```python
import torch

def _softmax(x, axis=-1):
    return torch.softmax(x, dim=axis)
def _gelu(x):
    return torch.nn.functional.gelu(x, approximate="tanh")
def _silu(x):
    return torch.nn.functional.silu(x)
def _sigmoid(x):
    return torch.sigmoid(x)
def _layernorm(x, axis=-1, eps=1e-5):
    m = x.mean(dim=axis, keepdim=True)
    v = x.var(dim=axis, keepdim=True, unbiased=False)
    return (x - m) / torch.sqrt(v + eps)
def _scatter_add(tgt, idx, src, axis=0):
    return tgt.clone().index_add_(axis, idx, src)
def _segment_sum(src, seg, n):
    out = torch.zeros((n,) + src.shape[1:], dtype=src.dtype)
    return out.index_add_(0, seg, src)
def _pad(x, pw):
    flat = tuple(v for pair in reversed(pw) for v in pair)
    return torch.nn.functional.pad(x, flat)

kernel_name = 'concat_heads__linear_attn_block__ssm_conv_h3__prompt'

def setup_inputs():

    _w = (lambda a: (lambda t: t.to(torch.bfloat16) if t.is_floating_point() else t)(torch.as_tensor(a)))
    def _A_setup():
        B, S, D = 1, 2048, 1024
        return {
            "x": _w((lambda *s: torch.randn(*s, dtype=torch.bfloat16) * 0.05)(B, S, D)),
            "wqkv": _w((lambda *s: torch.randn(*s, dtype=torch.bfloat16) * 1.6)(D, 3 * D)),
            "wo": _w((lambda *s: torch.randn(*s, dtype=torch.bfloat16) * 0.1)(D, D)),
        }
    _A_in = _A_setup()

    def _B_setup():
        B, S, D = 1, 2048, 1024
        ks = 4
        return {
            "q": _w((lambda *s: torch.randn(*s, dtype=torch.bfloat16) * 0.05)(B, S, D)),
            "k": _w((lambda *s: torch.randn(*s, dtype=torch.bfloat16) * 0.8)(B, S, D)),
            "v": _w((lambda *s: torch.randn(*s, dtype=torch.bfloat16) * 0.4)(B, S, D)),
            "shift_k": _w((lambda *s: torch.randn(*s, dtype=torch.bfloat16) * 0.8)(D, ks) * 0.5),
            "ssm_k": _w((lambda *s: torch.randn(*s, dtype=torch.bfloat16) * 3.2)(D, S) * (1.0 / S ** 0.5)),
            "ssm_D": _w((lambda *s: torch.randn(*s, dtype=torch.bfloat16) * 0.8)(D)),
        }
    _B_in = _B_setup()

    return {
        "A_x": _A_in["x"],
        "A_wqkv": _A_in["wqkv"],
        "A_wo": _A_in["wo"],
        "B_q": _B_in["q"],
        "B_k": _B_in["k"],
        "B_v": _B_in["v"],
        "B_shift_k": _B_in["shift_k"],
        "B_ssm_k": _B_in["ssm_k"],
        "B_ssm_D": _B_in["ssm_D"],
    }

def reference(A_x, A_wqkv, A_wo, B_q, B_k, B_v, B_shift_k, B_ssm_k, B_ssm_D):
    def _A_ref(x, wqkv, wo):
        B, S, D = x.shape
        H = 32; Dh = D // H
        qkv = (lambda x, *d: x.permute(*d))((x @ wqkv).reshape(B, S, 3, H, Dh), 2, 0, 3, 1, 4)
        q, k, v = qkv[0], qkv[1], qkv[2]
        phi = lambda t: torch.where(t > 0, t + 1, torch.exp(t)) + 1e-6
        pq, pk = phi(q), phi(k)
        kv = torch.einsum("bhsd,bhse->bhde", pk, v)
        z = torch.einsum("bhsd->bhd", pk)
        num = torch.einsum("bhqd,bhde->bhqe", pq, kv)
        den = torch.einsum("bhqd,bhd->bhq", pq, z)[..., None] + 1e-6
        o = num / den
        return (lambda x, *d: x.permute(*d))(o, 0, 2, 1, 3).reshape(B, S, D) @ wo

    def _B_ref(q, k, v, shift_k, ssm_k, ssm_D):
        B, S, D = q.shape
        ks = shift_k.shape[-1]
        k_pad = _pad(k, ((0, 0), (ks - 1, 0), (0, 0)))
        k_shift = torch.zeros_like(k)
        for t in range(ks):
            k_shift = k_shift + k_pad[:, t:t + S, :] * shift_k[:, ks - 1 - t][None, None, :]
        kv = k_shift * v
        L = 2 * S
        kv_pad = _pad(kv, ((0, 0), (0, S), (0, 0)))
        kf_pad = _pad(ssm_k, ((0, 0), (0, S)))
        kv_f = (lambda x, axes=(-2,-1): torch.fft.rfft2(x.float(), dim=axes))(kv_pad[:, None, :, :], axes=(1, 2))
        kf_f = (lambda x, axes=(-2,-1): torch.fft.rfft2(x.float(), dim=axes))(kf_pad[:, None, :], axes=(1, 2))
        kf_f = (lambda x, *d: x.permute(*d))(kf_f, 1, 2, 0)
        y_f = kv_f * kf_f[None, :, :, :]
        y = (lambda x, s, axes=(-2,-1): torch.fft.irfft2(x, s=s, dim=axes).to(torch.bfloat16))(y_f, (1, L), axes=(1, 2))[:, 0, :S, :]
        y = y + kv * ssm_D[None, None, :]
        return q * y

    a = _A_ref(A_x, A_wqkv, A_wo)
    b = _B_ref(B_q, B_k, B_v, B_shift_k, B_ssm_k, B_ssm_D)
    return torch.concatenate([a, b], axis=-1)
```

```python
def kernel_d(a, AMP, WS_ST):
    kA, iA, aggA, kB, iB, aggB, wsel, fac = AMP.split(",")
    kA, iA, kB, iB, wsel, fac = int(kA), int(iA), int(kB), int(iB), int(wsel), int(fac)
    a(f"""
.p2align 8
kd_kernel:
s_cmp_ge_u32 s2, 1
s_cbranch_scc1 Ld_exit
s_load_dwordx2 s[4:5], s[0:1], 88
s_waitcnt lgkmcnt(0)
s_add_u32 s4, s4, {WS_ST:#x}
s_addc_u32 s5, s5, 0
s_mov_b32 s6, 0x100000
s_mov_b32 s7, 0x20000
s_load_dword s16, s[4:5], 0
v_lshlrev_b32 v1, 5, v0
""")
    if wsel == 1: a("v_and_b32 v1, 0xffffff7f, v1")
    if wsel == 2: a("v_or_b32 v1, 0x80, v1")
    a(f"s_mov_b32 s17, {kA*65536 + iA*4}\ns_mov_b32 s18, {kB*65536 + iB*4}")
    for i in range(32):
        a(f"buffer_load_dword v{8+i}, v1, s[4:7], s17 offen\nbuffer_load_dword v{40+i}, v1, s[4:7], s18 offen\ns_add_u32 s17, s17, 2048\ns_add_u32 s18, s18, 2048")
        if i == 15: a("s_waitcnt vmcnt(0)")
    a("s_waitcnt vmcnt(0) lgkmcnt(0)\ns_sub_u32 s16, s16, 0x10000")
    for i in range(64): a(f"v_subrev_u32 v{8+i}, s16, v{8+i}")
    for i in range(1, 32):
        a(f"v_{aggA}_u32 v8, v8, v{8+i}\nv_{aggB}_u32 v40, v40, v{40+i}")
    a("s_nop 1\nv_readlane_b32 s20, v8, 0\nv_readlane_b32 s21, v40, 0")
    for l in range(1, 64):
        a(f"v_readlane_b32 s22, v8, {l}\nv_readlane_b32 s23, v40, {l}\ns_nop 3\ns_{aggA}_u32 s20, s20, s22\ns_{aggB}_u32 s21, s21, s23")
    a(f"""
s_memrealtime s[8:9]
s_waitcnt lgkmcnt(0)
s_sub_u32 s6, s21, s20
s_min_u32 s6, s6, 10000
s_mul_i32 s6, s6, {fac}
Ld_spin:
s_memrealtime s[10:11]
s_waitcnt lgkmcnt(0)
s_sub_u32 s12, s10, s8
s_cmp_lt_u32 s12, s6
s_cbranch_scc1 Ld_spin
Ld_exit:
s_endpgm
""")
```

```python
import sys, os
sys.path.insert(0, os.path.dirname(os.path.abspath(__file__)))
import kd
NAME = "concat_heads__linear_attn_block__ssm_conv_h3__prompt"
KN = NAME + "_kernel"
MB = 1 << 20
WS_UT, WS_KVP, WS_ZP, WS_FL, WS_O, WS_YT, WS_ST = 0, 8 * MB, 9 * MB, 9 * MB + 0x40000, 4 * MB, 0, 24 * MB
LOG2E, EPS = 0x3FB8AA3B, 0x358637BD
STAMP = "--stamp" in sys.argv
TRACE = "--trace" in sys.argv
def opt(name, default):
    for x in sys.argv:
        if x.startswith("--" + name + "="): return x.split("=", 1)[1]
    return default
FL_U, FL_P, FL_O, FL_Y = [WS_FL + k * 131072 for k in range(4)]
def FA(r, base, grp=2048):
    return f"s_lshr_b32 vcc_lo, s{r}, 6\ns_mul_i32 vcc_lo, vcc_lo, {grp-64}\ns_add_u32 s{r}, s{r}, vcc_lo\ns_add_u32 s{r}, s{r}, {base:#x}"
def FC(r, base, own, grp=2048):
    return FA(r, base, grp) + f"\ns_lshl_b32 vcc_lo, s{own}, 7\ns_add_u32 s{r}, s{r}, vcc_lo"
if opt("ysep", "0") == "1": WS_YT = 10 * MB
FL_KV = opt("kv", "")
FL_WO = opt("wo", "")
FL_XW = opt("xw", "")
FL_OUT = opt("outst", "sc1")
AMP = opt("amp", "")
KROT = opt("krot", "q8c")
ROT2 = opt("rot2", "0") == "1"
ROTW = opt("rotw", "1") == "1"
G2 = opt("g2", "")
OSC = "" if "nosc1" in G2 else "sc1"
DEPTH = int(opt("depth", "6"))
PSLEEP = opt("psleep", "0")

class A:
    def __init__(self): self.l = []
    def __call__(self, s):
        for x in s.strip("\n").split("\n"):
            x = x.strip()
            self.l.append(x if x.endswith(":") else "    " + x)
    jn = 0
    def stamp(self, i):
        J = opt("jitter", "")
        if J and i > 0 and getattr(self, "jon", False):
            n = self.jn; self.jn += 1
            self(f"""
s_cselect_b32 s101, 1, 0
s_memrealtime s[98:99]
s_waitcnt lgkmcnt(0)
s_lshr_b32 s100, s98, 2
s_xor_b32 s100, s100, s2
s_mul_i32 s100, s100, {2654435761 + 2*n + int(J)}
s_add_u32 s100, s100, s3
s_mul_i32 s100, s100, 40503
s_lshr_b32 s100, s100, 29
s_cmp_lt_u32 s100, 6
s_cbranch_scc1 L_j{n}
s_sleep 60
s_cmp_lt_u32 s100, 7
s_cbranch_scc1 L_j{n}
s_sleep 127
L_j{n}:
s_cmp_lg_u32 s101, 0
""")
        if STAMP: self(f"s_memrealtime s[{76+2*i}:{77+2*i}]")
    def end(self):
        if STAMP:
            self(f"""
s_memrealtime s[96:97]
s_mov_b64 exec, 1
v_lshrrev_b32 v1, 6, v0
s_waitcnt vmcnt(0) lgkmcnt(0)
s_memrealtime s[98:99]
s_mov_b32 s40, s26
s_mov_b32 s41, s27
s_mov_b32 s42, 0x2000000
s_mov_b32 s43, 0x20000
s_lshl_b32 s100, s2, 3
v_add_u32 v1, s100, v1
v_lshlrev_b32 v1, 5, v1
v_add_u32 v1, {WS_ST}, v1
v_add_u32 v2, 65536, v1
s_waitcnt lgkmcnt(0)
""")
            for i in range(12): self(f"v_mov_b32 v{4+i}, s{76+2*i}")
            self("""
buffer_store_dwordx4 v[4:7], v1, s[40:43], 0 offen
buffer_store_dwordx4 v[8:11], v1, s[40:43], 0 offen offset:16
buffer_store_dwordx4 v[12:15], v2, s[40:43], 0 offen
buffer_store_dwordx4 v[12:15], v2, s[40:43], 0 offen offset:16
""")
        self("s_endpgm")
    tn = 0
    def trace(self):
        if TRACE:
            self(f"s_memrealtime s[96:97]\ns_waitcnt lgkmcnt(0)\nv_writelane_b32 v252, s96, {self.tn}"); self.tn += 1
    def bar(self):
        self.trace(); self("s_barrier"); self.trace()
    def trace_out(self):
        if TRACE: self(f"""
s_lshl_b32 s96, s2, 10
s_add_u32 s96, s96, {WS_ST + 0x100000:#x}
v_lshlrev_b32 v253, 2, v0
v_subrev_u32 v253, 1024, v253
buffer_store_dword v252, v253, s[48:51], s96 offen
""")
    def text(self): return "\n".join(self.l) + "\n"

class VM:
    def __init__(self, a): self.a = a; self.q = []
    def issue(self, tag, n=1): self.q += [tag] * n; assert len(self.q) <= 63, len(self.q)
    def wait(self, tag):
        if tag not in self.q: return
        idx = max(i for i, t in enumerate(self.q) if t == tag)
        n = len(self.q) - 1 - idx
        self.q = self.q[idx + 1:]
        self.a(f"s_waitcnt vmcnt({n})")
    def drained(self): self.q = []

def vr(b, n=1): return f"v{b}" if n == 1 else f"v[{b}:{b+n-1}]"
def sr(b, n=1): return f"s{b}" if n == 1 else f"s[{b}:{b+n-1}]"
def srd(a, d, lo, nbytes):
    a(f"s_mov_b32 s{d}, s{lo}\ns_mov_b32 s{d+1}, s{lo+1}\ns_mov_b32 s{d+2}, {nbytes:#x}\ns_mov_b32 s{d+3}, 0x20000")
def srd_off(a, d, lo, off, nbytes):
    a(f"s_add_u32 s{d}, s{lo}, {off}\ns_addc_u32 s{d+1}, s{lo+1}, 0\ns_mov_b32 s{d+2}, {nbytes:#x}\ns_mov_b32 s{d+3}, 0x20000")
def mfma16(d, x, y, c=None):
    c = vr(d, 4) if c is None else c
    return f"v_mfma_f32_16x16x32_bf16 {vr(d,4)}, {vr(x,4)}, {vr(y,4)}, {c}"
def interleave(a, mf, others, per_gap=1):
    o = list(others)
    for m in mf:
        a(m)
        for _ in range(per_gap):
            if o: a(o.pop(0))
    for x in o: a(x)
def phi_pack(a, src, dst, n, t, sL, sE):
    for i in range(0, n, 8):
        for p in range(4): a(f"v_pk_mul_f32 {vr(t+2*p,2)}, {vr(src+i+2*p,2)}, {sr(sL,2)}")
        for p in range(8): a(f"v_exp_f32_e64 v{t+p}, v{t+p} clamp")
        for p in range(8): a(f"v_max_f32 v{src+i+p}, s{sE}, v{src+i+p}")
        for p in range(4): a(f"v_pk_add_f32 {vr(t+2*p,2)}, {vr(t+2*p,2)}, {vr(src+i+2*p,2)}")
        for p in range(4): a(f"v_cvt_pk_bf16_f32 v{dst+i//2+p}, v{t+2*p}, v{t+2*p+1}")
def phi_pack_np(a, src, dst, n, t, sL, sE):
    for i in range(0, n, 8):
        for p in range(8): a(f"v_mul_f32 v{t+p}, s{sL}, v{src+i+p}")
        for p in range(8): a(f"v_exp_f32_e64 v{t+p}, v{t+p} clamp")
        for p in range(8): a(f"v_max_f32 v{src+i+p}, s{sE}, v{src+i+p}")
        for p in range(8): a(f"v_add_f32 v{t+p}, v{t+p}, v{src+i+p}")
        for p in range(4): a(f"v_cvt_pk_bf16_f32 v{dst+i//2+p}, v{t+2*p}, v{t+2*p+1}")
def pack(a, src, dst, n):
    for i in range(n // 2): a(f"v_cvt_pk_bf16_f32 v{dst+i}, v{src+2*i}, v{src+2*i+1}")
def unpack(a, src, dst, ndw, smask):
    for i in range(ndw):
        a(f"v_lshlrev_b32 v{dst+2*i}, 16, v{src+i}\nv_and_b32 v{dst+2*i+1}, s{smask}, v{src+i}")

sX, sW, sWO, sQ, sK, sV, sSH, sH, sD, sOUT, sDBG, sWS = 4, 6, 8, 10, 12, 14, 16, 18, 20, 22, 24, 26
sx, sj, srb, shk, shq, sk0, sg_rb, sg_cb, sdb, ssb, sch, sEP = 28, 29, 30, 31, 32, 33, 34, 35, 36, 37, 38, 72
TOUCH = ""
_o = int(opt("wsoff", "0")) * MB
WSOFF = f"s_add_u32 s26, s26, {_o:#x}\ns_addc_u32 s27, s27, 0" if _o else "s_nop 0"
if opt("touch", "0") == "1":
    t = ["s_mov_b32 s52, 0x200000", "s_mov_b32 s53, 0x400000", "s_mov_b32 s54, 0x600000", "s_mov_b32 s55, 0x800000"]
    for base, n in ((sWS, 5), (sOUT, 4), (sQ, 2), (sH, 2), (sWO, 1)):
        for i in range(n): t.append(f"s_load_dword s46, s[{base}:{base+1}], {['0','s52','s53','s54','s55'][i]}")
    TOUCH = "\n".join(t)
STG = 40960
CPY = 4160
UCH = 2 * CPY
U0 = 98304
XCH = U0 + 4 * UCH
HB = XCH + 8192
HP = 2304
HCH = 2 * HP
KVL = HB + 4 * HCH
ZX = KVL + 4096
SYNC = ZX + 512
Y_XC, Y_CW, Y_C2, Y_CU, Y_CY, Y_CD, Y_PQ, Y_EP, Y_W1, Y_CO, Y_UOK, Y_YOK, Y_UB = 0, 96, 20, 28, 32, 36, 40, 56, 60, 64, 72, 76, 80
Y_WM = Y_W1
LDS = 163840


def spoll(a, lab, soff, sc):
    if opt("poll", "s") == "v":
        a(f"v_and_b32 v254, 15, v4\nv_lshlrev_b32 v254, 2, v254")
        vpoll(a, lab, 254, soff, 255, sc); return
    a(f"""
s_mov_b32 s{sc}, 0
s_branch {lab}_go
{lab}:
s_sleep {PSLEEP}
{lab}_go:
s_load_dwordx16 s[4:19], s[{sWS}:{sWS+1}], s{soff} glc
s_add_u32 s{sc}, s{sc}, 1
s_cmp_gt_u32 s{sc}, 0x8000
s_cbranch_scc1 {lab}_done
s_waitcnt lgkmcnt(0)
""")
    for i in range(8): a(f"s_cmp_eq_u64 s[{4+2*i}:{5+2*i}], s[{sEP}:{sEP+1}]\ns_cbranch_scc0 {lab}")
    a(f"{lab}_done:\ns_waitcnt lgkmcnt(0)")
def vpoll(a, lab, v16x4, soff, vt, sc):
    a(f"""
s_mov_b32 s{sc}, 0
{lab}:
buffer_load_dword v{vt}, v{v16x4}, s[48:51], s{soff} offen sc1
s_waitcnt vmcnt(0)
v_cmp_eq_u32 vcc, s{sEP}, v{vt}
s_add_u32 s{sc}, s{sc}, 1
s_nop 2
s_cmp_eq_u64 vcc, -1
s_cbranch_scc1 {lab}_done
s_sleep {PSLEEP}
s_cmp_lt_u32 s{sc}, 0x4000
s_cbranch_scc1 {lab}
{lab}_done:
""")
def lead_poll(a, lab, soff, sc, st, vY, off, vOne, vT):
    a(f"s_mov_b32 s{sc}, 0\ns_cmp_eq_u32 s3, 0\ns_cbranch_scc0 {lab}_f")
    spoll(a, lab, soff, sc)
    a(f"ds_write_b32 v{vY}, v{vOne} offset:{off}\ns_branch {lab}_f_done")
    a(f"{lab}_f:"); a.l.pop()
    lspin(a, lab + "_f", vY, off, "1", vT, sc, st, init=False, slp=3)
def lspin(a, lab, vaddr, off, target, vt, sc, st, init=True, slp=1):
    if init: a(f"s_mov_b32 s{sc}, 0")
    a(f"""
{lab}:
ds_read_b32 v{vt}, v{vaddr} offset:{off}
s_add_u32 s{sc}, s{sc}, 1
s_waitcnt lgkmcnt(0)
v_readfirstlane_b32 s{st}, v{vt}
s_cmp_gt_u32 s{sc}, 0x40000
s_cbranch_scc1 {lab}_done
s_cmp_ge_u32 s{st}, {target}
s_cbranch_scc1 {lab}_done
s_sleep {slp}
s_branch {lab}
{lab}_done:
""")
def ladd(a, vaddr, off, vone):
    a(f"s_mov_b64 exec, 1\nds_add_u32 v{vaddr}, v{vone} offset:{off}\ns_mov_b64 exec, -1")
def flag_store(a, srdn, soff, vep, vl128, mask="0xffff"):
    a(f"s_mov_b64 exec, {mask}\nbuffer_store_dword v{vep}, v{vl128}, s[{srdn}:{srdn+3}], s{soff} offen sc1\ns_mov_b64 exec, -1")
def wg_flag(a, lab, vaddr, off, vone, vt, st, srdn, soff, vep, vzero):
    a(f"""
s_mov_b64 exec, 1
ds_add_rtn_u32 v{vt}, v{vaddr}, v{vone} offset:{off}
s_waitcnt lgkmcnt(0)
v_readfirstlane_b32 s{st}, v{vt}
s_nop 3
s_cmp_eq_u32 s{st}, 3
s_cbranch_scc0 {lab}
buffer_store_dword v{vep}, v{vzero}, s[{srdn}:{srdn+3}], s{soff} offen sc1
{lab}:
s_mov_b64 exec, -1
""")

def ids2(a):
    a(f"""
s_and_b32 s{sg_rb}, s{sx}, 3
s_lshl_b32 s{sg_rb}, s{sg_rb}, 2
s_and_b32 vcc_lo, s{sj}, 3
s_add_u32 s{sg_rb}, s{sg_rb}, vcc_lo
s_lshr_b32 s{sg_cb}, s{sx}, 2
s_lshl_b32 s{sg_cb}, s{sg_cb}, 3
s_lshr_b32 vcc_lo, s{sj}, 2
s_add_u32 s{sg_cb}, s{sg_cb}, vcc_lo
s_lshl_b32 s39, vcc_lo, 2
s_and_b32 s{sdb}, s{sj}, 15
s_lshr_b32 s{ssb}, s{sj}, 4
s_lshl_b32 vcc_lo, s{sx}, 1
s_add_u32 s{ssb}, s{ssb}, vcc_lo
s_lshl_b32 s{sch}, s{sx}, 5
s_add_u32 s{sch}, s{sch}, s{sj}
s_lshl_b32 s{sch}, s{sch}, 2
""")
    a(f"s_mul_i32 s39, s{sg_rb}, 11\ns_lshr_b32 s39, s39, 5\ns_mul_i32 s39, s39, 3\ns_sub_u32 s39, s{sg_rb}, s39")

def kernel(a):
    a(f"""
{KN}:
s_cmp_ge_u32 s2, 256
s_cbranch_scc1 L_exit
s_load_dwordx16 s[4:19], s[0:1], 0
s_load_dwordx8 s[20:27], s[0:1], 64
s_getpc_b64 s[48:49]
L_pc:
s_and_b32 s45, s2, 24
s_lshl_b32 s45, s45, 4
v_lshl_add_u32 v2, v0, 9, s45
v_cmp_gt_u32 vcc, L_code_end-L_pc-4, v2
s_and_saveexec_b64 s[50:51], vcc
s_cbranch_execz L_pf
global_load_dword v252, v2, s[48:49]
L_pf:
s_mov_b64 exec, s[50:51]
""")
    for i in range(10): a.stamp(i)
    a(f"""
v_lshrrev_b32 v1, 6, v0
v_and_b32 v4, 63, v0
v_readfirstlane_b32 s3, v1
v_lshlrev_b32 v5, 4, v4
s_and_b32 s{sx}, s2, 7
s_lshr_b32 s{sj}, s2, 3
s_and_b32 s{srb}, s{sx}, 1
s_lshl_b32 s{srb}, s{srb}, 3
s_and_b32 s40, s{sj}, 7
s_add_u32 s{srb}, s{srb}, s40
s_lshr_b32 s40, s{sx}, 1
s_lshl_b32 s41, s40, 2
s_lshr_b32 s42, s{sj}, 3
s_add_u32 s{shk}, s41, s42
s_add_u32 s42, s42, 1
s_and_b32 s42, s42, 3
s_add_u32 s{shq}, s41, s42
""")
    if KROT == "q8":
        a(f"""
s_lshl_b32 s{sk0}, s40, 1
s_and_b32 s41, s{shk}, 1
s_add_u32 s{sk0}, s{sk0}, s41
s_lshl_b32 s41, s{sx}, 2
s_add_u32 s{sk0}, s{sk0}, s41
s_and_b32 s41, s{srb}, 3
s_add_u32 s{sk0}, s{sk0}, s41
s_and_b32 s{sk0}, s{sk0}, 7
s_lshl_b32 s{sk0}, s{sk0}, 1
""")
    elif KROT in ("q8b", "q8c", "q8d"):
        if KROT == "q8c": a(f"s_and_b32 s41, s{srb}, 1\ns_lshl_b32 s{sk0}, s41, 1\ns_and_b32 s41, s{srb}, 2\ns_lshl_b32 s41, s41, 2\ns_add_u32 s{sk0}, s{sk0}, s41\ns_and_b32 s41, s{sx}, 1\ns_lshl_b32 s41, s41, 2\ns_add_u32 s{sk0}, s{sk0}, s41")
        else: a(f"s_and_b32 s41, s{srb}, 3\ns_lshl_b32 s{sk0}, s41, 2\ns_and_b32 s41, s{sx}, 1\ns_lshl_b32 s41, s41, 1\ns_add_u32 s{sk0}, s{sk0}, s41")
        if KROT == "q8b": a(f"s_and_b32 s41, s{shk}, 1\ns_lshl_b32 s41, s41, 3\ns_add_u32 s{sk0}, s{sk0}, s41\ns_lshl_b32 s41, s40, 1\ns_add_u32 s{sk0}, s{sk0}, s41")
        else: a(f"s_and_b32 s41, s{shk}, 1\ns_lshl_b32 s41, s41, 1\ns_add_u32 s{sk0}, s{sk0}, s41\ns_lshl_b32 s41, s40, 2\ns_add_u32 s{sk0}, s{sk0}, s41")
        a(f"s_and_b32 s{sk0}, s{sk0}, 15")
    elif KROT == "q4c":
        a(f"""
s_and_b32 s41, s{sx}, 1
s_add_u32 s{sk0}, s40, s41
s_lshl_b32 s41, s{srb}, 1
s_add_u32 s{sk0}, s{sk0}, s41
s_and_b32 s{sk0}, s{sk0}, 3
s_lshl_b32 s{sk0}, s{sk0}, 2
""")
        SL = opt("sl", "0")
        if SL != "0":
            a(f"s_and_b32 s41, s{shk}, {7 if SL == '1' else 6}\ns_cmp_eq_u32 s41, {3 if SL == '1' else 2}\ns_cselect_b32 s41, 6, 0\ns_and_b32 s41, s41, s{srb}\ns_sub_u32 s{sk0}, s{sk0}, s41\ns_and_b32 s{sk0}, s{sk0}, 15")
    elif KROT == "q4":
        a(f"""
s_lshl_b32 s41, s{sx}, 1
s_add_u32 s{sk0}, s40, s41
s_and_b32 s41, s{srb}, 1
s_add_u32 s{sk0}, s{sk0}, s41
s_and_b32 s{sk0}, s{sk0}, 3
s_lshl_b32 s{sk0}, s{sk0}, 2
""")
    elif KROT == "q2":
        a(f"s_xor_b32 s41, s{sx}, s40\ns_and_b32 s41, s41, 1\ns_lshl_b32 s{sk0}, s41, 3")
    elif KROT == "q3":
        a(f"""
s_and_b32 s41, s{sx}, 1
s_lshl_b32 s41, s41, 1
s_add_u32 s{sk0}, s40, s41
s_and_b32 s41, s{srb}, 1
s_add_u32 s{sk0}, s{sk0}, s41
s_mul_i32 s41, s{sk0}, 11
s_lshr_b32 s41, s41, 5
s_mul_i32 s41, s41, 3
s_sub_u32 s{sk0}, s{sk0}, s41
s_mul_i32 s{sk0}, s{sk0}, 11
s_lshr_b32 s{sk0}, s{sk0}, 1
""")
    else: a(f"s_mov_b32 s{sk0}, 0")
    a.jon = True
    a("s_cmp_lt_u32 s3, 4\ns_cbranch_scc1 L_comp")
    aux(a)
    compute(a)
    a("L_exit:\ns_endpgm\nL_code_end:")

def compute(a):
    vAb, vA, vBb, vB = 8, 10, 12, 14
    vU, vH, vE, vS, vY, vUW = 16, 17, 18, 19, 20, 21
    X, Y, ACC, CACC = 24, 64, 104, 200
    vOne, vZero, vEp, vT = 232, 233, 234, 235
    QT = lambda dt, mt: ACC + 4 * (mt * 2 + dt)
    KK = lambda mt, nt: ACC + 32 + 4 * ((nt * 2 + (mt >> 1)) * 2 + (mt & 1))
    VV = lambda mt, nt: ACC + 64 + 4 * ((nt * 2 + (mt >> 1)) * 2 + (mt & 1))
    a(f"""
L_comp:
""")
    ids2(a)
    a(f"""
s_and_b32 s40, s3, 1
s_lshr_b32 s41, s3, 1
v_and_b32 v1, 15, v4
v_lshrrev_b32 v2, 4, v4
v_bfe_u32 v3, v4, 1, 3
v_xor_b32 v3, v2, v3
v_lshlrev_b32 v3, 4, v3
v_lshl_add_u32 v3, v1, 7, v3
s_lshl_b32 s45, s40, 13
v_add_u32 v{vAb}, s45, v3
v_xor_b32 v{vAb+1}, 64, v{vAb}
v_bfe_u32 v22, v4, 2, 2
v_lshl_add_u32 v3, v2, 3, v22
v_lshlrev_b32 v3, 7, v3
v_and_b32 v7, 3, v4
v_lshlrev_b32 v6, 3, v7
s_lshl_b32 s45, s41, 6
v_add_u32 v6, s45, v6
v_bfe_u32 v7, v4, 3, 1
v_lshlrev_b32 v7, 6, v7
v_xor_b32 v6, v6, v7
v_bfe_u32 v23, v4, 4, 1
v_lshlrev_b32 v7, 5, v23
v_xor_b32 v6, v6, v7
v_add_u32 v3, v3, v6
v_add_u32 v{vBb}, 0x4000, v3
v_xor_b32 v{vBb+1}, 32, v{vBb}
v_mov_b32 v{vB}, v{vBb}
v_mov_b32 v{vB+1}, v{vBb+1}
v_mov_b32 v{vA}, v{vAb}
v_mov_b32 v{vA+1}, v{vAb+1}
s_mul_i32 s42, s3, {UCH}
s_add_u32 s42, s42, {U0}
s_mul_i32 s43, s3, {HCH}
s_add_u32 s43, s43, {HB}
s_add_u32 s44, s{sch}, s3
s_movk_i32 s45, {CPY}
v_add_u32 v3, 1, v1
v_and_b32 v6, 1, v3
v_add_u32 v7, v6, v1
v_mul_u32_u24 v3, s45, v6
v_lshl_add_u32 v3, v2, 5, v3
v_lshlrev_b32 v7, 1, v7
v_sub_u32 v3, v3, v7
s_add_u32 s45, s42, {4014 - 512 - 16}
v_add_u32 v{vU}, s45, v3
v_add_u32 v3, v1, v2
s_add_u32 s45, s43, 208
v_lshlrev_b32 v3, 4, v3
v_add_u32 v{vH}, s45, v3
v_lshlrev_b32 v3, 5, v1
v_lshl_add_u32 v6, v2, 3, v3
s_add_u32 s45, s42, {4088 - 3584}
v_sub_u32 v{vE}, s45, v6
v_lshl_add_u32 v3, v23, 9, v3
v_lshrrev_b32 v6, 5, v4
v_lshl_add_u32 v{vS}, v6, 4, v3
v_add_u32 v{vUW}, s42, v5
v_lshlrev_b32 v254, 7, v4
s_movk_i32 s45, {CPY}
v_and_b32 v253, 1, v22
v_mul_u32_u24 v253, s45, v253
v_and_b32 v7, 3, v4
v_lshl_add_u32 v253, v7, 4, v253
v_add_u32 v253, s42, v253
v_mov_b32 v{vY}, {SYNC}
v_mov_b32 v{vOne}, 1
v_mov_b32 v{vZero}, 0
v_lshlrev_b32 v6, 2, v4
v_add_u32 v6, {SYNC}, v6
ds_write_b32 v6, v{vZero}
s_and_b32 s45, s44, 0xfffffffe
s_lshl_b32 s45, s45, 1
""")
    for i in range(64): a(f"v_mov_b64 {vr(ACC+2*i,2)}, 0")
    a(f"""
s_waitcnt lgkmcnt(0)
{WSOFF}
s_load_dword s47, s[{sD}:{sD+1}], s45
{TOUCH}
s_mov_b32 s52, 0
s_mov_b32 s53, 0
""")
    srd(a, 60, sWS, 32 * MB)
    a(f"s_lshl_b32 s45, s44, 12")
    srd_off(a, 64, sWS, "s45", 4096)
    srd(a, 68, sOUT, 8 * MB)
    a("s_barrier")
    a.stamp(1)
    a(f"global_load_dword v{vEp}, v{vZero}, s[{sDBG}:{sDBG+1}] sc1\ns_lshl_b32 s48, s44, 7\ns_add_u32 s48, s48, {FL_U:#x}")
    def reads(S, k2):
        ra = [f"ds_read_b128 {vr(S+4*mt,4)}, v{vA+k2} offset:{2048*mt}" for mt in range(4)]
        rb = [f"ds_read_b64_tr_b16 {vr(S+16+4*n+2*i2,2)}, v{vB+(n&1)} offset:{(n//2)*8192+k2*4096+i2*512}" for n in range(6) for i2 in range(2)]
        return [ra[0]] + rb + ra[1:]
    def mf(S):
        r = []
        for mt in range(4):
            Am = S + 4 * mt
            r += [mfma16(KK(mt, n), Am, S + 24 + 4 * n) for n in range(2)]
            r += [mfma16(VV(mt, n), Am, S + 32 + 4 * n) for n in range(2)]
            r += [mfma16(QT(d, mt), S + 16 + 4 * d, Am) for d in range(2)]
        return r
    for r in reads(X, 0): a(r)
    NA = int(opt("na", "0"))
    def stage(lab, last, defer):
        a(f"""
{lab}:
s_add_u32 s52, s52, {STG}
s_cmp_eq_u32 s52, {3*STG}
s_cselect_b32 s52, 0, s52
v_add_u32 v{vA}, s52, v{vAb}
s_waitcnt lgkmcnt(0)
""")
        interleave(a, mf(X), reads(Y, 1) + [f"v_add_u32 v{vA+1}, s52, v{vAb+1}", f"v_add_u32 v{vB}, s52, v{vBb}", f"v_add_u32 v{vB+1}, s52, v{vBb+1}"], 0 if defer == 2 else 1)
        a("s_waitcnt lgkmcnt(0)")
        m = mf(Y)
        tail = ["s_add_u32 s53, s53, 1", f"s_cmp_lt_u32 s53, {last}"]
        if defer:
            k = int(opt("nab", "1"))
            for x in m[:k]: a(x)
            a("s_barrier")
            for x in m[k:]: a(x)
            for x in reads(X, 0) + tail: a(x)
        else:
            a(m[0]); a("s_barrier")
            interleave(a, m[1:], reads(X, 0) + tail)
        a(f"s_cbranch_scc1 {lab}")
    NA2 = int(opt("na2", "0"))
    if NA2: stage("L_loop00", NA2, 2)
    if NA > NA2: stage("L_loop0", NA, 1)
    stage("L_loop1", 16, 0)
    a.stamp(2)
    if opt("lprio", "0") != "0": a("s_setprio 0")
    PK, PV, ONES, KV, Z, T, PQ, R = 24, 40, 56, 64, 80, 88, 168, 184
    a(f"""
s_mov_b32 s54, {LOG2E:#x}
s_mov_b32 s55, {LOG2E:#x}
s_mov_b32 s56, {EPS:#x}
s_waitcnt vmcnt(0) lgkmcnt(0)
s_setprio {opt('cprio', '2')}
v_mov_b32 v{ONES}, 0x3f803f80
v_mov_b32 v{ONES+1}, 0x3f803f80
v_mov_b32 v{ONES+2}, 0x3f803f80
v_mov_b32 v{ONES+3}, 0x3f803f80
""")
    for dt in range(2):
        phi_pack(a, ACC + 32 + 16 * dt, PK + 8 * dt, 16, T, 54, 56)
        if dt == 0: pack(a, ACC + 64, PV, 32)
        a("s_nop 1")
        for p in range(2):
            c = "0" if p == 0 else None
            for et in range(2): a(mfma16(KV + 4 * (et * 2 + dt), PK + 8 * dt + 4 * p, PV + 8 * et + 4 * p, c))
            a(mfma16(Z + 4 * dt, PK + 8 * dt + 4 * p, ONES, c))
    a(f"""
s_lshl_b32 s57, s3, 11
s_add_u32 s57, s57, {XCH}
v_add_u32 v6, s57, v5
v_xor_b32 v7, 2048, v6
s_lshl_b32 s57, s3, 7
s_add_u32 s57, s57, {ZX}
v_and_b32 v3, 0x30, v4
v_add_u32 v8, s57, v3
v_xor_b32 v9, 128, v8
s_lshl_b32 s57, s3, 2
v_add_u32 v10, s57, v{vY}
v_xor_b32 v11, 4, v10
s_cmp_eq_u32 s40, 0
s_cbranch_scc1 L_x0
""")
    for i in range(8): a(f"v_swap_b32 v{KV+i}, v{KV+8+i}")
    a("L_x0:")
    a(f"ds_write_b128 v6, {vr(KV+8,4)}\nds_write_b128 v6, {vr(KV+12,4)} offset:1024")
    a(f"ds_write_b128 v8, {vr(Z,4)}\nds_write_b128 v8, {vr(Z+4,4)} offset:64")
    a(f"ds_write_b32 v10, v{vOne} offset:{Y_XC}")
    a(f"""
s_lshl_b32 s57, s{shk}, 2
s_add_u32 s57, s57, s3
s_lshl_b32 s57, s57, 4
s_add_u32 s57, s57, s{srb}
s_lshl_b32 s58, s57, 10
s_add_u32 s58, s58, {WS_KVP:#x}
s_lshr_b32 s59, s57, 4
s_lshl_b32 s59, s59, 11
s_lshl_b32 s45, s{srb}, 4
s_add_u32 s59, s59, s45
s_add_u32 s59, s59, {WS_ZP:#x}
s_lshl_b32 s57, s57, 2
{FA(57, FL_P)}
""")
    a(f"s_lshl_b32 s45, s3, 13\ns_add_u32 s45, s45, 4096\nv_add_u32 v6, s45, v5")
    lspin(a, "L_xspin", 11, Y_XC, "1", vT, 45, 46)
    a(f"ds_read_b128 {vr(R,4)}, v7\nds_read_b128 {vr(R+4,4)}, v7 offset:1024\nds_read_b128 {vr(R+8,4)}, v9\nds_read_b128 {vr(R+12,4)}, v9 offset:64")
    a("s_waitcnt lgkmcnt(2)")
    for i in range(4): a(f"v_pk_add_f32 {vr(KV+2*i,2)}, {vr(KV+2*i,2)}, {vr(R+2*i,2)}")
    pack(a, KV, KV + 8, 8)
    a(f"buffer_store_dwordx4 {vr(KV+8,4)}, v5, s[60:63], s58 offen sc1")
    a("s_waitcnt lgkmcnt(0)")
    for i in range(4): a(f"v_pk_add_f32 {vr(Z+2*i,2)}, {vr(Z+2*i,2)}, {vr(R+8+2*i,2)}")
    a("s_mov_b32 exec_lo, 0x10001\ns_mov_b32 exec_hi, 0x10001")
    a(f"buffer_store_dwordx4 {vr(Z,4)}, v5, s[60:63], s59 offen sc1\nbuffer_store_dwordx4 {vr(Z+4,4)}, v5, s[60:63], s59 offen offset:1024 sc1")
    a("s_mov_b64 exec, -1\ns_setprio 0")
    a.stamp(3)
    for mt in range(4):
        phi_pack(a, ACC + 8 * mt, PQ + 4 * mt, 8, T, 54, 56)
        a(f"ds_write_b128 v6, {vr(PQ+4*mt,4)} offset:{1024*mt}")
        if mt == 2:
            a(f"""
s_mov_b32 s45, 0
L_cep:
s_waitcnt vmcnt(0)
v_readfirstlane_b32 s{sEP}, v{vEp}
s_add_u32 s45, s45, 1
s_cmp_gt_u32 s45, 0x4000
s_cbranch_scc1 L_cepok
s_cmp_lg_u32 s{sEP}, 0
s_cbranch_scc1 L_cepok
global_load_dword v{vEp}, v{vZero}, s[{sDBG}:{sDBG+1}] sc1
s_branch L_cep
L_cepok:
s_mov_b32 s{sEP+1}, s{sEP}
""")
            flag_store(a, 60, 57, vEp, 254)
    a(f"ds_write_b32 v10, v{vOne} offset:{Y_PQ}")
    a(f"ds_write_b128 v253, v[{CACC}:{CACC+3}] offset:4096")
    a.stamp(4)
    lspin(a, "L_ubspin", 10, Y_UB, "1", vT, 45, 46)
    VU = [vU, 12, 13, 14]
    for i in range(1, 4): a(f"v_subrev_u32 v{VU[i]}, {1024*i}, v{vU}")
    a("s_waitcnt lgkmcnt(0)")
    a.stamp(5)
    P, Qs = 24, 88
    def creads(S, rho):
        r = []
        for i in range(8):
            o0 = 128 * (1 - i % 2) + 4 * (1 - rho)
            r.append(f"ds_read2_b32 {vr(S+4*i,2)}, v{VU[i//2]} offset0:{o0} offset1:{o0+1}")
            r.append(f"ds_read2_b32 {vr(S+4*i+2,2)}, v{VU[i//2]} offset0:{o0+2} offset1:{o0+3}")
            r.append(f"ds_read_b128 {vr(S+32+4*i,4)}, v{vH} offset:{256*i+(HP if rho == 0 else 0)}")
        return r
    def cmf(S):
        return [mfma16(CACC + 4 * (x + y), S + 4 * x, S + 32 + 4 * y) for x in range(8) for y in range(8 - x)]
    for r in creads(P, 0): a(r)
    a("s_mov_b32 s53, 0\nL_cloop:\ns_waitcnt lgkmcnt(0)")
    interleave(a, cmf(P), creads(Qs, 1) + [f"v_subrev_u32 v{x}, 128, v{x}" for x in VU] + [f"v_subrev_u32 v{vH}, 64, v{vH}"])
    a("s_waitcnt lgkmcnt(0)")
    interleave(a, cmf(Qs), creads(P, 0) + ["s_add_u32 s53, s53, 1", "s_cmp_lt_u32 s53, 4"])
    a("s_cbranch_scc1 L_cloop")
    a.stamp(6)
    UU, T = 152, 168
    OF, WX, WY, C, PO = 24, 88, 104, 120, 172
    vWb, vWA, vWB = 236, 8, 244
    for t in range(8): a(f"ds_read_b64 {vr(UU+2*t,2)}, v{vE} offset:{512*(7-t)}")
    ladd(a, vY, Y_CD, vOne)
    a(f"s_lshl_b32 s57, s41, 2\nv_add_u32 v12, s57, v{vY}\nds_read_b32 v13, v{vY} offset:{Y_WM}\nds_read_b32 v{vT}, v12 offset:{Y_CO}")
    a(f"""
s_lshl_b32 s59, s{sg_rb}, 3
s_lshl_b32 s45, s3, 1
s_add_u32 s59, s59, s45
s_lshl_b32 s45, s59, 15
s_add_u32 s45, s45, {WS_O:#x}
v_add_u32 v242, 0x8000, v5
s_mov_b32 s51, 0x55555555
""")
    srd_off(a, 64, sWS, "s45", 65536 if "noload" not in G2 else 0)
    a(f"""
s_waitcnt lgkmcnt(0)
v_and_b32 v13, v13, v{vT}
s_mov_b32 s54, 0
v_readfirstlane_b32 s50, v13
s_nop 3
""")
    def yepi():
        a(f"""
s_bitcmp1_b32 s44, 0
s_cselect_b32 s57, 0, 16
s_lshl_b32 s47, s47, s57
s_and_b32 s47, s47, 0xffff0000
s_mov_b32 s58, 0xffff0000
s_lshl_b32 s46, s44, 12
s_add_u32 s46, s46, {WS_YT:#x}
""")
        for t in range(8):
            a(f"v_and_b32 v{T}, s58, v{UU+2*t+1}\nv_lshlrev_b32 v{T+1}, 16, v{UU+2*t+1}")
            a(f"v_and_b32 v{T+2}, s58, v{UU+2*t}\nv_lshlrev_b32 v{T+3}, 16, v{UU+2*t}")
            for i in range(4): a(f"v_fmac_f32 v{CACC+4*t+i}, s47, v{T+i}")
            a(f"v_cvt_pk_bf16_f32 v{UU+2*t}, v{CACC+4*t}, v{CACC+4*t+1}")
            a(f"v_cvt_pk_bf16_f32 v{UU+2*t+1}, v{CACC+4*t+2}, v{CACC+4*t+3}")
        a("s_nop 1")
        for t in range(0, 8, 2):
            a(f"v_permlane16_swap_b32 v{UU+2*t}, v{UU+2*t+2}\nv_permlane16_swap_b32 v{UU+2*t+1}, v{UU+2*t+3}")
        for t in range(0, 8, 2): a(f"buffer_store_dwordx4 {vr(UU+2*t,4)}, v{vS}, s[60:63], s46 offen offset:{512*t} sc1")
    selno = [0]
    def select(slot):
        n = selno[0]; selno[0] += 1
        a(f"""
s_cmp_lg_u32 s50, 0
s_cbranch_scc1 L_sel{n}_ok
s_mov_b32 s45, 0
s_cmp_lg_u32 s51, 0
s_cbranch_scc1 L_sel{n}
s_mov_b32 s66, 0
s_mov_b32 s50, 0x55555555
s_branch L_sel{n}_ok
L_sel{n}:
ds_read_b32 v{vT}, v12 offset:{Y_CO}
ds_read_b32 v13, v{vY} offset:{Y_WM}
s_add_u32 s45, s45, 1
s_waitcnt lgkmcnt(0)
v_and_b32 v13, v13, v{vT}
s_cmp_gt_u32 s45, 0x40000
s_cselect_b32 s46, -1, 0
v_readfirstlane_b32 s50, v13
s_nop 3
s_or_b32 s50, s50, s46
s_and_b32 s50, s50, s51
s_cbranch_scc1 L_sel{n}_ok
s_cmp_lg_u32 s54, 1
s_cbranch_scc1 L_sel{n}_s
s_waitcnt vmcnt(0)
s_mov_b32 s54, 2
""")
        ladd(a, vY, Y_CY, vOne)
        a(f"L_sel{n}_s:\ns_sleep 1\ns_branch L_sel{n}\nL_sel{n}_ok:")
        return [f"s_ff1_i32_b32 s46, s50", "s_bitset0_b32 s50, s46", "s_lshl_b32 s48, s46, 10", "s_bitset0_b32 s51, s46", f"s_lshl_b32 s{4+slot}, s46, 12"]
    def oload(slot):
        return [f"buffer_load_dwordx4 {vr(OF+16*slot+8*hh+4*rt,4)}, v{[5,242][rt]}, s[64:67], s48 offen offset:{1024*hh} {OSC}" for hh in range(2) for rt in range(2)]
    def wreads(S, hh, vw):
        return [f"ds_read_b64_tr_b16 {vr(S+4*ct+2*i2,2)}, v{vw+ct} offset:{hh*4096+i2*2048}" for ct in range(4) for i2 in range(2)]
    def wset(slot, vw): return [f"v_add_u32 v{vw+i}, s{4+slot}, v{vWb+i}" for i in range(4)]
    a(f"s_bcnt1_i32_b32 s46, s50\ns_cmp_ge_u32 s46, {3 if opt('fastp', '1') == '1' else 99}\ns_cbranch_scc1 L_fast\nL_yepi:")
    yepi()
    a("s_cmp_eq_u32 s54, 3\ns_mov_b32 s54, 1\ns_cbranch_scc1 L_go\nL_fast:")
    for sl in range(3):
        for x in select(sl): a(x)
        if sl == 0: a.stamp(7)
        for x in oload(sl): a(x)
    a("s_cmp_eq_u32 s54, 0\ns_cbranch_scc0 L_go\ns_mov_b32 s54, 3\ns_branch L_yepi\nL_go:")
    a(f"""
v_lshrrev_b32 v6, 2, v4
v_lshlrev_b32 v6, 7, v6
v_and_b32 v7, 3, v4
v_lshl_add_u32 v6, v7, 3, v6
v_bfe_u32 v7, v4, 3, 1
v_lshl_add_u32 v6, v7, 6, v6
v_lshl_add_u32 v{vWb}, v23, 5, v6
v_xor_b32 v{vWb+1}, 32, v{vWb}
v_xor_b32 v{vWb+2}, 64, v{vWb}
v_xor_b32 v{vWb+3}, 0x60, v{vWb}
""")
    for x in wset(0, vWA): a(x)
    for r in wreads(WX, 0, vWA): a(r)
    a(f"""
s_mul_i32 s57, s3, 2304
s_add_u32 s57, s57, {XCH}
s_cmp_eq_u32 s3, 3
s_cselect_b32 s57, {KVL}, s57
s_movk_i32 s56, 144
v_and_b32 v6, 15, v4
v_mul_u32_u24 v6, s56, v6
v_lshl_add_u32 v6, v23, 5, v6
v_lshrrev_b32 v7, 5, v4
v_lshl_add_u32 v6, v7, 4, v6
v_add_u32 v14, s57, v6
v_lshrrev_b32 v6, 3, v4
v_and_b32 v7, 7, v4
v_lshlrev_b32 v7, 4, v7
v_lshl_add_u32 v16, v6, 12, v7
v_mul_u32_u24 v6, s56, v6
v_add3_u32 v15, v6, v7, s57
s_mov_b32 s53, 0
""")
    for i in range(16): a(f"v_mov_b64 {vr(C+2*i,2)}, 0")
    a("L_gloop:")
    for u in range(4):
        cur, nxt = (vWA, vWB) if u % 2 == 0 else (vWB, vWA)
        sel = select((u + 3) % 4)
        ol = oload((u + 3) % 4)
        a("s_waitcnt vmcnt(10) lgkmcnt(0)")
        if TRACE: a("s_memrealtime s[100:101]")
        m = [mfma16(C + 4 * (rt * 4 + ct), WX + 4 * ct, OF + 16 * u + 4 * rt) for rt in range(2) for ct in range(4)]
        interleave(a, m, wreads(WY, 1, cur) + wset((u + 1) % 4, nxt) + sel[:4], 2)
        a("s_waitcnt vmcnt(8) lgkmcnt(0)")
        if TRACE: a(f"s_lshl_b32 m0, s53, 2\ns_add_u32 m0, m0, {u}\ns_nop 0\nv_writelane_b32 v252, s100, m0")
        m = [mfma16(C + 4 * (rt * 4 + ct), WY + 4 * ct, OF + 16 * u + 8 + 4 * rt) for rt in range(2) for ct in range(4)]
        tail = [sel[4], "s_nop 0", "s_nop 0", "s_nop 0"]
        if u == 3:
            a(m.pop(0))
            a("s_cmp_lg_u32 s54, 1\ns_cbranch_scc1 L_ycnt\ns_mov_b32 s54, 2")
            ladd(a, vY, Y_CY, vOne)
            a("L_ycnt:")
            tail = [sel[4], "s_add_u32 s53, s53, 1", "s_cmp_lt_u32 s53, 4"]
            oth = wreads(WX, 0, nxt) + [ol[0], ol[1], tail[0], ol[2], tail[1], ol[3], tail[2]]
        else:
            oth = wreads(WX, 0, nxt) + [ol[0], tail[0], ol[1]] + [None, ol[2], None, ol[3]]
        o2 = list(oth)
        for mm in m:
            a(mm)
            for _ in range(2):
                if o2:
                    x = o2.pop(0)
                    if x: a(x)
        for x in o2:
            if x: a(x)
    a("s_cbranch_scc1 L_gloop")
    a.stamp(8)
    a(f"""
s_lshl_b32 s48, s59, 16
s_lshl_b32 s49, s{sg_cb}, 7
s_add_u32 s48, s48, s49
s_add_u32 s49, s48, 0x8000
s_add_u32 s50, s48, 0x10000
s_add_u32 s51, s48, 0x18000
s_waitcnt lgkmcnt(0)
""")
    pack(a, C, PO, 32)
    a("s_nop 1")
    for q in range(4):
        a(f"v_permlane16_swap_b32 v{PO+4*q}, v{PO+4*q+2}\nv_permlane16_swap_b32 v{PO+4*q+1}, v{PO+4*q+3}")
    for rt in range(2):
        for qq in range(2): a(f"ds_write_b128 v14, {vr(PO+8*rt+4*qq,4)} offset:{64*qq}")
        for i in range(2): a(f"ds_read_b128 {vr(WX+8*rt+4*i,4)}, v15 offset:{8*144*i}")
    for q in range(4):
        a(f"s_waitcnt lgkmcnt({[5,4,1,0][q]})")
        a(f"buffer_store_dwordx4 {vr(WX+4*q,4)}, v16, s[68:71], s{48+q} offen {FL_OUT}")
    if TRACE:
        a(f"v_writelane_b32 v252, s90, 16\ns_lshl_b32 s100, s2, 10\ns_add_u32 s100, s100, {WS_ST + 0x200000:#x}\nv_lshlrev_b32 v253, 2, v0\nbuffer_store_dword v252, v253, s[60:63], s100 offen")
    a.end()

def aux(a):
    vOA, vOB = 8, 12
    vZero, vEp, vOne, vY, vT = 6, 7, 14, 15, 3
    a(f"""
s_sub_u32 s3, s3, 4
v_lshrrev_b32 v1, 3, v4
v_and_b32 v2, 7, v4
v_lshrrev_b32 v3, 4, v4
v_xor_b32 v6, v2, v3
v_lshlrev_b32 v6, 4, v6
v_lshl_add_u32 v6, v1, 11, v6
s_lshl_b32 s60, s{srb}, 7
s_lshl_b32 s61, s3, 5
s_add_u32 s60, s60, s61
s_lshl_b32 s60, s60, 11
v_add_u32 v{vOA}, s60, v6
v_xor_b32 v6, 64, v{vOA}
v_add_u32 v{vOA+1}, {16384-1024}, v6
v_add_u32 v{vOA+2}, {2*(16384-1024)}, v{vOA}
v_add_u32 v{vOA+3}, {3*(16384-1024)}, v6
v_and_b32 v3, 1, v3
v_lshlrev_b32 v3, 2, v3
v_xor_b32 v7, v2, v3
v_lshlrev_b32 v7, 4, v7
v_xor_b32 v6, 32, v7
s_movk_i32 s61, 6144
v_mad_u32_u24 v7, v1, s61, v7
v_mad_u32_u24 v6, v1, s61, v6
s_mul_i32 s60, s3, {16*6144}
v_add_u32 v{vOB}, s60, v7
s_add_u32 s60, s60, {8*6144-1024}
v_add_u32 v{vOB+1}, s60, v6
s_lshl_b32 s65, s3, 12
s_lshl_b32 s66, s3, 11
s_add_u32 s66, s66, 0x4000
s_mov_b32 s64, 0
s_mov_b32 s67, s{sk0}
s_lshl_b32 s74, s{shq}, 7
s_lshl_b32 s75, s{shk}, 7
s_add_u32 s75, s75, 2048
s_mov_b32 s42, {4*MB:#x}
s_mov_b32 s43, 0x20000
s_mov_b32 s46, {6*MB:#x}
s_mov_b32 s47, 0x20000
s_waitcnt lgkmcnt(0)
s_mov_b64 s[40:41], s[{sX}:{sX+1}]
s_mov_b64 s[44:45], s[{sW}:{sW+1}]
""")
    vm = VM(a)
    def issue(tag, fill=()):
        fill = list(fill); per = (len(fill) + 9) // 10
        def dma(t):
            a(t)
            for _ in range(per):
                if fill: a(fill.pop(0))
        a(f"s_add_u32 m0, s64, s65\ns_lshl_b32 s60, s67, 7\ns_mul_i32 s63, s67, {64*6144}")
        for i in range(4): dma(f"buffer_load_dwordx4 v{vOA+i}, s[40:43], s60 offen offset:{1024*i} lds")
        a(f"s_add_u32 m0, s64, s66\ns_add_u32 s61, s63, s74\ns_add_u32 s62, s63, s75")
        for i in range(2): dma(f"buffer_load_dwordx4 v{vOB+i}, s[44:47], s61 offen offset:{1024*i} lds")
        a(f"s_add_u32 m0, m0, 8192\ns_add_u32 s63, s62, 2048")
        for i in range(2): dma(f"buffer_load_dwordx4 v{vOB+i}, s[44:47], s62 offen offset:{1024*i} lds")
        a(f"s_add_u32 m0, m0, 8192\ns_add_u32 s67, s67, 1")
        for i in range(2): dma(f"buffer_load_dwordx4 v{vOB+i}, s[44:47], s63 offen offset:{1024*i} lds")
        a(f"s_and_b32 s67, s67, 15\ns_add_u32 s64, s64, {STG}\ns_cmp_eq_u32 s64, {3*STG}\ns_cselect_b32 s64, 0, s64")
        vm.issue(tag, 10)
    def B(i): vm.wait(i); a.bar()
    if opt("xprio", "0") != "0": a(f"s_setprio {opt('xprio', '0')}")
    issue(0)
    ids2(a)
    a(f"v_mov_b32 v{vZero}, 0\nv_mov_b32 v{vOne}, 1\nv_mov_b32 v{vY}, {SYNC}\nv_lshlrev_b32 v255, 7, v4\n{WSOFF}")
    srd(a, 48, sWS, 32 * MB)
    srd(a, 52, sDBG, 256)
    a(f"""
s_or_b32 s60, s2, s3
s_cmp_eq_u32 s60, 0
s_cbranch_scc0 L_noep
s_memrealtime s[60:61]
s_waitcnt lgkmcnt(0)
s_or_b32 s60, s60, 1
v_mov_b32 v{vEp}, s60
s_mov_b64 exec, 1
buffer_store_dword v{vEp}, v{vZero}, s[52:55], 0 offen sc1
s_mov_b64 exec, -1
L_noep:
""")
    issue(1)
    KR, VR, WR = 32, 54, 72
    KF, WF, VF, U, UT = 80, 124, 140, 172, 32
    vP0, vP1, vP2, vUS, vHL, vO = 16, 17, 18, 25, 26, 20
    a(f"""
s_mul_i32 s68, s3, {HCH}
s_add_u32 s68, s68, {HB}
s_lshl_b32 s69, s{ssb}, 7
s_lshl_b32 s70, s3, 5
s_add_u32 s69, s69, s70
s_lshl_b32 s70, s69, 11
s_lshl_b32 s71, s{sdb}, 7
s_add_u32 s70, s70, s71
v_lshrrev_b32 v28, 4, v4
v_bfe_u32 v29, v4, 2, 2
v_and_b32 v30, 3, v4
v_and_b32 v31, 15, v4
v_lshlrev_b32 v3, 3, v31
v_lshl_add_u32 v{vP0}, v28, 14, v3
v_add_u32 v{vP0}, s70, v{vP0}
v_subrev_u32 v{vP1}, 6144, v{vP0}
v_lshlrev_b32 v{vP2}, 5, v31
s_lshl_b32 s71, s{sdb}, 9
v_add_u32 v{vP2}, s71, v{vP2}
v_sub_u32 v27, 3, v28
s_lshl_b32 s60, s3, 2
s_sub_u32 s60, 12, s60
v_add_u32 v27, s60, v27
v_xor_b32 v27, v27, v2
v_lshlrev_b32 v27, 4, v27
v_lshl_add_u32 v27, v31, 10, v27
v_add_u32 v204, {HB}, v27
s_lshl_b32 s60, s3, 12
s_add_u32 s60, s60, {HB}
v_add_u32 v205, s60, v5
s_and_b32 s60, s3, 1
s_lshl_b32 s60, s60, 6
v_xor_b32 v205, s60, v205
v_xor_b32 v206, 16, v205
v_xor_b32 v207, 32, v205
v_xor_b32 v208, 48, v205
v_lshlrev_b32 v3, 12, v28
v_lshl_add_u32 v{vUS}, v31, 4, v3
s_lshl_b32 s60, s{sdb}, 18
s_lshl_b32 s61, s3, 16
s_add_u32 s60, s60, s61
s_lshl_b32 s61, s{ssb}, 8
s_sub_u32 s60, s60, s61
s_add_u32 s60, s60, {WS_UT + 3840}
v_add_u32 v{vUS}, s60, v{vUS}
v_lshlrev_b32 v{vHL}, 5, v4
v_and_b32 v3, 1, v28
v_lshlrev_b32 v3, 2, v3
v_xor_b32 v3, v2, v3
v_lshrrev_b32 v27, 5, v4
v_lshlrev_b32 v27, 1, v27
v_xor_b32 v3, v27, v3
v_lshlrev_b32 v3, 4, v3
v_lshl_add_u32 v3, v1, 11, v3
s_lshl_b32 s60, s{sg_cb}, 7
v_add_u32 v{vO}, s60, v3
v_add_u32 v{vO+1}, {16384-1024}, v{vO}
v_add_u32 v{vO+2}, {2*(16384-1024)}, v{vO}
v_add_u32 v{vO+3}, {3*(16384-1024)}, v{vO}
s_movk_i32 s71, 4096
s_movk_i32 s{sEP}, 8192
s_movk_i32 s{sEP+1}, 12288
s_mov_b32 s70, 0xffff0000
v_mov_b32 v212, 0
v_mov_b32 v213, 0
v_mov_b32 v214, 0
v_mov_b32 v215, 0
v_and_b32 v3, 1, v28
s_movk_i32 s60, {HP}
v_mul_u32_u24 v3, s60, v3
v_lshl_add_u32 v3, v31, 4, v3
v_add_u32 v209, s68, v3
s_mul_i32 s60, s3, {UCH}
s_add_u32 s60, s60, {U0}
v_add_u32 v19, s60, v5
s_movk_i32 s61, {CPY}
v_mul_u32_u24 v24, s61, v29
v_lshl_add_u32 v24, v30, 4, v24
v_add_u32 v24, s60, v24
""")
    srd(a, 52, sK, 4 * MB); srd(a, 56, sV, 4 * MB)
    PPOS = int(opt("ppos", "13"))
    so = ["0", "s71", f"s{sEP}", f"s{sEP+1}"]
    def pre_loads(part):
        if part == 0:
            for r in range(8): a(f"buffer_load_dwordx2 {vr(KR+6+2*r,2)}, v{vP0}, s[52:55], {so[r//2]} offen offset:{2048*(r%2)} {FL_KV}")
            for r in range(3): a(f"buffer_load_dwordx2 {vr(KR+2*r,2)}, v{vP1}, s[52:55], {so[r//2]} offen offset:{2048*(r%2)} {FL_KV}")
            vm.issue("k", 11)
            return
        for r in range(8): a(f"buffer_load_dwordx2 {vr(VR+2*r,2)}, v{vP0}, s[56:59], {so[r//2]} offen offset:{2048*(r%2)} {FL_KV}")
        srd(a, 56, sSH, 8192)
        for i in range(2): a(f"buffer_load_dwordx4 {vr(WR+4*i,4)}, v{vP2}, s[56:59], 0 offen offset:{16*i}")
        a(f"global_load_dword v{vEp}, v{vZero}, s[{sDBG}:{sDBG+1}] sc1")
        vm.issue("pre", 11)
        a(f"s_add_u32 s61, s{sch}, s3\ns_lshl_b32 s61, s61, 12\ns_mov_b32 s20, s{sQ}\ns_mov_b32 s21, s{sQ+1}")
        srd_off(a, 52, sH, "s61", 4096); srd(a, 56, sWO, 2 * MB)
    def hload():
        a(f"s_add_u32 m0, s68, 256\ns_movk_i32 s60, 1024\ns_movk_i32 s61, 1040")
        a(f"buffer_load_dwordx4 v{vHL}, s[52:55], 0 offen {FL_KV} lds\nbuffer_load_dwordx4 v{vHL}, s[52:55], s60 offen offset:1024 {FL_KV} lds")
        a(f"s_add_u32 m0, s68, {HP+256}\ns_nop 0")
        a(f"buffer_load_dwordx4 v{vHL}, s[52:55], 16 offen {FL_KV} lds\nbuffer_load_dwordx4 v{vHL}, s[52:55], s61 offen offset:1024 {FL_KV} lds")
        vm.issue("h", 4)
    pl = [f"buffer_load_dwordx2 {vr(KR+6+2*r,2)}, v{vP0}, s[52:55], {so[r//2]} offen offset:{2048*(r%2)} {FL_KV}" for r in range(8)]
    pl = pl[:5] + [pl[5], f"buffer_load_dwordx2 {vr(KR,2)}, v{vP1}, s[52:55], 0 offen {FL_KV}", pl[6], f"buffer_load_dwordx2 {vr(KR+2,2)}, v{vP1}, s[52:55], 0 offen offset:2048 {FL_KV}",
                   pl[7], f"buffer_load_dwordx2 {vr(KR+4,2)}, v{vP1}, s[52:55], s71 offen {FL_KV}"]
    pl += [f"buffer_load_dwordx2 {vr(VR+2*r,2)}, v{vP0}, s[56:59], {so[r//2]} offen offset:{2048*(r%2)} {FL_KV}" for r in range(8)]
    SPL = [int(x) for x in opt("spl", "7,6,6").split(",")]; assert sum(SPL) == 19
    S0 = int(opt("s0", "1"))
    class L:
        def __init__(s): s.l = []
        def __call__(s, t): s.l += [x for x in t.strip("\n").split("\n")]
    w = L()
    unpack(w, KR, KF, 22, 70)
    for p in range(4):
        w(f"v_lshlrev_b32 v{WF+p}, 16, v{WR+2*p}\nv_and_b32 v{WF+4+p}, s70, v{WR+2*p}")
        w(f"v_lshlrev_b32 v{WF+8+p}, 16, v{WR+2*p+1}\nv_and_b32 v{WF+12+p}, s70, v{WR+2*p+1}")
    unpack(w, VR, VF, 16, 70)
    for e in range(4):
        for i in range(8): w(f"v_mul_f32 v{U+4*i+e}, v{KF+4*i+e}, v{WF+12+e}")
        for t in (1, 2, 3):
            for i in range(8): w(f"v_fmac_f32 v{U+4*i+e}, v{KF+4*(i+t)+e}, v{WF+4*(3-t)+e}")
        for i in range(8): w(f"v_mul_f32 v{U+4*i+e}, v{U+4*i+e}, v{VF+4*i+e}")
        for d in range(4): w(f"v_cvt_pk_bf16_f32 v{UT+4*e+d}, v{U+4*(7-2*d)+e}, v{U+4*(6-2*d)+e}")
        w(f"ds_write_b128 v204, {vr(UT+4*e,4)} offset:{256*e}")
    F0 = int(opt("f0", "6")); ST = int(opt("st", "11"))
    FILL = (len(w.l) + ST - F0 - 1) // (ST - F0)
    def epoch():
        a(f"""
v_readfirstlane_b32 s{sEP}, v{vEp}
s_lshl_b32 s33, s{sdb}, 2
s_add_u32 s33, s33, s3
s_lshl_b32 s33, s33, 4
s_add_u32 s33, s33, s{ssb}
s_lshl_b32 s33, s33, 2
{FA(33, FL_U)}
s_mov_b32 s60, 0
s_cmp_lg_u32 s{sEP}, 0
s_cbranch_scc1 L_epok
L_eploop:
global_load_dword v{vEp}, v{vZero}, s[{sDBG}:{sDBG+1}] sc1
s_add_u32 s60, s60, 1
s_waitcnt vmcnt(0)
v_readfirstlane_b32 s{sEP}, v{vEp}
s_cmp_gt_u32 s60, 0x4000
s_cbranch_scc1 L_epok
s_cmp_eq_u32 s{sEP}, 0
s_cbranch_scc1 L_eploop
L_epok:
s_mov_b32 s{sEP+1}, s{sEP}
""")
    def treads():
        for e in range(4): a(f"ds_read_b128 {vr(UT+16+4*e,4)}, v{[205,206,207,208][e]} offset:{1024*e}")
    def ustores():
        a(f"s_movk_i32 s60, 0x4000\ns_mov_b32 s61, 0x8000\ns_mov_b32 s62, 0xc000")
        for e in range(4):
            a(f"s_waitcnt lgkmcnt({3-e})\nbuffer_store_dwordx4 {vr(UT+16+4*e,4)}, v{vUS}, s[48:51], {['0','s60','s61','s62'][e]} offen sc1")
        vm.issue("st", 4)
        a.stamp(9)
    flagged = [False]
    def uflag():
        vm.wait("st"); flag_store(a, 48, 33, vEp, 255); vm.issue("fl"); flagged[0] = True
    for b in range(14):
        B(b)
        k = b - S0
        if 0 <= k < len(SPL):
            for _ in range(SPL[k]): a(pl.pop(0))
            vm.issue("pre", SPL[k])
            if k == len(SPL) - 1:
                srd(a, 56, sSH, 8192)
                for i in range(2): a(f"buffer_load_dwordx4 {vr(WR+4*i,4)}, v{vP2}, s[56:59], 0 offen offset:{16*i}")
                a(f"global_load_dword v{vEp}, v{vZero}, s[{sDBG}:{sDBG+1}] sc1")
                vm.issue("pre", 3)
                a(f"s_add_u32 s61, s{sch}, s3\ns_lshl_b32 s61, s61, 12\ns_mov_b32 s20, s{sQ}\ns_mov_b32 s21, s{sQ+1}")
                srd_off(a, 52, sH, "s61", 4096); srd(a, 56, sWO, 2 * MB)
        fill = []
        if F0 <= b < ST:
            assert "pre" not in vm.q
            fill = w.l[:FILL]; w.l = w.l[FILL:]
            if b == ST - 1: fill = fill + ["s_waitcnt lgkmcnt(0)"]
        if b == ST: treads()
        if b == ST + 2: uflag()
        issue(b + 2, fill)
        if b == F0: epoch()
        if b == ST: ustores()
    W2 = 156
    sU = {0: 74, 1: 75, 2: 65, 3: 39}
    a("s_mov_b32 s74, s3\ns_add_u32 s75, s3, 4\ns_add_u32 s65, s3, 8")
    a("s_add_u32 s39, s3, 12")
    def w2(g):
        a(f"s_lshl_b32 s60, s{sU[g]}, 17\ns_add_u32 s61, s60, 0x10000")
        for hh in range(2):
            for i in range(4): a(f"buffer_load_dwordx4 {vr(W2+32*(g-1)+16*hh+4*i,4)}, v{vO+i}, s[56:59], s{60+hh} offen offset:{1024*i} {FL_WO}")
        vm.issue(f"w{g}", 8)
    def wb(g):
        a(f"s_lshl_b32 m0, s{sU[g]}, 13\ns_lshl_b32 s60, s{sU[g]}, 17\ns_add_u32 s61, s60, 0x10000")
        for hh in range(2):
            for i in range(4): a(f"buffer_load_dwordx4 v{vO+i}, s[56:59], s{60+hh} offen offset:{1024*i} {FL_WO} lds")
            if hh == 0: a("s_add_u32 m0, m0, 4096\ns_nop 0")
        vm.issue(f"w{g}", 8)
    def wm_set(su):
        a(f"s_lshl_b32 s60, s{su}, 1\ns_lshl_b32 s60, 1, s60\nv_mov_b32 v{vT}, s60")
        a(f"s_mov_b64 exec, 1\nds_or_b32 v{vY}, v{vT} offset:{Y_WM}\ns_mov_b64 exec, -1")
    srd(a, 40, 20, 4 * MB); srd(a, 44, sOUT, 8 * MB)
    a(f"v_lshl_add_u32 v18, s3, 2, v{vY}\ns_add_u32 s63, s{sch}, s3\ns_lshl_b32 s67, s63, 7\ns_add_u32 s67, s67, {FL_U:#x}\ns_lshl_b32 s63, s63, 12")
    D, E, O = 64, 80, 84
    def dload():
        for j in range(4):
            a(f"buffer_load_dwordx4 {vr(D+4*j,4)}, v5, s[52:55], 0 offen offset:{1024*j} sc1")
            a(f"buffer_load_dword v{E+j}, v5, s[52:55], 0 offen offset:{1024*j+16} sc1")
    def ucheck(lab):
        a(f"s_cmp_eq_u32 s64, 1\ns_cbranch_scc1 {lab}\ns_waitcnt lgkmcnt(0)")
        for i in range(8): a(f"s_cmp_eq_u64 s[{4+2*i}:{5+2*i}], s[{sEP}:{sEP+1}]\ns_cbranch_scc0 {lab}_n")
        a("s_mov_b32 s64, 1")
        dload()
        a(f"s_branch {lab}\n{lab}_n:\ns_load_dwordx16 s[4:19], s[{sWS}:{sWS+1}], s67 glc\n{lab}:")
    a("s_mov_b32 s64, 0")
    B(14)
    if ST == 12: uflag()
    a(f"s_load_dwordx16 s[4:19], s[{sWS}:{sWS+1}], s67 glc\nds_write_b128 v209, v[212:215]")
    hload()
    srd_off(a, 52, sWS, "s63", 4096)
    B(15)
    a.stamp(1)
    if not flagged[0]: uflag()
    ucheck("L_u0")
    a(f"s_bitcmp1_b32 s{sg_rb}, 0\ns_cbranch_scc1 L_b3\ns_mov_b32 s31, 6")
    wb(2)
    a("s_branch L_b4\nL_b3:\ns_mov_b32 s31, 10")
    w2(3)
    a("L_b4:")
    a.bar()
    a("s_mov_b32 s62, s64")
    ucheck("L_u1")
    wb(1)
    a("s_cmp_eq_u32 s64, 1\ns_cbranch_scc1 L_ugot\ns_waitcnt lgkmcnt(0)")
    spoll(a, "L_upoll", 67, 60)
    dload()
    a("s_waitcnt vmcnt(0)\nL_ugot:\ns_cmp_eq_u32 s62, 1\ns_cbranch_scc1 L_uw16\ns_waitcnt vmcnt(8)\nL_uw16:\ns_waitcnt vmcnt(16)")
    for j in range(4):
        d = [D + 4 * j + i for i in range(4)] + [E + j]
        o = O + 4 * j
        a(f"ds_write_b128 v19, {vr(D+4*j,4)} offset:{1024*j}")
        for i in range(4): a(f"v_alignbit_b32 v{o+i}, v{d[i+1]}, v{d[i]}, 16")
        a(f"ds_write_b128 v19, {vr(o,4)} offset:{CPY+1024*j}")
    a(f"ds_write_b32 v18, v{vOne} offset:{Y_UB}")
    vm.drained()
    a.stamp(2)
    QE = opt("qe", "0") == "1"
    def qload(reg):
        for i in range(4):
            a(f"buffer_load_dwordx4 {vr(156+4*i,4)}, v{reg}, s[40:43], s60 offen {FL_KV}")
            if i < 3: a("s_add_u32 s60, s60, 0x4000")
    if QE:
        a(f"v_lshlrev_b32 v27, 4, v2\nv_lshl_add_u32 v16, v1, 11, v27\ns_lshl_b32 s60, s69, 11\ns_lshl_b32 s61, s{sdb}, 7\ns_add_u32 s60, s60, s61")
        qload(16)
    lspin(a, "L_qspin", 18, Y_PQ, "1", vT, 60, 61)
    a(f"s_lshl_b32 s61, s3, 13\ns_add_u32 s61, s61, 4096\nv_add_u32 v16, s61, v5")
    for i in range(4): a(f"ds_read_b128 {vr(32+4*i,4)}, v16 offset:{1024*i}")
    a.stamp(3)
    PQ, PP, AC, ZZ, SEL = 32, 48, 112, 120, 8
    a(f"""
s_lshr_b32 s62, s3, 1
s_and_b32 s33, s3, 1
s_lshl_b32 s63, s{shq}, 1
s_add_u32 s63, s63, s62
s_lshl_b32 s66, s{shq}, 2
s_add_u32 s66, s66, s3
s_lshl_b32 s64, s66, 14
s_add_u32 s64, s64, {WS_KVP:#x}
s_lshl_b32 s67, s66, 11
s_add_u32 s67, s67, {WS_ZP:#x}
s_lshl_b32 s66, s66, 6
{FC(66, FL_P, srb)}
s_lshl_b32 s61, s62, 2
v_add_u32 v19, s61, v{vY}
v_mov_b32 v26, 0x3f80
v_and_b32 v27, 1, v4
v_lshlrev_b32 v27, 4, v27
v_lshlrev_b32 v26, v27, v26
v_cmp_eq_u32 vcc, v28, v29
v_bfe_u32 v27, v4, 1, 1
s_nop 0
v_cndmask_b32 v26, 0, v26, vcc
v_cmp_eq_u32 vcc, 0, v27
v_mov_b32 v{SEL}, 0
v_mov_b32 v{SEL+1}, 0
v_cndmask_b32 v{SEL+2}, 0, v26, vcc
v_cndmask_b32 v{SEL+3}, v26, {'v%d' % vZero}, vcc
v_mov_b32 v{SEL+4}, 0
v_mov_b32 v{SEL+5}, 0
""")
    def rest(tag):
        a(f"s_bitcmp1_b32 s31, 2\ns_cbranch_scc1 L_r3{tag}")
        wb(2)
        a(f"s_branch L_r4{tag}\nL_r3{tag}:")
        w2(3)
        a(f"L_r4{tag}:\ns_mov_b32 s31, 14")
    a(f"s_load_dwordx16 s[4:19], s[{sWS}:{sWS+1}], s66 glc")
    if opt("rr", "1") == "1":
        rest("a")
        a("s_waitcnt lgkmcnt(0)")
        for i in range(8): a(f"s_cmp_eq_u64 s[{4+2*i}:{5+2*i}], s[{sEP}:{sEP+1}]\ns_cbranch_scc0 L_ps")
        a("s_branch L_ppoll_done\nL_ps:")
    else:
        a("s_waitcnt lgkmcnt(0)")
        for i in range(8): a(f"s_cmp_eq_u64 s[{4+2*i}:{5+2*i}], s[{sEP}:{sEP+1}]\ns_cbranch_scc0 L_ps")
        a("s_branch L_ppoll_done\nL_ps:")
        rest("a")
    spoll(a, "L_ppoll", 66, 60)
    vm.q = []
    a.stamp(4)
    a("s_setprio 3")
    a(f"buffer_load_dwordx4 {vr(ZZ,4)}, v5, s[48:51], s67 offen sc1\nbuffer_load_dwordx4 {vr(ZZ+4,4)}, v5, s[48:51], s67 offen offset:1024 sc1")
    vm.issue("z", 2)
    if opt("prot", "1") == "1":
        a(f"s_lshl_b32 s60, s{srb}, 11\ns_and_b32 s60, s60, 0x3fff")
        for rb in range(16):
            if rb % 2 == 0: a("s_add_u32 s61, s64, s60\ns_add_u32 s60, s60, 2048\ns_and_b32 s60, s60, 0x3fff")
            a(f"buffer_load_dwordx4 {vr(PP+4*rb,4)}, v5, s[48:51], s61 offen offset:{1024*(rb%2)} sc1")
            vm.issue(f"p{rb}")
    else:
      for rb in range(16):
        a(f"buffer_load_dwordx4 {vr(PP+4*rb,4)}, v5, s[48:51], s64 offen offset:{1024*(rb%4)} sc1")
        if rb % 4 == 3: a("s_add_u32 s64, s64, 4096")
        vm.issue(f"p{rb}")
    a(f"""
s_lshl_b32 s60, s3, 10
s_add_u32 s60, s60, {KVL}
v_add_u32 v16, s60, v5
s_lshl_b32 s60, s62, 11
s_add_u32 s60, s60, {KVL}
v_add_u32 v17, s60, v5
s_lshl_b32 s64, s{srb}, 3
s_lshl_b32 s60, s33, 2
s_add_u32 s64, s64, s60
s_lshl_b32 s64, s64, 15
s_lshl_b32 s60, s63, 10
s_add_u32 s64, s64, s60
s_add_u32 s64, s64, {WS_O:#x}
s_lshl_b32 s67, s{srb}, 1
s_add_u32 s67, s67, s33
s_lshl_b32 s67, s67, 7
s_lshl_b32 s60, s63, 2
s_add_u32 s67, s67, s60
{FA(67, FL_O)}
s_mov_b32 s71, {EPS:#x}
""")
    vm.wait("z")
    NW1 = int(opt("nw1", "1"))
    for sh in (8, 4, 2, 1):
        for i in range(8): a(f"v_add_f32_dpp v{ZZ+i}, v{ZZ+i}, v{ZZ+i} row_ror:{sh} row_mask:0xf bank_mask:0xf")
    ZF, KF, DN = 128, 132, 140
    pack(a, ZZ, ZF, 8)
    a("s_nop 1")
    for i in range(4): a(mfma16(DN + 4 * i, ZF, PQ + 4 * i, "0"))
    for rb in range(16):
        if rb == 8: wb(0)
        if rb % 2 == 0: vm.wait(f"p{rb+1}")
        a(mfma16(AC, SEL + 2, PP + 4 * rb, "0" if rb == 0 else None))
        a(mfma16(AC + 4, SEL, PP + 4 * rb, "0" if rb == 0 else None))
    for i in range(4): a(f"v_add_f32 v{DN+4*i}, s71, v{DN+4*i}")
    for i in range(4): a(f"v_rcp_f32 v{DN+4*i}, v{DN+4*i}")
    pack(a, AC, ZZ, 8)
    a(f"ds_write_b128 v16, {vr(ZZ,4)}")
    ladd(a, 19, Y_C2, vOne)
    W3E = opt("w3e", "0") == "1"
    if W3E: w2(3)
    lspin(a, "L_kspin", 19, Y_C2, "2", vT, 60, 61)
    a(f"ds_read_b128 {vr(KF,4)}, v17\nds_read_b128 {vr(KF+4,4)}, v17 offset:1024\ns_waitcnt lgkmcnt(0)")
    a.stamp(5)
    N, OP = 48, 80
    for i in range(4):
        a(mfma16(N + 8 * i, KF, PQ + 4 * i, "0")); a(mfma16(N + 8 * i + 4, KF + 4, PQ + 4 * i, "0"))
    a("s_nop 1")
    for i in range(4):
        for p in range(8): a(f"v_mul_f32 v{N+8*i+p}, v{N+8*i+p}, v{DN+4*i}")
        pack(a, N + 8 * i, OP + 4 * i, 8)
        a(f"buffer_store_dwordx4 {vr(OP+4*i,4)}, v5, s[48:51], s64 offen sc1")
        if i < 3: a("s_add_u32 s64, s64, 0x8000")
    QQ = 156
    a(f"""
v_lshlrev_b32 v27, 4, v2
v_lshl_add_u32 v16, v1, 11, v27
v_lshl_add_u32 v17, v1, 12, v27
s_lshl_b32 s66, s69, 11
s_lshl_b32 s61, s{sdb}, 7
s_add_u32 s66, s66, s61
s_lshl_b32 s63, s69, 12
s_add_u32 s63, s63, s61
s_add_u32 s63, s63, 2048
s_waitcnt vmcnt(0)
""")
    vm.drained()
    flag_store(a, 48, 67, vEp, 255)
    a.stamp(6)
    a("s_setprio 0")
    a(f"""
s_mov_b32 s30, s66
s_lshl_b32 s66, s{sg_rb}, 8
s_lshl_b32 s61, s3, 6
s_add_u32 s66, s66, s61
{FC(66, FL_O, sg_cb)}
s_mov_b32 s64, 0
s_cmp_lg_u32 s3, 0
s_cselect_b32 s62, 1, 0
s_lshl_b32 s33, s33, 4
s_mov_b32 s32, s{sch}
{FA(32, FL_Y, 8192)}
""")
    def wwrite(g):
        a(f"s_lshl_b32 s60, s{sU[g]}, 13\nv_add_u32 v18, s60, v5")
        for i in range(8): a(f"ds_write_b128 v18, {vr(W2+32*(g-1)+4*i,4)} offset:{1024*i}")
        wm_set(sU[g])
    pn = [0]
    def Pissue(): a(f"s_load_dwordx16 s[4:19], s[{sWS}:{sWS+1}], s66 glc")
    def Pcheck():
        n = pn[0]; pn[0] += 1
        a(f"ds_read_b64 v[28:29], v{vY} offset:{Y_CY}\ns_mov_b32 s67, 0\ns_waitcnt lgkmcnt(0)\nv_readfirstlane_b32 s71, v28\nv_readfirstlane_b32 s69, v29" if False else
          f"ds_read_b64 v[28:29], v{vY} offset:{Y_CY}\ns_mov_b32 s67, 0\ns_waitcnt lgkmcnt(0)\nv_readfirstlane_b32 s71, v28\nv_readfirstlane_b32 s29, v29")
        for i in range(8): a(f"s_cmp_eq_u64 s[{4+2*i}:{5+2*i}], s[{sEP}:{sEP+1}]\ns_cselect_b32 s60, {1 << (2*i):#x}, 0\ns_or_b32 s67, s67, s60")
        a(f"""
s_cmp_eq_u32 s67, s64
s_cbranch_scc1 L_np{n}
s_mov_b32 s64, s67
s_lshl_b32 s60, s67, s33
v_mov_b32 v{vT}, s60
s_mov_b64 exec, 1
ds_or_b32 v19, v{vT} offset:{Y_CO}
s_mov_b64 exec, -1
L_np{n}:
""")
    wm_set(sU[0])
    wm_set(sU[1])
    a("s_cmp_eq_u32 s31, 14\ns_cbranch_scc1 L_e4")
    Pissue(); rest("b"); Pcheck()
    a("s_waitcnt vmcnt(0)\nL_e4:")
    wm_set(sU[2])
    QL = opt("ql", "0") == "1"
    if not QE and not QL:
        a("s_mov_b32 s60, s30"); qload(16)
    a(f"""
s_mov_b32 s61, 0
L_oloop:
s_cmp_eq_u32 s64, 0x5555
s_cbranch_scc1 L_onold
""")
    Pissue()
    a("L_onold:")
    Pcheck()
    a(f"""
s_bitcmp1_b32 s62, 2
s_cbranch_scc1 L_ow
s_cmp_lt_u32 s29, 4
s_cbranch_scc1 L_onext
s_or_b32 s62, s62, 4
s_waitcnt vmcnt({0 if QE or QL else 4})
""")
    wwrite(3)
    if QL and not QE:
        a("s_mov_b32 s60, s30"); qload(16)
    a(f"""
s_branch L_oloop
L_ow:
s_bitcmp1_b32 s62, 0
s_cbranch_scc1 L_oy
s_cmp_lt_u32 s71, 4
s_cbranch_scc1 L_onext
s_or_b32 s62, s62, 1
""")
    flag_store(a, 48, 32, vEp, 255, "-1")
    a(f"""
L_oy:
s_cmp_eq_u32 s64, 0x5555
s_cbranch_scc1 L_odone
L_onext:
s_add_u32 s61, s61, 1
s_cmp_gt_u32 s61, 0x20000
s_cbranch_scc1 L_odone
s_sleep 1
s_branch L_oloop
L_odone:
v_lshrrev_b32 v28, 4, v4
v_bfe_u32 v29, v4, 2, 2
""")
    a.stamp(7)
    a(f"""
s_lshl_b32 s67, s{sdb}, 6
s_lshl_b32 s60, s{ssb}, 2
s_add_u32 s60, s60, s3
{FC(67, FL_Y, 60, 8192)}
s_lshl_b32 s66, s{sdb}, 18
s_lshl_b32 s60, s69, 1
s_add_u32 s66, s66, s60
s_add_u32 s66, s66, {WS_YT:#x}
v_lshrrev_b32 v18, 2, v4
v_lshlrev_b32 v18, 12, v18
v_lshl_add_u32 v18, v30, 4, v18
v_lshl_add_u32 v19, v28, 3, v29
v_lshlrev_b32 v19, 6, v19
v_lshl_add_u32 v19, v30, 3, v19
v_add_u32 v19, s68, v19
s_movk_i32 s60, 144
v_mul_u32_u24 v24, s60, v31
v_lshl_add_u32 v24, v28, 4, v24
v_add_u32 v24, s68, v24
v_mul_u32_u24 v25, s60, v1
v_add3_u32 v25, v25, v27, s68
s_mov_b32 m0, s68
s_waitcnt lgkmcnt(0)
""")
    if "nopost" in G2: a.trace_out(); a.end()
    a("s_waitcnt vmcnt(0)")
    unpack(a, QQ, 96, 16, 70)
    spoll(a, "L_ypoll", 67, 60)
    a.stamp(8)
    for i in range(4):
        a(f"buffer_load_dwordx4 v18, s[48:51], s66 offen offset:{1024*i} sc1 lds")
        if i < 3: a(f"s_add_u32 s66, s66, {0x10000-1024}")
    YY, T = 48, 64
    a("s_waitcnt vmcnt(0)")
    for sh in range(2):
        for oh in range(2):
            for i2 in range(2):
                a(f"ds_read_b64_tr_b16 {vr(YY+8*sh+4*oh+2*i2,2)}, v19 offset:{32*sh+2048*oh+256*i2}")
    for sh in range(2):
        for oh in range(2):
            a(f"s_waitcnt lgkmcnt({6-2*(2*sh+oh)+(2*sh+oh)})" if False else "s_waitcnt lgkmcnt(0)" if (sh, oh) == (0, 0) else "s_nop 0")
            a(f"ds_write_b128 v24, {vr(YY+8*sh+4*oh,4)} offset:{16*144*sh+64*oh}")
    for j in range(4): a(f"ds_read_b128 {vr(YY+32+4*j,4)}, v25 offset:{8*144*j}")
    for j in range(4):
        a(f"s_waitcnt lgkmcnt({3-j})")
        unpack(a, YY + 32 + 4 * j, T, 4, 70)
        for e in range(8): a(f"v_mul_f32 v{T+e}, v{T+e}, v{96+8*j+e}")
        pack(a, T, QQ + 4 * j, 8)
        a(f"buffer_store_dwordx4 {vr(QQ+4*j,4)}, v17, s[44:47], s63 offen {FL_OUT}")
        if j < 3: a("s_add_u32 s63, s63, 0x8000")
    a.trace_out()
    a.end()

def desc(name, vgpr, sgpr=102):
    return f""".amdhsa_kernel {name}
  .amdhsa_next_free_vgpr {vgpr}
  .amdhsa_next_free_sgpr {sgpr}
  .amdhsa_accum_offset {(vgpr + 3) // 4 * 4}
  .amdhsa_group_segment_fixed_size 0
  .amdhsa_kernarg_size 96
  .amdhsa_user_sgpr_count 2
  .amdhsa_user_sgpr_kernarg_segment_ptr 1
  .amdhsa_system_sgpr_workgroup_id_x 1
.end_amdhsa_kernel
"""
def main():
    out = open("cdna_kernels/" + NAME + ".s.ref").read().split("; Override launch")[0]
    KS = [KN]
    if AMP:
        out += f"; @launch kernel={KN} grid=(256,1,1) block=(512,1,1) lds={LDS}\n"
        out += "; @launch kernel=kd_kernel grid=(1,1,1) block=(64,1,1) lds=0\n"; KS.append("kd_kernel")
    else:
        out += f"; @launch grid=(256,1,1) block=(512,1,1) lds={LDS}\n"
    out += '.amdgcn_target "amdgcn-amd-amdhsa--gfx950"\n.text\n'
    for k in KS: out += f".globl {k}\n.type {k},@function\n"
    out += ".p2align 8\n"
    a = A()
    kernel(a)
    if AMP: kd.kernel_d(a, AMP, WS_ST)
    out += a.text()
    out += '.section .rodata,"a"\n'
    for k in KS: out += ".p2align 6\n" + desc(k, 256)
    path = sys.argv[1] if len(sys.argv) > 1 and not sys.argv[1].startswith("--") else "cdna_kernels/" + NAME + ".s"
    open(path, "w").write(out)
main()
```

```python
import sys, os
sys.path.insert(0, os.path.dirname(os.path.abspath(__file__)))
import kd
NAME = "concat_heads__linear_attn_block__ssm_conv_h3__prompt"
KN = NAME + "_kernel"
MB = 1 << 20
WS_UT, WS_KVP, WS_ZP, WS_FL, WS_O, WS_YT, WS_ST = 0, 8 * MB, 9 * MB, 9 * MB + 0x40000, 4 * MB, 0, 24 * MB
LOG2E, EPS = 0x3FB8AA3B, 0x358637BD
STAMP = "--stamp" in sys.argv
TRACE = "--trace" in sys.argv
def opt(name, default):
    for x in sys.argv:
        if x.startswith("--" + name + "="): return x.split("=", 1)[1]
    return default
FL_U, FL_P, FL_O, FL_Y = [WS_FL + k * 131072 for k in range(4)]
def FA(r, base, grp=2048):
    return f"s_lshr_b32 vcc_lo, s{r}, 6\ns_mul_i32 vcc_lo, vcc_lo, {grp-64}\ns_add_u32 s{r}, s{r}, vcc_lo\ns_add_u32 s{r}, s{r}, {base:#x}"
def FC(r, base, own, grp=2048):
    return FA(r, base, grp) + f"\ns_lshl_b32 vcc_lo, s{own}, 7\ns_add_u32 s{r}, s{r}, vcc_lo"
if opt("ysep", "0") == "1": WS_YT = 10 * MB
FL_KV = opt("kv", "")
FL_WO = opt("wo", "")
FL_XW = opt("xw", "")
FL_OUT = opt("outst", "sc1")
AMP = opt("amp", "")
KROT = opt("krot", "q8c")
ROT2 = opt("rot2", "0") == "1"
ROTW = opt("rotw", "1") == "1"
G2 = opt("g2", "")
OSC = "" if "nosc1" in G2 else "sc1"
DEPTH = int(opt("depth", "6"))
PSLEEP = opt("psleep", "0")

class A:
    def __init__(self): self.l = []
    def __call__(self, s):
        for x in s.strip("\n").split("\n"):
            x = x.strip()
            self.l.append(x if x.endswith(":") else "    " + x)
    jn = 0
    def stamp(self, i):
        J = opt("jitter", "")
        if J and i > 0 and getattr(self, "jon", False):
            n = self.jn; self.jn += 1
            self(f"""
s_cselect_b32 s101, 1, 0
s_memrealtime s[98:99]
s_waitcnt lgkmcnt(0)
s_lshr_b32 s100, s98, 2
s_xor_b32 s100, s100, s2
s_mul_i32 s100, s100, {2654435761 + 2*n + int(J)}
s_add_u32 s100, s100, s3
s_mul_i32 s100, s100, 40503
s_lshr_b32 s100, s100, 29
s_cmp_lt_u32 s100, 6
s_cbranch_scc1 L_j{n}
s_sleep 60
s_cmp_lt_u32 s100, 7
s_cbranch_scc1 L_j{n}
s_sleep 127
L_j{n}:
s_cmp_lg_u32 s101, 0
""")
        if STAMP: self(f"s_memrealtime s[{76+2*i}:{77+2*i}]")
    def end(self):
        if STAMP:
            self(f"""
s_memrealtime s[96:97]
s_mov_b64 exec, 1
v_lshrrev_b32 v1, 6, v0
s_waitcnt vmcnt(0) lgkmcnt(0)
s_memrealtime s[98:99]
s_mov_b32 s40, s26
s_mov_b32 s41, s27
s_mov_b32 s42, 0x2000000
s_mov_b32 s43, 0x20000
s_lshl_b32 s100, s2, 3
v_add_u32 v1, s100, v1
v_lshlrev_b32 v1, 5, v1
v_add_u32 v1, {WS_ST}, v1
v_add_u32 v2, 65536, v1
s_waitcnt lgkmcnt(0)
""")
            for i in range(12): self(f"v_mov_b32 v{4+i}, s{76+2*i}")
            self("""
buffer_store_dwordx4 v[4:7], v1, s[40:43], 0 offen
buffer_store_dwordx4 v[8:11], v1, s[40:43], 0 offen offset:16
buffer_store_dwordx4 v[12:15], v2, s[40:43], 0 offen
buffer_store_dwordx4 v[12:15], v2, s[40:43], 0 offen offset:16
""")
        self("s_endpgm")
    tn = 0
    def trace(self):
        if TRACE:
            self(f"s_memrealtime s[96:97]\ns_waitcnt lgkmcnt(0)\nv_writelane_b32 v252, s96, {self.tn}"); self.tn += 1
    def bar(self):
        self.trace(); self("s_barrier"); self.trace()
    def trace_out(self):
        if TRACE: self(f"""
s_lshl_b32 s96, s2, 10
s_add_u32 s96, s96, {WS_ST + 0x100000:#x}
v_lshlrev_b32 v253, 2, v0
v_subrev_u32 v253, 1024, v253
buffer_store_dword v252, v253, s[48:51], s96 offen
""")
    def text(self): return "\n".join(self.l) + "\n"

class VM:
    def __init__(self, a): self.a = a; self.q = []
    def issue(self, tag, n=1): self.q += [tag] * n; assert len(self.q) <= 63, len(self.q)
    def wait(self, tag):
        if tag not in self.q: return
        idx = max(i for i, t in enumerate(self.q) if t == tag)
        n = len(self.q) - 1 - idx
        self.q = self.q[idx + 1:]
        self.a(f"s_waitcnt vmcnt({n})")
    def drained(self): self.q = []

def vr(b, n=1): return f"v{b}" if n == 1 else f"v[{b}:{b+n-1}]"
def sr(b, n=1): return f"s{b}" if n == 1 else f"s[{b}:{b+n-1}]"
def srd(a, d, lo, nbytes):
    a(f"s_mov_b32 s{d}, s{lo}\ns_mov_b32 s{d+1}, s{lo+1}\ns_mov_b32 s{d+2}, {nbytes:#x}\ns_mov_b32 s{d+3}, 0x20000")
def srd_off(a, d, lo, off, nbytes):
    a(f"s_add_u32 s{d}, s{lo}, {off}\ns_addc_u32 s{d+1}, s{lo+1}, 0\ns_mov_b32 s{d+2}, {nbytes:#x}\ns_mov_b32 s{d+3}, 0x20000")
def mfma16(d, x, y, c=None):
    c = vr(d, 4) if c is None else c
    return f"v_mfma_f32_16x16x32_bf16 {vr(d,4)}, {vr(x,4)}, {vr(y,4)}, {c}"
def interleave(a, mf, others, per_gap=1):
    o = list(others)
    for m in mf:
        a(m)
        for _ in range(per_gap):
            if o: a(o.pop(0))
    for x in o: a(x)
def phi_pack(a, src, dst, n, t, sL, sE):
    for i in range(0, n, 8):
        for p in range(4): a(f"v_pk_mul_f32 {vr(t+2*p,2)}, {vr(src+i+2*p,2)}, {sr(sL,2)}")
        for p in range(8): a(f"v_exp_f32_e64 v{t+p}, v{t+p} clamp")
        for p in range(8): a(f"v_max_f32 v{src+i+p}, s{sE}, v{src+i+p}")
        for p in range(4): a(f"v_pk_add_f32 {vr(t+2*p,2)}, {vr(t+2*p,2)}, {vr(src+i+2*p,2)}")
        for p in range(4): a(f"v_cvt_pk_bf16_f32 v{dst+i//2+p}, v{t+2*p}, v{t+2*p+1}")
def phi_pack_np(a, src, dst, n, t, sL, sE):
    for i in range(0, n, 8):
        for p in range(8): a(f"v_mul_f32 v{t+p}, s{sL}, v{src+i+p}")
        for p in range(8): a(f"v_exp_f32_e64 v{t+p}, v{t+p} clamp")
        for p in range(8): a(f"v_max_f32 v{src+i+p}, s{sE}, v{src+i+p}")
        for p in range(8): a(f"v_add_f32 v{t+p}, v{t+p}, v{src+i+p}")
        for p in range(4): a(f"v_cvt_pk_bf16_f32 v{dst+i//2+p}, v{t+2*p}, v{t+2*p+1}")
def pack(a, src, dst, n):
    for i in range(n // 2): a(f"v_cvt_pk_bf16_f32 v{dst+i}, v{src+2*i}, v{src+2*i+1}")
def unpack(a, src, dst, ndw, smask):
    for i in range(ndw):
        a(f"v_lshlrev_b32 v{dst+2*i}, 16, v{src+i}\nv_and_b32 v{dst+2*i+1}, s{smask}, v{src+i}")

sX, sW, sWO, sQ, sK, sV, sSH, sH, sD, sOUT, sDBG, sWS = 4, 6, 8, 10, 12, 14, 16, 18, 20, 22, 24, 26
sx, sj, srb, shk, shq, sk0, sg_rb, sg_cb, sdb, ssb, sch, sEP = 28, 29, 30, 31, 32, 33, 34, 35, 36, 37, 38, 72
TOUCH = ""
_o = int(opt("wsoff", "0")) * MB
WSOFF = f"s_add_u32 s26, s26, {_o:#x}\ns_addc_u32 s27, s27, 0" if _o else "s_nop 0"
if opt("touch", "0") == "1":
    t = ["s_mov_b32 s52, 0x200000", "s_mov_b32 s53, 0x400000", "s_mov_b32 s54, 0x600000", "s_mov_b32 s55, 0x800000"]
    for base, n in ((sWS, 5), (sOUT, 4), (sQ, 2), (sH, 2), (sWO, 1)):
        for i in range(n): t.append(f"s_load_dword s46, s[{base}:{base+1}], {['0','s52','s53','s54','s55'][i]}")
    TOUCH = "\n".join(t)
STG = 40960
CPY = 4160
UCH = 2 * CPY
U0 = 98304
XCH = U0 + 4 * UCH
HB = XCH + 8192
HP = 2304
HCH = 2 * HP
KVL = HB + 4 * HCH
ZX = KVL + 4096
SYNC = ZX + 512
Y_XC, Y_CW, Y_C2, Y_CU, Y_CY, Y_CD, Y_PQ, Y_EP, Y_W1, Y_CO, Y_UOK, Y_YOK, Y_UB = 0, 96, 20, 28, 32, 36, 40, 56, 60, 64, 72, 76, 80
Y_WM = Y_W1
Y_FR, Y_KD, Y_K2 = 112, 128, 40
LDS = 163840


def spoll(a, lab, soff, sc):
    if opt("poll", "s") == "v":
        a(f"v_and_b32 v254, 15, v4\nv_lshlrev_b32 v254, 2, v254")
        vpoll(a, lab, 254, soff, 255, sc); return
    a(f"""
s_mov_b32 s{sc}, 0
s_branch {lab}_go
{lab}:
s_sleep {PSLEEP}
{lab}_go:
s_load_dwordx16 s[4:19], s[{sWS}:{sWS+1}], s{soff} glc
s_add_u32 s{sc}, s{sc}, 1
s_cmp_gt_u32 s{sc}, 0x8000
s_cbranch_scc1 {lab}_done
s_waitcnt lgkmcnt(0)
""")
    for i in range(8): a(f"s_cmp_eq_u64 s[{4+2*i}:{5+2*i}], s[{sEP}:{sEP+1}]\ns_cbranch_scc0 {lab}")
    a(f"{lab}_done:\ns_waitcnt lgkmcnt(0)")
def vpoll(a, lab, v16x4, soff, vt, sc):
    a(f"""
s_mov_b32 s{sc}, 0
{lab}:
buffer_load_dword v{vt}, v{v16x4}, s[48:51], s{soff} offen sc1
s_waitcnt vmcnt(0)
v_cmp_eq_u32 vcc, s{sEP}, v{vt}
s_add_u32 s{sc}, s{sc}, 1
s_nop 2
s_cmp_eq_u64 vcc, -1
s_cbranch_scc1 {lab}_done
s_sleep {PSLEEP}
s_cmp_lt_u32 s{sc}, 0x4000
s_cbranch_scc1 {lab}
{lab}_done:
""")
def lead_poll(a, lab, soff, sc, st, vY, off, vOne, vT):
    a(f"s_mov_b32 s{sc}, 0\ns_cmp_eq_u32 s3, 0\ns_cbranch_scc0 {lab}_f")
    spoll(a, lab, soff, sc)
    a(f"ds_write_b32 v{vY}, v{vOne} offset:{off}\ns_branch {lab}_f_done")
    a(f"{lab}_f:"); a.l.pop()
    lspin(a, lab + "_f", vY, off, "1", vT, sc, st, init=False, slp=3)
def lspin(a, lab, vaddr, off, target, vt, sc, st, init=True, slp=1):
    if init: a(f"s_mov_b32 s{sc}, 0")
    a(f"""
{lab}:
ds_read_b32 v{vt}, v{vaddr} offset:{off}
s_add_u32 s{sc}, s{sc}, 1
s_waitcnt lgkmcnt(0)
v_readfirstlane_b32 s{st}, v{vt}
s_cmp_gt_u32 s{sc}, 0x40000
s_cbranch_scc1 {lab}_done
s_cmp_ge_u32 s{st}, {target}
s_cbranch_scc1 {lab}_done
s_sleep {slp}
s_branch {lab}
{lab}_done:
""")
def ladd(a, vaddr, off, vone):
    a(f"s_mov_b64 exec, 1\nds_add_u32 v{vaddr}, v{vone} offset:{off}\ns_mov_b64 exec, -1")
def flag_store(a, srdn, soff, vep, vl128, mask="0xffff"):
    a(f"s_mov_b64 exec, {mask}\nbuffer_store_dword v{vep}, v{vl128}, s[{srdn}:{srdn+3}], s{soff} offen sc1\ns_mov_b64 exec, -1")
def wg_flag(a, lab, vaddr, off, vone, vt, st, srdn, soff, vep, vzero):
    a(f"""
s_mov_b64 exec, 1
ds_add_rtn_u32 v{vt}, v{vaddr}, v{vone} offset:{off}
s_waitcnt lgkmcnt(0)
v_readfirstlane_b32 s{st}, v{vt}
s_nop 3
s_cmp_eq_u32 s{st}, 3
s_cbranch_scc0 {lab}
buffer_store_dword v{vep}, v{vzero}, s[{srdn}:{srdn+3}], s{soff} offen sc1
{lab}:
s_mov_b64 exec, -1
""")

def ids2(a):
    a(f"""
s_and_b32 s{sg_rb}, s{sx}, 3
s_lshl_b32 s{sg_rb}, s{sg_rb}, 2
s_and_b32 vcc_lo, s{sj}, 3
s_add_u32 s{sg_rb}, s{sg_rb}, vcc_lo
s_lshr_b32 s{sg_cb}, s{sx}, 2
s_lshl_b32 s{sg_cb}, s{sg_cb}, 3
s_lshr_b32 vcc_lo, s{sj}, 2
s_add_u32 s{sg_cb}, s{sg_cb}, vcc_lo
s_lshl_b32 s39, vcc_lo, 2
s_and_b32 s{sdb}, s{sj}, 15
s_lshr_b32 s{ssb}, s{sj}, 4
s_lshl_b32 vcc_lo, s{sx}, 1
s_add_u32 s{ssb}, s{ssb}, vcc_lo
s_lshl_b32 s{sch}, s{sx}, 5
s_add_u32 s{sch}, s{sch}, s{sj}
s_lshl_b32 s{sch}, s{sch}, 2
""")
    a(f"s_mul_i32 s39, s{sg_rb}, 11\ns_lshr_b32 s39, s39, 5\ns_mul_i32 s39, s39, 3\ns_sub_u32 s39, s{sg_rb}, s39")

def kernel(a):
    a(f"""
{KN}:
s_cmp_ge_u32 s2, 256
s_cbranch_scc1 L_exit
s_load_dwordx16 s[4:19], s[0:1], 0
s_load_dwordx8 s[20:27], s[0:1], 64
s_getpc_b64 s[48:49]
L_pc:
s_and_b32 s45, s2, 24
s_lshl_b32 s45, s45, 4
v_lshl_add_u32 v2, v0, 9, s45
v_cmp_gt_u32 vcc, L_code_end-L_pc-4, v2
s_and_saveexec_b64 s[50:51], vcc
s_cbranch_execz L_pf
global_load_dword v252, v2, s[48:49]
L_pf:
s_mov_b64 exec, s[50:51]
""")
    for i in range(10): a.stamp(i)
    a(f"""
v_lshrrev_b32 v1, 6, v0
v_and_b32 v4, 63, v0
v_readfirstlane_b32 s3, v1
v_lshlrev_b32 v5, 4, v4
s_and_b32 s{sx}, s2, 7
s_lshr_b32 s{sj}, s2, 3
s_and_b32 s{srb}, s{sx}, 1
s_lshl_b32 s{srb}, s{srb}, 3
s_and_b32 s40, s{sj}, 7
s_add_u32 s{srb}, s{srb}, s40
s_lshr_b32 s40, s{sx}, 1
s_lshl_b32 s41, s40, 2
s_lshr_b32 s42, s{sj}, 3
s_add_u32 s{shk}, s41, s42
s_add_u32 s42, s42, 1
s_and_b32 s42, s42, 3
s_add_u32 s{shq}, s41, s42
""")
    if KROT == "q8":
        a(f"""
s_lshl_b32 s{sk0}, s40, 1
s_and_b32 s41, s{shk}, 1
s_add_u32 s{sk0}, s{sk0}, s41
s_lshl_b32 s41, s{sx}, 2
s_add_u32 s{sk0}, s{sk0}, s41
s_and_b32 s41, s{srb}, 3
s_add_u32 s{sk0}, s{sk0}, s41
s_and_b32 s{sk0}, s{sk0}, 7
s_lshl_b32 s{sk0}, s{sk0}, 1
""")
    elif KROT in ("q8b", "q8c", "q8d"):
        if KROT == "q8c": a(f"s_and_b32 s41, s{srb}, 1\ns_lshl_b32 s{sk0}, s41, 1\ns_and_b32 s41, s{srb}, 2\ns_lshl_b32 s41, s41, 2\ns_add_u32 s{sk0}, s{sk0}, s41\ns_and_b32 s41, s{sx}, 1\ns_lshl_b32 s41, s41, 2\ns_add_u32 s{sk0}, s{sk0}, s41")
        else: a(f"s_and_b32 s41, s{srb}, 3\ns_lshl_b32 s{sk0}, s41, 2\ns_and_b32 s41, s{sx}, 1\ns_lshl_b32 s41, s41, 1\ns_add_u32 s{sk0}, s{sk0}, s41")
        if KROT == "q8b": a(f"s_and_b32 s41, s{shk}, 1\ns_lshl_b32 s41, s41, 3\ns_add_u32 s{sk0}, s{sk0}, s41\ns_lshl_b32 s41, s40, 1\ns_add_u32 s{sk0}, s{sk0}, s41")
        else: a(f"s_and_b32 s41, s{shk}, 1\ns_lshl_b32 s41, s41, 1\ns_add_u32 s{sk0}, s{sk0}, s41\ns_lshl_b32 s41, s40, 2\ns_add_u32 s{sk0}, s{sk0}, s41")
        a(f"s_and_b32 s{sk0}, s{sk0}, 15")
    elif KROT == "q4c":
        a(f"""
s_and_b32 s41, s{sx}, 1
s_add_u32 s{sk0}, s40, s41
s_lshl_b32 s41, s{srb}, 1
s_add_u32 s{sk0}, s{sk0}, s41
s_and_b32 s{sk0}, s{sk0}, 3
s_lshl_b32 s{sk0}, s{sk0}, 2
""")
        SL = opt("sl", "0")
        if SL != "0":
            a(f"s_and_b32 s41, s{shk}, {7 if SL == '1' else 6}\ns_cmp_eq_u32 s41, {3 if SL == '1' else 2}\ns_cselect_b32 s41, 6, 0\ns_and_b32 s41, s41, s{srb}\ns_sub_u32 s{sk0}, s{sk0}, s41\ns_and_b32 s{sk0}, s{sk0}, 15")
    elif KROT == "q4":
        a(f"""
s_lshl_b32 s41, s{sx}, 1
s_add_u32 s{sk0}, s40, s41
s_and_b32 s41, s{srb}, 1
s_add_u32 s{sk0}, s{sk0}, s41
s_and_b32 s{sk0}, s{sk0}, 3
s_lshl_b32 s{sk0}, s{sk0}, 2
""")
    elif KROT == "q2":
        a(f"s_xor_b32 s41, s{sx}, s40\ns_and_b32 s41, s41, 1\ns_lshl_b32 s{sk0}, s41, 3")
    elif KROT == "q3":
        a(f"""
s_and_b32 s41, s{sx}, 1
s_lshl_b32 s41, s41, 1
s_add_u32 s{sk0}, s40, s41
s_and_b32 s41, s{srb}, 1
s_add_u32 s{sk0}, s{sk0}, s41
s_mul_i32 s41, s{sk0}, 11
s_lshr_b32 s41, s41, 5
s_mul_i32 s41, s41, 3
s_sub_u32 s{sk0}, s{sk0}, s41
s_mul_i32 s{sk0}, s{sk0}, 11
s_lshr_b32 s{sk0}, s{sk0}, 1
""")
    else: a(f"s_mov_b32 s{sk0}, 0")
    a.jon = True
    a("s_cmp_lt_u32 s3, 4\ns_cbranch_scc1 L_comp")
    aux(a)
    compute(a)
    a("L_exit:\ns_endpgm\nL_code_end:")

def inter2(a, mf, others, per=2):
    o = list(others)
    for m in mf:
        a(m)
        for _ in range(per):
            if o: a(o.pop(0))
    for x in o: a(x)
def inter3(a, mf, l1, n1, l2, n2):
    l1 = list(l1); l2 = list(l2)
    for m in mf:
        a(m)
        for _ in range(n2):
            if l2: a(l2.pop(0))
        for _ in range(n1):
            if l1: a(l1.pop(0))
    assert not l1 and not l2
class L:
    def __init__(s): s.l = []
    def __call__(s, t): s.l += [x.strip() for x in t.strip("\n").split("\n")]
def maskbuild(a, sm, st, lo=4, step=2):
    a(f"s_mov_b32 s{sm}, 0")
    for i in range(8): a(f"s_cmp_eq_u64 s[{lo+2*i}:{lo+1+2*i}], s[{sEP}:{sEP+1}]\ns_cselect_b32 s{st}, {1 << (step*i):#x}, 0\ns_or_b32 s{sm}, s{sm}, s{st}")

def compute(a):
    vAb, vA, vBb, vB = 8, 10, 12, 14
    vY, vPW = 20, 21
    X, Y, ACC = 24, 64, 104
    vOne, vZero, vEp, vT, vL128 = 232, 233, 234, 235, 254
    QT = lambda dt, mt: ACC + 4 * (mt * 2 + dt)
    KK = lambda mt, nt: ACC + 32 + 4 * ((nt * 2 + (mt >> 1)) * 2 + (mt & 1))
    VV = lambda mt, nt: ACC + 64 + 4 * ((nt * 2 + (mt >> 1)) * 2 + (mt & 1))
    GATE = opt("gate", "kv")
    a("L_comp:")
    KR, WR, KF, WF, TM, VF, UT = 200, 242, 24, 68, 84, 56, 200
    VR = [222, 224, 226, 228, 230, 236, 238, 240]
    vP0, vP1, vP2, vTW = 16, 17, 18, 19
    ids2(a)
    a(f"""
s_lshl_b32 s45, s{ssb}, 18
s_lshl_b32 s46, s3, 16
s_add_u32 s45, s45, s46
s_lshl_b32 s46, s{sdb}, 7
s_add_u32 s45, s45, s46
v_lshrrev_b32 v2, 4, v4
v_and_b32 v1, 15, v4
v_lshlrev_b32 v3, 3, v1
v_lshl_add_u32 v{vP0}, v2, 14, v3
v_add_u32 v{vP0}, s45, v{vP0}
v_subrev_u32 v{vP1}, 6144, v{vP0}
s_movk_i32 s57, 4096
s_movk_i32 s58, 8192
s_movk_i32 s59, 12288
s_mov_b32 s62, {4*MB:#x}
s_mov_b32 s63, 0x20000
s_mov_b32 s66, {4*MB:#x}
s_mov_b32 s67, 0x20000
s_mov_b32 s70, 8192
s_mov_b32 s71, 0x20000
v_lshlrev_b32 v{vP2}, 5, v1
s_lshl_b32 s46, s{sdb}, 9
v_add_u32 v{vP2}, s46, v{vP2}
v_sub_u32 v3, 3, v2
s_lshl_b32 s45, s3, 2
s_sub_u32 s45, 12, s45
v_add_u32 v3, s45, v3
v_and_b32 v6, 7, v4
v_xor_b32 v3, v3, v6
v_lshlrev_b32 v3, 4, v3
v_lshl_add_u32 v3, v1, 10, v3
v_add_u32 v{vTW}, {HB}, v3
s_and_b32 s40, s3, 1
s_lshr_b32 s41, s3, 1
v_bfe_u32 v3, v4, 1, 3
v_xor_b32 v3, v2, v3
v_lshlrev_b32 v3, 4, v3
v_lshl_add_u32 v3, v1, 7, v3
s_lshl_b32 s45, s40, 13
v_add_u32 v{vAb}, s45, v3
v_xor_b32 v{vAb+1}, 64, v{vAb}
v_bfe_u32 v22, v4, 2, 2
v_lshl_add_u32 v3, v2, 3, v22
v_lshlrev_b32 v3, 7, v3
v_and_b32 v7, 3, v4
v_lshlrev_b32 v6, 3, v7
s_lshl_b32 s45, s41, 6
v_add_u32 v6, s45, v6
v_bfe_u32 v7, v4, 3, 1
v_lshlrev_b32 v7, 6, v7
v_xor_b32 v6, v6, v7
v_bfe_u32 v23, v4, 4, 1
v_lshlrev_b32 v7, 5, v23
v_xor_b32 v6, v6, v7
v_add_u32 v3, v3, v6
v_add_u32 v{vBb}, 0x4000, v3
v_xor_b32 v{vBb+1}, 32, v{vBb}
v_mov_b32 v{vB}, v{vBb}
v_mov_b32 v{vB+1}, v{vBb+1}
v_mov_b32 v{vA}, v{vAb}
v_mov_b32 v{vA+1}, v{vAb+1}
v_lshlrev_b32 v{vL128}, 7, v4
v_mov_b32 v{vY}, {SYNC}
v_mov_b32 v{vOne}, 1
v_mov_b32 v{vZero}, 0
v_lshlrev_b32 v6, 2, v4
v_add_u32 v6, {SYNC}, v6
ds_write_b32 v6, v{vZero}
s_lshl_b32 s45, s3, 2
v_add_u32 v{vPW}, s45, v{vY}
s_mov_b32 s53, 1
s_mov_b32 s56, 0xffff0000
s_waitcnt lgkmcnt(0)
{WSOFF}
s_mov_b64 s[60:61], s[{sK}:{sK+1}]
s_mov_b64 s[64:65], s[{sV}:{sV+1}]
s_mov_b64 s[68:69], s[{sSH}:{sSH+1}]
s_barrier
""")
    so = ["0", "s57", "s58", "s59"]
    for r in range(3): a(f"buffer_load_dwordx2 {vr(KR+2*r,2)}, v{vP1}, s[60:63], {so[r//2]} offen offset:{2048*(r%2)} {FL_KV}")
    for r in range(8): a(f"buffer_load_dwordx2 {vr(KR+6+2*r,2)}, v{vP0}, s[60:63], {so[r//2]} offen offset:{2048*(r%2)} {FL_KV}")
    for i in range(2): a(f"buffer_load_dwordx4 {vr(WR+4*i,4)}, v{vP2}, s[68:71], 0 offen offset:{16*i}")
    for r in range(8): a(f"buffer_load_dwordx2 {vr(VR[r],2)}, v{vP0}, s[64:67], {so[r//2]} offen offset:{2048*(r%2)} {FL_KV}")
    a("s_barrier")
    a.stamp(1)
    def reads(S, k2):
        ra = [f"ds_read_b128 {vr(S+4*mt,4)}, v{vA+k2} offset:{2048*mt}" for mt in range(4)]
        rb = [f"ds_read_b64_tr_b16 {vr(S+16+4*n+2*i2,2)}, v{vB+(n&1)} offset:{(n//2)*8192+k2*4096+i2*512}" for n in range(6) for i2 in range(2)]
        return [ra[0]] + rb + ra[1:]
    def mf(S, c=None):
        r = []
        for mt in range(4):
            Am = S + 4 * mt
            r += [mfma16(KK(mt, n), Am, S + 24 + 4 * n, c) for n in range(2)]
            r += [mfma16(VV(mt, n), Am, S + 32 + 4 * n, c) for n in range(2)]
            r += [mfma16(QT(d, mt), S + 16 + 4 * d, Am, c) for d in range(2)]
        return r
    adv = [f"v_add_u32 v{vA+1}, s52, v{vAb+1}", f"v_add_u32 v{vB}, s52, v{vBb}", f"v_add_u32 v{vB+1}, s52, v{vBb+1}"]
    for r in reads(X, 0): a(r)
    a(f"s_mov_b32 s52, {STG}\nv_add_u32 v{vA}, s52, v{vAb}\ns_waitcnt lgkmcnt(0)")
    w = L(); srd(w, 60, sWS, 32 * MB); srd(w, 68, sOUT, 8 * MB)
    interleave(a, mf(X, "0"), reads(Y, 1) + adv)
    a("s_waitcnt lgkmcnt(0)")
    interleave(a, mf(Y), w.l)
    a("s_waitcnt vmcnt(10)")
    unpack(a, KR, KF, 22, 56)
    a("s_waitcnt vmcnt(8)")
    for p in range(4):
        a(f"v_lshlrev_b32 v{WF+p}, 16, v{WR+2*p}\nv_and_b32 v{WF+4+p}, s56, v{WR+2*p}")
        a(f"v_lshlrev_b32 v{WF+8+p}, 16, v{WR+2*p+1}\nv_and_b32 v{WF+12+p}, s56, v{WR+2*p+1}")
    for i0 in range(0, 8, 2):
        ch = [(i, h) for i in (i0, i0 + 1) for h in range(2)]
        for c, (i, h) in enumerate(ch): a(f"v_pk_mul_f32 {vr(TM+2*c,2)}, {vr(KF+4*(i+3)+2*h,2)}, {vr(WF+2*h,2)}")
        for t in (2, 1):
            for c, (i, h) in enumerate(ch): a(f"v_pk_fma_f32 {vr(TM+2*c,2)}, {vr(KF+4*(i+t)+2*h,2)}, {vr(WF+4*(3-t)+2*h,2)}, {vr(TM+2*c,2)}")
        for c, (i, h) in enumerate(ch): a(f"v_pk_fma_f32 {vr(KF+4*i+2*h,2)}, {vr(KF+4*i+2*h,2)}, {vr(WF+12+2*h,2)}, {vr(TM+2*c,2)}")
    a("s_waitcnt vmcnt(0)")
    a(f"global_load_dword v{vEp}, v{vZero}, s[{sDBG}:{sDBG+1}] sc1")
    for r in range(8): unpack(a, VR[r], VF + 4 * r, 2, 56)
    for h in range(2):
        for i in range(8): a(f"v_pk_mul_f32 {vr(KF+4*i+2*h,2)}, {vr(KF+4*i+2*h,2)}, {vr(VF+4*i+2*h,2)}")
        for e in (2 * h, 2 * h + 1):
            for d in range(4): a(f"v_cvt_pk_bf16_f32 v{UT+4*e+d}, v{KF+4*(7-2*d)+e}, v{KF+4*(6-2*d)+e}")
            a(f"ds_write_b128 v{vTW}, {vr(UT+4*e,4)} offset:{256*e}")
    a("s_waitcnt lgkmcnt(0)\ns_barrier")
    for r in reads(X, 0): a(r)
    a(f"""
L_loop1:
s_add_u32 s52, s52, {STG}
s_cmp_eq_u32 s52, {3*STG}
s_cselect_b32 s52, 0, s52
v_add_u32 v{vA}, s52, v{vAb}
s_waitcnt lgkmcnt(0)
""")
    interleave(a, mf(X), reads(Y, 1) + adv)
    a("s_waitcnt lgkmcnt(0)")
    m = mf(Y)
    a(m[0]); a("s_barrier")
    interleave(a, m[1:], reads(X, 0) + ["s_add_u32 s53, s53, 1", "s_cmp_lt_u32 s53, 15"])
    a("s_cbranch_scc1 L_loop1")
    PK, PV, ONES, T, KV, Z, R, PQ = ACC + 32, ACC + 64, 200, 204, 212, 48, 236, ACC
    pre = [f"s_mov_b32 s54, {LOG2E:#x}", f"s_mov_b32 s55, {LOG2E:#x}", f"s_mov_b32 s56, {EPS:#x}",
           f"s_lshl_b32 s57, s{shk}, 2", "s_add_u32 s57, s57, s3", "s_lshl_b32 s57, s57, 4", f"s_add_u32 s57, s57, s{srb}",
           "s_lshl_b32 s58, s57, 10", f"s_add_u32 s58, s58, {WS_KVP:#x}", "s_lshr_b32 s59, s57, 4", "s_lshl_b32 s59, s59, 11",
           f"s_lshl_b32 s45, s{srb}, 4", "s_add_u32 s59, s59, s45", f"s_add_u32 s59, s59, {WS_ZP:#x}", "s_lshl_b32 s57, s57, 2"] + FA(57, FL_P).split("\n")
    pre += ["s_lshl_b32 s45, s3, 11", f"s_add_u32 s45, s45, {XCH}", "v_add_u32 v6, s45, v5", "v_xor_b32 v7, 2048, v6", "s_lshl_b32 s45, s3, 7", f"s_add_u32 s45, s45, {ZX}",
            "v_and_b32 v3, 0x30, v4", "v_add_u32 v16, s45, v3", "v_xor_b32 v17, 128, v16", f"v_xor_b32 v18, 4, v{vPW}"]
    pre += [f"v_mov_b32 v{ONES+i}, 0x3f803f80" for i in range(4)]
    mk = lambda S: [mfma16(KK(mt, n), S + 4 * mt, S + 24 + 4 * n) for n in range(2) for mt in range(4)]
    mv = lambda S: [mfma16(VV(mt, n), S + 4 * mt, S + 32 + 4 * n) for n in range(2) for mt in range(4)]
    mq = lambda S: [mfma16(QT(d, mt), S + 16 + 4 * d, S + 4 * mt) for mt in range(4) for d in range(2)]
    ry = reads(Y, 1)
    ry = [ry[0]] + ry[13:16] + ry[5:9] + ry[9:13] + ry[1:5]
    a("s_waitcnt lgkmcnt(0)")
    inter3(a, mk(X) + mv(X)[:4], pre, 3, ry, 2)
    a("s_waitcnt lgkmcnt(8)")
    for x in mk(Y)[:6]: a(x)
    a(f"s_waitcnt lgkmcnt(0)\nds_write_b32 v{vPW}, v{vOne} offset:{Y_FR}")
    w = L(); phi_pack_np(w, PK, PK, 16, T, 54, 56)
    inter2(a, mk(Y)[6:] + mv(X)[4:] + mv(Y), w.l, int(opt("kfi", "3")))
    a.stamp(2)
    a(f"s_setprio {opt('cprio', '2')}")
    pk1 = phi_pack if GATE != "none" else phi_pack_np
    pack(a, PV, PV, 32)
    for dt in range(2):
        if dt == 1: pk1(a, PK + 16, PK + 16, 16, T, 54, 56)
        a("s_nop 1")
        for p in range(2):
            c = "0" if p == 0 else None
            for et in range(2): a(mfma16(KV + 4 * (et * 2 + dt), PK + 16 * dt + 4 * p, PV + 8 * et + 4 * p, c))
            a(mfma16(Z + 4 * dt, PK + 16 * dt + 4 * p, ONES, c))
    a("s_cmp_eq_u32 s40, 0\ns_nop 5\ns_cbranch_scc1 L_x0")
    for i in range(8): a(f"v_swap_b32 v{KV+i}, v{KV+8+i}")
    a("L_x0:")
    a(f"ds_write_b128 v6, {vr(KV+8,4)}\nds_write_b128 v6, {vr(KV+12,4)} offset:1024")
    a(f"ds_write_b128 v16, {vr(Z,4)}\nds_write_b128 v16, {vr(Z+4,4)} offset:64")
    a(f"""
ds_write_b32 v{vPW}, v{vOne} offset:{Y_XC}
s_mov_b32 s45, 0
L_xspin:
ds_read_b32 v{vT}, v18 offset:{Y_XC}
ds_read_b128 {vr(R,4)}, v7
ds_read_b128 {vr(R+4,4)}, v7 offset:1024
ds_read_b128 {vr(R+8,4)}, v17
ds_read_b128 {vr(R+12,4)}, v17 offset:64
s_add_u32 s45, s45, 1
s_waitcnt lgkmcnt(4)
v_readfirstlane_b32 s46, v{vT}
s_cmp_gt_u32 s45, 0x40000
s_cbranch_scc1 L_xdone
s_cmp_eq_u32 s46, 0
s_cbranch_scc1 L_xspin
L_xdone:
s_waitcnt lgkmcnt(2)
""")
    def add8(d, r):
        if GATE != "none":
            for i in range(4): a(f"v_pk_add_f32 {vr(d+2*i,2)}, {vr(d+2*i,2)}, {vr(r+2*i,2)}")
        else:
            for i in range(8): a(f"v_add_f32 v{d+i}, v{d+i}, v{r+i}")
    add8(KV, R)
    pack(a, KV, KV + 8, 8)
    a(f"buffer_store_dwordx4 {vr(KV+8,4)}, v5, s[60:63], s58 offen sc1")
    a("s_waitcnt lgkmcnt(0)")
    add8(Z, R + 8)
    pack(a, Z, KV + 12, 8)
    a("s_mov_b32 exec_lo, 0x10001\ns_mov_b32 exec_hi, 0x10001")
    a(f"buffer_store_dwordx4 {vr(KV+12,4)}, v5, s[60:63], s59 offen sc1")
    a("s_mov_b64 exec, -1")
    if GATE == "kv": a(f"ds_write_b32 v{vPW}, v{vOne} offset:{Y_KD}")
    a.stamp(3)
    PP, AC, ZZ, SEL, D1, B2, DN, EQ, KO, KP = 24, 88, 96, 8, 120, 136, 152, 168, 172, 176
    su = L()
    su(f"""
s_lshl_b32 s47, s{shq}, 1
s_add_u32 s47, s47, s41
s_lshl_b32 s44, s{shq}, 2
s_add_u32 s44, s44, s3
s_lshl_b32 s58, s44, 14
s_add_u32 s58, s58, {WS_KVP:#x}
s_lshl_b32 s59, s44, 11
s_add_u32 s59, s59, {WS_ZP:#x}
s_lshl_b32 s44, s44, 6
{FC(44, FL_P, srb)}
s_lshl_b32 s45, s41, 2
v_add_u32 v14, s45, v{vY}
v_mov_b32 v6, 0x3f80
v_and_b32 v7, 1, v4
v_lshlrev_b32 v7, 4, v7
v_lshlrev_b32 v6, v7, v6
v_lshrrev_b32 v2, 4, v4
v_cmp_eq_u32 vcc, v2, v22
v_bfe_u32 v7, v4, 1, 1
v_mov_b32 v{SEL}, 0
v_cndmask_b32 v6, 0, v6, vcc
v_cmp_eq_u32 vcc, 0, v7
v_mov_b32 v{SEL+1}, 0
v_mov_b32 v{SEL+4}, 0
v_cndmask_b32 v{SEL+2}, 0, v6, vcc
v_cndmask_b32 v{SEL+3}, v6, v{vZero}, vcc
v_mov_b32 v{SEL+5}, 0
s_lshl_b32 s45, s3, 10
s_add_u32 s45, s45, {KVL}
v_add_u32 v6, s45, v5
s_xor_b32 s45, s3, 1
s_lshl_b32 s45, s45, 10
s_add_u32 s45, s45, {KVL}
v_add_u32 v7, s45, v5
s_lshl_b32 s48, s{srb}, 3
s_lshl_b32 s45, s40, 2
s_add_u32 s48, s48, s45
s_lshl_b32 s48, s48, 15
s_lshl_b32 s45, s47, 10
s_add_u32 s48, s48, s45
s_add_u32 s48, s48, {WS_O:#x}
s_lshl_b32 s49, s{srb}, 1
s_add_u32 s49, s49, s40
s_lshl_b32 s49, s49, 7
s_lshl_b32 s45, s47, 2
s_add_u32 s49, s49, s45
{FA(49, FL_O)}
s_mov_b32 s50, 0
s_mov_b32 s51, 0
s_mov_b32 s53, 0
s_mov_b32 s46, 0
""")
    qm = [x for mt in range(4) for S in (X, Y) for x in mq(S)[2 * mt:2 * mt + 2]]
    inter2(a, qm, su.l, 4)
    phiq = phi_pack if GATE == "pq" else phi_pack_np
    NQ1 = int(opt("nq1", "2"))
    if NQ1: phiq(a, ACC, PQ, 8 * NQ1, T, 54, 56)
    a(f"""
s_mov_b32 s45, 0
L_cep:
s_waitcnt vmcnt(0)
v_readfirstlane_b32 s{sEP}, v{vEp}
s_add_u32 s45, s45, 1
s_cmp_gt_u32 s45, 0x4000
s_cbranch_scc1 L_cepok
s_cmp_lg_u32 s{sEP}, 0
s_cbranch_scc1 L_cepok
global_load_dword v{vEp}, v{vZero}, s[{sDBG}:{sDBG+1}] sc1
s_branch L_cep
L_cepok:
s_mov_b32 s{sEP+1}, s{sEP}
""")
    flag_store(a, 60, 57, vEp, vL128)
    a(f"s_load_dwordx16 s[4:19], s[{sWS}:{sWS+1}], s44 glc")
    a.stamp(4)
    for mt in range(NQ1, 4): phiq(a, ACC + 8 * mt, PQ + 4 * mt, 8, T, 54, 56)
    if GATE == "pq": a(f"ds_write_b32 v{vPW}, v{vOne} offset:{Y_KD}")
    for i in range(4): a(f"v_mov_b64 {vr(AC+2*i,2)}, 0\nv_mov_b64 {vr(B2+4*i+2,2)}, 0\nv_mov_b32 v{EQ+i}, s56")
    a("s_setprio 3")
    def accm(j):
        for i in range(2):
            a(mfma16(AC, SEL + 2, PP + 8 * j + 4 * i)); a(mfma16(AC + 4, SEL, PP + 8 * j + 4 * i))
    for k in range(8):
        a(f"s_cmp_eq_u32 s46, 0\ns_cbranch_scc1 L_poll{k}\nL_go{k}:\ns_ff1_i32_b32 s45, s46\ns_bitset0_b32 s46, s45\ns_lshl_b32 s45, s45, 11\ns_add_u32 s45, s45, s58")
        for i in range(2): a(f"buffer_load_dwordx4 {vr(PP+8*k+4*i,4)}, v5, s[60:63], s45 offen offset:{1024*i} sc1")
        a(f"s_bitset1_b32 s51, {k}")
    a("s_branch L_fin")
    for k in range(8):
        a(f"L_poll{k}:\ns_waitcnt lgkmcnt(0)")
        for i in range(7, -1, -1): a(f"s_cmp_eq_u64 s[{4+2*i}:{5+2*i}], s[{sEP}:{sEP+1}]\ns_addc_u32 s46, s46, s46")
        a(f"""
s_add_u32 s53, s53, 1
s_cmp_gt_u32 s53, 0x8000
s_cselect_b32 s46, 0xff, s46
s_andn2_b32 s46, s46, s50
s_or_b32 s50, s50, s46
s_cmp_eq_u32 s50, 0xff
s_cbranch_scc0 L_pm{k}
buffer_load_dwordx4 {vr(ZZ,4)}, v5, s[60:63], s59 offen sc1
s_mov_b32 s47, s51
s_mov_b32 s52, {k}
""")
        if STAMP: a.stamp(5)
        a(f"""
s_branch L_go{k}
L_pm{k}:
s_load_dwordx16 s[4:19], s[{sWS}:{sWS+1}], s44 glc
s_cmp_lg_u32 s46, 0
s_cbranch_scc1 L_go{k}
""")
        if k == 0: a("s_branch L_poll0")
        else: a(f"s_cmp_eq_u32 s51, 0\ns_cbranch_scc1 L_poll{k}\ns_mov_b32 s52, {k}\ns_branch L_acc")
    a("L_acc:\ns_waitcnt vmcnt(0)")
    for j in range(7):
        a(f"s_bitcmp1_b32 s51, {j}\ns_cbranch_scc0 L_ac{j}"); accm(j); a(f"L_ac{j}:")
    a("s_mov_b32 s51, 0")
    for k in range(1, 7): a(f"s_cmp_eq_u32 s52, {k}\ns_cbranch_scc1 L_poll{k}")
    a("s_branch L_poll7\nL_fin:\ns_andn2_b32 s46, s51, s47")
    for k in range(7): a(f"s_cmp_eq_u32 s52, {k}\ns_cbranch_scc1 L_pw{k}")
    a("s_waitcnt vmcnt(2)\ns_branch L_pwd")
    for k in range(7): a(f"L_pw{k}:\ns_waitcnt vmcnt({2*(8-k)})" + ("\ns_branch L_pwd" if k < 6 else ""))
    a("L_pwd:")
    for i in range(4): a(mfma16(D1 + 4 * i, ZZ, PQ + 4 * i, "0"))
    for j in range(7):
        a(f"s_bitcmp1_b32 s47, {j}\ns_cbranch_scc0 L_ao{j}"); accm(j); a(f"L_ao{j}:")
    for i in range(4): a(f"v_cvt_pk_bf16_f32 v{B2+4*i}, v{D1+4*i}, v{D1+4*i+1}\nv_cvt_pk_bf16_f32 v{B2+4*i+1}, v{D1+4*i+2}, v{D1+4*i+3}")
    a("s_nop 0")
    for i in range(4): a(mfma16(DN + 4 * i, ONES, B2 + 4 * i, vr(EQ, 4)))
    for j in range(8):
        a(f"s_bitcmp1_b32 s46, {j}\ns_cbranch_scc0 L_an{j}\ns_waitcnt vmcnt({2*(7-j)})"); accm(j); a(f"L_an{j}:")
    a("s_nop 3")
    for i in range(4): a(f"v_rcp_f32 v{DN+4*i}, v{DN+4*i}")
    pack(a, AC, KO, 8)
    NO, NP, OP = 24, 40, 56
    a(f"ds_write_b128 v6, {vr(KO,4)}\nds_write_b32 v{vPW}, v{vOne} offset:{Y_K2}\nds_read_b32 v{vT}, v18 offset:{Y_K2}\nds_read_b128 {vr(KP,4)}, v7")
    for i in range(4): a(mfma16(NO + 4 * i, KO, PQ + 4 * i, "0"))
    a("s_mov_b32 s45, 0\ns_nop 3\ns_cmp_eq_u32 s40, 0")
    OPK = opt("opk", "0") == "1"
    def mul4(r, d):
        if OPK:
            for p in range(2): a(f"v_pk_mul_f32 {vr(r+2*p,2)}, {vr(r+2*p,2)}, {vr(d,2)} op_sel_hi:[1,0]")
        else:
            for p in range(4): a(f"v_mul_f32 v{r+p}, v{r+p}, v{d}")
    for i in range(4): mul4(NO + 4 * i, DN + 4 * i)
    a("s_cbranch_scc0 L_o1")
    for wr in range(2):
        if wr: a("L_o1:")
        for i in range(4): pack(a, NO + 4 * i, OP + 4 * i + 2 * wr, 4)
        a(f"""
s_branch L_ks{wr}g
L_ks{wr}:
ds_read_b32 v{vT}, v18 offset:{Y_K2}
ds_read_b128 {vr(KP,4)}, v7
L_ks{wr}g:
s_add_u32 s45, s45, 1
s_waitcnt lgkmcnt(0)
v_readfirstlane_b32 s46, v{vT}
s_cmp_gt_u32 s45, 0x40000
s_cbranch_scc1 L_kd{wr}
s_cmp_eq_u32 s46, 0
s_cbranch_scc1 L_ks{wr}
L_kd{wr}:
""")
        for i in range(4): a(mfma16(NP + 4 * i, KP, PQ + 4 * i, "0"))
        a("s_nop 4")
        for i in range(4):
            mul4(NP + 4 * i, DN + 4 * i)
            pack(a, NP + 4 * i, OP + 4 * i + 2 * (1 - wr), 4)
            a(f"buffer_store_dwordx4 {vr(OP+4*i,4)}, v5, s[60:63], s48 offen sc1")
            if i < 3: a("s_add_u32 s48, s48, 0x8000")
        if wr == 0: a("s_branch L_o2")
    a("L_o2:")
    a.stamp(9)
    OF, WX, WY, C, PO = 24, 88, 104, 120, 172
    vWb, vWA, vWB = 236, 8, 244
    a(f"""
s_lshl_b32 s59, s{sg_rb}, 3
s_lshl_b32 s45, s3, 1
s_add_u32 s59, s59, s45
s_lshl_b32 s45, s59, 15
s_add_u32 s45, s45, {WS_O:#x}
v_add_u32 v242, 0x8000, v5
s_mov_b32 s51, 0x55555555
""")
    srd_off(a, 64, sWS, "s45", 65536)
    a(f"""
s_lshl_b32 s52, s{sg_rb}, 8
s_lshl_b32 s46, s3, 6
s_add_u32 s52, s52, s46
{FC(52, FL_O, sg_cb)}
v_lshrrev_b32 v6, 2, v4
v_lshlrev_b32 v6, 7, v6
v_and_b32 v7, 3, v4
v_lshl_add_u32 v6, v7, 3, v6
v_bfe_u32 v7, v4, 3, 1
v_lshl_add_u32 v6, v7, 6, v6
v_lshl_add_u32 v{vWb}, v23, 5, v6
v_xor_b32 v{vWb+1}, 32, v{vWb}
v_xor_b32 v{vWb+2}, 64, v{vWb}
v_xor_b32 v{vWb+3}, 0x60, v{vWb}
s_lshl_b32 s57, s3, 11
s_add_u32 s57, s57, {XCH}
v_lshrrev_b32 v7, 5, v4
v_lshl_add_u32 v6, v23, 1, v7
v_and_b32 v7, 7, v4
v_xor_b32 v6, v6, v7
v_lshlrev_b32 v6, 4, v6
v_and_b32 v3, 15, v4
v_lshl_add_u32 v6, v3, 7, v6
v_add_u32 v15, s57, v6
v_xor_b32 v18, 64, v15
v_lshrrev_b32 v6, 3, v4
v_lshlrev_b32 v3, 4, v7
v_lshl_add_u32 v17, v6, 12, v3
v_xor_b32 v7, v7, v6
v_lshlrev_b32 v7, 4, v7
v_lshl_add_u32 v6, v6, 7, v7
v_add_u32 v16, s57, v6
s_mov_b32 s50, 0
s_mov_b32 s53, 0
s_mov_b32 s54, 0
s_lshl_b32 s55, s40, 4
""")
    for i in range(16): a(f"v_mov_b64 {vr(C+2*i,2)}, 0")
    a("s_waitcnt vmcnt(0)")
    flag_store(a, 60, 49, vEp, vL128)
    a.stamp(6)
    a(f"s_setprio {opt('gprio', '2')}")
    selno = [0]
    def select(slot):
        n = selno[0]; selno[0] += 1
        a(f"""
s_cmp_lg_u32 s50, 0
s_cbranch_scc1 L_sel{n}_ok
s_mov_b32 s45, 0
s_cmp_lg_u32 s51, 0
s_cbranch_scc1 L_sel{n}
s_mov_b32 s66, 0
s_mov_b32 s50, 0x55555555
s_branch L_sel{n}_ok
L_sel{n}:
ds_read_b32 v{vT}, v14 offset:{Y_CO}
ds_read_b32 v13, v{vY} offset:{Y_WM}
s_add_u32 s45, s45, 1
s_waitcnt lgkmcnt(0)
v_and_b32 v13, v13, v{vT}
s_cmp_gt_u32 s45, 0x40000
s_cselect_b32 s46, -1, 0
v_readfirstlane_b32 s50, v13
s_nop 3
s_or_b32 s50, s50, s46
s_and_b32 s50, s50, s51
s_cbranch_scc1 L_sel{n}_ok
s_cmp_lg_u32 s54, 0x5555
s_cbranch_scc1 L_sel{n}_p
s_sleep 1
s_branch L_sel{n}
L_sel{n}_p:
s_load_dwordx16 s[4:19], s[{sWS}:{sWS+1}], s52 glc
s_add_u32 s45, s45, 8
s_waitcnt lgkmcnt(0)
""")
        maskbuild(a, 54, 46)
        a(f"s_lshl_b32 s46, s54, s55\nv_mov_b32 v{vT}, s46\ns_mov_b64 exec, 1\nds_or_b32 v14, v{vT} offset:{Y_CO}\ns_mov_b64 exec, -1")
        a(f"s_branch L_sel{n}\nL_sel{n}_ok:")
        return [f"s_ff1_i32_b32 s46, s50", "s_bitset0_b32 s50, s46", "s_lshl_b32 s48, s46, 10", "s_bitset0_b32 s51, s46", f"s_lshl_b32 s{28+slot}, s46, 12"]
    def oload(slot):
        return [f"buffer_load_dwordx4 {vr(OF+16*slot+8*hh+4*rt,4)}, v{[5,242][rt]}, s[64:67], s48 offen offset:{1024*hh} {OSC}" for hh in range(2) for rt in range(2)]
    def wreads(S, hh, vw):
        return [f"ds_read_b64_tr_b16 {vr(S+4*ct+2*i2,2)}, v{vw+ct} offset:{hh*4096+i2*2048}" for ct in range(4) for i2 in range(2)]
    def wset(slot, vw): return [f"v_add_u32 v{vw+i}, s{28+slot}, v{vWb+i}" for i in range(4)]
    for sl in range(3):
        for x in select(sl): a(x)
        if sl == 0: a.stamp(7)
        for x in oload(sl): a(x)
    for x in wset(0, vWA): a(x)
    for r in wreads(WX, 0, vWA): a(r)
    a("L_gloop:")
    for u in range(4):
        cur, nxt = (vWA, vWB) if u % 2 == 0 else (vWB, vWA)
        sel = select((u + 3) % 4)
        ol = oload((u + 3) % 4)
        a("s_waitcnt vmcnt(10) lgkmcnt(0)")
        if TRACE: a("s_memrealtime s[100:101]")
        m = [mfma16(C + 4 * (rt * 4 + ct), WX + 4 * ct, OF + 16 * u + 4 * rt) for rt in range(2) for ct in range(4)]
        interleave(a, m, wreads(WY, 1, cur) + wset((u + 1) % 4, nxt) + sel[:4], 2)
        a("s_waitcnt vmcnt(8) lgkmcnt(0)")
        if TRACE: a(f"s_lshl_b32 m0, s53, 2\ns_add_u32 m0, m0, {u}\ns_nop 0\nv_writelane_b32 v252, s100, m0")
        m = [mfma16(C + 4 * (rt * 4 + ct), WY + 4 * ct, OF + 16 * u + 8 + 4 * rt) for rt in range(2) for ct in range(4)]
        if u == 3: oth = wreads(WX, 0, nxt) + [ol[0], ol[1], sel[4], ol[2], "s_add_u32 s53, s53, 1", ol[3], "s_cmp_lt_u32 s53, 4"]
        else: oth = wreads(WX, 0, nxt) + [ol[0], sel[4], ol[1]] + [None, ol[2], None, ol[3]]
        o2 = list(oth)
        for mm in m:
            a(mm)
            for _ in range(2):
                if o2:
                    x = o2.pop(0)
                    if x: a(x)
        for x in o2:
            if x: a(x)
    a("s_cbranch_scc1 L_gloop")
    a.stamp(8)
    a(f"""
s_lshl_b32 s48, s59, 16
s_lshl_b32 s49, s{sg_cb}, 7
s_add_u32 s48, s48, s49
s_add_u32 s49, s48, 0x8000
s_add_u32 s50, s48, 0x10000
s_add_u32 s51, s48, 0x18000
s_waitcnt lgkmcnt(0)
""")
    pack(a, C, PO, 32)
    a("s_nop 1")
    for q in range(4):
        a(f"v_permlane16_swap_b32 v{PO+4*q}, v{PO+4*q+2}\nv_permlane16_swap_b32 v{PO+4*q+1}, v{PO+4*q+3}")
    for rt in range(2):
        for qq in range(2): a(f"ds_write_b128 v{[15,18][qq]}, {vr(PO+8*rt+4*qq,4)}")
        for i in range(2): a(f"ds_read_b128 {vr(WX+8*rt+4*i,4)}, v16 offset:{1024*i}")
    for q in range(4):
        a(f"s_waitcnt lgkmcnt({[5,4,1,0][q]})")
        a(f"buffer_store_dwordx4 {vr(WX+4*q,4)}, v17, s[68:71], s{48+q} offen {FL_OUT}")
    if TRACE:
        a(f"v_writelane_b32 v252, s90, 16\ns_lshl_b32 s100, s2, 10\ns_add_u32 s100, s100, {WS_ST + 0x200000:#x}\nv_lshlrev_b32 v253, 2, v0\nbuffer_store_dword v252, v253, s[60:63], s100 offen")
    a.end()

def aux(a):
    vOA, vOB = 8, 12
    vZero, vEp, vOne, vY, vT = 6, 7, 14, 15, 3
    a(f"""
s_sub_u32 s3, s3, 4
v_lshrrev_b32 v1, 3, v4
v_and_b32 v2, 7, v4
v_lshrrev_b32 v3, 4, v4
v_xor_b32 v6, v2, v3
v_lshlrev_b32 v6, 4, v6
v_lshl_add_u32 v6, v1, 11, v6
s_lshl_b32 s60, s{srb}, 7
s_lshl_b32 s61, s3, 5
s_add_u32 s60, s60, s61
s_lshl_b32 s60, s60, 11
v_add_u32 v{vOA}, s60, v6
v_xor_b32 v6, 64, v{vOA}
v_add_u32 v{vOA+1}, {16384-1024}, v6
v_add_u32 v{vOA+2}, {2*(16384-1024)}, v{vOA}
v_add_u32 v{vOA+3}, {3*(16384-1024)}, v6
v_and_b32 v3, 1, v3
v_lshlrev_b32 v3, 2, v3
v_xor_b32 v7, v2, v3
v_lshlrev_b32 v7, 4, v7
v_xor_b32 v6, 32, v7
s_movk_i32 s61, 6144
v_mad_u32_u24 v7, v1, s61, v7
v_mad_u32_u24 v6, v1, s61, v6
s_mul_i32 s60, s3, {16*6144}
v_add_u32 v{vOB}, s60, v7
s_add_u32 s60, s60, {8*6144-1024}
v_add_u32 v{vOB+1}, s60, v6
s_lshl_b32 s65, s3, 12
s_lshl_b32 s66, s3, 11
s_add_u32 s66, s66, 0x4000
s_mov_b32 s64, 0
s_mov_b32 s67, s{sk0}
s_lshl_b32 s74, s{shq}, 7
s_lshl_b32 s75, s{shk}, 7
s_add_u32 s75, s75, 2048
s_mov_b32 s42, {4*MB:#x}
s_mov_b32 s43, 0x20000
s_mov_b32 s46, {6*MB:#x}
s_mov_b32 s47, 0x20000
s_waitcnt lgkmcnt(0)
s_mov_b64 s[40:41], s[{sX}:{sX+1}]
s_mov_b64 s[44:45], s[{sW}:{sW+1}]
""")
    vm = VM(a)
    def issue(tag):
        a(f"s_add_u32 m0, s64, s65\ns_lshl_b32 s60, s67, 7\ns_mul_i32 s63, s67, {64*6144}")
        for i in range(4): a(f"buffer_load_dwordx4 v{vOA+i}, s[40:43], s60 offen offset:{1024*i} lds")
        a(f"s_add_u32 m0, s64, s66\ns_add_u32 s61, s63, s74\ns_add_u32 s62, s63, s75")
        for i in range(2): a(f"buffer_load_dwordx4 v{vOB+i}, s[44:47], s61 offen offset:{1024*i} lds")
        a(f"s_add_u32 m0, m0, 8192\ns_add_u32 s63, s62, 2048")
        for i in range(2): a(f"buffer_load_dwordx4 v{vOB+i}, s[44:47], s62 offen offset:{1024*i} lds")
        a(f"s_add_u32 m0, m0, 8192\ns_add_u32 s67, s67, 1")
        for i in range(2): a(f"buffer_load_dwordx4 v{vOB+i}, s[44:47], s63 offen offset:{1024*i} lds")
        a(f"s_and_b32 s67, s67, 15\ns_add_u32 s64, s64, {STG}\ns_cmp_eq_u32 s64, {3*STG}\ns_cselect_b32 s64, 0, s64")
        vm.issue(tag, 10)
    def B(i): vm.wait(i); a.bar()
    issue(0)
    a("s_barrier")
    ids2(a)
    a(f"v_mov_b32 v{vZero}, 0\nv_mov_b32 v{vOne}, 1\nv_mov_b32 v{vY}, {SYNC}\nv_lshlrev_b32 v255, 7, v4\n{WSOFF}")
    srd(a, 48, sWS, 32 * MB)
    srd(a, 52, sDBG, 256)
    a(f"""
s_or_b32 s60, s2, s3
s_cmp_eq_u32 s60, 0
s_cbranch_scc0 L_noep
s_memrealtime s[60:61]
s_waitcnt lgkmcnt(0)
s_or_b32 s60, s60, 1
v_mov_b32 v{vEp}, s60
s_mov_b64 exec, 1
buffer_store_dword v{vEp}, v{vZero}, s[52:55], 0 offen sc1
s_mov_b64 exec, -1
L_noep:
""")
    P, Qs, CACC, W2, QQ = 32, 96, 160, 192, 224
    VU = [240, 241, 242, 243]; vH, vE, vS, vTR, vHP = 244, 245, 246, 247, 251
    vUS, vHL, vO = 25, 26, 20
    a(f"""
s_mul_i32 s68, s3, {HCH}
s_add_u32 s68, s68, {HB}
s_lshl_b32 s69, s{ssb}, 7
s_lshl_b32 s70, s3, 5
s_add_u32 s69, s69, s70
v_lshrrev_b32 v28, 4, v4
v_bfe_u32 v29, v4, 2, 2
v_and_b32 v30, 3, v4
v_and_b32 v31, 15, v4
s_lshl_b32 s60, s3, 12
s_add_u32 s60, s60, {HB}
v_add_u32 v{vTR}, s60, v5
s_and_b32 s60, s3, 1
s_lshl_b32 s60, s60, 6
v_xor_b32 v{vTR}, s60, v{vTR}
v_xor_b32 v{vTR+1}, 16, v{vTR}
v_xor_b32 v{vTR+2}, 32, v{vTR}
v_xor_b32 v{vTR+3}, 48, v{vTR}
v_lshlrev_b32 v3, 12, v28
v_lshl_add_u32 v{vUS}, v31, 4, v3
s_lshl_b32 s60, s{sdb}, 18
s_lshl_b32 s61, s3, 16
s_add_u32 s60, s60, s61
s_lshl_b32 s61, s{ssb}, 8
s_sub_u32 s60, s60, s61
s_add_u32 s60, s60, {WS_UT + 3840}
v_add_u32 v{vUS}, s60, v{vUS}
v_lshlrev_b32 v{vHL}, 5, v4
v_and_b32 v3, 1, v28
v_lshlrev_b32 v3, 2, v3
v_xor_b32 v3, v2, v3
v_lshrrev_b32 v27, 5, v4
v_lshlrev_b32 v27, 1, v27
v_xor_b32 v3, v27, v3
v_lshlrev_b32 v3, 4, v3
v_lshl_add_u32 v3, v1, 11, v3
s_lshl_b32 s60, s{sg_cb}, 7
v_add_u32 v{vO}, s60, v3
v_add_u32 v{vO+1}, {16384-1024}, v{vO}
v_add_u32 v{vO+2}, {2*(16384-1024)}, v{vO}
v_add_u32 v{vO+3}, {3*(16384-1024)}, v{vO}
s_mov_b32 s70, 0xffff0000
v_and_b32 v3, 1, v28
s_movk_i32 s60, {HP}
v_mul_u32_u24 v3, s60, v3
v_lshl_add_u32 v3, v31, 4, v3
v_add_u32 v{vHP}, s68, v3
s_mul_i32 s71, s3, {UCH}
s_add_u32 s71, s71, {U0}
v_add_u32 v19, s71, v5
s_movk_i32 s61, {CPY}
v_and_b32 v24, 1, v29
v_mul_u32_u24 v24, s61, v24
v_lshl_add_u32 v24, v30, 4, v24
v_add_u32 v24, s71, v24
v_add_u32 v3, 1, v31
v_and_b32 v16, 1, v3
v_add_u32 v17, v16, v31
v_mul_u32_u24 v3, s61, v16
v_lshl_add_u32 v3, v28, 5, v3
v_lshlrev_b32 v17, 1, v17
v_sub_u32 v3, v3, v17
s_add_u32 s60, s71, {4014 - 512 - 16}
v_add_u32 v{VU[0]}, s60, v3
v_subrev_u32 v{VU[1]}, 1024, v{VU[0]}
v_subrev_u32 v{VU[2]}, 2048, v{VU[0]}
v_subrev_u32 v{VU[3]}, 3072, v{VU[0]}
v_add_u32 v3, v31, v28
s_add_u32 s60, s68, 208
v_lshlrev_b32 v3, 4, v3
v_add_u32 v{vH}, s60, v3
v_lshlrev_b32 v3, 5, v31
v_lshl_add_u32 v16, v28, 3, v3
s_add_u32 s60, s71, {4088 - 3584}
v_sub_u32 v{vE}, s60, v16
v_and_b32 v16, 1, v28
v_lshl_add_u32 v3, v16, 9, v3
v_lshrrev_b32 v16, 5, v4
v_lshl_add_u32 v{vS}, v16, 4, v3
v_lshlrev_b32 v27, 4, v2
v_lshl_add_u32 v16, v1, 11, v27
v_lshl_add_u32 v17, v1, 12, v27
s_add_u32 s39, s{sch}, s3
s_and_b32 s60, s39, 0xfffffffe
s_lshl_b32 s60, s60, 1
s_load_dword s71, s[{sD}:{sD+1}], s60
s_lshl_b32 s61, s39, 12
""")
    for i in range(16): a(f"v_mov_b64 {vr(CACC+2*i,2)}, 0")
    srd_off(a, 52, sH, "s61", 4096); srd(a, 56, sWO, 2 * MB)
    a(f"s_waitcnt lgkmcnt(0)\ns_mov_b32 s20, s{sQ}\ns_mov_b32 s21, s{sQ+1}")
    def hload():
        a(f"s_add_u32 m0, s68, 256\ns_movk_i32 s60, 1024\ns_movk_i32 s61, 1040")
        a(f"buffer_load_dwordx4 v{vHL}, s[52:55], 0 offen {FL_KV} lds\nbuffer_load_dwordx4 v{vHL}, s[52:55], s60 offen offset:1024 {FL_KV} lds")
        a(f"s_add_u32 m0, s68, {HP+256}\ns_nop 0")
        a(f"buffer_load_dwordx4 v{vHL}, s[52:55], 16 offen {FL_KV} lds\nbuffer_load_dwordx4 v{vHL}, s[52:55], s61 offen offset:1024 {FL_KV} lds")
        vm.issue("h", 4)
    def epoch():
        a(f"""
v_readfirstlane_b32 s{sEP}, v{vEp}
s_lshl_b32 s33, s{sdb}, 2
s_add_u32 s33, s33, s3
s_lshl_b32 s33, s33, 4
s_add_u32 s33, s33, s{ssb}
s_lshl_b32 s33, s33, 2
{FA(33, FL_U)}
s_mov_b32 s60, 0
s_cmp_lg_u32 s{sEP}, 0
s_cbranch_scc1 L_epok
L_eploop:
global_load_dword v{vEp}, v{vZero}, s[{sDBG}:{sDBG+1}] sc1
s_add_u32 s60, s60, 1
s_waitcnt vmcnt(0)
v_readfirstlane_b32 s{sEP}, v{vEp}
s_cmp_gt_u32 s60, 0x4000
s_cbranch_scc1 L_epok
s_cmp_eq_u32 s{sEP}, 0
s_cbranch_scc1 L_eploop
L_epok:
s_mov_b32 s{sEP+1}, s{sEP}
""")
    UT = 32
    B(0); issue(1); issue(2)
    B(1)
    for e in range(4): a(f"ds_read_b128 {vr(UT+4*e,4)}, v{vTR+e} offset:{1024*e}")
    issue(3)
    a(f"s_movk_i32 s60, 0x4000\ns_mov_b32 s61, 0x8000\ns_mov_b32 s62, 0xc000")
    for e in range(4):
        a(f"s_waitcnt lgkmcnt({3-e})\nbuffer_store_dwordx4 {vr(UT+4*e,4)}, v{vUS}, s[48:51], {['0','s60','s61','s62'][e]} offen sc1")
    vm.issue("st", 4)
    a(f"global_load_dword v{vEp}, v{vZero}, s[{sDBG}:{sDBG+1}] sc1"); vm.issue("ep")
    a.stamp(9)
    B(2); issue(4)
    B(3); vm.wait("ep"); epoch(); flag_store(a, 48, 33, vEp, 255); vm.issue("fl"); issue(5)
    a("s_mov_b32 s33, 4\nL_lloop:\ns_waitcnt vmcnt(10)")
    if TRACE:
        a("s_memrealtime s[96:97]\ns_lshl_b32 m0, s33, 1\ns_waitcnt lgkmcnt(0)\nv_writelane_b32 v252, s96, m0\ns_barrier\ns_memrealtime s[96:97]\ns_add_u32 m0, m0, 1\ns_waitcnt lgkmcnt(0)\nv_writelane_b32 v252, s96, m0")
        a.tn = 28
    else: a("s_barrier")
    issue(99)
    a(f"s_add_u32 s33, s33, 1\ns_cmp_le_u32 s33, 13\ns_cbranch_scc1 L_lloop")
    vm.q = [14] * 10 + [15] * 10
    a(f"s_lshl_b32 s67, s39, 7\ns_add_u32 s67, s67, {FL_U:#x}\ns_load_dwordx16 s[4:19], s[{sWS}:{sWS+1}], s67 glc")
    srd(a, 40, 20, 4 * MB); srd(a, 44, sOUT, 8 * MB)
    sU = {0: 74, 1: 75, 2: 65, 3: 66}
    a("s_mov_b32 s74, s3\ns_add_u32 s75, s3, 4\ns_add_u32 s65, s3, 8\ns_add_u32 s66, s3, 12")
    def w2(g):
        r = [f"s_lshl_b32 s60, s{sU[g]}, 17", "s_add_u32 s61, s60, 0x10000"]
        for hh in range(2):
            for i in range(4): r.append(f"buffer_load_dwordx4 {vr(W2+16*hh+4*i,4)}, v{vO+i}, s[56:59], s{60+hh} offen offset:{1024*i} {FL_WO}")
        vm.issue(f"w{g}", 8)
        return r
    def wb(g):
        a(f"s_lshl_b32 m0, s{sU[g]}, 13\ns_lshl_b32 s60, s{sU[g]}, 17\ns_add_u32 s61, s60, 0x10000")
        for hh in range(2):
            for i in range(4): a(f"buffer_load_dwordx4 v{vO+i}, s[56:59], s{60+hh} offen offset:{1024*i} {FL_WO} lds")
            if hh == 0: a("s_add_u32 m0, m0, 4096\ns_nop 0")
        vm.issue(f"w{g}", 8)
    def wm_lines(bits):
        return ["s_lshl_b32 s60, s3, 1", f"s_lshl_b32 s60, {bits:#x}, s60", f"v_mov_b32 v{vT}, s60", f"s_mov_b64 exec, 1\nds_or_b32 v{vY}, v{vT} offset:{Y_WM}\ns_mov_b64 exec, -1"]
    D, E, O = 32, 48, 52
    B(14)
    a(f"ds_write_b128 v{vHP}, {vr(CACC,4)}")
    hload()
    a(f"s_lshl_b32 s63, s39, 12")
    srd_off(a, 52, sWS, "s63", 4096)
    a("s_waitcnt lgkmcnt(0)")
    for i in range(8): a(f"s_cmp_eq_u64 s[{4+2*i}:{5+2*i}], s[{sEP}:{sEP+1}]\ns_cbranch_scc0 L_us")
    a("s_branch L_upoll_done\nL_us:")
    spoll(a, "L_upoll", 67, 60)
    for j in range(4):
        a(f"buffer_load_dwordx4 {vr(D+4*j,4)}, v5, s[52:55], 0 offen offset:{1024*j} sc1")
    vm.issue("d", 4)
    B(15)
    a.stamp(1)
    a(f"ds_write_b128 v24, {vr(CACC,4)} offset:4096")
    wb(2)
    vm.wait("d")
    for j in range(3): a(f"v_mov_b32_dpp v{E+j}, v{D+4*j+4} wave_rol:1 row_mask:0xf bank_mask:0xf")
    a(f"v_mov_b32 v{E+3}, 0\ns_nop 0")
    for j in range(4): a(f"v_mov_b32_dpp v{E+j}, v{D+4*j} wave_shl:1 row_mask:0xf bank_mask:0xf")
    for j in range(4):
        d = [D + 4 * j + i for i in range(4)] + [E + j]
        o = O + 4 * j
        a(f"ds_write_b128 v19, {vr(D+4*j,4)} offset:{1024*j}")
        for i in range(4): a(f"v_alignbit_b32 v{o+i}, v{d[i+1]}, v{d[i]}, 16")
        a(f"ds_write_b128 v19, {vr(o,4)} offset:{CPY+1024*j}")
    def wait4(lab, off, slp=1, T=68):
        a(f"""
s_mov_b32 s60, 0
{lab}:
ds_read_b128 v[{T}:{T+3}], v{vY} offset:{off}
s_add_u32 s60, s60, 1
s_waitcnt lgkmcnt(0)
v_and_b32 v{T}, v{T}, v{T+1}
v_and_b32 v{T+2}, v{T+2}, v{T+3}
v_and_b32 v{T}, v{T}, v{T+2}
s_cmp_gt_u32 s60, 0x40000
s_cbranch_scc1 {lab}_d
v_readfirstlane_b32 s61, v{T}
s_nop 3
s_cmp_eq_u32 s61, 1
s_cbranch_scc1 {lab}_d
s_sleep {slp}
s_branch {lab}
{lab}_d:
""")
    wait4("L_fr", Y_FR)
    a.stamp(2)
    wb(1); wb(0)
    a(f"""
s_lshl_b32 s30, s69, 11
s_lshl_b32 s61, s{sdb}, 7
s_add_u32 s30, s30, s61
s_lshl_b32 s63, s69, 12
s_add_u32 s63, s63, s61
s_add_u32 s63, s63, 2048
s_lshl_b32 s66, s{sg_rb}, 8
s_lshl_b32 s61, s3, 6
s_add_u32 s66, s66, s61
{FC(66, FL_O, sg_cb)}
s_add_u32 s31, s3, 12
s_bitcmp1_b32 s3, 0
s_cselect_b32 s60, 0, 16
s_cselect_b32 s33, 16, 0
s_lshl_b32 s71, s71, s60
s_and_b32 s71, s71, 0xffff0000
s_lshr_b32 s60, s3, 1
v_lshl_add_u32 v19, s60, 2, v{vY}
s_mov_b32 s32, s{sch}
{FA(32, FL_Y, 8192)}
s_lshl_b32 s67, s{sdb}, 6
s_lshl_b32 s60, s{ssb}, 2
s_add_u32 s60, s60, s3
{FC(67, FL_Y, 60, 8192)}
s_mov_b32 s64, 0
""")
    sU[3] = 31
    def creads(S, rho):
        r = []
        for i in range(8):
            o0 = 128 * (1 - i % 2) + 4 * (1 - rho)
            r.append(f"ds_read2_b32 {vr(S+4*i,2)}, v{VU[i//2]} offset0:{o0} offset1:{o0+1}")
            r.append(f"ds_read2_b32 {vr(S+4*i+2,2)}, v{VU[i//2]} offset0:{o0+2} offset1:{o0+3}")
            r.append(f"ds_read_b128 {vr(S+32+4*i,4)}, v{vH} offset:{256*i+(HP if rho == 0 else 0)}")
        return r
    def cmf(S):
        return [mfma16(CACC + 4 * (x + y), S + 4 * x, S + 32 + 4 * y) for x in range(8) for y in range(8 - x)]
    for r in creads(P, 0): a(r)
    if opt("gate", "kv") != "none": wait4("L_kd", Y_KD, T=Qs)
    a.stamp(3)
    a(f"s_setprio {opt('vprio', '0')}")
    adv = [f"v_subrev_u32 v{x}, 128, v{x}" for x in VU] + [f"v_subrev_u32 v{vH}, 64, v{vH}"]
    pn = [0]
    def Pissue(): return f"s_load_dwordx16 s[4:19], s[{sWS}:{sWS+1}], s66 glc"
    def Pcheck(w):
        n = pn[0]; pn[0] += 1
        maskbuild(w, 62, 60)
        w(f"s_mov_b32 s64, s62\ns_lshl_b32 s60, s62, s33\nv_mov_b32 v{vT}, s60")
        g = f"s_mov_b64 exec, 1\nds_or_b32 v19, v{vT} offset:{Y_CO}\ns_mov_b64 exec, -1"
        if isinstance(w, L): w.l.append(g)
        else: w(g)
    a("s_waitcnt lgkmcnt(0)")
    interleave(a, cmf(P), creads(Qs, 1) + adv)
    a("s_waitcnt lgkmcnt(0)")
    vm.wait("w0")
    ex = wm_lines(0x10101) + w2(3)
    ex += [x for i in range(4) for x in ([f"buffer_load_dwordx4 {vr(QQ+4*i,4)}, v16, s[40:43], s30 offen {FL_KV}"] + (["s_add_u32 s30, s30, 0x4000"] if i < 3 else []))]
    vm.issue("q", 4)
    CVP = opt("cvpoll", "1") == "1"
    inter3(a, cmf(Qs), ["s_mov_b32 s29, 1"] + ([Pissue()] if CVP else []) + ex, 1, creads(P, 0), 1)
    a("L_cloop:\ns_waitcnt lgkmcnt(0)")
    w = L(); Pcheck(w)
    inter3(a, cmf(P), w.l + [Pissue()] if CVP else [], 3, creads(Qs, 1) + adv, 1)
    a("s_waitcnt lgkmcnt(0)")
    w = L(); Pcheck(w)
    inter3(a, cmf(Qs), w.l + [Pissue()] if CVP else [], 3, creads(P, 0) + ["s_add_u32 s29, s29, 1", "s_cmp_lt_u32 s29, 4"], 1)
    a("s_cbranch_scc1 L_cloop")
    a.stamp(4)
    if not CVP: a(Pissue())
    UU, T = Qs + 40, Qs + 56
    for t in range(8): a(f"ds_read_b64 {vr(UU+2*t,2)}, v{vE} offset:{512*(7-t)}")
    ladd(a, vY, Y_CD, vOne)
    a(f"s_setprio {opt('yprio', '1')}\ns_waitcnt lgkmcnt(0)")
    Pcheck(a); a(Pissue())
    for t in range(8):
        a(f"v_and_b32 v{T}, s70, v{UU+2*t+1}\nv_lshlrev_b32 v{T+1}, 16, v{UU+2*t+1}")
        a(f"v_and_b32 v{T+2}, s70, v{UU+2*t}\nv_lshlrev_b32 v{T+3}, 16, v{UU+2*t}")
        for i in range(4): a(f"v_fmac_f32 v{CACC+4*t+i}, s71, v{T+i}")
        a(f"v_cvt_pk_bf16_f32 v{UU+2*t}, v{CACC+4*t}, v{CACC+4*t+1}")
        a(f"v_cvt_pk_bf16_f32 v{UU+2*t+1}, v{CACC+4*t+2}, v{CACC+4*t+3}")
    a("s_nop 1")
    for t in range(0, 8, 2):
        a(f"v_permlane16_swap_b32 v{UU+2*t}, v{UU+2*t+2}\nv_permlane16_swap_b32 v{UU+2*t+1}, v{UU+2*t+3}")
    vm.wait("w3")
    for t in range(0, 8, 2): a(f"buffer_store_dwordx4 {vr(UU+2*t,4)}, v{vS}, s[52:55], 0 offen offset:{512*t} sc1")
    a("s_waitcnt lgkmcnt(0)")
    Pcheck(a)
    lspin(a, "L_cdspin", vY, Y_CD, "4", vT, 60, 61, slp=0)
    a(Pissue())
    a(f"s_lshl_b32 s60, s31, 13\nv_add_u32 v18, s60, v5")
    for i in range(8): a(f"ds_write_b128 v18, {vr(W2+4*i,4)} offset:{1024*i}")
    for x in wm_lines(0x1000000): a(x)
    a.stamp(5)
    a(f"""
s_lshl_b32 s65, s{sdb}, 18
s_lshl_b32 s60, s69, 1
s_add_u32 s65, s65, s60
s_add_u32 s65, s65, {WS_YT:#x}
v_lshrrev_b32 v18, 2, v4
v_lshlrev_b32 v18, 12, v18
v_lshl_add_u32 v18, v30, 4, v18
v_lshl_add_u32 v20, v28, 3, v29
v_lshlrev_b32 v20, 6, v20
v_lshl_add_u32 v20, v30, 3, v20
v_add_u32 v20, s68, v20
s_movk_i32 s60, 144
v_mul_u32_u24 v24, s60, v31
v_lshl_add_u32 v24, v28, 4, v24
v_add_u32 v24, s68, v24
v_mul_u32_u24 v25, s60, v1
v_add3_u32 v25, v25, v27, s68
s_mov_b32 m0, s68
s_waitcnt lgkmcnt(0)
""")
    Pcheck(a)
    a(f"""
s_waitcnt vmcnt(0)
s_mov_b64 exec, 1
ds_add_rtn_u32 v{vT}, v{vY}, v{vOne} offset:{Y_CY}
s_mov_b64 exec, -1
s_waitcnt lgkmcnt(0)
v_readfirstlane_b32 s60, v{vT}
s_nop 3
s_cmp_eq_u32 s60, 3
s_cbranch_scc0 L_yfl
""")
    flag_store(a, 48, 32, vEp, 255, "-1")
    a("L_yfl:")
    a.stamp(6)
    a("s_setprio 0")
    unpack(a, QQ, 96, 16, 70)
    a("s_mov_b32 s61, 0\nL_yloop:\ns_cmp_eq_u32 s64, 0x5555\ns_cbranch_scc1 L_ynop")
    a(Pissue() + "\ns_waitcnt lgkmcnt(0)"); Pcheck(a)
    a(f"L_ynop:\ns_load_dwordx16 s[4:19], s[{sWS}:{sWS+1}], s67 glc\ns_add_u32 s61, s61, 1\ns_cmp_gt_u32 s61, 0x8000\ns_cbranch_scc1 L_ydone\ns_waitcnt lgkmcnt(0)")
    for i in range(8): a(f"s_cmp_eq_u64 s[{4+2*i}:{5+2*i}], s[{sEP}:{sEP+1}]\ns_cbranch_scc0 L_yloop")
    a("L_ydone:\ns_waitcnt lgkmcnt(0)")
    a.stamp(7)
    for i in range(4):
        a(f"buffer_load_dwordx4 v18, s[48:51], s65 offen offset:{1024*i} sc1 lds")
        if i < 3: a(f"s_add_u32 s65, s65, {0x10000-1024}")
    YY, T = 48, 64
    a("s_waitcnt vmcnt(0)")
    a.stamp(8)
    for sh in range(2):
        for oh in range(2):
            for i2 in range(2):
                a(f"ds_read_b64_tr_b16 {vr(YY+8*sh+4*oh+2*i2,2)}, v20 offset:{32*sh+2048*oh+256*i2}")
    a("s_waitcnt lgkmcnt(0)")
    for sh in range(2):
        for oh in range(2): a(f"ds_write_b128 v24, {vr(YY+8*sh+4*oh,4)} offset:{16*144*sh+64*oh}")
    for j in range(4): a(f"ds_read_b128 {vr(YY+32+4*j,4)}, v25 offset:{8*144*j}")
    for j in range(4):
        a(f"s_waitcnt lgkmcnt({3-j})")
        unpack(a, YY + 32 + 4 * j, T, 4, 70)
        for e in range(8): a(f"v_mul_f32 v{T+e}, v{T+e}, v{96+8*j+e}")
        pack(a, T, QQ + 4 * j, 8)
        a(f"buffer_store_dwordx4 {vr(QQ+4*j,4)}, v17, s[44:47], s63 offen {FL_OUT}")
        if j < 3: a("s_add_u32 s63, s63, 0x8000")
    a.trace_out()
    a.end()

def desc(name, vgpr, sgpr=102):
    return f""".amdhsa_kernel {name}
  .amdhsa_next_free_vgpr {vgpr}
  .amdhsa_next_free_sgpr {sgpr}
  .amdhsa_accum_offset {(vgpr + 3) // 4 * 4}
  .amdhsa_group_segment_fixed_size 0
  .amdhsa_kernarg_size 96
  .amdhsa_user_sgpr_count 2
  .amdhsa_user_sgpr_kernarg_segment_ptr 1
  .amdhsa_system_sgpr_workgroup_id_x 1
.end_amdhsa_kernel
"""
def main():
    out = open("cdna_kernels/" + NAME + ".s.ref").read().split("; Override launch")[0]
    KS = [KN]
    if AMP:
        out += f"; @launch kernel={KN} grid=(256,1,1) block=(512,1,1) lds={LDS}\n"
        out += "; @launch kernel=kd_kernel grid=(1,1,1) block=(64,1,1) lds=0\n"; KS.append("kd_kernel")
    else:
        out += f"; @launch grid=(256,1,1) block=(512,1,1) lds={LDS}\n"
    out += '.amdgcn_target "amdgcn-amd-amdhsa--gfx950"\n.text\n'
    for k in KS: out += f".globl {k}\n.type {k},@function\n"
    out += ".p2align 8\n"
    a = A()
    kernel(a)
    if AMP: kd.kernel_d(a, AMP, WS_ST)
    out += a.text()
    out += '.section .rodata,"a"\n'
    for k in KS: out += ".p2align 6\n" + desc(k, 256)
    path = sys.argv[1] if len(sys.argv) > 1 and not sys.argv[1].startswith("--") else "cdna_kernels/" + NAME + ".s"
    open(path, "w").write(out)
main()
```

```python
def kernel_d(a, AMP, WS_ST):
    kA, iA, aggA, kB, iB, aggB, wsel, fac = AMP.split(",")
    kA, iA, kB, iB, wsel, fac = int(kA), int(iA), int(kB), int(iB), int(wsel), int(fac)
    a(f"""
.p2align 8
kd_kernel:
s_cmp_ge_u32 s2, 1
s_cbranch_scc1 Ld_exit
s_load_dwordx2 s[4:5], s[0:1], 88
s_waitcnt lgkmcnt(0)
s_add_u32 s4, s4, {WS_ST:#x}
s_addc_u32 s5, s5, 0
s_mov_b32 s6, 0x100000
s_mov_b32 s7, 0x20000
s_load_dword s16, s[4:5], 0
v_lshlrev_b32 v1, 5, v0
""")
    if wsel == 1: a("v_and_b32 v1, 0xffffff7f, v1")
    if wsel == 2: a("v_or_b32 v1, 0x80, v1")
    a(f"s_mov_b32 s17, {kA*65536 + iA*4}\ns_mov_b32 s18, {kB*65536 + iB*4}")
    for i in range(32):
        a(f"buffer_load_dword v{8+i}, v1, s[4:7], s17 offen\nbuffer_load_dword v{40+i}, v1, s[4:7], s18 offen\ns_add_u32 s17, s17, 2048\ns_add_u32 s18, s18, 2048")
        if i == 15: a("s_waitcnt vmcnt(0)")
    a("s_waitcnt vmcnt(0) lgkmcnt(0)\ns_sub_u32 s16, s16, 0x10000")
    for i in range(64): a(f"v_subrev_u32 v{8+i}, s16, v{8+i}")
    if aggA == "mean":
        for i in range(32): a(f"v_sub_u32 v{40+i}, v{40+i}, v{8+i}")
        for i in range(1, 32): a(f"v_add_u32 v40, v40, v{40+i}")
        a("s_nop 1\nv_readlane_b32 s21, v40, 0")
        for l in range(1, 64): a(f"v_readlane_b32 s23, v40, {l}\ns_nop 3\ns_add_u32 s21, s21, s23")
        a(f"""
s_mul_i32 s21, s21, {fac}
s_lshr_b32 s6, s21, 11
s_min_u32 s6, s6, 100000
s_memrealtime s[8:9]
s_waitcnt lgkmcnt(0)
Ld_spin:
s_memrealtime s[10:11]
s_waitcnt lgkmcnt(0)
s_sub_u32 s12, s10, s8
s_cmp_lt_u32 s12, s6
s_cbranch_scc1 Ld_spin
Ld_exit:
s_endpgm
""")
        return
    for i in range(1, 32):
        a(f"v_{aggA}_u32 v8, v8, v{8+i}\nv_{aggB}_u32 v40, v40, v{40+i}")
    a("s_nop 1\nv_readlane_b32 s20, v8, 0\nv_readlane_b32 s21, v40, 0")
    for l in range(1, 64):
        a(f"v_readlane_b32 s22, v8, {l}\nv_readlane_b32 s23, v40, {l}\ns_nop 3\ns_{aggA}_u32 s20, s20, s22\ns_{aggB}_u32 s21, s21, s23")
    a(f"""
s_memrealtime s[8:9]
s_waitcnt lgkmcnt(0)
s_sub_u32 s6, s21, s20
s_min_u32 s6, s6, 10000
s_mul_i32 s6, s6, {fac}
Ld_spin:
s_memrealtime s[10:11]
s_waitcnt lgkmcnt(0)
s_sub_u32 s12, s10, s8
s_cmp_lt_u32 s12, s6
s_cbranch_scc1 Ld_spin
Ld_exit:
s_endpgm
""")
```

```python
import sys, os
sys.path.insert(0, os.path.dirname(os.path.abspath(__file__)))
import kd
NAME = "concat_heads__linear_attn_block__ssm_conv_h3__prompt"
KN = NAME + "_kernel"
MB = 1 << 20
WS_UT, WS_KVP, WS_ZP, WS_FL, WS_O, WS_YT, WS_ST = 0, 8 * MB, 9 * MB, 9 * MB + 0x40000, 4 * MB, 0, 24 * MB
LOG2E, EPS = 0x3FB8AA3B, 0x358637BD
STAMP = "--stamp" in sys.argv
TRACE = "--trace" in sys.argv
def opt(name, default):
    for x in sys.argv:
        if x.startswith("--" + name + "="): return x.split("=", 1)[1]
    return default
FL_U, FL_P, FL_O, FL_Y = [WS_FL + k * 131072 for k in range(4)]
def FA(r, base, grp=2048):
    return f"s_lshr_b32 vcc_lo, s{r}, 6\ns_mul_i32 vcc_lo, vcc_lo, {grp-64}\ns_add_u32 s{r}, s{r}, vcc_lo\ns_add_u32 s{r}, s{r}, {base:#x}"
def FC(r, base, own, grp=2048):
    return FA(r, base, grp) + f"\ns_lshl_b32 vcc_lo, s{own}, 7\ns_add_u32 s{r}, s{r}, vcc_lo"
if opt("ysep", "0") == "1": WS_YT = 10 * MB
FL_KV = opt("kv", "")
FL_WO = opt("wo", "")
FL_XW = opt("xw", "")
FL_OUT = opt("outst", "sc1")
AMP = opt("amp", "")
KROT = opt("krot", "q8c")
ROT2 = opt("rot2", "0") == "1"
ROTW = opt("rotw", "1") == "1"
G2 = opt("g2", "")
OSC = "" if "nosc1" in G2 else "sc1"
DEPTH = int(opt("depth", "6"))
PSLEEP = opt("psleep", "0")

SST = opt("sst", "0") == "1"
class A:
    def __init__(self): self.l = []
    def __call__(self, s):
        for x in s.strip("\n").split("\n"):
            x = x.strip()
            self.l.append(x if x.endswith(":") else "    " + x)
    jn = 0
    def stamp(self, i):
        J = opt("jitter", "")
        if J and i > 0 and getattr(self, "jon", False):
            n = self.jn; self.jn += 1
            self(f"""
s_cselect_b32 s101, 1, 0
s_memrealtime s[98:99]
s_waitcnt lgkmcnt(0)
s_lshr_b32 s100, s98, 2
s_xor_b32 s100, s100, s2
s_mul_i32 s100, s100, {2654435761 + 2*n + int(J)}
s_add_u32 s100, s100, s3
s_mul_i32 s100, s100, 40503
s_lshr_b32 s100, s100, 29
s_cmp_lt_u32 s100, 6
s_cbranch_scc1 L_j{n}
s_sleep 60
s_cmp_lt_u32 s100, 7
s_cbranch_scc1 L_j{n}
s_sleep 127
L_j{n}:
s_cmp_lg_u32 s101, 0
""")
        if STAMP and not (SST and getattr(self, "jon", False) and 2 <= i <= 6): self(f"s_memrealtime s[{76+2*i}:{77+2*i}]")
    def sst(self, i):
        if STAMP and SST: self(f"s_memrealtime s[{76+2*i}:{77+2*i}]")
    def end(self):
        if STAMP:
            self(f"""
s_memrealtime s[96:97]
s_mov_b64 exec, 1
v_lshrrev_b32 v1, 6, v0
s_waitcnt vmcnt(0) lgkmcnt(0)
s_memrealtime s[98:99]
s_mov_b32 s40, s26
s_mov_b32 s41, s27
s_mov_b32 s42, 0x2000000
s_mov_b32 s43, 0x20000
s_lshl_b32 s100, s2, 3
v_add_u32 v1, s100, v1
v_lshlrev_b32 v1, 5, v1
v_add_u32 v1, {WS_ST}, v1
v_add_u32 v2, 65536, v1
s_waitcnt lgkmcnt(0)
""")
            for i in range(12): self(f"v_mov_b32 v{4+i}, s{76+2*i}")
            self("""
buffer_store_dwordx4 v[4:7], v1, s[40:43], 0 offen
buffer_store_dwordx4 v[8:11], v1, s[40:43], 0 offen offset:16
buffer_store_dwordx4 v[12:15], v2, s[40:43], 0 offen
buffer_store_dwordx4 v[12:15], v2, s[40:43], 0 offen offset:16
""")
        self("s_endpgm")
    tn = 0
    def trace(self):
        if TRACE:
            self(f"s_memrealtime s[96:97]\ns_waitcnt lgkmcnt(0)\nv_writelane_b32 v252, s96, {self.tn}"); self.tn += 1
    def bar(self):
        self.trace(); self("s_barrier"); self.trace()
    def trace_out(self):
        if TRACE: self(f"""
s_lshl_b32 s96, s2, 10
s_add_u32 s96, s96, {WS_ST + 0x100000:#x}
v_lshlrev_b32 v253, 2, v0
v_subrev_u32 v253, 1024, v253
buffer_store_dword v252, v253, s[48:51], s96 offen
""")
    def text(self): return "\n".join(self.l) + "\n"

class VM:
    def __init__(self, a): self.a = a; self.q = []
    def issue(self, tag, n=1): self.q += [tag] * n; assert len(self.q) <= 63, len(self.q)
    def wait(self, tag):
        if tag not in self.q: return
        idx = max(i for i, t in enumerate(self.q) if t == tag)
        n = len(self.q) - 1 - idx
        self.q = self.q[idx + 1:]
        self.a(f"s_waitcnt vmcnt({n})")
    def drained(self): self.q = []

def vr(b, n=1): return f"v{b}" if n == 1 else f"v[{b}:{b+n-1}]"
def sr(b, n=1): return f"s{b}" if n == 1 else f"s[{b}:{b+n-1}]"
def srd(a, d, lo, nbytes):
    a(f"s_mov_b32 s{d}, s{lo}\ns_mov_b32 s{d+1}, s{lo+1}\ns_mov_b32 s{d+2}, {nbytes:#x}\ns_mov_b32 s{d+3}, 0x20000")
def srd_off(a, d, lo, off, nbytes):
    a(f"s_add_u32 s{d}, s{lo}, {off}\ns_addc_u32 s{d+1}, s{lo+1}, 0\ns_mov_b32 s{d+2}, {nbytes:#x}\ns_mov_b32 s{d+3}, 0x20000")
def mfma16(d, x, y, c=None):
    c = vr(d, 4) if c is None else c
    return f"v_mfma_f32_16x16x32_bf16 {vr(d,4)}, {vr(x,4)}, {vr(y,4)}, {c}"
def interleave(a, mf, others, per_gap=1):
    o = list(others)
    for m in mf:
        a(m)
        for _ in range(per_gap):
            if o: a(o.pop(0))
    for x in o: a(x)
def phi_pack(a, src, dst, n, t, sL, sE):
    for i in range(0, n, 8):
        for p in range(4): a(f"v_pk_mul_f32 {vr(t+2*p,2)}, {vr(src+i+2*p,2)}, {sr(sL,2)}")
        for p in range(8): a(f"v_exp_f32_e64 v{t+p}, v{t+p} clamp")
        for p in range(8): a(f"v_max_f32 v{src+i+p}, s{sE}, v{src+i+p}")
        for p in range(4): a(f"v_pk_add_f32 {vr(t+2*p,2)}, {vr(t+2*p,2)}, {vr(src+i+2*p,2)}")
        for p in range(4): a(f"v_cvt_pk_bf16_f32 v{dst+i//2+p}, v{t+2*p}, v{t+2*p+1}")
def phi_pack_np(a, src, dst, n, t, sL, sE):
    for i in range(0, n, 8):
        for p in range(8): a(f"v_mul_f32 v{t+p}, s{sL}, v{src+i+p}")
        for p in range(8): a(f"v_exp_f32_e64 v{t+p}, v{t+p} clamp")
        for p in range(8): a(f"v_max_f32 v{src+i+p}, s{sE}, v{src+i+p}")
        for p in range(8): a(f"v_add_f32 v{t+p}, v{t+p}, v{src+i+p}")
        for p in range(4): a(f"v_cvt_pk_bf16_f32 v{dst+i//2+p}, v{t+2*p}, v{t+2*p+1}")
def pack(a, src, dst, n):
    for i in range(n // 2): a(f"v_cvt_pk_bf16_f32 v{dst+i}, v{src+2*i}, v{src+2*i+1}")
def unpack(a, src, dst, ndw, smask):
    for i in range(ndw):
        a(f"v_lshlrev_b32 v{dst+2*i}, 16, v{src+i}\nv_and_b32 v{dst+2*i+1}, s{smask}, v{src+i}")

sX, sW, sWO, sQ, sK, sV, sSH, sH, sD, sOUT, sDBG, sWS = 4, 6, 8, 10, 12, 14, 16, 18, 20, 22, 24, 26
sx, sj, srb, shk, shq, sk0, sg_rb, sg_cb, sdb, ssb, sch, sEP = 28, 29, 30, 31, 32, 33, 34, 35, 36, 37, 38, 72
TOUCH = ""
_o = int(opt("wsoff", "0")) * MB
WSOFF = f"s_add_u32 s26, s26, {_o:#x}\ns_addc_u32 s27, s27, 0" if _o else "s_nop 0"
if opt("touch", "0") == "1":
    t = ["s_mov_b32 s52, 0x200000", "s_mov_b32 s53, 0x400000", "s_mov_b32 s54, 0x600000", "s_mov_b32 s55, 0x800000"]
    for base, n in ((sWS, 5), (sOUT, 4), (sQ, 2), (sH, 2), (sWO, 1)):
        for i in range(n): t.append(f"s_load_dword s46, s[{base}:{base+1}], {['0','s52','s53','s54','s55'][i]}")
    TOUCH = "\n".join(t)
STG = 40960
CPY = 4160
UCH = 2 * CPY
U0 = 98304
XCH = U0 + 4 * UCH
HB = XCH + 8192
HP = 2304
HCH = 2 * HP
KVL = HB + 4 * HCH
ZX = KVL + 4096
SYNC = ZX + 512
Y_XC, Y_CW, Y_C2, Y_CU, Y_CY, Y_CD, Y_PQ, Y_EP, Y_W1, Y_CO, Y_UOK, Y_YOK, Y_UB = 0, 96, 20, 28, 32, 36, 40, 56, 60, 64, 72, 76, 80
Y_WM = Y_W1
Y_FR, Y_KD, Y_K2 = 112, 128, 40
LDS = 163840


def spoll(a, lab, soff, sc):
    if opt("poll", "s") == "v":
        a(f"v_and_b32 v254, 15, v4\nv_lshlrev_b32 v254, 2, v254")
        vpoll(a, lab, 254, soff, 255, sc); return
    a(f"""
s_mov_b32 s{sc}, 0
s_branch {lab}_go
{lab}:
s_sleep {PSLEEP}
{lab}_go:
s_load_dwordx16 s[4:19], s[{sWS}:{sWS+1}], s{soff} glc
s_add_u32 s{sc}, s{sc}, 1
s_cmp_gt_u32 s{sc}, 0x8000
s_cbranch_scc1 {lab}_done
s_waitcnt lgkmcnt(0)
""")
    for i in range(8): a(f"s_cmp_eq_u64 s[{4+2*i}:{5+2*i}], s[{sEP}:{sEP+1}]\ns_cbranch_scc0 {lab}")
    a(f"{lab}_done:\ns_waitcnt lgkmcnt(0)")
def vpoll(a, lab, v16x4, soff, vt, sc):
    a(f"""
s_mov_b32 s{sc}, 0
{lab}:
buffer_load_dword v{vt}, v{v16x4}, s[48:51], s{soff} offen sc1
s_waitcnt vmcnt(0)
v_cmp_eq_u32 vcc, s{sEP}, v{vt}
s_add_u32 s{sc}, s{sc}, 1
s_nop 2
s_cmp_eq_u64 vcc, -1
s_cbranch_scc1 {lab}_done
s_sleep {PSLEEP}
s_cmp_lt_u32 s{sc}, 0x4000
s_cbranch_scc1 {lab}
{lab}_done:
""")
def lead_poll(a, lab, soff, sc, st, vY, off, vOne, vT):
    a(f"s_mov_b32 s{sc}, 0\ns_cmp_eq_u32 s3, 0\ns_cbranch_scc0 {lab}_f")
    spoll(a, lab, soff, sc)
    a(f"ds_write_b32 v{vY}, v{vOne} offset:{off}\ns_branch {lab}_f_done")
    a(f"{lab}_f:"); a.l.pop()
    lspin(a, lab + "_f", vY, off, "1", vT, sc, st, init=False, slp=3)
def lspin(a, lab, vaddr, off, target, vt, sc, st, init=True, slp=1):
    if init: a(f"s_mov_b32 s{sc}, 0")
    a(f"""
{lab}:
ds_read_b32 v{vt}, v{vaddr} offset:{off}
s_add_u32 s{sc}, s{sc}, 1
s_waitcnt lgkmcnt(0)
v_readfirstlane_b32 s{st}, v{vt}
s_cmp_gt_u32 s{sc}, 0x40000
s_cbranch_scc1 {lab}_done
s_cmp_ge_u32 s{st}, {target}
s_cbranch_scc1 {lab}_done
s_sleep {slp}
s_branch {lab}
{lab}_done:
""")
def ladd(a, vaddr, off, vone):
    a(f"s_mov_b64 exec, 1\nds_add_u32 v{vaddr}, v{vone} offset:{off}\ns_mov_b64 exec, -1")
def flag_store(a, srdn, soff, vep, vl128, mask="0xffff"):
    a(f"s_mov_b64 exec, {mask}\nbuffer_store_dword v{vep}, v{vl128}, s[{srdn}:{srdn+3}], s{soff} offen sc1\ns_mov_b64 exec, -1")
def wg_flag(a, lab, vaddr, off, vone, vt, st, srdn, soff, vep, vzero):
    a(f"""
s_mov_b64 exec, 1
ds_add_rtn_u32 v{vt}, v{vaddr}, v{vone} offset:{off}
s_waitcnt lgkmcnt(0)
v_readfirstlane_b32 s{st}, v{vt}
s_nop 3
s_cmp_eq_u32 s{st}, 3
s_cbranch_scc0 {lab}
buffer_store_dword v{vep}, v{vzero}, s[{srdn}:{srdn+3}], s{soff} offen sc1
{lab}:
s_mov_b64 exec, -1
""")

def ids2(a):
    a(f"""
s_and_b32 s{sg_rb}, s{sx}, 3
s_lshl_b32 s{sg_rb}, s{sg_rb}, 2
s_and_b32 vcc_lo, s{sj}, 3
s_add_u32 s{sg_rb}, s{sg_rb}, vcc_lo
s_lshr_b32 s{sg_cb}, s{sx}, 2
s_lshl_b32 s{sg_cb}, s{sg_cb}, 3
s_lshr_b32 vcc_lo, s{sj}, 2
s_add_u32 s{sg_cb}, s{sg_cb}, vcc_lo
s_lshl_b32 s39, vcc_lo, 2
s_and_b32 s{sdb}, s{sj}, 15
s_lshr_b32 s{ssb}, s{sj}, 4
s_lshl_b32 vcc_lo, s{sx}, 1
s_add_u32 s{ssb}, s{ssb}, vcc_lo
s_lshl_b32 s{sch}, s{sx}, 5
s_add_u32 s{sch}, s{sch}, s{sj}
s_lshl_b32 s{sch}, s{sch}, 2
""")
    a(f"s_mul_i32 s39, s{sg_rb}, 11\ns_lshr_b32 s39, s39, 5\ns_mul_i32 s39, s39, 3\ns_sub_u32 s39, s{sg_rb}, s39")

def kernel(a):
    a(f"""
{KN}:
s_cmp_ge_u32 s2, 256
s_cbranch_scc1 L_exit
s_load_dwordx16 s[4:19], s[0:1], 0
s_load_dwordx8 s[20:27], s[0:1], 64
s_getpc_b64 s[48:49]
L_pc:
s_and_b32 s45, s2, 24
s_lshl_b32 s45, s45, 4
v_lshl_add_u32 v2, v0, 9, s45
v_cmp_gt_u32 vcc, L_code_end-L_pc-4, v2
s_and_saveexec_b64 s[50:51], vcc
s_cbranch_execz L_pf
global_load_dword v252, v2, s[48:49]
L_pf:
s_mov_b64 exec, s[50:51]
""")
    for i in range(10): a.stamp(i)
    a(f"""
v_lshrrev_b32 v1, 6, v0
v_and_b32 v4, 63, v0
v_readfirstlane_b32 s3, v1
v_lshlrev_b32 v5, 4, v4
s_and_b32 s{sx}, s2, 7
s_lshr_b32 s{sj}, s2, 3
s_and_b32 s{srb}, s{sx}, 1
s_lshl_b32 s{srb}, s{srb}, 3
s_and_b32 s40, s{sj}, 7
s_add_u32 s{srb}, s{srb}, s40
s_lshr_b32 s40, s{sx}, 1
s_lshl_b32 s41, s40, 2
s_lshr_b32 s42, s{sj}, 3
s_add_u32 s{shk}, s41, s42
s_add_u32 s42, s42, 1
s_and_b32 s42, s42, 3
s_add_u32 s{shq}, s41, s42
""")
    if KROT.startswith("f"):
        a_, b_, c_, d_ = [int(t) for t in KROT[1:].split("_")]
        a(f"s_mul_i32 s{sk0}, s{srb}, {a_}\ns_mul_i32 s41, s{shk}, {b_}\ns_add_u32 s{sk0}, s{sk0}, s41\ns_and_b32 s41, s{sx}, 1\ns_mul_i32 s41, s41, {c_}\ns_add_u32 s{sk0}, s{sk0}, s41\ns_mul_i32 s41, s40, {d_}\ns_add_u32 s{sk0}, s{sk0}, s41\ns_and_b32 s{sk0}, s{sk0}, 15")
    elif KROT == "q8":
        a(f"""
s_lshl_b32 s{sk0}, s40, 1
s_and_b32 s41, s{shk}, 1
s_add_u32 s{sk0}, s{sk0}, s41
s_lshl_b32 s41, s{sx}, 2
s_add_u32 s{sk0}, s{sk0}, s41
s_and_b32 s41, s{srb}, 3
s_add_u32 s{sk0}, s{sk0}, s41
s_and_b32 s{sk0}, s{sk0}, 7
s_lshl_b32 s{sk0}, s{sk0}, 1
""")
    elif KROT in ("q8b", "q8c", "q8d"):
        if KROT == "q8c": a(f"s_and_b32 s41, s{srb}, 1\ns_lshl_b32 s{sk0}, s41, 1\ns_and_b32 s41, s{srb}, 2\ns_lshl_b32 s41, s41, 2\ns_add_u32 s{sk0}, s{sk0}, s41\ns_and_b32 s41, s{sx}, 1\ns_lshl_b32 s41, s41, 2\ns_add_u32 s{sk0}, s{sk0}, s41")
        else: a(f"s_and_b32 s41, s{srb}, 3\ns_lshl_b32 s{sk0}, s41, 2\ns_and_b32 s41, s{sx}, 1\ns_lshl_b32 s41, s41, 1\ns_add_u32 s{sk0}, s{sk0}, s41")
        if KROT == "q8b": a(f"s_and_b32 s41, s{shk}, 1\ns_lshl_b32 s41, s41, 3\ns_add_u32 s{sk0}, s{sk0}, s41\ns_lshl_b32 s41, s40, 1\ns_add_u32 s{sk0}, s{sk0}, s41")
        else: a(f"s_and_b32 s41, s{shk}, 1\ns_lshl_b32 s41, s41, 1\ns_add_u32 s{sk0}, s{sk0}, s41\ns_lshl_b32 s41, s40, 2\ns_add_u32 s{sk0}, s{sk0}, s41")
        a(f"s_and_b32 s{sk0}, s{sk0}, 15")
    elif KROT == "q4c":
        a(f"""
s_and_b32 s41, s{sx}, 1
s_add_u32 s{sk0}, s40, s41
s_lshl_b32 s41, s{srb}, 1
s_add_u32 s{sk0}, s{sk0}, s41
s_and_b32 s{sk0}, s{sk0}, 3
s_lshl_b32 s{sk0}, s{sk0}, 2
""")
        SL = opt("sl", "0")
        if SL != "0":
            a(f"s_and_b32 s41, s{shk}, {7 if SL == '1' else 6}\ns_cmp_eq_u32 s41, {3 if SL == '1' else 2}\ns_cselect_b32 s41, 6, 0\ns_and_b32 s41, s41, s{srb}\ns_sub_u32 s{sk0}, s{sk0}, s41\ns_and_b32 s{sk0}, s{sk0}, 15")
    elif KROT == "q4":
        a(f"""
s_lshl_b32 s41, s{sx}, 1
s_add_u32 s{sk0}, s40, s41
s_and_b32 s41, s{srb}, 1
s_add_u32 s{sk0}, s{sk0}, s41
s_and_b32 s{sk0}, s{sk0}, 3
s_lshl_b32 s{sk0}, s{sk0}, 2
""")
    elif KROT == "q2":
        a(f"s_xor_b32 s41, s{sx}, s40\ns_and_b32 s41, s41, 1\ns_lshl_b32 s{sk0}, s41, 3")
    elif KROT == "q3":
        a(f"""
s_and_b32 s41, s{sx}, 1
s_lshl_b32 s41, s41, 1
s_add_u32 s{sk0}, s40, s41
s_and_b32 s41, s{srb}, 1
s_add_u32 s{sk0}, s{sk0}, s41
s_mul_i32 s41, s{sk0}, 11
s_lshr_b32 s41, s41, 5
s_mul_i32 s41, s41, 3
s_sub_u32 s{sk0}, s{sk0}, s41
s_mul_i32 s{sk0}, s{sk0}, 11
s_lshr_b32 s{sk0}, s{sk0}, 1
""")
    else: a(f"s_mov_b32 s{sk0}, 0")
    a.jon = True
    a("s_cmp_lt_u32 s3, 4\ns_cbranch_scc1 L_comp")
    aux(a)
    compute(a)
    a("L_exit:\ns_endpgm\nL_code_end:")

def inter2(a, mf, others, per=2):
    o = list(others)
    for m in mf:
        a(m)
        for _ in range(per):
            if o: a(o.pop(0))
    for x in o: a(x)
def inter3(a, mf, l1, n1, l2, n2):
    l1 = list(l1); l2 = list(l2)
    for m in mf:
        a(m)
        for _ in range(n2):
            if l2: a(l2.pop(0))
        for _ in range(n1):
            if l1: a(l1.pop(0))
    assert not l1 and not l2
class L:
    def __init__(s): s.l = []
    def __call__(s, t): s.l += [x.strip() for x in t.strip("\n").split("\n")]
def maskbuild(a, sm, st, lo=4, step=2):
    a(f"s_mov_b32 s{sm}, 0")
    for i in range(8): a(f"s_cmp_eq_u64 s[{lo+2*i}:{lo+1+2*i}], s[{sEP}:{sEP+1}]\ns_cselect_b32 s{st}, {1 << (step*i):#x}, 0\ns_or_b32 s{sm}, s{sm}, s{st}")

def compute(a):
    vAb, vA, vBb, vB = 8, 10, 12, 14
    vY, vPW = 20, 21
    X, Y, ACC = 24, 64, 104
    vOne, vZero, vEp, vT, vL128 = 232, 233, 234, 235, 254
    QT = lambda dt, mt: ACC + 4 * (mt * 2 + dt)
    KK = lambda mt, nt: ACC + 32 + 4 * ((nt * 2 + (mt >> 1)) * 2 + (mt & 1))
    VV = lambda mt, nt: ACC + 64 + 4 * ((nt * 2 + (mt >> 1)) * 2 + (mt & 1))
    GATE = opt("gate", "kv")
    a("L_comp:")
    a.sst(2)
    KR, WR, KF, WF, TM, VF, UT = 200, 242, 24, 68, 84, 56, 200
    VR = [222, 224, 226, 228, 230, 236, 238, 240]
    vP0, vP1, vP2, vTW = 16, 17, 18, 19
    ids2(a)
    a(f"""
s_lshl_b32 s45, s{ssb}, 18
s_lshl_b32 s46, s3, 16
s_add_u32 s45, s45, s46
s_lshl_b32 s46, s{sdb}, 7
s_add_u32 s45, s45, s46
v_lshrrev_b32 v2, 4, v4
v_and_b32 v1, 15, v4
v_lshlrev_b32 v3, 3, v1
v_lshl_add_u32 v{vP0}, v2, 14, v3
v_add_u32 v{vP0}, s45, v{vP0}
v_subrev_u32 v{vP1}, 6144, v{vP0}
s_movk_i32 s57, 4096
s_movk_i32 s58, 8192
s_movk_i32 s59, 12288
s_mov_b32 s62, {4*MB:#x}
s_mov_b32 s63, 0x20000
s_mov_b32 s66, {4*MB:#x}
s_mov_b32 s67, 0x20000
s_mov_b32 s70, 8192
s_mov_b32 s71, 0x20000
v_lshlrev_b32 v{vP2}, 5, v1
s_lshl_b32 s46, s{sdb}, 9
v_add_u32 v{vP2}, s46, v{vP2}
v_sub_u32 v3, 3, v2
s_lshl_b32 s45, s3, 2
s_sub_u32 s45, 12, s45
v_add_u32 v3, s45, v3
v_and_b32 v6, 7, v4
v_xor_b32 v3, v3, v6
v_lshlrev_b32 v3, 4, v3
v_lshl_add_u32 v3, v1, 10, v3
v_add_u32 v{vTW}, {HB}, v3
s_and_b32 s40, s3, 1
s_lshr_b32 s41, s3, 1
v_bfe_u32 v3, v4, 1, 3
v_xor_b32 v3, v2, v3
v_lshlrev_b32 v3, 4, v3
v_lshl_add_u32 v3, v1, 7, v3
s_lshl_b32 s45, s40, 13
v_add_u32 v{vAb}, s45, v3
v_xor_b32 v{vAb+1}, 64, v{vAb}
v_bfe_u32 v22, v4, 2, 2
v_lshl_add_u32 v3, v2, 3, v22
v_lshlrev_b32 v3, 7, v3
v_and_b32 v7, 3, v4
v_lshlrev_b32 v6, 3, v7
s_lshl_b32 s45, s41, 6
v_add_u32 v6, s45, v6
v_bfe_u32 v7, v4, 3, 1
v_lshlrev_b32 v7, 6, v7
v_xor_b32 v6, v6, v7
v_bfe_u32 v23, v4, 4, 1
v_lshlrev_b32 v7, 5, v23
v_xor_b32 v6, v6, v7
v_add_u32 v3, v3, v6
v_add_u32 v{vBb}, 0x4000, v3
v_xor_b32 v{vBb+1}, 32, v{vBb}
v_mov_b32 v{vB}, v{vBb}
v_mov_b32 v{vB+1}, v{vBb+1}
v_mov_b32 v{vA}, v{vAb}
v_mov_b32 v{vA+1}, v{vAb+1}
v_lshlrev_b32 v{vL128}, 7, v4
v_mov_b32 v{vY}, {SYNC}
v_mov_b32 v{vOne}, 1
v_mov_b32 v{vZero}, 0
v_lshlrev_b32 v6, 2, v4
v_add_u32 v6, {SYNC}, v6
ds_write_b32 v6, v{vZero}
s_lshl_b32 s45, s3, 2
v_add_u32 v{vPW}, s45, v{vY}
s_mov_b32 s53, 1
s_mov_b32 s56, 0xffff0000
s_waitcnt lgkmcnt(0)
{WSOFF}
s_mov_b64 s[60:61], s[{sK}:{sK+1}]
s_mov_b64 s[64:65], s[{sV}:{sV+1}]
s_mov_b64 s[68:69], s[{sSH}:{sSH+1}]
""")
    a.sst(3); a("s_barrier"); a.sst(4)
    so = ["0", "s57", "s58", "s59"]
    for r in range(3): a(f"buffer_load_dwordx2 {vr(KR+2*r,2)}, v{vP1}, s[60:63], {so[r//2]} offen offset:{2048*(r%2)} {FL_KV}")
    for r in range(8): a(f"buffer_load_dwordx2 {vr(KR+6+2*r,2)}, v{vP0}, s[60:63], {so[r//2]} offen offset:{2048*(r%2)} {FL_KV}")
    for i in range(2): a(f"buffer_load_dwordx4 {vr(WR+4*i,4)}, v{vP2}, s[68:71], 0 offen offset:{16*i}")
    for r in range(8): a(f"buffer_load_dwordx2 {vr(VR[r],2)}, v{vP0}, s[64:67], {so[r//2]} offen offset:{2048*(r%2)} {FL_KV}")
    a.sst(5)
    a("s_barrier")
    a.stamp(1)
    def reads(S, k2):
        ra = [f"ds_read_b128 {vr(S+4*mt,4)}, v{vA+k2} offset:{2048*mt}" for mt in range(4)]
        rb = [f"ds_read_b64_tr_b16 {vr(S+16+4*n+2*i2,2)}, v{vB+(n&1)} offset:{(n//2)*8192+k2*4096+i2*512}" for n in range(6) for i2 in range(2)]
        return [ra[0]] + rb + ra[1:]
    def mf(S, c=None):
        r = []
        for mt in range(4):
            Am = S + 4 * mt
            r += [mfma16(KK(mt, n), Am, S + 24 + 4 * n, c) for n in range(2)]
            r += [mfma16(VV(mt, n), Am, S + 32 + 4 * n, c) for n in range(2)]
            r += [mfma16(QT(d, mt), S + 16 + 4 * d, Am, c) for d in range(2)]
        return r
    adv = [f"v_add_u32 v{vA+1}, s52, v{vAb+1}", f"v_add_u32 v{vB}, s52, v{vBb}", f"v_add_u32 v{vB+1}, s52, v{vBb+1}"]
    for r in reads(X, 0): a(r)
    a(f"s_mov_b32 s52, {STG}\nv_add_u32 v{vA}, s52, v{vAb}\ns_waitcnt lgkmcnt(0)")
    w = L(); srd(w, 60, sWS, 32 * MB); srd(w, 68, sOUT, 8 * MB)
    vTR, vUS = 250, 16
    UF = int(opt("uf", "5"))
    w(f"""
s_lshl_b32 s45, s3, 12
s_add_u32 s45, s45, {HB}
v_add_u32 v{vTR}, s45, v5
s_lshl_b32 s45, s40, 6
v_xor_b32 v{vTR}, s45, v{vTR}
v_xor_b32 v{vTR+1}, 16, v{vTR}
v_xor_b32 v{vTR+2}, 32, v{vTR}
v_xor_b32 v{vTR+3}, 48, v{vTR}
v_lshlrev_b32 v3, 12, v2
v_lshl_add_u32 v{vUS}, v1, 4, v3
s_lshl_b32 s45, s{sdb}, 18
s_lshl_b32 s46, s3, 16
s_add_u32 s45, s45, s46
s_lshl_b32 s46, s{ssb}, 8
s_sub_u32 s45, s45, s46
s_add_u32 s45, s45, {WS_UT + 3840}
v_add_u32 v{vUS}, s45, v{vUS}
s_movk_i32 s57, 0x4000
s_mov_b32 s58, 0x8000
s_mov_b32 s59, 0xc000
s_lshl_b32 s43, s{sdb}, 2
s_add_u32 s43, s43, s3
s_lshl_b32 s43, s43, 4
s_add_u32 s43, s43, s{ssb}
s_lshl_b32 s43, s43, 2
{FA(43, FL_U)}
s_movk_i32 s42, {2 + (1 << UF)}
""")
    interleave(a, mf(X, "0"), reads(Y, 1) + adv)
    a("s_waitcnt lgkmcnt(0)")
    interleave(a, mf(Y), w.l, 2)
    a("s_waitcnt vmcnt(10)")
    a.sst(6)
    unpack(a, KR, KF, 22, 56)
    a("s_waitcnt vmcnt(8)")
    for p in range(4):
        a(f"v_lshlrev_b32 v{WF+p}, 16, v{WR+2*p}\nv_and_b32 v{WF+4+p}, s56, v{WR+2*p}")
        a(f"v_lshlrev_b32 v{WF+8+p}, 16, v{WR+2*p+1}\nv_and_b32 v{WF+12+p}, s56, v{WR+2*p+1}")
    for i0 in range(0, 8, 2):
        ch = [(i, h) for i in (i0, i0 + 1) for h in range(2)]
        for c, (i, h) in enumerate(ch): a(f"v_pk_mul_f32 {vr(TM+2*c,2)}, {vr(KF+4*(i+3)+2*h,2)}, {vr(WF+2*h,2)}")
        for t in (2, 1):
            for c, (i, h) in enumerate(ch): a(f"v_pk_fma_f32 {vr(TM+2*c,2)}, {vr(KF+4*(i+t)+2*h,2)}, {vr(WF+4*(3-t)+2*h,2)}, {vr(TM+2*c,2)}")
        for c, (i, h) in enumerate(ch): a(f"v_pk_fma_f32 {vr(KF+4*i+2*h,2)}, {vr(KF+4*i+2*h,2)}, {vr(WF+12+2*h,2)}, {vr(TM+2*c,2)}")
    a("s_waitcnt vmcnt(0)")
    for r in range(8): unpack(a, VR[r], VF + 4 * r, 2, 56)
    for h in range(2):
        for i in range(8): a(f"v_pk_mul_f32 {vr(KF+4*i+2*h,2)}, {vr(KF+4*i+2*h,2)}, {vr(VF+4*i+2*h,2)}")
        for e in (2 * h, 2 * h + 1):
            for d in range(4): a(f"v_cvt_pk_bf16_f32 v{UT+4*e+d}, v{KF+4*(7-2*d)+e}, v{KF+4*(6-2*d)+e}")
            a(f"ds_write_b128 v{vTW}, {vr(UT+4*e,4)} offset:{256*e}")
    a("s_waitcnt lgkmcnt(0)\ns_barrier")
    for e in range(4): a(f"ds_read_b128 {vr(UT+4*e,4)}, v{vTR+e} offset:{1024*e}")
    for r in reads(X, 0): a(r)
    headv = [f"s_add_u32 s52, s52, {STG}", f"s_cmp_eq_u32 s52, {3*STG}", "s_cselect_b32 s52, 0, s52", f"v_add_u32 v{vA}, s52, v{vAb}"]
    for x in headv: a(x)
    a("s_branch L_loop1\nL_side:\ns_cmp_eq_u32 s53, 1\ns_cbranch_scc0 L_side2")
    for e in range(4): a(f"buffer_store_dwordx4 {vr(UT+4*e,4)}, v{vUS}, s[60:63], {['0','s57','s58','s59'][e]} offen sc1")
    a(f"""
s_branch L_back
L_side2:
s_mov_b32 s45, 0
L_cep:
ds_read_b32 v{vEp}, v{vY} offset:{Y_EP}
s_add_u32 s45, s45, 1
s_waitcnt vmcnt(0) lgkmcnt(0)
v_readfirstlane_b32 s{sEP}, v{vEp}
s_cmp_gt_u32 s45, 0x40000
s_cbranch_scc1 L_cepok
s_cmp_eq_u32 s{sEP}, 0
s_cbranch_scc1 L_cep
L_cepok:
s_mov_b32 s{sEP+1}, s{sEP}
""")
    flag_store(a, 60, 43, vEp, vL128)
    a(f"""
s_branch L_back
{opt("lal", "")}
L_loop1:
s_waitcnt lgkmcnt(0)
""")
    interleave(a, mf(X), reads(Y, 1) + adv + ["s_bitcmp1_b32 s42, s53", "s_cbranch_scc1 L_side\nL_back:"])
    a("s_waitcnt lgkmcnt(0)")
    m = mf(Y)
    a(m[0]); a("s_barrier")
    interleave(a, m[1:], reads(X, 0) + headv + ["s_add_u32 s53, s53, 1", "s_cmp_lt_u32 s53, 15"])
    a("s_cbranch_scc1 L_loop1")
    PK, PV, ONES, T, KV, Z, R, PQ = ACC + 32, ACC + 64, 200, 204, 212, 48, 236, ACC
    pre = [f"s_mov_b32 s54, {LOG2E:#x}", f"s_mov_b32 s55, {LOG2E:#x}", f"s_mov_b32 s56, {EPS:#x}",
           f"s_lshl_b32 s57, s{shk}, 2", "s_add_u32 s57, s57, s3", "s_lshl_b32 s57, s57, 4", f"s_add_u32 s57, s57, s{srb}",
           "s_lshl_b32 s58, s57, 10", f"s_add_u32 s58, s58, {WS_KVP:#x}", "s_lshr_b32 s59, s57, 4", "s_lshl_b32 s59, s59, 11",
           f"s_lshl_b32 s45, s{srb}, 4", "s_add_u32 s59, s59, s45", f"s_add_u32 s59, s59, {WS_ZP:#x}", "s_lshr_b32 s57, s57, 4", "s_lshl_b32 s57, s57, 11", f"s_add_u32 s57, s57, {FL_P:#x}"]
    PROT = opt("prot", "1") == "1"
    pre += ["v_and_b32 v19, 7, v4", f"v_lshlrev_b32 v19, {1 if PROT else 4}, v19", f"v_sub_u32 v19, s{srb}, v19", "v_and_b32 v19, 15, v19", f"v_lshl_add_u32 v19, v19, 2, v{vL128}"]
    pre += ["s_lshl_b32 s45, s3, 11", f"s_add_u32 s45, s45, {XCH}", "v_add_u32 v6, s45, v5", "v_xor_b32 v7, 2048, v6", "s_lshl_b32 s45, s3, 7", f"s_add_u32 s45, s45, {ZX}",
            "v_and_b32 v3, 0x30, v4", "v_add_u32 v16, s45, v3", "v_xor_b32 v17, 128, v16", f"v_xor_b32 v18, 4, v{vPW}"]
    pre += [f"v_mov_b32 v{ONES+i}, 0x3f803f80" for i in range(4)]
    mk = lambda S: [mfma16(KK(mt, n), S + 4 * mt, S + 24 + 4 * n) for n in range(2) for mt in range(4)]
    mv = lambda S: [mfma16(VV(mt, n), S + 4 * mt, S + 32 + 4 * n) for n in range(2) for mt in range(4)]
    mq = lambda S: [mfma16(QT(d, mt), S + 16 + 4 * d, S + 4 * mt) for mt in range(4) for d in range(2)]
    ry = reads(Y, 1)
    ry = [ry[0]] + ry[13:16] + ry[5:9] + ry[9:13] + ry[1:5]
    a("s_waitcnt lgkmcnt(0)")
    inter3(a, mk(X) + mv(X)[:4], pre, 4, ry, 2)
    a("s_waitcnt lgkmcnt(8)")
    for x in mk(Y)[:6]: a(x)
    a(f"s_waitcnt lgkmcnt(0)\nds_write_b32 v{vPW}, v{vOne} offset:{Y_FR}")
    w = L(); phi_pack_np(w, PK, PK, 16, T, 54, 56)
    inter2(a, mk(Y)[6:] + mv(X)[4:] + mv(Y), w.l, int(opt("kfi", "3")))
    a.stamp(2)
    a(f"s_setprio {opt('cprio', '2')}")
    pk1 = phi_pack if GATE != "none" else phi_pack_np
    pack(a, PV, PV, 32)
    for dt in range(2):
        if dt == 1: pk1(a, PK + 16, PK + 16, 16, T, 54, 56)
        a("s_nop 1")
        for p in range(2):
            c = "0" if p == 0 else None
            for et in range(2): a(mfma16(KV + 4 * (et * 2 + dt), PK + 16 * dt + 4 * p, PV + 8 * et + 4 * p, c))
            a(mfma16(Z + 4 * dt, PK + 16 * dt + 4 * p, ONES, c))
    a("s_cmp_eq_u32 s40, 0\ns_nop 5\ns_cbranch_scc1 L_x0")
    for i in range(8): a(f"v_swap_b32 v{KV+i}, v{KV+8+i}")
    a("L_x0:")
    a(f"ds_write_b128 v6, {vr(KV+8,4)}\nds_write_b128 v6, {vr(KV+12,4)} offset:1024")
    a(f"ds_write_b128 v16, {vr(Z,4)}\nds_write_b128 v16, {vr(Z+4,4)} offset:64")
    a(f"""
ds_write_b32 v{vPW}, v{vOne} offset:{Y_XC}
s_mov_b32 s45, 0
L_xspin:
ds_read_b32 v{vT}, v18 offset:{Y_XC}
ds_read_b128 {vr(R,4)}, v7
ds_read_b128 {vr(R+4,4)}, v7 offset:1024
ds_read_b128 {vr(R+8,4)}, v17
ds_read_b128 {vr(R+12,4)}, v17 offset:64
s_add_u32 s45, s45, 1
s_waitcnt lgkmcnt(4)
v_readfirstlane_b32 s46, v{vT}
s_cmp_gt_u32 s45, 0x40000
s_cbranch_scc1 L_xdone
s_cmp_eq_u32 s46, 0
s_cbranch_scc1 L_xspin
L_xdone:
s_waitcnt lgkmcnt(2)
""")
    def add8(d, r):
        if GATE != "none":
            for i in range(4): a(f"v_pk_add_f32 {vr(d+2*i,2)}, {vr(d+2*i,2)}, {vr(r+2*i,2)}")
        else:
            for i in range(8): a(f"v_add_f32 v{d+i}, v{d+i}, v{r+i}")
    add8(KV, R)
    pack(a, KV, KV + 8, 8)
    a(f"buffer_store_dwordx4 {vr(KV+8,4)}, v5, s[60:63], s58 offen sc1")
    a("s_waitcnt lgkmcnt(0)")
    add8(Z, R + 8)
    pack(a, Z, KV + 12, 8)
    a("s_mov_b32 exec_lo, 0x10001\ns_mov_b32 exec_hi, 0x10001")
    a(f"buffer_store_dwordx4 {vr(KV+12,4)}, v5, s[60:63], s59 offen sc1")
    a("s_mov_b64 exec, -1")
    if GATE == "kv": a(f"ds_write_b32 v{vPW}, v{vOne} offset:{Y_KD}")
    a.stamp(3)
    PP, AC, ZZ, SEL, D1, B2, DN, EQ, KO, KP = 24, 88, 96, 8, 120, 136, 152, 168, 172, 176
    su = L()
    su(f"""
s_lshl_b32 s47, s{shq}, 1
s_add_u32 s47, s47, s41
s_lshl_b32 s44, s{shq}, 2
s_add_u32 s44, s44, s3
s_lshl_b32 s58, s44, 14
s_add_u32 s58, s58, {WS_KVP:#x}
s_lshl_b32 s59, s44, 11
s_add_u32 s59, s59, {WS_ZP:#x}
s_lshl_b32 s44, s44, 6
{FC(44, FL_P, srb)}
s_lshl_b32 s45, s41, 2
v_add_u32 v14, s45, v{vY}
v_mov_b32 v6, 0x3f80
v_and_b32 v7, 1, v4
v_lshlrev_b32 v7, 4, v7
v_lshlrev_b32 v6, v7, v6
v_lshrrev_b32 v2, 4, v4
v_cmp_eq_u32 vcc, v2, v22
v_bfe_u32 v7, v4, 1, 1
v_mov_b32 v{SEL}, 0
v_cndmask_b32 v6, 0, v6, vcc
v_cmp_eq_u32 vcc, 0, v7
v_mov_b32 v{SEL+1}, 0
v_mov_b32 v{SEL+4}, 0
v_cndmask_b32 v{SEL+2}, 0, v6, vcc
v_cndmask_b32 v{SEL+3}, v6, v{vZero}, vcc
v_mov_b32 v{SEL+5}, 0
s_lshl_b32 s45, s3, 10
s_add_u32 s45, s45, {KVL}
v_add_u32 v6, s45, v5
s_xor_b32 s45, s3, 1
s_lshl_b32 s45, s45, 10
s_add_u32 s45, s45, {KVL}
v_add_u32 v7, s45, v5
s_lshl_b32 s48, s{srb}, 3
s_lshl_b32 s45, s40, 2
s_add_u32 s48, s48, s45
s_lshl_b32 s48, s48, 15
s_lshl_b32 s45, s47, 10
s_add_u32 s48, s48, s45
s_add_u32 s48, s48, {WS_O:#x}
s_lshl_b32 s49, s{srb}, 1
s_add_u32 s49, s49, s40
s_lshl_b32 s49, s49, 7
s_lshl_b32 s45, s47, 2
s_add_u32 s49, s49, s45
{FA(49, FL_O)}
s_mov_b32 s50, 0
s_mov_b32 s51, 0
s_mov_b32 s53, 0
s_mov_b32 s46, 0
s_and_b32 s43, s{srb}, {7 if PROT else 0}
""")
    qm = [x for mt in range(4) for S in (X, Y) for x in mq(S)[2 * mt:2 * mt + 2]]
    inter2(a, qm, su.l, 4)
    phiq = phi_pack if GATE == "pq" else phi_pack_np
    NQ1 = int(opt("nq1", "2"))
    if NQ1: phiq(a, ACC, PQ, 8 * NQ1, T, 54, 56)
    a("s_waitcnt vmcnt(0)")
    flag_store(a, 60, 57, vEp, 19)
    a(f"s_load_dwordx16 s[4:19], s[{sWS}:{sWS+1}], s44 glc")
    a.stamp(4)
    for mt in range(NQ1, 4): phiq(a, ACC + 8 * mt, PQ + 4 * mt, 8, T, 54, 56)
    if GATE == "pq": a(f"ds_write_b32 v{vPW}, v{vOne} offset:{Y_KD}")
    for i in range(4): a(f"v_mov_b64 {vr(AC+2*i,2)}, 0\nv_mov_b64 {vr(B2+4*i+2,2)}, 0\nv_mov_b32 v{EQ+i}, s56")
    a("s_setprio 3")
    def accm(j):
        for i in range(2):
            a(mfma16(AC, SEL + 2, PP + 8 * j + 4 * i)); a(mfma16(AC + 4, SEL, PP + 8 * j + 4 * i))
    for k in range(8):
        a(f"s_cmp_eq_u32 s46, 0\ns_cbranch_scc1 L_poll{k}\nL_go{k}:\ns_ff1_i32_b32 s45, s46\ns_bitset0_b32 s46, s45\ns_add_u32 s45, s45, s43\ns_and_b32 s45, s45, 7\ns_lshl_b32 s45, s45, 11\ns_add_u32 s45, s45, s58")
        for i in range(2): a(f"buffer_load_dwordx4 {vr(PP+8*k+4*i,4)}, v5, s[60:63], s45 offen offset:{1024*i} sc1")
        a(f"s_bitset1_b32 s51, {k}")
    a("s_branch L_fin")
    for k in range(8):
        a(f"L_poll{k}:\ns_waitcnt lgkmcnt(0)")
        for i in range(7, -1, -1): a(f"s_cmp_eq_u64 s[{4+2*i}:{5+2*i}], s[{sEP}:{sEP+1}]\ns_addc_u32 s46, s46, s46")
        a(f"""
s_add_u32 s53, s53, 1
s_cmp_gt_u32 s53, 0x8000
s_cselect_b32 s46, 0xff, s46
s_andn2_b32 s46, s46, s50
s_or_b32 s50, s50, s46
s_cmp_eq_u32 s50, 0xff
s_cbranch_scc0 L_pm{k}
buffer_load_dwordx4 {vr(ZZ,4)}, v5, s[60:63], s59 offen sc1
s_mov_b32 s47, s51
s_mov_b32 s52, {k}
""")
        if STAMP: a.stamp(5)
        a(f"""
s_branch L_go{k}
L_pm{k}:
s_load_dwordx16 s[4:19], s[{sWS}:{sWS+1}], s44 glc
s_cmp_lg_u32 s46, 0
s_cbranch_scc1 L_go{k}
""")
        if k == 0: a("s_branch L_poll0")
        else: a(f"s_cmp_eq_u32 s51, 0\ns_cbranch_scc1 L_poll{k}\ns_mov_b32 s52, {k}\ns_branch L_acc")
    a("L_acc:\ns_waitcnt vmcnt(0)")
    for j in range(7):
        a(f"s_bitcmp1_b32 s51, {j}\ns_cbranch_scc0 L_ac{j}"); accm(j); a(f"L_ac{j}:")
    a("s_mov_b32 s51, 0")
    for k in range(1, 7): a(f"s_cmp_eq_u32 s52, {k}\ns_cbranch_scc1 L_poll{k}")
    a("s_branch L_poll7\nL_fin:\ns_andn2_b32 s46, s51, s47")
    for k in range(7): a(f"s_cmp_eq_u32 s52, {k}\ns_cbranch_scc1 L_pw{k}")
    a("s_waitcnt vmcnt(2)\ns_branch L_pwd")
    for k in range(7): a(f"L_pw{k}:\ns_waitcnt vmcnt({2*(8-k)})" + ("\ns_branch L_pwd" if k < 6 else ""))
    a("L_pwd:")
    OST = opt("ost", "0") == "1"
    if OST: a.stamp(7)
    for i in range(4): a(mfma16(D1 + 4 * i, ZZ, PQ + 4 * i, "0"))
    for j in range(7):
        a(f"s_bitcmp1_b32 s47, {j}\ns_cbranch_scc0 L_ao{j}"); accm(j); a(f"L_ao{j}:")
    for i in range(4): a(f"v_cvt_pk_bf16_f32 v{B2+4*i}, v{D1+4*i}, v{D1+4*i+1}\nv_cvt_pk_bf16_f32 v{B2+4*i+1}, v{D1+4*i+2}, v{D1+4*i+3}")
    a("s_nop 0")
    for i in range(4): a(mfma16(DN + 4 * i, ONES, B2 + 4 * i, vr(EQ, 4)))
    for j in range(8):
        a(f"s_bitcmp1_b32 s46, {j}\ns_cbranch_scc0 L_an{j}\ns_waitcnt vmcnt({2*(7-j)})"); accm(j); a(f"L_an{j}:")
    if OST: a.stamp(8)
    a("s_nop 3")
    for i in range(4): a(f"v_rcp_f32 v{DN+4*i}, v{DN+4*i}")
    pack(a, AC, KO, 8)
    NO, NP, OP = 24, 40, 56
    a(f"ds_write_b128 v6, {vr(KO,4)}\nds_write_b32 v{vPW}, v{vOne} offset:{Y_K2}\nds_read_b32 v{vT}, v18 offset:{Y_K2}\nds_read_b128 {vr(KP,4)}, v7")
    for i in range(4): a(mfma16(NO + 4 * i, KO, PQ + 4 * i, "0"))
    a("s_mov_b32 s45, 0\ns_nop 3\ns_cmp_eq_u32 s40, 0")
    OPK = opt("opk", "0") == "1"
    def mul4(r, d):
        if OPK:
            for p in range(2): a(f"v_pk_mul_f32 {vr(r+2*p,2)}, {vr(r+2*p,2)}, {vr(d,2)} op_sel_hi:[1,0]")
        else:
            for p in range(4): a(f"v_mul_f32 v{r+p}, v{r+p}, v{d}")
    for i in range(4): mul4(NO + 4 * i, DN + 4 * i)
    a("s_cbranch_scc0 L_o1")
    for wr in range(2):
        if wr: a("L_o1:")
        for i in range(4): pack(a, NO + 4 * i, OP + 4 * i + 2 * wr, 4)
        a(f"""
s_branch L_ks{wr}g
L_ks{wr}:
ds_read_b32 v{vT}, v18 offset:{Y_K2}
ds_read_b128 {vr(KP,4)}, v7
L_ks{wr}g:
s_add_u32 s45, s45, 1
s_waitcnt lgkmcnt(0)
v_readfirstlane_b32 s46, v{vT}
s_cmp_gt_u32 s45, 0x40000
s_cbranch_scc1 L_kd{wr}
s_cmp_eq_u32 s46, 0
s_cbranch_scc1 L_ks{wr}
L_kd{wr}:
""")
        for i in range(4): a(mfma16(NP + 4 * i, KP, PQ + 4 * i, "0"))
        a("s_nop 4")
        for i in range(4):
            mul4(NP + 4 * i, DN + 4 * i)
            pack(a, NP + 4 * i, OP + 4 * i + 2 * (1 - wr), 4)
            a(f"buffer_store_dwordx4 {vr(OP+4*i,4)}, v5, s[60:63], s48 offen sc1")
            if i < 3: a("s_add_u32 s48, s48, 0x8000")
        if wr == 0: a("s_branch L_o2")
    a("L_o2:")
    if GATE == "o": a(f"ds_write_b32 v{vPW}, v{vOne} offset:{Y_KD}")
    a.stamp(9)
    OF, WX, WY, C, PO = 24, 88, 104, 120, 172
    vWb, vWA, vWB = 236, 8, 244
    a(f"""
s_lshl_b32 s59, s{sg_rb}, 3
s_lshl_b32 s45, s3, 1
s_add_u32 s59, s59, s45
s_lshl_b32 s45, s59, 15
s_add_u32 s45, s45, {WS_O:#x}
v_add_u32 v242, 0x8000, v5
s_mov_b32 s51, 0x55555555
""")
    srd_off(a, 64, sWS, "s45", 65536)
    a(f"""
s_lshl_b32 s52, s{sg_rb}, 8
s_lshl_b32 s46, s3, 6
s_add_u32 s52, s52, s46
{FC(52, FL_O, sg_cb)}
v_lshrrev_b32 v6, 2, v4
v_lshlrev_b32 v6, 7, v6
v_and_b32 v7, 3, v4
v_lshl_add_u32 v6, v7, 3, v6
v_bfe_u32 v7, v4, 3, 1
v_lshl_add_u32 v6, v7, 6, v6
v_lshl_add_u32 v{vWb}, v23, 5, v6
v_xor_b32 v{vWb+1}, 32, v{vWb}
v_xor_b32 v{vWb+2}, 64, v{vWb}
v_xor_b32 v{vWb+3}, 0x60, v{vWb}
s_lshl_b32 s57, s3, 11
s_add_u32 s57, s57, {XCH}
v_lshrrev_b32 v7, 5, v4
v_lshl_add_u32 v6, v23, 1, v7
v_and_b32 v7, 7, v4
v_xor_b32 v6, v6, v7
v_lshlrev_b32 v6, 4, v6
v_and_b32 v3, 15, v4
v_lshl_add_u32 v6, v3, 7, v6
v_add_u32 v15, s57, v6
v_xor_b32 v18, 64, v15
v_lshrrev_b32 v6, 3, v4
v_lshlrev_b32 v3, 4, v7
v_lshl_add_u32 v17, v6, 12, v3
v_xor_b32 v7, v7, v6
v_lshlrev_b32 v7, 4, v7
v_lshl_add_u32 v6, v6, 7, v7
v_add_u32 v16, s57, v6
s_mov_b32 s50, 0
s_mov_b32 s53, 0
s_mov_b32 s54, 0
s_lshl_b32 s55, s40, 4
s_and_b32 s42, s{sg_rb}, {3 if opt("wrot", "1") == "1" else 0}
s_lshl_b32 s42, s42, 3
""")
    for i in range(10): a(f"v_mov_b64 {vr(C+2*i,2)}, 0")
    a(f"s_load_dwordx16 s[4:19], s[{sWS}:{sWS+1}], s52 glc")
    for i in range(10, 16): a(f"v_mov_b64 {vr(C+2*i,2)}, 0")
    a("s_waitcnt vmcnt(0)")
    flag_store(a, 60, 49, vEp, vL128)
    a.stamp(6)
    a("s_waitcnt lgkmcnt(0)")
    maskbuild(a, 54, 46)
    a(f"s_lshl_b32 s46, s54, s55\ns_mov_b32 s47, s46\ns_lshr_b64 s[46:47], s[46:47], s42\nv_mov_b32 v{vT}, s46\ns_mov_b64 exec, 1\nds_or_b32 v14, v{vT} offset:{Y_CO}\ns_mov_b64 exec, -1")
    a(f"s_setprio {opt('gprio', '2')}")
    selno = [0]
    def select(slot):
        n = selno[0]; selno[0] += 1
        a(f"""
s_cmp_lg_u32 s50, 0
s_cbranch_scc1 L_sel{n}_ok
s_mov_b32 s45, 0
s_cmp_lg_u32 s51, 0
s_cbranch_scc1 L_sel{n}
s_mov_b32 s66, 0
s_mov_b32 s50, 0x55555555
s_branch L_sel{n}_ok
L_sel{n}:
ds_read_b32 v{vT}, v14 offset:{Y_CO}
ds_read_b32 v13, v{vY} offset:{Y_WM}
s_add_u32 s45, s45, 1
s_waitcnt lgkmcnt(0)
v_and_b32 v13, v13, v{vT}
s_cmp_gt_u32 s45, 0x40000
s_cselect_b32 s46, -1, 0
v_readfirstlane_b32 s50, v13
s_nop 3
s_or_b32 s50, s50, s46
s_and_b32 s50, s50, s51
s_cbranch_scc1 L_sel{n}_ok
s_cmp_lg_u32 s54, 0x5555
s_cbranch_scc1 L_sel{n}_p
s_sleep 1
s_branch L_sel{n}
L_sel{n}_p:
s_load_dwordx16 s[4:19], s[{sWS}:{sWS+1}], s52 glc
s_add_u32 s45, s45, 8
s_waitcnt lgkmcnt(0)
""")
        maskbuild(a, 54, 46)
        a(f"s_lshl_b32 s46, s54, s55\ns_mov_b32 s47, s46\ns_lshr_b64 s[46:47], s[46:47], s42\nv_mov_b32 v{vT}, s46\ns_mov_b64 exec, 1\nds_or_b32 v14, v{vT} offset:{Y_CO}\ns_mov_b64 exec, -1")
        a(f"s_branch L_sel{n}\nL_sel{n}_ok:")
        return [f"s_ff1_i32_b32 s46, s50", "s_bitset0_b32 s50, s46\ns_add_u32 s48, s46, s42", "s_and_b32 s48, s48, 31\ns_lshl_b32 s48, s48, 10", "s_bitset0_b32 s51, s46", f"s_lshl_b32 s{28+slot}, s46, 12"]
    def oload(slot):
        return [f"buffer_load_dwordx4 {vr(OF+16*slot+8*hh+4*rt,4)}, v{[5,242][rt]}, s[64:67], s48 offen offset:{1024*hh} {OSC}" for hh in range(2) for rt in range(2)]
    def wreads(S, hh, vw):
        return [f"ds_read_b64_tr_b16 {vr(S+4*ct+2*i2,2)}, v{vw+ct} offset:{hh*4096+i2*2048}" for ct in range(4) for i2 in range(2)]
    def wset(slot, vw): return [f"v_add_u32 v{vw+i}, s{28+slot}, v{vWb+i}" for i in range(4)]
    for sl in range(3):
        for x in select(sl): a(x)
        if sl == 0 and not OST: a.stamp(7)
        for x in oload(sl): a(x)
    for x in wset(0, vWA): a(x)
    for r in wreads(WX, 0, vWA): a(r)
    a("L_gloop:")
    for u in range(4):
        cur, nxt = (vWA, vWB) if u % 2 == 0 else (vWB, vWA)
        sel = select((u + 3) % 4)
        ol = oload((u + 3) % 4)
        a("s_waitcnt vmcnt(10) lgkmcnt(0)")
        if TRACE: a("s_memrealtime s[100:101]")
        m = [mfma16(C + 4 * (rt * 4 + ct), WX + 4 * ct, OF + 16 * u + 4 * rt) for rt in range(2) for ct in range(4)]
        interleave(a, m, wreads(WY, 1, cur) + wset((u + 1) % 4, nxt) + sel[:4], 2)
        a("s_waitcnt vmcnt(8) lgkmcnt(0)")
        if TRACE: a(f"s_lshl_b32 m0, s53, 2\ns_add_u32 m0, m0, {u}\ns_nop 0\nv_writelane_b32 v252, s100, m0")
        m = [mfma16(C + 4 * (rt * 4 + ct), WY + 4 * ct, OF + 16 * u + 8 + 4 * rt) for rt in range(2) for ct in range(4)]
        if u == 3: oth = wreads(WX, 0, nxt) + [ol[0], ol[1], sel[4], ol[2], "s_add_u32 s53, s53, 1", ol[3], "s_cmp_lt_u32 s53, 4"]
        else: oth = wreads(WX, 0, nxt) + [ol[0], sel[4], ol[1]] + [None, ol[2], None, ol[3]]
        o2 = list(oth)
        for mm in m:
            a(mm)
            for _ in range(2):
                if o2:
                    x = o2.pop(0)
                    if x: a(x)
        for x in o2:
            if x: a(x)
    a("s_cbranch_scc1 L_gloop")
    if not OST: a.stamp(8)
    a(f"""
s_lshl_b32 s48, s59, 16
s_lshl_b32 s49, s{sg_cb}, 7
s_add_u32 s48, s48, s49
s_add_u32 s49, s48, 0x8000
s_add_u32 s50, s48, 0x10000
s_add_u32 s51, s48, 0x18000
s_waitcnt lgkmcnt(0)
""")
    pack(a, C, PO, 32)
    a("s_nop 1")
    for q in range(4):
        a(f"v_permlane16_swap_b32 v{PO+4*q}, v{PO+4*q+2}\nv_permlane16_swap_b32 v{PO+4*q+1}, v{PO+4*q+3}")
    for rt in range(2):
        for qq in range(2): a(f"ds_write_b128 v{[15,18][qq]}, {vr(PO+8*rt+4*qq,4)}")
        for i in range(2): a(f"ds_read_b128 {vr(WX+8*rt+4*i,4)}, v16 offset:{1024*i}")
    for q in range(4):
        a(f"s_waitcnt lgkmcnt({[5,4,1,0][q]})")
        a(f"buffer_store_dwordx4 {vr(WX+4*q,4)}, v17, s[68:71], s{48+q} offen {FL_OUT}")
    if TRACE:
        a(f"v_writelane_b32 v252, s90, 16\ns_lshl_b32 s100, s2, 10\ns_add_u32 s100, s100, {WS_ST + 0x200000:#x}\nv_lshlrev_b32 v253, 2, v0\nbuffer_store_dword v252, v253, s[60:63], s100 offen")
    a.end()

def aux(a):
    vOA, vOB = 8, 12
    vZero, vEp, vOne, vY, vT = 6, 7, 14, 15, 3
    a(f"""
s_sub_u32 s3, s3, 4
v_lshrrev_b32 v1, 3, v4
v_and_b32 v2, 7, v4
v_lshrrev_b32 v3, 4, v4
v_xor_b32 v6, v2, v3
v_lshlrev_b32 v6, 4, v6
v_lshl_add_u32 v6, v1, 11, v6
s_lshl_b32 s60, s{srb}, 7
s_lshl_b32 s61, s3, 5
s_add_u32 s60, s60, s61
s_lshl_b32 s60, s60, 11
v_add_u32 v{vOA}, s60, v6
v_xor_b32 v6, 64, v{vOA}
v_add_u32 v{vOA+1}, {16384-1024}, v6
v_add_u32 v{vOA+2}, {2*(16384-1024)}, v{vOA}
v_add_u32 v{vOA+3}, {3*(16384-1024)}, v6
v_and_b32 v3, 1, v3
v_lshlrev_b32 v3, 2, v3
v_xor_b32 v7, v2, v3
v_lshlrev_b32 v7, 4, v7
v_xor_b32 v6, 32, v7
s_movk_i32 s61, 6144
v_mad_u32_u24 v7, v1, s61, v7
v_mad_u32_u24 v6, v1, s61, v6
s_mul_i32 s60, s3, {16*6144}
v_add_u32 v{vOB}, s60, v7
s_add_u32 s60, s60, {8*6144-1024}
v_add_u32 v{vOB+1}, s60, v6
s_lshl_b32 s65, s3, 12
s_lshl_b32 s66, s3, 11
s_add_u32 s66, s66, 0x4000
s_mov_b32 s64, 0
s_mov_b32 s67, s{sk0}
s_lshl_b32 s74, s{shq}, 7
s_lshl_b32 s75, s{shk}, 7
s_add_u32 s75, s75, 2048
s_mov_b32 s42, {4*MB:#x}
s_mov_b32 s43, 0x20000
s_mov_b32 s46, {6*MB:#x}
s_mov_b32 s47, 0x20000
s_waitcnt lgkmcnt(0)
s_mov_b64 s[40:41], s[{sX}:{sX+1}]
s_mov_b64 s[44:45], s[{sW}:{sW+1}]
""")
    vm = VM(a)
    def issue(tag):
        a(f"s_add_u32 m0, s64, s65\ns_lshl_b32 s60, s67, 7\ns_mul_i32 s63, s67, {64*6144}")
        for i in range(4): a(f"buffer_load_dwordx4 v{vOA+i}, s[40:43], s60 offen offset:{1024*i} lds")
        a(f"s_add_u32 m0, s64, s66\ns_add_u32 s61, s63, s74\ns_add_u32 s62, s63, s75")
        for i in range(2): a(f"buffer_load_dwordx4 v{vOB+i}, s[44:47], s61 offen offset:{1024*i} lds")
        a(f"s_add_u32 m0, m0, 8192\ns_add_u32 s63, s62, 2048")
        for i in range(2): a(f"buffer_load_dwordx4 v{vOB+i}, s[44:47], s62 offen offset:{1024*i} lds")
        a(f"s_add_u32 m0, m0, 8192\ns_add_u32 s67, s67, 1")
        for i in range(2): a(f"buffer_load_dwordx4 v{vOB+i}, s[44:47], s63 offen offset:{1024*i} lds")
        a(f"s_and_b32 s67, s67, 15\ns_add_u32 s64, s64, {STG}\ns_cmp_eq_u32 s64, {3*STG}\ns_cselect_b32 s64, 0, s64")
        vm.issue(tag, 10)
    def B(i): vm.wait(i); a.bar()
    a.sst(2)
    issue(0)
    a.sst(3)
    a("s_barrier")
    a.sst(4)
    ids2(a)
    a(f"v_mov_b32 v{vZero}, 0\nv_mov_b32 v{vOne}, 1\nv_mov_b32 v{vY}, {SYNC}\nv_lshlrev_b32 v255, 7, v4\n{WSOFF}")
    srd(a, 48, sWS, 32 * MB)
    srd(a, 52, sDBG, 256)
    a(f"""
s_or_b32 s60, s2, s3
s_cmp_eq_u32 s60, 0
s_cbranch_scc0 L_noep
s_memrealtime s[60:61]
s_waitcnt lgkmcnt(0)
s_or_b32 s60, s60, 1
v_mov_b32 v{vEp}, s60
s_mov_b64 exec, 1
buffer_store_dword v{vEp}, v{vZero}, s[52:55], 0 offen sc1
s_mov_b64 exec, -1
L_noep:
""")
    P, Qs, CACC, W2, QQ = 32, 96, 160, 192, 224
    VU = [240, 241, 242, 243]; vH, vE, vS, vTR, vHP = 244, 245, 246, 247, 251
    vUS, vHL, vO = 25, 26, 20
    a(f"""
s_mul_i32 s68, s3, {HCH}
s_add_u32 s68, s68, {HB}
s_lshl_b32 s69, s{ssb}, 7
s_lshl_b32 s70, s3, 5
s_add_u32 s69, s69, s70
v_lshrrev_b32 v28, 4, v4
v_bfe_u32 v29, v4, 2, 2
v_and_b32 v30, 3, v4
v_and_b32 v31, 15, v4
s_lshl_b32 s60, s3, 12
s_add_u32 s60, s60, {HB}
v_add_u32 v{vTR}, s60, v5
s_and_b32 s60, s3, 1
s_lshl_b32 s60, s60, 6
v_xor_b32 v{vTR}, s60, v{vTR}
v_xor_b32 v{vTR+1}, 16, v{vTR}
v_xor_b32 v{vTR+2}, 32, v{vTR}
v_xor_b32 v{vTR+3}, 48, v{vTR}
v_lshlrev_b32 v3, 12, v28
v_lshl_add_u32 v{vUS}, v31, 4, v3
s_lshl_b32 s60, s{sdb}, 18
s_lshl_b32 s61, s3, 16
s_add_u32 s60, s60, s61
s_lshl_b32 s61, s{ssb}, 8
s_sub_u32 s60, s60, s61
s_add_u32 s60, s60, {WS_UT + 3840}
v_add_u32 v{vUS}, s60, v{vUS}
v_lshlrev_b32 v{vHL}, 5, v4
v_and_b32 v3, 1, v28
v_lshlrev_b32 v3, 2, v3
v_xor_b32 v3, v2, v3
v_lshrrev_b32 v27, 5, v4
v_lshlrev_b32 v27, 1, v27
v_xor_b32 v3, v27, v3
v_lshlrev_b32 v3, 4, v3
v_lshl_add_u32 v3, v1, 11, v3
s_lshl_b32 s60, s{sg_cb}, 7
v_add_u32 v{vO}, s60, v3
v_add_u32 v{vO+1}, {16384-1024}, v{vO}
v_add_u32 v{vO+2}, {2*(16384-1024)}, v{vO}
v_add_u32 v{vO+3}, {3*(16384-1024)}, v{vO}
s_mov_b32 s70, 0xffff0000
v_and_b32 v3, 1, v28
s_movk_i32 s60, {HP}
v_mul_u32_u24 v3, s60, v3
v_lshl_add_u32 v3, v31, 4, v3
v_add_u32 v{vHP}, s68, v3
s_mul_i32 s71, s3, {UCH}
s_add_u32 s71, s71, {U0}
v_add_u32 v19, s71, v5
s_movk_i32 s61, {CPY}
v_and_b32 v24, 1, v29
v_mul_u32_u24 v24, s61, v24
v_lshl_add_u32 v24, v30, 4, v24
v_add_u32 v24, s71, v24
v_add_u32 v3, 1, v31
v_and_b32 v16, 1, v3
v_add_u32 v17, v16, v31
v_mul_u32_u24 v3, s61, v16
v_lshl_add_u32 v3, v28, 5, v3
v_lshlrev_b32 v17, 1, v17
v_sub_u32 v3, v3, v17
s_add_u32 s60, s71, {4014 - 512 - 16}
v_add_u32 v{VU[0]}, s60, v3
v_subrev_u32 v{VU[1]}, 1024, v{VU[0]}
v_subrev_u32 v{VU[2]}, 2048, v{VU[0]}
v_subrev_u32 v{VU[3]}, 3072, v{VU[0]}
v_add_u32 v3, v31, v28
s_add_u32 s60, s68, 208
v_lshlrev_b32 v3, 4, v3
v_add_u32 v{vH}, s60, v3
v_lshlrev_b32 v3, 5, v31
v_lshl_add_u32 v16, v28, 3, v3
s_add_u32 s60, s71, {4088 - 3584}
v_sub_u32 v{vE}, s60, v16
v_and_b32 v16, 1, v28
v_lshl_add_u32 v3, v16, 9, v3
v_lshrrev_b32 v16, 5, v4
v_lshl_add_u32 v{vS}, v16, 4, v3
v_lshlrev_b32 v27, 4, v2
v_lshl_add_u32 v16, v1, 11, v27
v_lshl_add_u32 v17, v1, 12, v27
s_add_u32 s39, s{sch}, s3
s_and_b32 s60, s39, 0xfffffffe
s_lshl_b32 s60, s60, 1
s_load_dword s71, s[{sD}:{sD+1}], s60
s_lshl_b32 s61, s39, 12
""")
    for i in range(16): a(f"v_mov_b64 {vr(CACC+2*i,2)}, 0")
    srd_off(a, 52, sH, "s61", 4096); srd(a, 56, sWO, 2 * MB)
    a(f"s_waitcnt lgkmcnt(0)\ns_mov_b32 s20, s{sQ}\ns_mov_b32 s21, s{sQ+1}")
    def hload():
        a(f"s_add_u32 m0, s68, 256\ns_movk_i32 s60, 1024\ns_movk_i32 s61, 1040")
        a(f"buffer_load_dwordx4 v{vHL}, s[52:55], 0 offen {FL_KV} lds\nbuffer_load_dwordx4 v{vHL}, s[52:55], s60 offen offset:1024 {FL_KV} lds")
        a(f"s_add_u32 m0, s68, {HP+256}\ns_nop 0")
        a(f"buffer_load_dwordx4 v{vHL}, s[52:55], 16 offen {FL_KV} lds\nbuffer_load_dwordx4 v{vHL}, s[52:55], s61 offen offset:1024 {FL_KV} lds")
        vm.issue("h", 4)
    def epoch():
        a(f"""
s_waitcnt lgkmcnt(0)
s_mov_b32 s60, 0
L_eploop:
s_cmp_lg_u32 s{sEP}, 0
s_cbranch_scc1 L_epok
s_sleep 8
s_load_dword s{sEP}, s[{sDBG}:{sDBG+1}], 0 glc
s_add_u32 s60, s60, 1
s_cmp_gt_u32 s60, 0x4000
s_waitcnt lgkmcnt(0)
s_cbranch_scc0 L_eploop
L_epok:
s_mov_b32 s{sEP+1}, s{sEP}
v_mov_b32 v{vEp}, s{sEP}
ds_write_b32 v{vY}, v{vEp} offset:{Y_EP}
""")
    a.sst(5); vm.wait(0); a.sst(6)
    B(0); issue(1); issue(2)
    B(1); issue(3)
    a.stamp(9)
    B(2); issue(4)
    a(f"s_load_dword s{sEP}, s[{sDBG}:{sDBG+1}], 0")
    D, E, O = 32, 48, 52
    H0 = int(opt("h0", "14")); D0 = int(opt("d0", "14")); HN = int(opt("hn", "1")); DN_ = int(opt("dn", "1"))
    hl = [(f"s_add_u32 m0, s68, 256", f"buffer_load_dwordx4 v{vHL}, s[52:55], 0 offen {FL_KV} lds"),
          (f"s_add_u32 m0, s68, 256\ns_movk_i32 s60, 1024", f"buffer_load_dwordx4 v{vHL}, s[52:55], s60 offen offset:1024 {FL_KV} lds"),
          (f"s_add_u32 m0, s68, {HP+256}", f"buffer_load_dwordx4 v{vHL}, s[52:55], 16 offen {FL_KV} lds"),
          (f"s_add_u32 m0, s68, {HP+256}\ns_movk_i32 s60, 1040", f"buffer_load_dwordx4 v{vHL}, s[52:55], s60 offen offset:1024 {FL_KV} lds")]
    dl = [f"buffer_load_dwordx4 {vr(D+4*j,4)}, v5, s[48:51], s39 offen offset:{1024*j} sc1" for j in range(4)]
    a(f"s_lshl_b32 s33, s39, 7\ns_add_u32 s33, s33, {FL_U:#x}\ns_lshl_b32 s39, s39, 12")
    def uchk():
        a("s_waitcnt lgkmcnt(0)")
        for i in range(8): a(f"s_cmp_eq_u64 s[{4+2*i}:{5+2*i}], s[{sEP}:{sEP+1}]\ns_cbranch_scc0 L_us")
        a("s_branch L_upoll_done\nL_us:")
        spoll(a, "L_upoll", 33, 60)
    for b in range(3, 14):
        B(b)
        if b == 3:
            epoch(); a(f"ds_write_b128 v{vHP}, {vr(CACC,4)}")
        issue(b + 2)
        if b == min(D0, 14) - 1: a(f"s_load_dwordx16 s[4:19], s[{sWS}:{sWS+1}], s33 glc")
        if b == D0: uchk()
        if b >= H0:
            for _ in range(HN):
                if hl:
                    x = hl.pop(0); a(x[0]); a("s_nop 0"); a(x[1]); vm.issue("h")
        if b >= D0:
            for _ in range(DN_):
                if dl: a(dl.pop(0)); vm.issue("d")
    srd(a, 40, 20, 4 * MB); srd(a, 44, sOUT, 8 * MB)
    sPo = {0: 3, 1: 75, 2: 65, 3: 31}
    a(f"s_and_b32 s28, s{sg_rb}, {3 if opt('wrot', '1') == '1' else 0}\ns_lshl_b32 s74, s28, 2\ns_lshl_b32 s28, s28, 3")
    a("s_add_u32 s65, s3, 5\ns_add_u32 s75, s3, 9\ns_cmp_eq_u32 s3, 3\ns_cselect_b32 s75, 4, s75\ns_add_u32 s31, s3, 12")
    def usrc(g): return [f"s_add_u32 s60, s{sPo[g]}, s74", "s_and_b32 s60, s60, 15", "s_lshl_b32 s60, s60, 17", "s_add_u32 s61, s60, 0x10000"]
    def w2(g):
        r = usrc(g)
        for hh in range(2):
            for i in range(4): r.append(f"buffer_load_dwordx4 {vr(W2+16*hh+4*i,4)}, v{vO+i}, s[56:59], s{60+hh} offen offset:{1024*i} {FL_WO}")
        vm.issue(f"w{g}", 8)
        return r
    def wb(g):
        a(f"s_lshl_b32 m0, s{sPo[g]}, 13")
        for x in usrc(g): a(x)
        for hh in range(2):
            for i in range(4): a(f"buffer_load_dwordx4 v{vO+i}, s[56:59], s{60+hh} offen offset:{1024*i} {FL_WO} lds")
            if hh == 0: a("s_add_u32 m0, m0, 4096\ns_nop 0")
        vm.issue(f"w{g}", 8)
    def wm_lines(bits):
        r = ["s_mov_b32 s61, 0"]
        for g in bits: r += [f"s_lshl_b32 s60, s{sPo[g]}, 1", "s_bitset1_b32 s61, s60"]
        return r + [f"v_mov_b32 v{vT}, s61", f"s_mov_b64 exec, 1\nds_or_b32 v{vY}, v{vT} offset:{Y_WM}\ns_mov_b64 exec, -1"]
    B(14)
    if D0 >= 14: uchk()
    for x in dl: a(x); vm.issue("d")
    for x in hl: a(x[0]); a("s_nop 0"); a(x[1]); vm.issue("h")
    W14 = len(dl) + len(hl) <= 4
    if W14: wb(2)
    B(15)
    a.stamp(1)
    a(f"ds_write_b128 v24, {vr(CACC,4)} offset:4096")
    if not W14: wb(2)
    vm.wait("d")
    for j in range(3): a(f"v_mov_b32_dpp v{E+j}, v{D+4*j+4} wave_rol:1 row_mask:0xf bank_mask:0xf")
    a(f"v_mov_b32 v{E+3}, 0\ns_nop 0")
    for j in range(4): a(f"v_mov_b32_dpp v{E+j}, v{D+4*j} wave_shl:1 row_mask:0xf bank_mask:0xf")
    for j in range(4):
        d = [D + 4 * j + i for i in range(4)] + [E + j]
        o = O + 4 * j
        a(f"ds_write_b128 v19, {vr(D+4*j,4)} offset:{1024*j}")
        for i in range(4): a(f"v_alignbit_b32 v{o+i}, v{d[i+1]}, v{d[i]}, 16")
        a(f"ds_write_b128 v19, {vr(o,4)} offset:{CPY+1024*j}")
    def wait4(lab, off, slp=1, T=68):
        a(f"""
s_mov_b32 s60, 0
{lab}:
ds_read_b128 v[{T}:{T+3}], v{vY} offset:{off}
s_add_u32 s60, s60, 1
s_waitcnt lgkmcnt(0)
v_and_b32 v{T}, v{T}, v{T+1}
v_and_b32 v{T+2}, v{T+2}, v{T+3}
v_and_b32 v{T}, v{T}, v{T+2}
s_cmp_gt_u32 s60, 0x40000
s_cbranch_scc1 {lab}_d
v_readfirstlane_b32 s61, v{T}
s_nop 3
s_cmp_eq_u32 s61, 1
s_cbranch_scc1 {lab}_d
s_sleep {slp}
s_branch {lab}
{lab}_d:
""")
    wait4("L_fr", Y_FR)
    a.stamp(2)
    wb(1); wb(0)
    a(f"""
s_lshl_b32 s30, s69, 11
s_lshl_b32 s61, s{sdb}, 7
s_add_u32 s30, s30, s61
s_lshl_b32 s63, s69, 12
s_add_u32 s63, s63, s61
s_add_u32 s63, s63, 2048
s_lshl_b32 s66, s{sg_rb}, 8
s_lshl_b32 s61, s3, 6
s_add_u32 s66, s66, s61
{FC(66, FL_O, sg_cb)}
s_bitcmp1_b32 s3, 0
s_cselect_b32 s60, 0, 16
s_cselect_b32 s33, 16, 0
s_lshl_b32 s71, s71, s60
s_and_b32 s71, s71, 0xffff0000
s_lshr_b32 s60, s3, 1
v_lshl_add_u32 v19, s60, 2, v{vY}
s_mov_b32 s32, s{sch}
{FA(32, FL_Y, 8192)}
s_lshl_b32 s67, s{sdb}, 6
s_lshl_b32 s60, s{ssb}, 2
s_add_u32 s60, s60, s3
{FC(67, FL_Y, 60, 8192)}
s_mov_b32 s64, 0
""")
    def creads(S, rho):
        r = []
        for i in range(8):
            o0 = 128 * (1 - i % 2) + 4 * (1 - rho)
            r.append(f"ds_read2_b32 {vr(S+4*i,2)}, v{VU[i//2]} offset0:{o0} offset1:{o0+1}")
            r.append(f"ds_read2_b32 {vr(S+4*i+2,2)}, v{VU[i//2]} offset0:{o0+2} offset1:{o0+3}")
            r.append(f"ds_read_b128 {vr(S+32+4*i,4)}, v{vH} offset:{256*i+(HP if rho == 0 else 0)}")
        return r
    def cmf(S):
        if opt("cch", "1") == "1": return [mfma16(CACC + 4 * t, S + 4 * x, S + 32 + 4 * (t - x)) for t in range(7, -1, -1) for x in range(t + 1)]
        return [mfma16(CACC + 4 * (x + y), S + 4 * x, S + 32 + 4 * y) for x in range(8) for y in range(8 - x)]
    vm.wait("h")
    for r in creads(P, 0): a(r)
    if opt("gate", "kv") != "none": wait4("L_kd", Y_KD, T=Qs)
    a.stamp(3)
    a(f"s_setprio {opt('vprio', '0')}")
    adv = [f"v_subrev_u32 v{x}, 128, v{x}" for x in VU] + [f"v_subrev_u32 v{vH}, 64, v{vH}"]
    pn = [0]
    def Pissue(): return f"s_load_dwordx16 s[4:19], s[{sWS}:{sWS+1}], s66 glc"
    def Pcheck(w):
        n = pn[0]; pn[0] += 1
        maskbuild(w, 62, 60)
        w(f"s_mov_b32 s64, s62\ns_lshl_b32 s60, s62, s33\ns_mov_b32 s61, s60\ns_lshr_b64 s[60:61], s[60:61], s28\nv_mov_b32 v{vT}, s60")
        g = f"s_mov_b64 exec, 1\nds_or_b32 v19, v{vT} offset:{Y_CO}\ns_mov_b64 exec, -1"
        if isinstance(w, L): w.l.append(g)
        else: w(g)
    a("s_waitcnt lgkmcnt(0)")
    interleave(a, cmf(P), creads(Qs, 1) + adv)
    a("s_waitcnt lgkmcnt(0)")
    vm.wait("w0")
    ex = wm_lines((0, 1, 2)) + w2(3)
    ex += [x for i in range(4) for x in ([f"buffer_load_dwordx4 {vr(QQ+4*i,4)}, v16, s[40:43], s30 offen {FL_KV}"] + (["s_add_u32 s30, s30, 0x4000"] if i < 3 else []))]
    vm.issue("q", 4)
    CVP = opt("cvpoll", "0") == "1"
    inter3(a, cmf(Qs), ["s_mov_b32 s29, 1"] + ([Pissue()] if CVP else []) + ex, 1, creads(P, 0), 1)
    a("L_cloop:\ns_waitcnt lgkmcnt(0)")
    w = L(); Pcheck(w)
    inter3(a, cmf(P), w.l + [Pissue()] if CVP else [], 3, creads(Qs, 1) + adv, 1)
    a("s_waitcnt lgkmcnt(0)")
    w = L(); Pcheck(w)
    inter3(a, cmf(Qs), w.l + [Pissue()] if CVP else [], 3, creads(P, 0) + ["s_add_u32 s29, s29, 1", "s_cmp_lt_u32 s29, 4"], 1)
    a("s_cbranch_scc1 L_cloop")
    a.stamp(4)
    UU, T = Qs + 40, Qs + 56
    for t in range(8): a(f"ds_read_b64 {vr(UU+2*t,2)}, v{vE} offset:{512*(7-t)}")
    ladd(a, vY, Y_CD, vOne)
    a(f"s_setprio {opt('yprio', '3')}\ns_waitcnt lgkmcnt(0)")
    for t in range(8):
        a(f"v_and_b32 v{T}, s70, v{UU+2*t+1}\nv_lshlrev_b32 v{T+1}, 16, v{UU+2*t+1}")
        a(f"v_and_b32 v{T+2}, s70, v{UU+2*t}\nv_lshlrev_b32 v{T+3}, 16, v{UU+2*t}")
        for i in range(4): a(f"v_fmac_f32 v{CACC+4*t+i}, s71, v{T+i}")
        a(f"v_cvt_pk_bf16_f32 v{UU+2*t}, v{CACC+4*t}, v{CACC+4*t+1}")
        a(f"v_cvt_pk_bf16_f32 v{UU+2*t+1}, v{CACC+4*t+2}, v{CACC+4*t+3}")
    a("s_nop 1")
    for t in range(0, 8, 2):
        a(f"v_permlane16_swap_b32 v{UU+2*t}, v{UU+2*t+2}\nv_permlane16_swap_b32 v{UU+2*t+1}, v{UU+2*t+3}")
    vm.wait("w3")
    for t in range(0, 8, 2): a(f"buffer_store_dwordx4 {vr(UU+2*t,4)}, v{vS}, s[48:51], s39 offen offset:{512*t} sc1")
    lspin(a, "L_cdspin", vY, Y_CD, "4", vT, 60, 61, slp=0)
    a(f"s_lshl_b32 s60, s3, 13\ns_add_u32 s60, s60, {U0}\nv_add_u32 v18, s60, v5")
    for i in range(8): a(f"ds_write_b128 v18, {vr(W2+4*i,4)} offset:{1024*i}")
    for x in wm_lines((3,)): a(x)
    a.stamp(5)
    a(f"""
s_lshl_b32 s65, s{sdb}, 18
s_lshl_b32 s60, s69, 1
s_add_u32 s65, s65, s60
s_add_u32 s65, s65, {WS_YT:#x}
v_lshrrev_b32 v18, 2, v4
v_lshlrev_b32 v18, 12, v18
v_lshl_add_u32 v18, v30, 4, v18
v_lshl_add_u32 v20, v28, 3, v29
v_lshlrev_b32 v20, 6, v20
v_lshl_add_u32 v20, v30, 3, v20
v_add_u32 v20, s68, v20
s_movk_i32 s60, 144
v_mul_u32_u24 v24, s60, v31
v_lshl_add_u32 v24, v28, 4, v24
v_add_u32 v24, s68, v24
v_mul_u32_u24 v25, s60, v1
v_add3_u32 v25, v25, v27, s68
s_mov_b32 m0, s68
s_waitcnt vmcnt(0)
s_mov_b64 exec, 1
ds_add_rtn_u32 v{vT}, v{vY}, v{vOne} offset:{Y_CY}
s_mov_b64 exec, -1
s_waitcnt lgkmcnt(0)
v_readfirstlane_b32 s60, v{vT}
s_nop 3
s_cmp_eq_u32 s60, 3
s_cbranch_scc0 L_yfl
""")
    flag_store(a, 48, 32, vEp, 255, "-1")
    a("L_yfl:")
    a.stamp(6)
    a("s_setprio 0")
    unpack(a, QQ, 96, 16, 70)
    a("s_mov_b32 s29, 0\nL_yloop:\ns_cmp_eq_u32 s64, 0x5555\ns_cbranch_scc1 L_ynop")
    a(Pissue() + "\ns_waitcnt lgkmcnt(0)"); Pcheck(a)
    a(f"L_ynop:\ns_load_dwordx16 s[4:19], s[{sWS}:{sWS+1}], s67 glc\ns_add_u32 s29, s29, 1\ns_cmp_gt_u32 s29, 0x8000\ns_cbranch_scc1 L_ydone\ns_waitcnt lgkmcnt(0)")
    for i in range(8): a(f"s_cmp_eq_u64 s[{4+2*i}:{5+2*i}], s[{sEP}:{sEP+1}]\ns_cbranch_scc0 L_yloop")
    a("L_ydone:\ns_waitcnt lgkmcnt(0)")
    a.stamp(7)
    for i in range(4):
        a(f"buffer_load_dwordx4 v18, s[48:51], s65 offen offset:{1024*i} sc1 lds")
        if i < 3: a(f"s_add_u32 s65, s65, {0x10000-1024}")
    YY, T = 48, 64
    a("s_waitcnt vmcnt(0)")
    a.stamp(8)
    for sh in range(2):
        for oh in range(2):
            for i2 in range(2):
                a(f"ds_read_b64_tr_b16 {vr(YY+8*sh+4*oh+2*i2,2)}, v20 offset:{32*sh+2048*oh+256*i2}")
    a("s_waitcnt lgkmcnt(0)")
    for sh in range(2):
        for oh in range(2): a(f"ds_write_b128 v24, {vr(YY+8*sh+4*oh,4)} offset:{16*144*sh+64*oh}")
    for j in range(4): a(f"ds_read_b128 {vr(YY+32+4*j,4)}, v25 offset:{8*144*j}")
    for j in range(4):
        a(f"s_waitcnt lgkmcnt({3-j})")
        unpack(a, YY + 32 + 4 * j, T, 4, 70)
        for e in range(8): a(f"v_mul_f32 v{T+e}, v{T+e}, v{96+8*j+e}")
        pack(a, T, QQ + 4 * j, 8)
        a(f"buffer_store_dwordx4 {vr(QQ+4*j,4)}, v17, s[44:47], s63 offen {FL_OUT}")
        if j < 3: a("s_add_u32 s63, s63, 0x8000")
    a.trace_out()
    a.end()

def desc(name, vgpr, sgpr=102):
    return f""".amdhsa_kernel {name}
  .amdhsa_next_free_vgpr {vgpr}
  .amdhsa_next_free_sgpr {sgpr}
  .amdhsa_accum_offset {(vgpr + 3) // 4 * 4}
  .amdhsa_group_segment_fixed_size 0
  .amdhsa_kernarg_size 96
  .amdhsa_user_sgpr_count 2
  .amdhsa_user_sgpr_kernarg_segment_ptr 1
  .amdhsa_system_sgpr_workgroup_id_x 1
.end_amdhsa_kernel
"""
def main():
    out = open("cdna_kernels/" + NAME + ".s.ref").read().split("; Override launch")[0]
    KS = [KN]
    if AMP:
        out += f"; @launch kernel={KN} grid=(256,1,1) block=(512,1,1) lds={LDS}\n"
        out += "; @launch kernel=kd_kernel grid=(1,1,1) block=(64,1,1) lds=0\n"; KS.append("kd_kernel")
    else:
        out += f"; @launch grid=(256,1,1) block=(512,1,1) lds={LDS}\n"
    out += '.amdgcn_target "amdgcn-amd-amdhsa--gfx950"\n.text\n'
    for k in KS: out += f".globl {k}\n.type {k},@function\n"
    if opt("pal", ""): out += f".p2align {opt('pal', '')}\n"
    out += ".p2align 8\n"
    a = A()
    kernel(a)
    if AMP: kd.kernel_d(a, AMP, WS_ST)
    out += a.text()
    out += '.section .rodata,"a"\n'
    for k in KS: out += ".p2align 6\n" + desc(k, 256)
    path = sys.argv[1] if len(sys.argv) > 1 and not sys.argv[1].startswith("--") else "cdna_kernels/" + NAME + ".s"
    open(path, "w").write(out)
main()
```

```python
import sys, os
sys.path.insert(0, os.path.dirname(os.path.abspath(__file__)))
import kd
NAME = "concat_heads__linear_attn_block__ssm_conv_h3__prompt"
KN = NAME + "_kernel"
MB = 1 << 20
WS_UT, WS_KVP, WS_ZP, WS_FL, WS_O, WS_YT, WS_ST = 0, 8 * MB, 9 * MB, 9 * MB + 0x40000, 4 * MB, 0, 24 * MB
LOG2E, EPS = 0x3FB8AA3B, 0x358637BD
STAMP = "--stamp" in sys.argv
TRACE = "--trace" in sys.argv
def opt(name, default):
    for x in sys.argv:
        if x.startswith("--" + name + "="): return x.split("=", 1)[1]
    return default
FL_U, FL_P, FL_O, FL_Y = [WS_FL + k * 131072 for k in range(4)]
def FA(r, base, grp=2048):
    return f"s_lshr_b32 vcc_lo, s{r}, 6\ns_mul_i32 vcc_lo, vcc_lo, {grp-64}\ns_add_u32 s{r}, s{r}, vcc_lo\ns_add_u32 s{r}, s{r}, {base:#x}"
def FC(r, base, own, grp=2048):
    return FA(r, base, grp) + f"\ns_lshl_b32 vcc_lo, s{own}, 7\ns_add_u32 s{r}, s{r}, vcc_lo"
if opt("ysep", "0") == "1": WS_YT = 10 * MB
FL_KV = opt("kv", "")
FL_WO = opt("wo", "")
FL_XW = opt("xw", "")
FL_OUT = opt("outst", "sc1")
AMP = opt("amp", "")
KROT = opt("krot", "q8c")
ROT2 = opt("rot2", "0") == "1"
ROTW = opt("rotw", "1") == "1"
G2 = opt("g2", "")
OSC = "" if "nosc1" in G2 else "sc1"
DEPTH = int(opt("depth", "6"))
PSLEEP = opt("psleep", "0")

SST = opt("sst", "0") == "1"
class A:
    def __init__(self): self.l = []
    def __call__(self, s):
        for x in s.strip("\n").split("\n"):
            x = x.strip()
            self.l.append(x if x.endswith(":") else "    " + x)
    jn = 0
    def stamp(self, i):
        J = opt("jitter", "")
        if J and i > 0 and getattr(self, "jon", False):
            n = self.jn; self.jn += 1
            self(f"""
s_cselect_b32 s101, 1, 0
s_memrealtime s[98:99]
s_waitcnt lgkmcnt(0)
s_lshr_b32 s100, s98, 2
s_xor_b32 s100, s100, s2
s_mul_i32 s100, s100, {2654435761 + 2*n + int(J)}
s_add_u32 s100, s100, s3
s_mul_i32 s100, s100, 40503
s_lshr_b32 s100, s100, 29
s_cmp_lt_u32 s100, 6
s_cbranch_scc1 L_j{n}
s_sleep 60
s_cmp_lt_u32 s100, 7
s_cbranch_scc1 L_j{n}
s_sleep 127
L_j{n}:
s_cmp_lg_u32 s101, 0
""")
        if STAMP and not (SST and getattr(self, "jon", False) and 2 <= i <= 6): self(f"s_memrealtime s[{76+2*i}:{77+2*i}]")
    def sst(self, i):
        if STAMP and SST: self(f"s_memrealtime s[{76+2*i}:{77+2*i}]")
    def end(self):
        if STAMP:
            self(f"""
s_memrealtime s[96:97]
s_mov_b64 exec, 1
v_lshrrev_b32 v1, 6, v0
s_waitcnt vmcnt(0) lgkmcnt(0)
s_memrealtime s[98:99]
s_mov_b32 s40, s26
s_mov_b32 s41, s27
s_mov_b32 s42, 0x2000000
s_mov_b32 s43, 0x20000
s_lshl_b32 s100, s2, 3
v_add_u32 v1, s100, v1
v_lshlrev_b32 v1, 5, v1
v_add_u32 v1, {WS_ST}, v1
v_add_u32 v2, 65536, v1
s_waitcnt lgkmcnt(0)
""")
            for i in range(12): self(f"v_mov_b32 v{4+i}, s{76+2*i}")
            self("""
buffer_store_dwordx4 v[4:7], v1, s[40:43], 0 offen
buffer_store_dwordx4 v[8:11], v1, s[40:43], 0 offen offset:16
buffer_store_dwordx4 v[12:15], v2, s[40:43], 0 offen
buffer_store_dwordx4 v[12:15], v2, s[40:43], 0 offen offset:16
""")
        self("s_endpgm")
    tn = 0
    def trace(self):
        if TRACE:
            self(f"s_memrealtime s[96:97]\ns_waitcnt lgkmcnt(0)\nv_writelane_b32 v252, s96, {self.tn}"); self.tn += 1
    def bar(self):
        self.trace(); self("s_barrier"); self.trace()
    def trace_out(self):
        if TRACE: self(f"""
s_lshl_b32 s96, s2, 10
s_add_u32 s96, s96, {WS_ST + 0x100000:#x}
v_lshlrev_b32 v253, 2, v0
v_subrev_u32 v253, 1024, v253
buffer_store_dword v252, v253, s[48:51], s96 offen
""")
    def text(self): return "\n".join(self.l) + "\n"

class VM:
    def __init__(self, a): self.a = a; self.q = []
    def issue(self, tag, n=1): self.q += [tag] * n; assert len(self.q) <= 63, len(self.q)
    def wait(self, tag):
        if tag not in self.q: return
        idx = max(i for i, t in enumerate(self.q) if t == tag)
        n = len(self.q) - 1 - idx
        self.q = self.q[idx + 1:]
        self.a(f"s_waitcnt vmcnt({n})")
    def drained(self): self.q = []

def vr(b, n=1): return f"v{b}" if n == 1 else f"v[{b}:{b+n-1}]"
def sr(b, n=1): return f"s{b}" if n == 1 else f"s[{b}:{b+n-1}]"
def srd(a, d, lo, nbytes):
    a(f"s_mov_b32 s{d}, s{lo}\ns_mov_b32 s{d+1}, s{lo+1}\ns_mov_b32 s{d+2}, {nbytes:#x}\ns_mov_b32 s{d+3}, 0x20000")
def srd_off(a, d, lo, off, nbytes):
    a(f"s_add_u32 s{d}, s{lo}, {off}\ns_addc_u32 s{d+1}, s{lo+1}, 0\ns_mov_b32 s{d+2}, {nbytes:#x}\ns_mov_b32 s{d+3}, 0x20000")
def mfma16(d, x, y, c=None):
    c = vr(d, 4) if c is None else c
    return f"v_mfma_f32_16x16x32_bf16 {vr(d,4)}, {vr(x,4)}, {vr(y,4)}, {c}"
def interleave(a, mf, others, per_gap=1):
    o = list(others)
    for m in mf:
        a(m)
        for _ in range(per_gap):
            if o: a(o.pop(0))
    for x in o: a(x)
def phi_pack(a, src, dst, n, t, sL, sE):
    for i in range(0, n, 8):
        for p in range(4): a(f"v_pk_mul_f32 {vr(t+2*p,2)}, {vr(src+i+2*p,2)}, {sr(sL,2)}")
        for p in range(8): a(f"v_exp_f32_e64 v{t+p}, v{t+p} clamp")
        for p in range(8): a(f"v_max_f32 v{src+i+p}, s{sE}, v{src+i+p}")
        for p in range(4): a(f"v_pk_add_f32 {vr(t+2*p,2)}, {vr(t+2*p,2)}, {vr(src+i+2*p,2)}")
        for p in range(4): a(f"v_cvt_pk_bf16_f32 v{dst+i//2+p}, v{t+2*p}, v{t+2*p+1}")
def phi_pack_np(a, src, dst, n, t, sL, sE):
    for i in range(0, n, 8):
        for p in range(8): a(f"v_mul_f32 v{t+p}, s{sL}, v{src+i+p}")
        for p in range(8): a(f"v_exp_f32_e64 v{t+p}, v{t+p} clamp")
        for p in range(8): a(f"v_max_f32 v{src+i+p}, s{sE}, v{src+i+p}")
        for p in range(8): a(f"v_add_f32 v{t+p}, v{t+p}, v{src+i+p}")
        for p in range(4): a(f"v_cvt_pk_bf16_f32 v{dst+i//2+p}, v{t+2*p}, v{t+2*p+1}")
def pack(a, src, dst, n):
    for i in range(n // 2): a(f"v_cvt_pk_bf16_f32 v{dst+i}, v{src+2*i}, v{src+2*i+1}")
def unpack(a, src, dst, ndw, smask):
    for i in range(ndw):
        a(f"v_lshlrev_b32 v{dst+2*i}, 16, v{src+i}\nv_and_b32 v{dst+2*i+1}, s{smask}, v{src+i}")

sX, sW, sWO, sQ, sK, sV, sSH, sH, sD, sOUT, sDBG, sWS = 4, 6, 8, 10, 12, 14, 16, 18, 20, 22, 24, 26
sx, sj, srb, shk, shq, sk0, sg_rb, sg_cb, sdb, ssb, sch, sEP = 28, 29, 30, 31, 32, 33, 34, 35, 36, 37, 38, 72
TOUCH = ""
_o = int(opt("wsoff", "0")) * MB
WSOFF = f"s_add_u32 s26, s26, {_o:#x}\ns_addc_u32 s27, s27, 0" if _o else "s_nop 0"
if opt("touch", "0") == "1":
    t = ["s_mov_b32 s52, 0x200000", "s_mov_b32 s53, 0x400000", "s_mov_b32 s54, 0x600000", "s_mov_b32 s55, 0x800000"]
    for base, n in ((sWS, 5), (sOUT, 4), (sQ, 2), (sH, 2), (sWO, 1)):
        for i in range(n): t.append(f"s_load_dword s46, s[{base}:{base+1}], {['0','s52','s53','s54','s55'][i]}")
    TOUCH = "\n".join(t)
STG = 40960
CPY = 4160
UCH = 2 * CPY
U0 = 98304
XCH = U0 + 4 * UCH
HB = XCH + 8192
HP = 2304
HCH = 2 * HP
KVL = HB + 4 * HCH
ZX = KVL + 4096
SYNC = ZX + 512
Y_XC, Y_CW, Y_C2, Y_CU, Y_CY, Y_CD, Y_PQ, Y_EP, Y_W1, Y_CO, Y_UOK, Y_YOK, Y_UB = 0, 96, 20, 28, 32, 36, 40, 56, 60, 64, 72, 76, 80
Y_WM = Y_W1
Y_FR, Y_KD, Y_K2 = 112, 128, 40
LDS = 163840


def spoll(a, lab, soff, sc):
    if opt("poll", "s") == "v":
        a(f"v_and_b32 v254, 15, v4\nv_lshlrev_b32 v254, 2, v254")
        vpoll(a, lab, 254, soff, 255, sc); return
    a(f"""
s_mov_b32 s{sc}, 0
s_branch {lab}_go
{lab}:
s_sleep {PSLEEP}
{lab}_go:
s_load_dwordx16 s[4:19], s[{sWS}:{sWS+1}], s{soff} glc
s_add_u32 s{sc}, s{sc}, 1
s_cmp_gt_u32 s{sc}, 0x8000
s_cbranch_scc1 {lab}_done
s_waitcnt lgkmcnt(0)
""")
    for i in range(8): a(f"s_cmp_eq_u64 s[{4+2*i}:{5+2*i}], s[{sEP}:{sEP+1}]\ns_cbranch_scc0 {lab}")
    a(f"{lab}_done:\ns_waitcnt lgkmcnt(0)")
def vpoll(a, lab, v16x4, soff, vt, sc):
    a(f"""
s_mov_b32 s{sc}, 0
{lab}:
buffer_load_dword v{vt}, v{v16x4}, s[48:51], s{soff} offen sc1
s_waitcnt vmcnt(0)
v_cmp_eq_u32 vcc, s{sEP}, v{vt}
s_add_u32 s{sc}, s{sc}, 1
s_nop 2
s_cmp_eq_u64 vcc, -1
s_cbranch_scc1 {lab}_done
s_sleep {PSLEEP}
s_cmp_lt_u32 s{sc}, 0x4000
s_cbranch_scc1 {lab}
{lab}_done:
""")
def lead_poll(a, lab, soff, sc, st, vY, off, vOne, vT):
    a(f"s_mov_b32 s{sc}, 0\ns_cmp_eq_u32 s3, 0\ns_cbranch_scc0 {lab}_f")
    spoll(a, lab, soff, sc)
    a(f"ds_write_b32 v{vY}, v{vOne} offset:{off}\ns_branch {lab}_f_done")
    a(f"{lab}_f:"); a.l.pop()
    lspin(a, lab + "_f", vY, off, "1", vT, sc, st, init=False, slp=3)
def lspin(a, lab, vaddr, off, target, vt, sc, st, init=True, slp=1):
    if init: a(f"s_mov_b32 s{sc}, 0")
    a(f"""
{lab}:
ds_read_b32 v{vt}, v{vaddr} offset:{off}
s_add_u32 s{sc}, s{sc}, 1
s_waitcnt lgkmcnt(0)
v_readfirstlane_b32 s{st}, v{vt}
s_cmp_gt_u32 s{sc}, 0x40000
s_cbranch_scc1 {lab}_done
s_cmp_ge_u32 s{st}, {target}
s_cbranch_scc1 {lab}_done
s_sleep {slp}
s_branch {lab}
{lab}_done:
""")
def ladd(a, vaddr, off, vone):
    a(f"s_mov_b64 exec, 1\nds_add_u32 v{vaddr}, v{vone} offset:{off}\ns_mov_b64 exec, -1")
def flag_store(a, srdn, soff, vep, vl128, mask="0xffff"):
    a(f"s_mov_b64 exec, {mask}\nbuffer_store_dword v{vep}, v{vl128}, s[{srdn}:{srdn+3}], s{soff} offen sc1\ns_mov_b64 exec, -1")
def wg_flag(a, lab, vaddr, off, vone, vt, st, srdn, soff, vep, vzero):
    a(f"""
s_mov_b64 exec, 1
ds_add_rtn_u32 v{vt}, v{vaddr}, v{vone} offset:{off}
s_waitcnt lgkmcnt(0)
v_readfirstlane_b32 s{st}, v{vt}
s_nop 3
s_cmp_eq_u32 s{st}, 3
s_cbranch_scc0 {lab}
buffer_store_dword v{vep}, v{vzero}, s[{srdn}:{srdn+3}], s{soff} offen sc1
{lab}:
s_mov_b64 exec, -1
""")

def ids2(a):
    a(f"""
s_and_b32 s{sg_rb}, s{sx}, 3
s_lshl_b32 s{sg_rb}, s{sg_rb}, 2
s_and_b32 vcc_lo, s{sj}, 3
s_add_u32 s{sg_rb}, s{sg_rb}, vcc_lo
s_lshr_b32 s{sg_cb}, s{sx}, 2
s_lshl_b32 s{sg_cb}, s{sg_cb}, 3
s_lshr_b32 vcc_lo, s{sj}, 2
s_add_u32 s{sg_cb}, s{sg_cb}, vcc_lo
s_lshl_b32 s39, vcc_lo, 2
s_and_b32 s{sdb}, s{sj}, 15
s_lshr_b32 s{ssb}, s{sj}, 4
s_lshl_b32 vcc_lo, s{sx}, 1
s_add_u32 s{ssb}, s{ssb}, vcc_lo
s_lshl_b32 s{sch}, s{sx}, 5
s_add_u32 s{sch}, s{sch}, s{sj}
s_lshl_b32 s{sch}, s{sch}, 2
""")
    a(f"s_mul_i32 s39, s{sg_rb}, 11\ns_lshr_b32 s39, s39, 5\ns_mul_i32 s39, s39, 3\ns_sub_u32 s39, s{sg_rb}, s39")

def kernel(a):
    a(f"""
{KN}:
s_cmp_ge_u32 s2, 256
s_cbranch_scc1 L_exit
s_load_dwordx16 s[4:19], s[0:1], 0
s_load_dwordx8 s[20:27], s[0:1], 64
s_getpc_b64 s[48:49]
L_pc:
s_and_b32 s45, s2, 24
s_lshl_b32 s45, s45, 4
v_lshl_add_u32 v2, v0, 9, s45
v_cmp_gt_u32 vcc, L_code_end-L_pc-4, v2
s_and_saveexec_b64 s[50:51], vcc
s_cbranch_execz L_pf
global_load_dword v252, v2, s[48:49]
L_pf:
s_mov_b64 exec, s[50:51]
""")
    for i in range(10): a.stamp(i)
    a(f"""
v_lshrrev_b32 v1, 6, v0
v_and_b32 v4, 63, v0
v_readfirstlane_b32 s3, v1
v_lshlrev_b32 v5, 4, v4
s_and_b32 s{sx}, s2, 7
s_lshr_b32 s{sj}, s2, 3
s_and_b32 s{srb}, s{sx}, 1
s_lshl_b32 s{srb}, s{srb}, 3
s_and_b32 s40, s{sj}, 7
s_add_u32 s{srb}, s{srb}, s40
s_lshr_b32 s40, s{sx}, 1
s_lshl_b32 s41, s40, 2
s_lshr_b32 s42, s{sj}, 3
s_add_u32 s{shk}, s41, s42
s_add_u32 s42, s42, 1
s_and_b32 s42, s42, 3
s_add_u32 s{shq}, s41, s42
""")
    if KROT.startswith("f"):
        a_, b_, c_, d_ = [int(t) for t in KROT[1:].split("_")]
        a(f"s_mul_i32 s{sk0}, s{srb}, {a_}\ns_mul_i32 s41, s{shk}, {b_}\ns_add_u32 s{sk0}, s{sk0}, s41\ns_and_b32 s41, s{sx}, 1\ns_mul_i32 s41, s41, {c_}\ns_add_u32 s{sk0}, s{sk0}, s41\ns_mul_i32 s41, s40, {d_}\ns_add_u32 s{sk0}, s{sk0}, s41\ns_and_b32 s{sk0}, s{sk0}, 15")
    elif KROT == "q8":
        a(f"""
s_lshl_b32 s{sk0}, s40, 1
s_and_b32 s41, s{shk}, 1
s_add_u32 s{sk0}, s{sk0}, s41
s_lshl_b32 s41, s{sx}, 2
s_add_u32 s{sk0}, s{sk0}, s41
s_and_b32 s41, s{srb}, 3
s_add_u32 s{sk0}, s{sk0}, s41
s_and_b32 s{sk0}, s{sk0}, 7
s_lshl_b32 s{sk0}, s{sk0}, 1
""")
    elif KROT in ("q8e", "q8f", "q8g"):
        a(f"s_and_b32 s41, s{srb}, 1\ns_lshl_b32 s{sk0}, s41, 1\ns_and_b32 s41, s{srb}, 2\ns_lshl_b32 s41, s41, 2\ns_add_u32 s{sk0}, s{sk0}, s41\ns_and_b32 s41, s{sx}, 1\ns_lshl_b32 s41, s41, 2\ns_add_u32 s{sk0}, s{sk0}, s41")
        if KROT == "q8e": a(f"s_and_b32 s41, s{shk}, 1\ns_lshl_b32 s41, s41, 1\ns_sub_u32 s{sk0}, s{sk0}, s41")
        elif KROT == "q8f": a(f"s_and_b32 s41, s{shk}, 2\ns_sub_u32 s{sk0}, s{sk0}, s41")
        else: a(f"s_add_u32 s41, s{shk}, 1\ns_and_b32 s41, s41, 3\ns_add_u32 s{sk0}, s{sk0}, s41")
        a(f"s_lshl_b32 s41, s40, 2\ns_add_u32 s{sk0}, s{sk0}, s41\ns_and_b32 s{sk0}, s{sk0}, 15")
    elif KROT in ("q8b", "q8c", "q8d"):
        if KROT == "q8c": a(f"s_and_b32 s41, s{srb}, 1\ns_lshl_b32 s{sk0}, s41, 1\ns_and_b32 s41, s{srb}, 2\ns_lshl_b32 s41, s41, 2\ns_add_u32 s{sk0}, s{sk0}, s41\ns_and_b32 s41, s{sx}, 1\ns_lshl_b32 s41, s41, 2\ns_add_u32 s{sk0}, s{sk0}, s41")
        else: a(f"s_and_b32 s41, s{srb}, 3\ns_lshl_b32 s{sk0}, s41, 2\ns_and_b32 s41, s{sx}, 1\ns_lshl_b32 s41, s41, 1\ns_add_u32 s{sk0}, s{sk0}, s41")
        if KROT == "q8b": a(f"s_and_b32 s41, s{shk}, 1\ns_lshl_b32 s41, s41, 3\ns_add_u32 s{sk0}, s{sk0}, s41\ns_lshl_b32 s41, s40, 1\ns_add_u32 s{sk0}, s{sk0}, s41")
        else: a(f"s_and_b32 s41, s{shk}, 1\ns_lshl_b32 s41, s41, 1\ns_add_u32 s{sk0}, s{sk0}, s41\ns_lshl_b32 s41, s40, 2\ns_add_u32 s{sk0}, s{sk0}, s41")
        a(f"s_and_b32 s{sk0}, s{sk0}, 15")
    elif KROT == "q4c":
        a(f"""
s_and_b32 s41, s{sx}, 1
s_add_u32 s{sk0}, s40, s41
s_lshl_b32 s41, s{srb}, 1
s_add_u32 s{sk0}, s{sk0}, s41
s_and_b32 s{sk0}, s{sk0}, 3
s_lshl_b32 s{sk0}, s{sk0}, 2
""")
        SL = opt("sl", "0")
        if SL != "0":
            a(f"s_and_b32 s41, s{shk}, {7 if SL == '1' else 6}\ns_cmp_eq_u32 s41, {3 if SL == '1' else 2}\ns_cselect_b32 s41, 6, 0\ns_and_b32 s41, s41, s{srb}\ns_sub_u32 s{sk0}, s{sk0}, s41\ns_and_b32 s{sk0}, s{sk0}, 15")
    elif KROT == "q4":
        a(f"""
s_lshl_b32 s41, s{sx}, 1
s_add_u32 s{sk0}, s40, s41
s_and_b32 s41, s{srb}, 1
s_add_u32 s{sk0}, s{sk0}, s41
s_and_b32 s{sk0}, s{sk0}, 3
s_lshl_b32 s{sk0}, s{sk0}, 2
""")
    elif KROT == "q2":
        a(f"s_xor_b32 s41, s{sx}, s40\ns_and_b32 s41, s41, 1\ns_lshl_b32 s{sk0}, s41, 3")
    elif KROT == "q3":
        a(f"""
s_and_b32 s41, s{sx}, 1
s_lshl_b32 s41, s41, 1
s_add_u32 s{sk0}, s40, s41
s_and_b32 s41, s{srb}, 1
s_add_u32 s{sk0}, s{sk0}, s41
s_mul_i32 s41, s{sk0}, 11
s_lshr_b32 s41, s41, 5
s_mul_i32 s41, s41, 3
s_sub_u32 s{sk0}, s{sk0}, s41
s_mul_i32 s{sk0}, s{sk0}, 11
s_lshr_b32 s{sk0}, s{sk0}, 1
""")
    else: a(f"s_mov_b32 s{sk0}, 0")
    a.jon = True
    a("s_cmp_lt_u32 s3, 4\ns_cbranch_scc1 L_comp")
    aux(a)
    compute(a)
    a("L_exit:\ns_endpgm\nL_code_end:")

def inter2(a, mf, others, per=2):
    o = list(others)
    for m in mf:
        a(m)
        for _ in range(per):
            if o: a(o.pop(0))
    for x in o: a(x)
def inter3(a, mf, l1, n1, l2, n2):
    l1 = list(l1); l2 = list(l2)
    for m in mf:
        a(m)
        for _ in range(n2):
            if l2: a(l2.pop(0))
        for _ in range(n1):
            if l1: a(l1.pop(0))
    assert not l1 and not l2
class L:
    def __init__(s): s.l = []
    def __call__(s, t): s.l += [x.strip() for x in t.strip("\n").split("\n")]
def maskbuild(a, sm, st, lo=4, step=2):
    a(f"s_mov_b32 s{sm}, 0")
    for i in range(8): a(f"s_cmp_eq_u64 s[{lo+2*i}:{lo+1+2*i}], s[{sEP}:{sEP+1}]\ns_cselect_b32 s{st}, {1 << (step*i):#x}, 0\ns_or_b32 s{sm}, s{sm}, s{st}")

def compute(a):
    vAb, vA, vBb, vB = 8, 10, 12, 14
    vY, vPW = 20, 21
    X, Y, ACC = 24, 64, 104
    vOne, vZero, vEp, vT, vL128 = 232, 233, 234, 235, 254
    QT = lambda dt, mt: ACC + 4 * (mt * 2 + dt)
    KK = lambda mt, nt: ACC + 32 + 4 * ((nt * 2 + (mt >> 1)) * 2 + (mt & 1))
    VV = lambda mt, nt: ACC + 64 + 4 * ((nt * 2 + (mt >> 1)) * 2 + (mt & 1))
    GATE = opt("gate", "kv")
    a("L_comp:")
    a.sst(2)
    KR, WR, KF, WF, TM, VF, UT = 200, 242, 24, 68, 84, 56, 200
    VR = [222, 224, 226, 228, 230, 236, 238, 240]
    vP0, vP1, vP2, vTW = 16, 17, 18, 19
    ids2(a)
    a(f"""
s_lshl_b32 s45, s{ssb}, 18
s_lshl_b32 s46, s3, 16
s_add_u32 s45, s45, s46
s_lshl_b32 s46, s{sdb}, 7
s_add_u32 s45, s45, s46
v_lshrrev_b32 v2, 4, v4
v_and_b32 v1, 15, v4
v_lshlrev_b32 v3, 3, v1
v_lshl_add_u32 v{vP0}, v2, 14, v3
v_add_u32 v{vP0}, s45, v{vP0}
v_subrev_u32 v{vP1}, 6144, v{vP0}
s_movk_i32 s57, 4096
s_movk_i32 s58, 8192
s_movk_i32 s59, 12288
s_mov_b32 s62, {4*MB:#x}
s_mov_b32 s63, 0x20000
s_mov_b32 s66, {4*MB:#x}
s_mov_b32 s67, 0x20000
s_mov_b32 s70, 8192
s_mov_b32 s71, 0x20000
v_lshlrev_b32 v{vP2}, 5, v1
s_lshl_b32 s46, s{sdb}, 9
v_add_u32 v{vP2}, s46, v{vP2}
v_sub_u32 v3, 3, v2
s_lshl_b32 s45, s3, 2
s_sub_u32 s45, 12, s45
v_add_u32 v3, s45, v3
v_and_b32 v6, 7, v4
v_xor_b32 v3, v3, v6
v_lshlrev_b32 v3, 4, v3
v_lshl_add_u32 v3, v1, 10, v3
v_add_u32 v{vTW}, {HB}, v3
s_and_b32 s40, s3, 1
s_lshr_b32 s41, s3, 1
v_bfe_u32 v3, v4, 1, 3
v_xor_b32 v3, v2, v3
v_lshlrev_b32 v3, 4, v3
v_lshl_add_u32 v3, v1, 7, v3
s_lshl_b32 s45, s40, 13
v_add_u32 v{vAb}, s45, v3
v_xor_b32 v{vAb+1}, 64, v{vAb}
v_bfe_u32 v22, v4, 2, 2
v_lshl_add_u32 v3, v2, 3, v22
v_lshlrev_b32 v3, 7, v3
v_and_b32 v7, 3, v4
v_lshlrev_b32 v6, 3, v7
s_lshl_b32 s45, s41, 6
v_add_u32 v6, s45, v6
v_bfe_u32 v7, v4, 3, 1
v_lshlrev_b32 v7, 6, v7
v_xor_b32 v6, v6, v7
v_bfe_u32 v23, v4, 4, 1
v_lshlrev_b32 v7, 5, v23
v_xor_b32 v6, v6, v7
v_add_u32 v3, v3, v6
v_add_u32 v{vBb}, 0x4000, v3
v_xor_b32 v{vBb+1}, 32, v{vBb}
v_mov_b32 v{vB}, v{vBb}
v_mov_b32 v{vB+1}, v{vBb+1}
v_mov_b32 v{vA}, v{vAb}
v_mov_b32 v{vA+1}, v{vAb+1}
v_lshlrev_b32 v{vL128}, 7, v4
v_mov_b32 v{vY}, {SYNC}
v_mov_b32 v{vOne}, 1
v_mov_b32 v{vZero}, 0
v_lshlrev_b32 v6, 2, v4
v_add_u32 v6, {SYNC}, v6
ds_write_b32 v6, v{vZero}
s_lshl_b32 s45, s3, 2
v_add_u32 v{vPW}, s45, v{vY}
s_mov_b32 s53, 0
s_mov_b32 s56, 0xffff0000
s_waitcnt lgkmcnt(0)
{WSOFF}
s_mov_b64 s[60:61], s[{sK}:{sK+1}]
s_mov_b64 s[64:65], s[{sV}:{sV+1}]
s_mov_b64 s[68:69], s[{sSH}:{sSH+1}]
""")
    a.sst(3); a("s_barrier"); a.sst(4)
    so = ["0", "s57", "s58", "s59"]
    for r in range(3): a(f"buffer_load_dwordx2 {vr(KR+2*r,2)}, v{vP1}, s[60:63], {so[r//2]} offen offset:{2048*(r%2)} {FL_KV}")
    for r in range(8): a(f"buffer_load_dwordx2 {vr(KR+6+2*r,2)}, v{vP0}, s[60:63], {so[r//2]} offen offset:{2048*(r%2)} {FL_KV}")
    for i in range(2): a(f"buffer_load_dwordx4 {vr(WR+4*i,4)}, v{vP2}, s[68:71], 0 offen offset:{16*i}")
    for r in range(8): a(f"buffer_load_dwordx2 {vr(VR[r],2)}, v{vP0}, s[64:67], {so[r//2]} offen offset:{2048*(r%2)} {FL_KV}")
    a.sst(5)
    a("s_barrier")
    a.stamp(1)
    A0, A1, BB = 24, 200, 56
    NORD = [2, 3, 4, 5, 0, 1]
    def rdA(A): return [f"ds_read_b128 {vr(A+8*mt+4*k2,4)}, v{vA+k2} offset:{2048*mt}" for mt in range(4) for k2 in range(2)]
    def rdB(g):
        n = NORD[g]
        return [f"ds_read_b64_tr_b16 {vr(BB+8*g+4*k2+2*i2,2)}, v{vB+(n&1)} offset:{(n//2)*8192+k2*4096+i2*512}" for k2 in range(2) for i2 in range(2)]
    def grp(A, g, zero=False):
        r = []
        for mt in range(4):
            for k2 in range(2):
                c = "0" if zero and k2 == 0 else None
                x, y = A + 8 * mt + 4 * k2, BB + 8 * g + 4 * k2
                if g < 2: r.append(mfma16(KK(mt, g), x, y, c))
                elif g < 4: r.append(mfma16(VV(mt, g - 2), x, y, c))
                else: r.append(mfma16(QT(g - 4, mt), y, x, c))
        return r
    advs = [f"s_add_u32 s52, s52, {STG}", f"s_cmp_eq_u32 s52, {3*STG}", "s_cselect_b32 s52, 0, s52"]
    advv = [f"v_add_u32 v{vA}, s52, v{vAb}", f"v_add_u32 v{vA+1}, s52, v{vAb+1}", f"v_add_u32 v{vB}, s52, v{vBb}", f"v_add_u32 v{vB+1}, s52, v{vBb+1}"]
    for r in rdA(A0)[:2] + rdB(0) + rdA(A0)[2:] + rdB(1): a(r)
    a("s_mov_b32 s52, 0")
    w = L(); srd(w, 60, sWS, 32 * MB); srd(w, 68, sOUT, 8 * MB)
    vTR, vUS, TD = [1, 2, 3, 6], 16, 236
    UF = int(opt("uf", "2"))
    w(f"""
v_lshlrev_b32 v3, 12, v2
v_lshl_add_u32 v{vUS}, v1, 4, v3
s_lshl_b32 s45, s{sdb}, 18
s_lshl_b32 s46, s3, 16
s_add_u32 s45, s45, s46
s_lshl_b32 s46, s{ssb}, 8
s_sub_u32 s45, s45, s46
s_add_u32 s45, s45, {WS_UT + 3840}
v_add_u32 v{vUS}, s45, v{vUS}
s_lshl_b32 s45, s3, 12
s_add_u32 s45, s45, {HB}
v_add_u32 v1, s45, v5
s_lshl_b32 s45, s40, 6
v_xor_b32 v1, s45, v1
v_xor_b32 v2, 16, v1
v_xor_b32 v3, 32, v1
v_xor_b32 v6, 48, v1
s_movk_i32 s57, 0x4000
s_mov_b32 s58, 0x8000
s_mov_b32 s59, 0xc000
s_lshl_b32 s43, s{sdb}, 2
s_add_u32 s43, s43, s3
s_lshl_b32 s43, s43, 4
s_add_u32 s43, s43, s{ssb}
s_lshl_b32 s43, s43, 2
{FA(43, FL_U)}
s_movk_i32 s42, {1 + (1 << UF)}
""")
    a("s_waitcnt lgkmcnt(10)")
    m = grp(A0, 0, True)
    a(m[0]); a(m[1])
    for x in rdB(2): a(x)
    a("s_waitcnt lgkmcnt(8)")
    interleave(a, m[2:], rdB(3) + rdB(4)[:2])
    a("s_waitcnt lgkmcnt(10)")
    interleave(a, grp(A0, 1, True), rdB(4)[2:] + rdB(5))
    a("s_waitcnt lgkmcnt(0)")
    interleave(a, grp(A0, 2, True) + grp(A0, 3, True) + grp(A0, 4, True) + grp(A0, 5, True), advs + advv + w.l, 2)
    a("s_waitcnt vmcnt(10)")
    a.sst(6)
    unpack(a, KR, KF, 22, 56)
    a("s_waitcnt vmcnt(8)")
    for p in range(4):
        a(f"v_lshlrev_b32 v{WF+p}, 16, v{WR+2*p}\nv_and_b32 v{WF+4+p}, s56, v{WR+2*p}")
        a(f"v_lshlrev_b32 v{WF+8+p}, 16, v{WR+2*p+1}\nv_and_b32 v{WF+12+p}, s56, v{WR+2*p+1}")
    for i0 in range(0, 8, 2):
        ch = [(i, h) for i in (i0, i0 + 1) for h in range(2)]
        for c, (i, h) in enumerate(ch): a(f"v_pk_mul_f32 {vr(TM+2*c,2)}, {vr(KF+4*(i+3)+2*h,2)}, {vr(WF+2*h,2)}")
        for t in (2, 1):
            for c, (i, h) in enumerate(ch): a(f"v_pk_fma_f32 {vr(TM+2*c,2)}, {vr(KF+4*(i+t)+2*h,2)}, {vr(WF+4*(3-t)+2*h,2)}, {vr(TM+2*c,2)}")
        for c, (i, h) in enumerate(ch): a(f"v_pk_fma_f32 {vr(KF+4*i+2*h,2)}, {vr(KF+4*i+2*h,2)}, {vr(WF+12+2*h,2)}, {vr(TM+2*c,2)}")
    a("s_waitcnt vmcnt(0)")
    for r in range(8): unpack(a, VR[r], VF + 4 * r, 2, 56)
    for h in range(2):
        for i in range(8): a(f"v_pk_mul_f32 {vr(KF+4*i+2*h,2)}, {vr(KF+4*i+2*h,2)}, {vr(VF+4*i+2*h,2)}")
        for e in (2 * h, 2 * h + 1):
            for d in range(4): a(f"v_cvt_pk_bf16_f32 v{UT+4*e+d}, v{KF+4*(7-2*d)+e}, v{KF+4*(6-2*d)+e}")
            a(f"ds_write_b128 v{vTW}, {vr(UT+4*e,4)} offset:{256*e}")
    a("s_waitcnt lgkmcnt(0)\ns_barrier")
    for r in rdA(A0)[:2] + rdB(0) + rdA(A0)[2:]: a(r)
    a("s_waitcnt lgkmcnt(6)")
    for r in rdB(1) + rdB(2): a(r)
    a("s_waitcnt lgkmcnt(8)")
    for r in rdB(3) + rdB(4): a(r)
    a("s_waitcnt lgkmcnt(8)")
    for e in range(4): a(f"ds_read_b128 {vr(TD+4*e,4)}, v{vTR[e]} offset:{1024*e}")
    a("s_branch L_loop1\nL_side:\ns_cmp_eq_u32 s53, 0\ns_cbranch_scc0 L_side2")
    for e in range(4): a(f"buffer_store_dwordx4 {vr(TD+4*e,4)}, v{vUS}, s[60:63], {['0','s57','s58','s59'][e]} offen sc1")
    a(f"""
s_branch L_back
L_side2:
v_readfirstlane_b32 s{sEP}, v{vEp}
s_mov_b32 s45, 0
s_waitcnt vmcnt(0)
s_cmp_lg_u32 s{sEP}, 0
s_cbranch_scc1 L_cepok
L_cep:
ds_read_b32 v{vEp}, v{vY} offset:{Y_EP}
s_add_u32 s45, s45, 1
s_waitcnt lgkmcnt(0)
v_readfirstlane_b32 s{sEP}, v{vEp}
s_cmp_gt_u32 s45, 0x40000
s_cbranch_scc1 L_cepok
s_cmp_eq_u32 s{sEP}, 0
s_cbranch_scc1 L_cep
L_cepok:
s_mov_b32 s{sEP+1}, s{sEP}
""")
    flag_store(a, 60, 43, vEp, vL128)
    a(f"""
s_branch L_back
{opt("lal", "")}
L_loop1:
""")
    def stage(A, An, first):
        interleave(a, grp(A, 0), rdB(5) + ["\n".join(advs)] + ["\n".join(advv[:2]), "\n".join(advv[2:])])
        m = grp(A, 1)
        a("s_waitcnt lgkmcnt(0)"); a(m[0]); a("s_barrier")
        interleave(a, m[1:], rdB(0) + rdA(An)[:3])
        interleave(a, grp(A, 2), rdB(1) + rdA(An)[3:7])
        interleave(a, grp(A, 3), rdB(2) + rdA(An)[7:] + (["s_bitcmp1_b32 s42, s53", "s_cbranch_scc1 L_side\nL_back:"] if first else []))
        interleave(a, grp(A, 4), rdB(3) + ([f"ds_read_b32 v{vEp}, v{vY} offset:{Y_EP}"] if first else []))
        interleave(a, grp(A, 5), ["s_waitcnt lgkmcnt(4)\n" + rdB(4)[0]] + rdB(4)[1:] + ([] if first else ["s_add_u32 s53, s53, 1", "s_cmp_lt_u32 s53, 7"]))
    stage(A0, A1, True); stage(A1, A0, False)
    a("s_cbranch_scc1 L_loop1")
    PK, PV, ONES, T, KV, Z, R, PQ = ACC + 32, ACC + 64, 200, 204, 212, 56, 236, ACC
    pre = [f"s_mov_b32 s54, {LOG2E:#x}", f"s_mov_b32 s55, {LOG2E:#x}", f"s_mov_b32 s56, {EPS:#x}",
           f"s_lshl_b32 s57, s{shk}, 2", "s_add_u32 s57, s57, s3", "s_lshl_b32 s57, s57, 4", f"s_add_u32 s57, s57, s{srb}",
           "s_lshl_b32 s58, s57, 10", f"s_add_u32 s58, s58, {WS_KVP:#x}", "s_lshr_b32 s59, s57, 4", "s_lshl_b32 s59, s59, 11",
           f"s_lshl_b32 s45, s{srb}, 4", "s_add_u32 s59, s59, s45", f"s_add_u32 s59, s59, {WS_ZP:#x}", "s_lshr_b32 s57, s57, 4", "s_lshl_b32 s57, s57, 11", f"s_add_u32 s57, s57, {FL_P:#x}"]
    PROT = opt("prot", "1") == "1"
    pre += ["v_and_b32 v19, 7, v4", f"v_lshlrev_b32 v19, {1 if PROT else 4}, v19", f"v_sub_u32 v19, s{srb}, v19", "v_and_b32 v19, 15, v19", f"v_lshl_add_u32 v19, v19, 2, v{vL128}"]
    pre += ["s_lshl_b32 s45, s3, 11", f"s_add_u32 s45, s45, {XCH}", "v_add_u32 v6, s45, v5", "v_xor_b32 v7, 2048, v6", "s_lshl_b32 s45, s3, 7", f"s_add_u32 s45, s45, {ZX}",
            "v_and_b32 v3, 0x30, v4", "v_add_u32 v16, s45, v3", "v_xor_b32 v17, 128, v16", f"v_xor_b32 v18, 4, v{vPW}"]
    pre += [f"v_mov_b32 v{ONES+i}, 0x3f803f80" for i in range(4)]
    inter3(a, grp(A0, 0) + grp(A0, 1)[:2], pre, 4, rdB(5), 1)
    a(f"s_waitcnt lgkmcnt(0)\nds_write_b32 v{vPW}, v{vOne} offset:{Y_FR}")
    w = L(); phi_pack_np(w, PK, PK, 16, T, 54, 56)
    P1 = opt("p1", "0") == "1"
    if P1: phi_pack_np(w, PK + 16, PK + 16, 16, T, 54, 56)
    inter2(a, grp(A0, 1)[2:] + grp(A0, 2) + grp(A0, 3), w.l, int(opt("kfi", "3")))
    a.stamp(2)
    a(f"s_setprio {opt('cprio', '2')}")
    pk1 = phi_pack if GATE != "none" else phi_pack_np
    pack(a, PV, PV, 32)
    for dt in range(2):
        if dt == 1 and not P1: pk1(a, PK + 16, PK + 16, 16, T, 54, 56)
        a("s_nop 1")
        for p in range(2):
            c = "0" if p == 0 else None
            for et in range(2): a(mfma16(KV + 4 * (et * 2 + dt), PK + 16 * dt + 4 * p, PV + 8 * et + 4 * p, c))
            a(mfma16(Z + 4 * dt, PK + 16 * dt + 4 * p, ONES, c))
    a("s_cmp_eq_u32 s40, 0\ns_nop 5\ns_cbranch_scc1 L_x0")
    for i in range(8): a(f"v_swap_b32 v{KV+i}, v{KV+8+i}")
    a("L_x0:")
    a(f"ds_write_b128 v6, {vr(KV+8,4)}\nds_write_b128 v6, {vr(KV+12,4)} offset:1024")
    a(f"ds_write_b128 v16, {vr(Z,4)}\nds_write_b128 v16, {vr(Z+4,4)} offset:64")
    a(f"""
ds_write_b32 v{vPW}, v{vOne} offset:{Y_XC}
s_mov_b32 s45, 0
L_xspin:
ds_read_b32 v{vT}, v18 offset:{Y_XC}
ds_read_b128 {vr(R,4)}, v7
ds_read_b128 {vr(R+4,4)}, v7 offset:1024
ds_read_b128 {vr(R+8,4)}, v17
ds_read_b128 {vr(R+12,4)}, v17 offset:64
s_add_u32 s45, s45, 1
s_waitcnt lgkmcnt(4)
v_readfirstlane_b32 s46, v{vT}
s_cmp_gt_u32 s45, 0x40000
s_cbranch_scc1 L_xdone
s_cmp_eq_u32 s46, 0
s_cbranch_scc1 L_xspin
L_xdone:
s_waitcnt lgkmcnt(2)
""")
    def add8(d, r):
        if GATE != "none":
            for i in range(4): a(f"v_pk_add_f32 {vr(d+2*i,2)}, {vr(d+2*i,2)}, {vr(r+2*i,2)}")
        else:
            for i in range(8): a(f"v_add_f32 v{d+i}, v{d+i}, v{r+i}")
    add8(KV, R)
    pack(a, KV, KV + 8, 8)
    a(f"buffer_store_dwordx4 {vr(KV+8,4)}, v5, s[60:63], s58 offen sc1")
    a("s_waitcnt lgkmcnt(0)")
    add8(Z, R + 8)
    pack(a, Z, KV + 12, 8)
    a("s_mov_b32 exec_lo, 0x10001\ns_mov_b32 exec_hi, 0x10001")
    a(f"buffer_store_dwordx4 {vr(KV+12,4)}, v5, s[60:63], s59 offen sc1")
    a("s_mov_b64 exec, -1")
    if GATE == "kv": a(f"ds_write_b32 v{vPW}, v{vOne} offset:{Y_KD}")
    a.stamp(3)
    PP, AC, ZZ, SEL, D1, B2, DN, EQ, KO, KP = 24, 88, 96, 8, 120, 136, 152, 168, 172, 176
    su = L()
    su(f"""
s_lshl_b32 s47, s{shq}, 1
s_add_u32 s47, s47, s41
s_lshl_b32 s44, s{shq}, 2
s_add_u32 s44, s44, s3
s_lshl_b32 s58, s44, 14
s_add_u32 s58, s58, {WS_KVP:#x}
s_lshl_b32 s59, s44, 11
s_add_u32 s59, s59, {WS_ZP:#x}
s_lshl_b32 s44, s44, 6
{FC(44, FL_P, srb)}
s_lshl_b32 s45, s41, 2
v_add_u32 v14, s45, v{vY}
v_mov_b32 v6, 0x3f80
v_and_b32 v7, 1, v4
v_lshlrev_b32 v7, 4, v7
v_lshlrev_b32 v6, v7, v6
v_lshrrev_b32 v2, 4, v4
v_cmp_eq_u32 vcc, v2, v22
v_bfe_u32 v7, v4, 1, 1
v_mov_b32 v{SEL}, 0
v_cndmask_b32 v6, 0, v6, vcc
v_cmp_eq_u32 vcc, 0, v7
v_mov_b32 v{SEL+1}, 0
v_mov_b32 v{SEL+4}, 0
v_cndmask_b32 v{SEL+2}, 0, v6, vcc
v_cndmask_b32 v{SEL+3}, v6, v{vZero}, vcc
v_mov_b32 v{SEL+5}, 0
s_lshl_b32 s45, s3, 10
s_add_u32 s45, s45, {KVL}
v_add_u32 v6, s45, v5
s_xor_b32 s45, s3, 1
s_lshl_b32 s45, s45, 10
s_add_u32 s45, s45, {KVL}
v_add_u32 v7, s45, v5
s_lshl_b32 s48, s{srb}, 3
s_lshl_b32 s45, s40, 2
s_add_u32 s48, s48, s45
s_lshl_b32 s48, s48, 15
s_lshl_b32 s45, s47, 10
s_add_u32 s48, s48, s45
s_add_u32 s48, s48, {WS_O:#x}
s_lshl_b32 s49, s{srb}, 1
s_add_u32 s49, s49, s40
s_lshl_b32 s49, s49, 7
s_lshl_b32 s45, s47, 2
s_add_u32 s49, s49, s45
{FA(49, FL_O)}
s_mov_b32 s50, 0
s_mov_b32 s51, 0
s_mov_b32 s53, 0
s_mov_b32 s46, 0
s_and_b32 s43, s{srb}, {7 if PROT else 0}
""")
    g4, g5 = grp(A0, 4), grp(A0, 5)
    qm = [x for mt in range(4) for x in g4[2 * mt:2 * mt + 2] + g5[2 * mt:2 * mt + 2]]
    inter2(a, qm, su.l, 4)
    phiq = phi_pack if GATE == "pq" else phi_pack_np
    NQ1 = int(opt("nq1", "2"))
    if NQ1: phiq(a, ACC, PQ, 8 * NQ1, T, 54, 56)
    a("s_waitcnt vmcnt(0)")
    flag_store(a, 60, 57, vEp, 19)
    a(f"s_load_dwordx16 s[4:19], s[{sWS}:{sWS+1}], s44 glc")
    a.stamp(4)
    for mt in range(NQ1, 4): phiq(a, ACC + 8 * mt, PQ + 4 * mt, 8, T, 54, 56)
    if GATE == "pq": a(f"ds_write_b32 v{vPW}, v{vOne} offset:{Y_KD}")
    for i in range(4): a(f"v_mov_b64 {vr(AC+2*i,2)}, 0\nv_mov_b64 {vr(B2+4*i+2,2)}, 0\nv_mov_b32 v{EQ+i}, s56")
    a("s_setprio 3")
    def accm(j):
        for i in range(2):
            a(mfma16(AC, SEL + 2, PP + 8 * j + 4 * i)); a(mfma16(AC + 4, SEL, PP + 8 * j + 4 * i))
    for k in range(8):
        a(f"s_cmp_eq_u32 s46, 0\ns_cbranch_scc1 L_poll{k}\nL_go{k}:\ns_ff1_i32_b32 s45, s46\ns_bitset0_b32 s46, s45\ns_add_u32 s45, s45, s43\ns_and_b32 s45, s45, 7\ns_lshl_b32 s45, s45, 11\ns_add_u32 s45, s45, s58")
        for i in range(2): a(f"buffer_load_dwordx4 {vr(PP+8*k+4*i,4)}, v5, s[60:63], s45 offen offset:{1024*i} sc1")
        a(f"s_bitset1_b32 s51, {k}")
    a("s_branch L_fin")
    for k in range(8):
        a(f"L_poll{k}:\ns_waitcnt lgkmcnt(0)")
        for i in range(7, -1, -1): a(f"s_cmp_eq_u64 s[{4+2*i}:{5+2*i}], s[{sEP}:{sEP+1}]\ns_addc_u32 s46, s46, s46")
        a(f"""
s_add_u32 s53, s53, 1
s_cmp_gt_u32 s53, 0x8000
s_cselect_b32 s46, 0xff, s46
s_andn2_b32 s46, s46, s50
s_or_b32 s50, s50, s46
s_cmp_eq_u32 s50, 0xff
s_cbranch_scc0 L_pm{k}
buffer_load_dwordx4 {vr(ZZ,4)}, v5, s[60:63], s59 offen sc1
s_mov_b32 s47, s51
s_mov_b32 s52, {k}
""")
        if STAMP: a.stamp(5)
        a(f"""
s_branch L_go{k}
L_pm{k}:
s_load_dwordx16 s[4:19], s[{sWS}:{sWS+1}], s44 glc
s_cmp_lg_u32 s46, 0
s_cbranch_scc1 L_go{k}
""")
        if k == 0: a("s_branch L_poll0")
        else: a(f"s_cmp_eq_u32 s51, 0\ns_cbranch_scc1 L_poll{k}\ns_mov_b32 s52, {k}\ns_branch L_acc")
    a("L_acc:\ns_waitcnt vmcnt(0)")
    for j in range(7):
        a(f"s_bitcmp1_b32 s51, {j}\ns_cbranch_scc0 L_ac{j}"); accm(j); a(f"L_ac{j}:")
    a("s_mov_b32 s51, 0")
    for k in range(1, 7): a(f"s_cmp_eq_u32 s52, {k}\ns_cbranch_scc1 L_poll{k}")
    a("s_branch L_poll7\nL_fin:\ns_andn2_b32 s46, s51, s47")
    for k in range(7): a(f"s_cmp_eq_u32 s52, {k}\ns_cbranch_scc1 L_pw{k}")
    a("s_waitcnt vmcnt(2)\ns_branch L_pwd")
    for k in range(7): a(f"L_pw{k}:\ns_waitcnt vmcnt({2*(8-k)})" + ("\ns_branch L_pwd" if k < 6 else ""))
    a("L_pwd:")
    OST = opt("ost", "0") == "1"
    if OST: a.stamp(7)
    for i in range(4): a(mfma16(D1 + 4 * i, ZZ, PQ + 4 * i, "0"))
    for j in range(7):
        a(f"s_bitcmp1_b32 s47, {j}\ns_cbranch_scc0 L_ao{j}"); accm(j); a(f"L_ao{j}:")
    for i in range(4): a(f"v_cvt_pk_bf16_f32 v{B2+4*i}, v{D1+4*i}, v{D1+4*i+1}\nv_cvt_pk_bf16_f32 v{B2+4*i+1}, v{D1+4*i+2}, v{D1+4*i+3}")
    a("s_nop 0")
    for i in range(4): a(mfma16(DN + 4 * i, ONES, B2 + 4 * i, vr(EQ, 4)))
    for j in range(8):
        a(f"s_bitcmp1_b32 s46, {j}\ns_cbranch_scc0 L_an{j}\ns_waitcnt vmcnt({2*(7-j)})"); accm(j); a(f"L_an{j}:")
    if OST: a.stamp(8)
    a("s_nop 3")
    for i in range(4): a(f"v_rcp_f32 v{DN+4*i}, v{DN+4*i}")
    pack(a, AC, KO, 8)
    NO, NP, OP = 24, 40, 56
    a(f"ds_write_b128 v6, {vr(KO,4)}\nds_write_b32 v{vPW}, v{vOne} offset:{Y_K2}\nds_read_b32 v{vT}, v18 offset:{Y_K2}\nds_read_b128 {vr(KP,4)}, v7")
    for i in range(4): a(mfma16(NO + 4 * i, KO, PQ + 4 * i, "0"))
    a("s_mov_b32 s45, 0\ns_nop 3\ns_cmp_eq_u32 s40, 0")
    OPK = opt("opk", "0") == "1"
    def mul4(r, d):
        if OPK:
            for p in range(2): a(f"v_pk_mul_f32 {vr(r+2*p,2)}, {vr(r+2*p,2)}, {vr(d,2)} op_sel_hi:[1,0]")
        else:
            for p in range(4): a(f"v_mul_f32 v{r+p}, v{r+p}, v{d}")
    for i in range(4): mul4(NO + 4 * i, DN + 4 * i)
    a("s_cbranch_scc0 L_o1")
    for wr in range(2):
        if wr: a("L_o1:")
        for i in range(4): pack(a, NO + 4 * i, OP + 4 * i + 2 * wr, 4)
        a(f"""
s_branch L_ks{wr}g
L_ks{wr}:
ds_read_b32 v{vT}, v18 offset:{Y_K2}
ds_read_b128 {vr(KP,4)}, v7
L_ks{wr}g:
s_add_u32 s45, s45, 1
s_waitcnt lgkmcnt(0)
v_readfirstlane_b32 s46, v{vT}
s_cmp_gt_u32 s45, 0x40000
s_cbranch_scc1 L_kd{wr}
s_cmp_eq_u32 s46, 0
s_cbranch_scc1 L_ks{wr}
L_kd{wr}:
""")
        for i in range(4): a(mfma16(NP + 4 * i, KP, PQ + 4 * i, "0"))
        a("s_nop 4")
        for i in range(4):
            mul4(NP + 4 * i, DN + 4 * i)
            pack(a, NP + 4 * i, OP + 4 * i + 2 * (1 - wr), 4)
            a(f"buffer_store_dwordx4 {vr(OP+4*i,4)}, v5, s[60:63], s48 offen sc1")
            if i < 3: a("s_add_u32 s48, s48, 0x8000")
        if wr == 0: a("s_branch L_o2")
    a("L_o2:")
    if GATE == "o": a(f"ds_write_b32 v{vPW}, v{vOne} offset:{Y_KD}")
    a.stamp(9)
    OF, WX, WY, C, PO = 24, 88, 104, 120, 172
    vWb, vWA, vWB = 236, 8, 244
    a(f"""
s_lshl_b32 s59, s{sg_rb}, 3
s_lshl_b32 s45, s3, 1
s_add_u32 s59, s59, s45
s_lshl_b32 s45, s59, 15
s_add_u32 s45, s45, {WS_O:#x}
v_add_u32 v242, 0x8000, v5
s_mov_b32 s51, 0x55555555
""")
    srd_off(a, 64, sWS, "s45", 65536)
    a(f"""
s_lshl_b32 s52, s{sg_rb}, 8
s_lshl_b32 s46, s3, 6
s_add_u32 s52, s52, s46
{FC(52, FL_O, sg_cb)}
v_lshrrev_b32 v6, 2, v4
v_lshlrev_b32 v6, 7, v6
v_and_b32 v7, 3, v4
v_lshl_add_u32 v6, v7, 3, v6
v_bfe_u32 v7, v4, 3, 1
v_lshl_add_u32 v6, v7, 6, v6
v_lshl_add_u32 v{vWb}, v23, 5, v6
v_xor_b32 v{vWb+1}, 32, v{vWb}
v_xor_b32 v{vWb+2}, 64, v{vWb}
v_xor_b32 v{vWb+3}, 0x60, v{vWb}
s_lshl_b32 s57, s3, 11
s_add_u32 s57, s57, {XCH}
v_lshrrev_b32 v7, 5, v4
v_lshl_add_u32 v6, v23, 1, v7
v_and_b32 v7, 7, v4
v_xor_b32 v6, v6, v7
v_lshlrev_b32 v6, 4, v6
v_and_b32 v3, 15, v4
v_lshl_add_u32 v6, v3, 7, v6
v_add_u32 v15, s57, v6
v_xor_b32 v18, 64, v15
v_lshrrev_b32 v6, 3, v4
v_lshlrev_b32 v3, 4, v7
v_lshl_add_u32 v17, v6, 12, v3
v_xor_b32 v7, v7, v6
v_lshlrev_b32 v7, 4, v7
v_lshl_add_u32 v6, v6, 7, v7
v_add_u32 v16, s57, v6
s_mov_b32 s50, 0
s_mov_b32 s53, 0
s_mov_b32 s54, 0
s_lshl_b32 s55, s40, 4
s_and_b32 s42, s{sg_rb}, {3 if opt("wrot", "1") == "1" else 0}
s_lshl_b32 s42, s42, 3
""")
    for i in range(10): a(f"v_mov_b64 {vr(C+2*i,2)}, 0")
    a(f"s_load_dwordx16 s[4:19], s[{sWS}:{sWS+1}], s52 glc")
    for i in range(10, 16): a(f"v_mov_b64 {vr(C+2*i,2)}, 0")
    a("s_waitcnt vmcnt(0)")
    flag_store(a, 60, 49, vEp, vL128)
    a.stamp(6)
    a("s_waitcnt lgkmcnt(0)")
    maskbuild(a, 54, 46)
    a(f"s_lshl_b32 s46, s54, s55\ns_mov_b32 s47, s46\ns_lshr_b64 s[46:47], s[46:47], s42\nv_mov_b32 v{vT}, s46\ns_mov_b64 exec, 1\nds_or_b32 v14, v{vT} offset:{Y_CO}\ns_mov_b64 exec, -1")
    a(f"s_setprio {opt('gprio', '2')}")
    selno = [0]
    def select(slot):
        n = selno[0]; selno[0] += 1
        a(f"""
s_cmp_lg_u32 s50, 0
s_cbranch_scc1 L_sel{n}_ok
s_mov_b32 s45, 0
s_cmp_lg_u32 s51, 0
s_cbranch_scc1 L_sel{n}
s_mov_b32 s66, 0
s_mov_b32 s50, 0x55555555
s_branch L_sel{n}_ok
L_sel{n}:
ds_read_b32 v{vT}, v14 offset:{Y_CO}
ds_read_b32 v13, v{vY} offset:{Y_WM}
s_add_u32 s45, s45, 1
s_waitcnt lgkmcnt(0)
v_and_b32 v13, v13, v{vT}
s_cmp_gt_u32 s45, 0x40000
s_cselect_b32 s46, -1, 0
v_readfirstlane_b32 s50, v13
s_nop 3
s_or_b32 s50, s50, s46
s_and_b32 s50, s50, s51
s_cbranch_scc1 L_sel{n}_ok
s_cmp_lg_u32 s54, 0x5555
s_cbranch_scc1 L_sel{n}_p
s_sleep 1
s_branch L_sel{n}
L_sel{n}_p:
s_load_dwordx16 s[4:19], s[{sWS}:{sWS+1}], s52 glc
s_add_u32 s45, s45, 8
s_waitcnt lgkmcnt(0)
""")
        maskbuild(a, 54, 46)
        a(f"s_lshl_b32 s46, s54, s55\ns_mov_b32 s47, s46\ns_lshr_b64 s[46:47], s[46:47], s42\nv_mov_b32 v{vT}, s46\ns_mov_b64 exec, 1\nds_or_b32 v14, v{vT} offset:{Y_CO}\ns_mov_b64 exec, -1")
        a(f"s_branch L_sel{n}\nL_sel{n}_ok:")
        return [f"s_ff1_i32_b32 s46, s50", "s_bitset0_b32 s50, s46\ns_add_u32 s48, s46, s42", "s_and_b32 s48, s48, 31\ns_lshl_b32 s48, s48, 10", "s_bitset0_b32 s51, s46", f"s_lshl_b32 s{28+slot}, s46, 12"]
    def oload(slot):
        return [f"buffer_load_dwordx4 {vr(OF+16*slot+8*hh+4*rt,4)}, v{[5,242][rt]}, s[64:67], s48 offen offset:{1024*hh} {OSC}" for hh in range(2) for rt in range(2)]
    def wreads(S, hh, vw):
        return [f"ds_read_b64_tr_b16 {vr(S+4*ct+2*i2,2)}, v{vw+ct} offset:{hh*4096+i2*2048}" for ct in range(4) for i2 in range(2)]
    def wset(slot, vw): return [f"v_add_u32 v{vw+i}, s{28+slot}, v{vWb+i}" for i in range(4)]
    for sl in range(3):
        for x in select(sl): a(x)
        if sl == 0 and not OST: a.stamp(7)
        for x in oload(sl): a(x)
    for x in wset(0, vWA): a(x)
    for r in wreads(WX, 0, vWA): a(r)
    a("L_gloop:")
    for u in range(4):
        cur, nxt = (vWA, vWB) if u % 2 == 0 else (vWB, vWA)
        sel = select((u + 3) % 4)
        ol = oload((u + 3) % 4)
        a("s_waitcnt vmcnt(10) lgkmcnt(0)")
        if TRACE: a("s_memrealtime s[100:101]")
        m = [mfma16(C + 4 * (rt * 4 + ct), WX + 4 * ct, OF + 16 * u + 4 * rt) for rt in range(2) for ct in range(4)]
        interleave(a, m, wreads(WY, 1, cur) + wset((u + 1) % 4, nxt) + sel[:4], 2)
        a("s_waitcnt vmcnt(8) lgkmcnt(0)")
        if TRACE: a(f"s_lshl_b32 m0, s53, 2\ns_add_u32 m0, m0, {u}\ns_nop 0\nv_writelane_b32 v252, s100, m0")
        m = [mfma16(C + 4 * (rt * 4 + ct), WY + 4 * ct, OF + 16 * u + 8 + 4 * rt) for rt in range(2) for ct in range(4)]
        if u == 3: oth = wreads(WX, 0, nxt) + [ol[0], ol[1], sel[4], ol[2], "s_add_u32 s53, s53, 1", ol[3], "s_cmp_lt_u32 s53, 4"]
        else: oth = wreads(WX, 0, nxt) + [ol[0], sel[4], ol[1]] + [None, ol[2], None, ol[3]]
        o2 = list(oth)
        for mm in m:
            a(mm)
            for _ in range(2):
                if o2:
                    x = o2.pop(0)
                    if x: a(x)
        for x in o2:
            if x: a(x)
    a("s_cbranch_scc1 L_gloop")
    if not OST: a.stamp(8)
    a(f"""
s_lshl_b32 s48, s59, 16
s_lshl_b32 s49, s{sg_cb}, 7
s_add_u32 s48, s48, s49
s_add_u32 s49, s48, 0x8000
s_add_u32 s50, s48, 0x10000
s_add_u32 s51, s48, 0x18000
s_waitcnt lgkmcnt(0)
""")
    pack(a, C, PO, 32)
    a("s_nop 1")
    for q in range(4):
        a(f"v_permlane16_swap_b32 v{PO+4*q}, v{PO+4*q+2}\nv_permlane16_swap_b32 v{PO+4*q+1}, v{PO+4*q+3}")
    for rt in range(2):
        for qq in range(2): a(f"ds_write_b128 v{[15,18][qq]}, {vr(PO+8*rt+4*qq,4)}")
        for i in range(2): a(f"ds_read_b128 {vr(WX+8*rt+4*i,4)}, v16 offset:{1024*i}")
    for q in range(4):
        a(f"s_waitcnt lgkmcnt({[5,4,1,0][q]})")
        a(f"buffer_store_dwordx4 {vr(WX+4*q,4)}, v17, s[68:71], s{48+q} offen {FL_OUT}")
    if TRACE:
        a(f"v_writelane_b32 v252, s90, 16\ns_lshl_b32 s100, s2, 10\ns_add_u32 s100, s100, {WS_ST + 0x200000:#x}\nv_lshlrev_b32 v253, 2, v0\nbuffer_store_dword v252, v253, s[60:63], s100 offen")
    a.end()

def aux(a):
    vOA, vOB = 8, 12
    vZero, vEp, vOne, vY, vT = 6, 7, 14, 15, 3
    a(f"""
s_sub_u32 s3, s3, 4
v_lshrrev_b32 v1, 3, v4
v_and_b32 v2, 7, v4
v_lshrrev_b32 v3, 4, v4
v_xor_b32 v6, v2, v3
v_lshlrev_b32 v6, 4, v6
v_lshl_add_u32 v6, v1, 11, v6
s_lshl_b32 s60, s{srb}, 7
s_lshl_b32 s61, s3, 5
s_add_u32 s60, s60, s61
s_lshl_b32 s60, s60, 11
v_add_u32 v{vOA}, s60, v6
v_xor_b32 v6, 64, v{vOA}
v_add_u32 v{vOA+1}, {16384-1024}, v6
v_add_u32 v{vOA+2}, {2*(16384-1024)}, v{vOA}
v_add_u32 v{vOA+3}, {3*(16384-1024)}, v6
v_and_b32 v3, 1, v3
v_lshlrev_b32 v3, 2, v3
v_xor_b32 v7, v2, v3
v_lshlrev_b32 v7, 4, v7
v_xor_b32 v6, 32, v7
s_movk_i32 s61, 6144
v_mad_u32_u24 v7, v1, s61, v7
v_mad_u32_u24 v6, v1, s61, v6
s_mul_i32 s60, s3, {16*6144}
v_add_u32 v{vOB}, s60, v7
s_add_u32 s60, s60, {8*6144-1024}
v_add_u32 v{vOB+1}, s60, v6
s_lshl_b32 s65, s3, 12
s_lshl_b32 s66, s3, 11
s_add_u32 s66, s66, 0x4000
s_mov_b32 s64, 0
s_mov_b32 s67, s{sk0}
s_lshl_b32 s74, s{shq}, 7
s_lshl_b32 s75, s{shk}, 7
s_add_u32 s75, s75, 2048
s_mov_b32 s42, {4*MB:#x}
s_mov_b32 s43, 0x20000
s_mov_b32 s46, {6*MB:#x}
s_mov_b32 s47, 0x20000
s_waitcnt lgkmcnt(0)
s_mov_b64 s[40:41], s[{sX}:{sX+1}]
s_mov_b64 s[44:45], s[{sW}:{sW+1}]
""")
    vm = VM(a)
    def issue(tag):
        a(f"s_add_u32 m0, s64, s65\ns_lshl_b32 s60, s67, 7\ns_mul_i32 s63, s67, {64*6144}")
        for i in range(4): a(f"buffer_load_dwordx4 v{vOA+i}, s[40:43], s60 offen offset:{1024*i} lds")
        a(f"s_add_u32 m0, s64, s66\ns_add_u32 s61, s63, s74\ns_add_u32 s62, s63, s75")
        for i in range(2): a(f"buffer_load_dwordx4 v{vOB+i}, s[44:47], s61 offen offset:{1024*i} lds")
        a(f"s_add_u32 m0, m0, 8192\ns_add_u32 s63, s62, 2048")
        for i in range(2): a(f"buffer_load_dwordx4 v{vOB+i}, s[44:47], s62 offen offset:{1024*i} lds")
        a(f"s_add_u32 m0, m0, 8192\ns_add_u32 s67, s67, 1")
        for i in range(2): a(f"buffer_load_dwordx4 v{vOB+i}, s[44:47], s63 offen offset:{1024*i} lds")
        a(f"s_and_b32 s67, s67, 15\ns_add_u32 s64, s64, {STG}\ns_cmp_eq_u32 s64, {3*STG}\ns_cselect_b32 s64, 0, s64")
        vm.issue(tag, 10)
    def B(i): vm.wait(i); a.bar()
    a.sst(2)
    issue(0)
    a.sst(3)
    a("s_barrier")
    a.sst(4)
    ids2(a)
    a(f"v_mov_b32 v{vZero}, 0\nv_mov_b32 v{vOne}, 1\nv_mov_b32 v{vY}, {SYNC}\nv_lshlrev_b32 v255, 7, v4\n{WSOFF}")
    srd(a, 48, sWS, 32 * MB)
    srd(a, 52, sDBG, 256)
    a(f"""
s_or_b32 s60, s2, s3
s_cmp_eq_u32 s60, 0
s_cbranch_scc0 L_noep
s_memrealtime s[60:61]
s_waitcnt lgkmcnt(0)
s_or_b32 s60, s60, 1
v_mov_b32 v{vEp}, s60
s_mov_b64 exec, 1
buffer_store_dword v{vEp}, v{vZero}, s[52:55], 0 offen sc1
s_mov_b64 exec, -1
L_noep:
""")
    P, Qs, CACC, W2, QQ = 32, 96, 160, 192, 224
    VU = [240, 241, 242, 243]; vH, vE, vS, vTR, vHP = 244, 245, 246, 247, 251
    vUS, vHL, vO = 25, 26, 20
    a(f"""
s_mul_i32 s68, s3, {HCH}
s_add_u32 s68, s68, {HB}
s_lshl_b32 s69, s{ssb}, 7
s_lshl_b32 s70, s3, 5
s_add_u32 s69, s69, s70
v_lshrrev_b32 v28, 4, v4
v_bfe_u32 v29, v4, 2, 2
v_and_b32 v30, 3, v4
v_and_b32 v31, 15, v4
s_lshl_b32 s60, s3, 12
s_add_u32 s60, s60, {HB}
v_add_u32 v{vTR}, s60, v5
s_and_b32 s60, s3, 1
s_lshl_b32 s60, s60, 6
v_xor_b32 v{vTR}, s60, v{vTR}
v_xor_b32 v{vTR+1}, 16, v{vTR}
v_xor_b32 v{vTR+2}, 32, v{vTR}
v_xor_b32 v{vTR+3}, 48, v{vTR}
v_lshlrev_b32 v3, 12, v28
v_lshl_add_u32 v{vUS}, v31, 4, v3
s_lshl_b32 s60, s{sdb}, 18
s_lshl_b32 s61, s3, 16
s_add_u32 s60, s60, s61
s_lshl_b32 s61, s{ssb}, 8
s_sub_u32 s60, s60, s61
s_add_u32 s60, s60, {WS_UT + 3840}
v_add_u32 v{vUS}, s60, v{vUS}
v_lshlrev_b32 v{vHL}, 5, v4
v_and_b32 v3, 1, v28
v_lshlrev_b32 v3, 2, v3
v_xor_b32 v3, v2, v3
v_lshrrev_b32 v27, 5, v4
v_lshlrev_b32 v27, 1, v27
v_xor_b32 v3, v27, v3
v_lshlrev_b32 v3, 4, v3
v_lshl_add_u32 v3, v1, 11, v3
s_lshl_b32 s60, s{sg_cb}, 7
v_add_u32 v{vO}, s60, v3
v_add_u32 v{vO+1}, {16384-1024}, v{vO}
v_add_u32 v{vO+2}, {2*(16384-1024)}, v{vO}
v_add_u32 v{vO+3}, {3*(16384-1024)}, v{vO}
s_mov_b32 s70, 0xffff0000
v_and_b32 v3, 1, v28
s_movk_i32 s60, {HP}
v_mul_u32_u24 v3, s60, v3
v_lshl_add_u32 v3, v31, 4, v3
v_add_u32 v{vHP}, s68, v3
s_mul_i32 s71, s3, {UCH}
s_add_u32 s71, s71, {U0}
v_add_u32 v19, s71, v5
s_movk_i32 s61, {CPY}
v_and_b32 v24, 1, v29
v_mul_u32_u24 v24, s61, v24
v_lshl_add_u32 v24, v30, 4, v24
v_add_u32 v24, s71, v24
v_add_u32 v3, 1, v31
v_and_b32 v16, 1, v3
v_add_u32 v17, v16, v31
v_mul_u32_u24 v3, s61, v16
v_lshl_add_u32 v3, v28, 5, v3
v_lshlrev_b32 v17, 1, v17
v_sub_u32 v3, v3, v17
s_add_u32 s60, s71, {4014 - 512 - 16}
v_add_u32 v{VU[0]}, s60, v3
v_subrev_u32 v{VU[1]}, 1024, v{VU[0]}
v_subrev_u32 v{VU[2]}, 2048, v{VU[0]}
v_subrev_u32 v{VU[3]}, 3072, v{VU[0]}
v_add_u32 v3, v31, v28
s_add_u32 s60, s68, 208
v_lshlrev_b32 v3, 4, v3
v_add_u32 v{vH}, s60, v3
v_lshlrev_b32 v3, 5, v31
v_lshl_add_u32 v16, v28, 3, v3
s_add_u32 s60, s71, {4088 - 3584}
v_sub_u32 v{vE}, s60, v16
v_and_b32 v16, 1, v28
v_lshl_add_u32 v3, v16, 9, v3
v_lshrrev_b32 v16, 5, v4
v_lshl_add_u32 v{vS}, v16, 4, v3
v_lshlrev_b32 v27, 4, v2
v_lshl_add_u32 v16, v1, 11, v27
v_lshl_add_u32 v17, v1, 12, v27
s_add_u32 s39, s{sch}, s3
s_and_b32 s60, s39, 0xfffffffe
s_lshl_b32 s60, s60, 1
s_load_dword s71, s[{sD}:{sD+1}], s60
s_lshl_b32 s61, s39, 12
""")
    for i in range(16): a(f"v_mov_b64 {vr(CACC+2*i,2)}, 0")
    srd_off(a, 52, sH, "s61", 4096); srd(a, 56, sWO, 2 * MB)
    a(f"s_waitcnt lgkmcnt(0)\ns_mov_b32 s20, s{sQ}\ns_mov_b32 s21, s{sQ+1}")
    def hload():
        a(f"s_add_u32 m0, s68, 256\ns_movk_i32 s60, 1024\ns_movk_i32 s61, 1040")
        a(f"buffer_load_dwordx4 v{vHL}, s[52:55], 0 offen {FL_KV} lds\nbuffer_load_dwordx4 v{vHL}, s[52:55], s60 offen offset:1024 {FL_KV} lds")
        a(f"s_add_u32 m0, s68, {HP+256}\ns_nop 0")
        a(f"buffer_load_dwordx4 v{vHL}, s[52:55], 16 offen {FL_KV} lds\nbuffer_load_dwordx4 v{vHL}, s[52:55], s61 offen offset:1024 {FL_KV} lds")
        vm.issue("h", 4)
    def epoch():
        a(f"""
s_waitcnt lgkmcnt(0)
s_mov_b32 s60, 0
L_eploop:
s_cmp_lg_u32 s{sEP}, 0
s_cbranch_scc1 L_epok
s_sleep 8
s_load_dword s{sEP}, s[{sDBG}:{sDBG+1}], 0 glc
s_add_u32 s60, s60, 1
s_cmp_gt_u32 s60, 0x4000
s_waitcnt lgkmcnt(0)
s_cbranch_scc0 L_eploop
L_epok:
s_mov_b32 s{sEP+1}, s{sEP}
v_mov_b32 v{vEp}, s{sEP}
ds_write_b32 v{vY}, v{vEp} offset:{Y_EP}
""")
    a.sst(5); vm.wait(0); a.sst(6)
    B(0); issue(1); issue(2)
    B(1); issue(3)
    a.stamp(9)
    B(2); issue(4)
    a(f"s_load_dword s{sEP}, s[{sDBG}:{sDBG+1}], 0")
    D, E, O = 32, 48, 52
    H0 = int(opt("h0", "14")); D0 = int(opt("d0", "14")); HN = int(opt("hn", "1")); DN_ = int(opt("dn", "1"))
    hl = [(f"s_add_u32 m0, s68, 256", f"buffer_load_dwordx4 v{vHL}, s[52:55], 0 offen {FL_KV} lds"),
          (f"s_add_u32 m0, s68, 256\ns_movk_i32 s60, 1024", f"buffer_load_dwordx4 v{vHL}, s[52:55], s60 offen offset:1024 {FL_KV} lds"),
          (f"s_add_u32 m0, s68, {HP+256}", f"buffer_load_dwordx4 v{vHL}, s[52:55], 16 offen {FL_KV} lds"),
          (f"s_add_u32 m0, s68, {HP+256}\ns_movk_i32 s60, 1040", f"buffer_load_dwordx4 v{vHL}, s[52:55], s60 offen offset:1024 {FL_KV} lds")]
    dl = [f"buffer_load_dwordx4 {vr(D+4*j,4)}, v5, s[48:51], s39 offen offset:{1024*j} sc1" for j in range(4)]
    a(f"s_lshl_b32 s33, s39, 7\ns_add_u32 s33, s33, {FL_U:#x}\ns_lshl_b32 s39, s39, 12")
    def uchk():
        a("s_waitcnt lgkmcnt(0)")
        for i in range(8): a(f"s_cmp_eq_u64 s[{4+2*i}:{5+2*i}], s[{sEP}:{sEP+1}]\ns_cbranch_scc0 L_us")
        a("s_branch L_upoll_done\nL_us:")
        spoll(a, "L_upoll", 33, 60)
    for b in range(3, 14):
        B(b)
        if b == 3:
            epoch(); a(f"ds_write_b128 v{vHP}, {vr(CACC,4)}")
        issue(b + 2)
        if b == min(D0, 14) - 1: a(f"s_load_dwordx16 s[4:19], s[{sWS}:{sWS+1}], s33 glc")
        if b == D0: uchk()
        if b >= H0:
            for _ in range(HN):
                if hl:
                    x = hl.pop(0); a(x[0]); a("s_nop 0"); a(x[1]); vm.issue("h")
        if b >= D0:
            for _ in range(DN_):
                if dl: a(dl.pop(0)); vm.issue("d")
    srd(a, 40, 20, 4 * MB); srd(a, 44, sOUT, 8 * MB)
    sPo = {0: 3, 1: 75, 2: 65, 3: 31}
    a(f"s_and_b32 s28, s{sg_rb}, {3 if opt('wrot', '1') == '1' else 0}\ns_lshl_b32 s74, s28, 2\ns_lshl_b32 s28, s28, 3")
    a("s_add_u32 s65, s3, 5\ns_add_u32 s75, s3, 9\ns_cmp_eq_u32 s3, 3\ns_cselect_b32 s75, 4, s75\ns_add_u32 s31, s3, 12")
    def usrc(g): return [f"s_add_u32 s60, s{sPo[g]}, s74", "s_and_b32 s60, s60, 15", "s_lshl_b32 s60, s60, 17", "s_add_u32 s61, s60, 0x10000"]
    def w2(g):
        r = usrc(g)
        for hh in range(2):
            for i in range(4): r.append(f"buffer_load_dwordx4 {vr(W2+16*hh+4*i,4)}, v{vO+i}, s[56:59], s{60+hh} offen offset:{1024*i} {FL_WO}")
        vm.issue(f"w{g}", 8)
        return r
    def wb(g):
        a(f"s_lshl_b32 m0, s{sPo[g]}, 13")
        for x in usrc(g): a(x)
        for hh in range(2):
            for i in range(4): a(f"buffer_load_dwordx4 v{vO+i}, s[56:59], s{60+hh} offen offset:{1024*i} {FL_WO} lds")
            if hh == 0: a("s_add_u32 m0, m0, 4096\ns_nop 0")
        vm.issue(f"w{g}", 8)
    def wm_lines(bits):
        r = ["s_mov_b32 s61, 0"]
        for g in bits: r += [f"s_lshl_b32 s60, s{sPo[g]}, 1", "s_bitset1_b32 s61, s60"]
        return r + [f"v_mov_b32 v{vT}, s61", f"s_mov_b64 exec, 1\nds_or_b32 v{vY}, v{vT} offset:{Y_WM}\ns_mov_b64 exec, -1"]
    B(14)
    if D0 >= 14: uchk()
    for x in dl: a(x); vm.issue("d")
    for x in hl: a(x[0]); a("s_nop 0"); a(x[1]); vm.issue("h")
    W14 = len(dl) + len(hl) <= 4
    if W14: wb(2)
    B(15)
    a.stamp(1)
    a(f"ds_write_b128 v24, {vr(CACC,4)} offset:4096")
    if not W14: wb(2)
    vm.wait("d")
    for j in range(3): a(f"v_mov_b32_dpp v{E+j}, v{D+4*j+4} wave_rol:1 row_mask:0xf bank_mask:0xf")
    a(f"v_mov_b32 v{E+3}, 0\ns_nop 0")
    for j in range(4): a(f"v_mov_b32_dpp v{E+j}, v{D+4*j} wave_shl:1 row_mask:0xf bank_mask:0xf")
    for j in range(4):
        d = [D + 4 * j + i for i in range(4)] + [E + j]
        o = O + 4 * j
        a(f"ds_write_b128 v19, {vr(D+4*j,4)} offset:{1024*j}")
        for i in range(4): a(f"v_alignbit_b32 v{o+i}, v{d[i+1]}, v{d[i]}, 16")
        a(f"ds_write_b128 v19, {vr(o,4)} offset:{CPY+1024*j}")
    def wait4(lab, off, slp=1, T=68):
        a(f"""
s_mov_b32 s60, 0
{lab}:
ds_read_b128 v[{T}:{T+3}], v{vY} offset:{off}
s_add_u32 s60, s60, 1
s_waitcnt lgkmcnt(0)
v_and_b32 v{T}, v{T}, v{T+1}
v_and_b32 v{T+2}, v{T+2}, v{T+3}
v_and_b32 v{T}, v{T}, v{T+2}
s_cmp_gt_u32 s60, 0x40000
s_cbranch_scc1 {lab}_d
v_readfirstlane_b32 s61, v{T}
s_nop 3
s_cmp_eq_u32 s61, 1
s_cbranch_scc1 {lab}_d
s_sleep {slp}
s_branch {lab}
{lab}_d:
""")
    wait4("L_fr", Y_FR)
    a.stamp(2)
    wb(1); wb(0)
    a(f"""
s_lshl_b32 s30, s69, 11
s_lshl_b32 s61, s{sdb}, 7
s_add_u32 s30, s30, s61
s_lshl_b32 s63, s69, 12
s_add_u32 s63, s63, s61
s_add_u32 s63, s63, 2048
s_lshl_b32 s66, s{sg_rb}, 8
s_lshl_b32 s61, s3, 6
s_add_u32 s66, s66, s61
{FC(66, FL_O, sg_cb)}
s_bitcmp1_b32 s3, 0
s_cselect_b32 s60, 0, 16
s_cselect_b32 s33, 16, 0
s_lshl_b32 s71, s71, s60
s_and_b32 s71, s71, 0xffff0000
s_lshr_b32 s60, s3, 1
v_lshl_add_u32 v19, s60, 2, v{vY}
s_mov_b32 s32, s{sch}
{FA(32, FL_Y, 8192)}
s_lshl_b32 s67, s{sdb}, 6
s_lshl_b32 s60, s{ssb}, 2
s_add_u32 s60, s60, s3
{FC(67, FL_Y, 60, 8192)}
s_mov_b32 s64, 0
""")
    def creads(S, rho):
        r = []
        for i in range(8):
            o0 = 128 * (1 - i % 2) + 4 * (1 - rho)
            r.append(f"ds_read2_b32 {vr(S+4*i,2)}, v{VU[i//2]} offset0:{o0} offset1:{o0+1}")
            r.append(f"ds_read2_b32 {vr(S+4*i+2,2)}, v{VU[i//2]} offset0:{o0+2} offset1:{o0+3}")
            r.append(f"ds_read_b128 {vr(S+32+4*i,4)}, v{vH} offset:{256*i+(HP if rho == 0 else 0)}")
        return r
    def cmf(S):
        if opt("cch", "1") == "1": return [mfma16(CACC + 4 * t, S + 4 * x, S + 32 + 4 * (t - x)) for t in range(7, -1, -1) for x in range(t + 1)]
        return [mfma16(CACC + 4 * (x + y), S + 4 * x, S + 32 + 4 * y) for x in range(8) for y in range(8 - x)]
    vm.wait("h")
    for r in creads(P, 0): a(r)
    if opt("gate", "kv") != "none": wait4("L_kd", Y_KD, T=Qs)
    a.stamp(3)
    a(f"s_setprio {opt('vprio', '0')}")
    adv = [f"v_subrev_u32 v{x}, 128, v{x}" for x in VU] + [f"v_subrev_u32 v{vH}, 64, v{vH}"]
    pn = [0]
    def Pissue(): return f"s_load_dwordx16 s[4:19], s[{sWS}:{sWS+1}], s66 glc"
    def Pcheck(w):
        n = pn[0]; pn[0] += 1
        maskbuild(w, 62, 60)
        w(f"s_mov_b32 s64, s62\ns_lshl_b32 s60, s62, s33\ns_mov_b32 s61, s60\ns_lshr_b64 s[60:61], s[60:61], s28\nv_mov_b32 v{vT}, s60")
        g = f"s_mov_b64 exec, 1\nds_or_b32 v19, v{vT} offset:{Y_CO}\ns_mov_b64 exec, -1"
        if isinstance(w, L): w.l.append(g)
        else: w(g)
    a("s_waitcnt lgkmcnt(0)")
    interleave(a, cmf(P), creads(Qs, 1) + adv)
    a("s_waitcnt lgkmcnt(0)")
    vm.wait("w0")
    ex = wm_lines((0, 1, 2)) + w2(3)
    ex += [x for i in range(4) for x in ([f"buffer_load_dwordx4 {vr(QQ+4*i,4)}, v16, s[40:43], s30 offen {FL_KV}"] + (["s_add_u32 s30, s30, 0x4000"] if i < 3 else []))]
    vm.issue("q", 4)
    CVP = opt("cvpoll", "0") == "1"
    inter3(a, cmf(Qs), ["s_mov_b32 s29, 1"] + ([Pissue()] if CVP else []) + ex, 1, creads(P, 0), 1)
    a("L_cloop:\ns_waitcnt lgkmcnt(0)")
    w = L(); Pcheck(w)
    inter3(a, cmf(P), w.l + [Pissue()] if CVP else [], 3, creads(Qs, 1) + adv, 1)
    a("s_waitcnt lgkmcnt(0)")
    w = L(); Pcheck(w)
    inter3(a, cmf(Qs), w.l + [Pissue()] if CVP else [], 3, creads(P, 0) + ["s_add_u32 s29, s29, 1", "s_cmp_lt_u32 s29, 4"], 1)
    a("s_cbranch_scc1 L_cloop")
    a.stamp(4)
    UU, T = Qs + 40, Qs + 56
    for t in range(8): a(f"ds_read_b64 {vr(UU+2*t,2)}, v{vE} offset:{512*(7-t)}")
    ladd(a, vY, Y_CD, vOne)
    a(f"s_setprio {opt('yprio', '3')}\ns_waitcnt lgkmcnt(0)")
    for t in range(8):
        a(f"v_and_b32 v{T}, s70, v{UU+2*t+1}\nv_lshlrev_b32 v{T+1}, 16, v{UU+2*t+1}")
        a(f"v_and_b32 v{T+2}, s70, v{UU+2*t}\nv_lshlrev_b32 v{T+3}, 16, v{UU+2*t}")
        for i in range(4): a(f"v_fmac_f32 v{CACC+4*t+i}, s71, v{T+i}")
        a(f"v_cvt_pk_bf16_f32 v{UU+2*t}, v{CACC+4*t}, v{CACC+4*t+1}")
        a(f"v_cvt_pk_bf16_f32 v{UU+2*t+1}, v{CACC+4*t+2}, v{CACC+4*t+3}")
    a("s_nop 1")
    for t in range(0, 8, 2):
        a(f"v_permlane16_swap_b32 v{UU+2*t}, v{UU+2*t+2}\nv_permlane16_swap_b32 v{UU+2*t+1}, v{UU+2*t+3}")
    vm.wait("w3")
    for t in range(0, 8, 2): a(f"buffer_store_dwordx4 {vr(UU+2*t,4)}, v{vS}, s[48:51], s39 offen offset:{512*t} sc1")
    lspin(a, "L_cdspin", vY, Y_CD, "4", vT, 60, 61, slp=0)
    a(f"s_lshl_b32 s60, s3, 13\ns_add_u32 s60, s60, {U0}\nv_add_u32 v18, s60, v5")
    for i in range(8): a(f"ds_write_b128 v18, {vr(W2+4*i,4)} offset:{1024*i}")
    for x in wm_lines((3,)): a(x)
    a.stamp(5)
    a(f"""
s_lshl_b32 s65, s{sdb}, 18
s_lshl_b32 s60, s69, 1
s_add_u32 s65, s65, s60
s_add_u32 s65, s65, {WS_YT:#x}
v_lshrrev_b32 v18, 2, v4
v_lshlrev_b32 v18, 12, v18
v_lshl_add_u32 v18, v30, 4, v18
v_lshl_add_u32 v20, v28, 3, v29
v_lshlrev_b32 v20, 6, v20
v_lshl_add_u32 v20, v30, 3, v20
v_add_u32 v20, s68, v20
s_movk_i32 s60, 144
v_mul_u32_u24 v24, s60, v31
v_lshl_add_u32 v24, v28, 4, v24
v_add_u32 v24, s68, v24
v_mul_u32_u24 v25, s60, v1
v_add3_u32 v25, v25, v27, s68
s_mov_b32 m0, s68
s_waitcnt vmcnt(0)
s_mov_b64 exec, 1
ds_add_rtn_u32 v{vT}, v{vY}, v{vOne} offset:{Y_CY}
s_mov_b64 exec, -1
s_waitcnt lgkmcnt(0)
v_readfirstlane_b32 s60, v{vT}
s_nop 3
s_cmp_eq_u32 s60, 3
s_cbranch_scc0 L_yfl
""")
    flag_store(a, 48, 32, vEp, 255, "-1")
    a("L_yfl:")
    a.stamp(6)
    a("s_setprio 0")
    unpack(a, QQ, 96, 16, 70)
    a("s_mov_b32 s29, 0\nL_yloop:\ns_cmp_eq_u32 s64, 0x5555\ns_cbranch_scc1 L_ynop")
    a(Pissue() + "\ns_waitcnt lgkmcnt(0)"); Pcheck(a)
    a(f"L_ynop:\ns_load_dwordx16 s[4:19], s[{sWS}:{sWS+1}], s67 glc\ns_add_u32 s29, s29, 1\ns_cmp_gt_u32 s29, 0x8000\ns_cbranch_scc1 L_ydone\ns_waitcnt lgkmcnt(0)")
    for i in range(8): a(f"s_cmp_eq_u64 s[{4+2*i}:{5+2*i}], s[{sEP}:{sEP+1}]\ns_cbranch_scc0 L_yloop")
    a("L_ydone:\ns_waitcnt lgkmcnt(0)")
    a.stamp(7)
    for i in range(4):
        a(f"buffer_load_dwordx4 v18, s[48:51], s65 offen offset:{1024*i} sc1 lds")
        if i < 3: a(f"s_add_u32 s65, s65, {0x10000-1024}")
    YY, T = 48, 64
    a("s_waitcnt vmcnt(0)")
    a.stamp(8)
    for sh in range(2):
        for oh in range(2):
            for i2 in range(2):
                a(f"ds_read_b64_tr_b16 {vr(YY+8*sh+4*oh+2*i2,2)}, v20 offset:{32*sh+2048*oh+256*i2}")
    a("s_waitcnt lgkmcnt(0)")
    for sh in range(2):
        for oh in range(2): a(f"ds_write_b128 v24, {vr(YY+8*sh+4*oh,4)} offset:{16*144*sh+64*oh}")
    for j in range(4): a(f"ds_read_b128 {vr(YY+32+4*j,4)}, v25 offset:{8*144*j}")
    for j in range(4):
        a(f"s_waitcnt lgkmcnt({3-j})")
        unpack(a, YY + 32 + 4 * j, T, 4, 70)
        for e in range(8): a(f"v_mul_f32 v{T+e}, v{T+e}, v{96+8*j+e}")
        pack(a, T, QQ + 4 * j, 8)
        a(f"buffer_store_dwordx4 {vr(QQ+4*j,4)}, v17, s[44:47], s63 offen {FL_OUT}")
        if j < 3: a("s_add_u32 s63, s63, 0x8000")
    a.trace_out()
    a.end()

def desc(name, vgpr, sgpr=102):
    return f""".amdhsa_kernel {name}
  .amdhsa_next_free_vgpr {vgpr}
  .amdhsa_next_free_sgpr {sgpr}
  .amdhsa_accum_offset {(vgpr + 3) // 4 * 4}
  .amdhsa_group_segment_fixed_size 0
  .amdhsa_kernarg_size 96
  .amdhsa_user_sgpr_count 2
  .amdhsa_user_sgpr_kernarg_segment_ptr 1
  .amdhsa_system_sgpr_workgroup_id_x 1
.end_amdhsa_kernel
"""
def main():
    out = open("cdna_kernels/" + NAME + ".s.ref").read().split("; Override launch")[0]
    KS = [KN]
    if AMP:
        out += f"; @launch kernel={KN} grid=(256,1,1) block=(512,1,1) lds={LDS}\n"
        out += "; @launch kernel=kd_kernel grid=(1,1,1) block=(64,1,1) lds=0\n"; KS.append("kd_kernel")
    else:
        out += f"; @launch grid=(256,1,1) block=(512,1,1) lds={LDS}\n"
    out += '.amdgcn_target "amdgcn-amd-amdhsa--gfx950"\n.text\n'
    for k in KS: out += f".globl {k}\n.type {k},@function\n"
    if opt("pal", ""): out += f".p2align {opt('pal', '')}\n"
    out += ".p2align 8\n"
    a = A()
    kernel(a)
    if AMP: kd.kernel_d(a, AMP, WS_ST)
    out += a.text()
    out += '.section .rodata,"a"\n'
    for k in KS: out += ".p2align 6\n" + desc(k, 256)
    path = sys.argv[1] if len(sys.argv) > 1 and not sys.argv[1].startswith("--") else "cdna_kernels/" + NAME + ".s"
    open(path, "w").write(out)
main()
```

```python
import sys, os
sys.path.insert(0, os.path.dirname(os.path.abspath(__file__)))
import kd
NAME = "concat_heads__linear_attn_block__ssm_conv_h3__prompt"
KN = NAME + "_kernel"
MB = 1 << 20
WS_UT, WS_KVP, WS_ZP, WS_FL, WS_O, WS_YT, WS_ST = 0, 8 * MB, 9 * MB, 9 * MB + 0x40000, 4 * MB, 0, 24 * MB
LOG2E, EPS = 0x3FB8AA3B, 0x358637BD
STAMP = "--stamp" in sys.argv
TRACE = "--trace" in sys.argv
def opt(name, default):
    for x in sys.argv:
        if x.startswith("--" + name + "="): return x.split("=", 1)[1]
    return default
FL_U, FL_P, FL_O, FL_Y = [WS_FL + k * 131072 for k in range(4)]
def FA(r, base, grp=2048):
    return f"s_lshr_b32 vcc_lo, s{r}, 6\ns_mul_i32 vcc_lo, vcc_lo, {grp-64}\ns_add_u32 s{r}, s{r}, vcc_lo\ns_add_u32 s{r}, s{r}, {base:#x}"
def FC(r, base, own, grp=2048):
    return FA(r, base, grp) + f"\ns_lshl_b32 vcc_lo, s{own}, 7\ns_add_u32 s{r}, s{r}, vcc_lo"
if opt("ysep", "0") == "1": WS_YT = 10 * MB
FL_KV = opt("kv", "")
FL_WO = opt("wo", "")
FL_XW = opt("xw", "")
FL_OUT = opt("outst", "sc1")
AMP = opt("amp", "")
KROT = opt("krot", "q8c")
ROT2 = opt("rot2", "0") == "1"
ROTW = opt("rotw", "1") == "1"
G2 = opt("g2", "")
OSC = "" if "nosc1" in G2 else "sc1"
DEPTH = int(opt("depth", "6"))
PSLEEP = opt("psleep", "0")

SST = opt("sst", "0") == "1"
class A:
    def __init__(self): self.l = []
    def __call__(self, s):
        for x in s.strip("\n").split("\n"):
            x = x.strip()
            self.l.append(x if x.endswith(":") else "    " + x)
    jn = 0
    def stamp(self, i):
        J = opt("jitter", "")
        if J and i > 0 and getattr(self, "jon", False):
            n = self.jn; self.jn += 1
            self(f"""
s_cselect_b32 s101, 1, 0
s_memrealtime s[98:99]
s_waitcnt lgkmcnt(0)
s_lshr_b32 s100, s98, 2
s_xor_b32 s100, s100, s2
s_mul_i32 s100, s100, {2654435761 + 2*n + int(J)}
s_add_u32 s100, s100, s3
s_mul_i32 s100, s100, 40503
s_lshr_b32 s100, s100, 29
s_cmp_lt_u32 s100, 6
s_cbranch_scc1 L_j{n}
s_sleep 60
s_cmp_lt_u32 s100, 7
s_cbranch_scc1 L_j{n}
s_sleep 127
L_j{n}:
s_cmp_lg_u32 s101, 0
""")
        if STAMP and not (SST and getattr(self, "jon", False) and 2 <= i <= 6): self(f"s_memrealtime s[{76+2*i}:{77+2*i}]")
    def sst(self, i):
        if STAMP and SST: self(f"s_memrealtime s[{76+2*i}:{77+2*i}]")
    def end(self):
        if STAMP:
            self(f"""
s_memrealtime s[96:97]
s_mov_b64 exec, 1
v_lshrrev_b32 v1, 6, v0
s_waitcnt vmcnt(0) lgkmcnt(0)
s_memrealtime s[98:99]
s_mov_b32 s40, s26
s_mov_b32 s41, s27
s_mov_b32 s42, 0x2000000
s_mov_b32 s43, 0x20000
s_lshl_b32 s100, s2, 3
v_add_u32 v1, s100, v1
v_lshlrev_b32 v1, 5, v1
v_add_u32 v1, {WS_ST}, v1
v_add_u32 v2, 65536, v1
s_waitcnt lgkmcnt(0)
""")
            for i in range(12): self(f"v_mov_b32 v{4+i}, s{76+2*i}")
            self("""
buffer_store_dwordx4 v[4:7], v1, s[40:43], 0 offen
buffer_store_dwordx4 v[8:11], v1, s[40:43], 0 offen offset:16
buffer_store_dwordx4 v[12:15], v2, s[40:43], 0 offen
buffer_store_dwordx4 v[12:15], v2, s[40:43], 0 offen offset:16
""")
        self("s_endpgm")
    tn = 0
    def trace(self):
        if TRACE:
            self(f"s_memrealtime s[96:97]\ns_waitcnt lgkmcnt(0)\nv_writelane_b32 v252, s96, {self.tn}"); self.tn += 1
    def bar(self):
        self.trace(); self("s_barrier"); self.trace()
    def trace_out(self):
        if TRACE: self(f"""
s_lshl_b32 s96, s2, 10
s_add_u32 s96, s96, {WS_ST + 0x100000:#x}
v_lshlrev_b32 v253, 2, v0
v_subrev_u32 v253, 1024, v253
buffer_store_dword v252, v253, s[48:51], s96 offen
""")
    def text(self): return "\n".join(self.l) + "\n"

class VM:
    def __init__(self, a): self.a = a; self.q = []
    def issue(self, tag, n=1): self.q += [tag] * n; assert len(self.q) <= 63, len(self.q)
    def wait(self, tag):
        if tag not in self.q: return
        idx = max(i for i, t in enumerate(self.q) if t == tag)
        n = len(self.q) - 1 - idx
        self.q = self.q[idx + 1:]
        self.a(f"s_waitcnt vmcnt({n})")
    def drained(self): self.q = []

def vr(b, n=1): return f"v{b}" if n == 1 else f"v[{b}:{b+n-1}]"
def sr(b, n=1): return f"s{b}" if n == 1 else f"s[{b}:{b+n-1}]"
def srd(a, d, lo, nbytes):
    a(f"s_mov_b32 s{d}, s{lo}\ns_mov_b32 s{d+1}, s{lo+1}\ns_mov_b32 s{d+2}, {nbytes:#x}\ns_mov_b32 s{d+3}, 0x20000")
def srd_off(a, d, lo, off, nbytes):
    a(f"s_add_u32 s{d}, s{lo}, {off}\ns_addc_u32 s{d+1}, s{lo+1}, 0\ns_mov_b32 s{d+2}, {nbytes:#x}\ns_mov_b32 s{d+3}, 0x20000")
def mfma16(d, x, y, c=None):
    c = vr(d, 4) if c is None else c
    return f"v_mfma_f32_16x16x32_bf16 {vr(d,4)}, {vr(x,4)}, {vr(y,4)}, {c}"
def interleave(a, mf, others, per_gap=1):
    o = list(others)
    for m in mf:
        a(m)
        for _ in range(per_gap):
            if o: a(o.pop(0))
    for x in o: a(x)
def phi_pack(a, src, dst, n, t, sL, sE):
    for i in range(0, n, 8):
        for p in range(4): a(f"v_pk_mul_f32 {vr(t+2*p,2)}, {vr(src+i+2*p,2)}, {sr(sL,2)}")
        for p in range(8): a(f"v_exp_f32_e64 v{t+p}, v{t+p} clamp")
        for p in range(8): a(f"v_max_f32 v{src+i+p}, s{sE}, v{src+i+p}")
        for p in range(4): a(f"v_pk_add_f32 {vr(t+2*p,2)}, {vr(t+2*p,2)}, {vr(src+i+2*p,2)}")
        for p in range(4): a(f"v_cvt_pk_bf16_f32 v{dst+i//2+p}, v{t+2*p}, v{t+2*p+1}")
def phi_pack_np(a, src, dst, n, t, sL, sE):
    for i in range(0, n, 8):
        for p in range(8): a(f"v_mul_f32 v{t+p}, s{sL}, v{src+i+p}")
        for p in range(8): a(f"v_exp_f32_e64 v{t+p}, v{t+p} clamp")
        for p in range(8): a(f"v_max_f32 v{src+i+p}, s{sE}, v{src+i+p}")
        for p in range(8): a(f"v_add_f32 v{t+p}, v{t+p}, v{src+i+p}")
        for p in range(4): a(f"v_cvt_pk_bf16_f32 v{dst+i//2+p}, v{t+2*p}, v{t+2*p+1}")
def phi_keep(a, src, dst, n, t, sL, sE):
    for i in range(0, n, 8):
        for p in range(8): a(f"v_mul_f32 v{t+p}, s{sL}, v{src+i+p}")
        for p in range(8): a(f"v_exp_f32_e64 v{t+p}, v{t+p} clamp")
        for p in range(8): a(f"v_max_f32 v{src+i+p}, s{sE}, v{src+i+p}")
        for p in range(8): a(f"v_add_f32 v{src+i+p}, v{t+p}, v{src+i+p}")
        for p in range(4): a(f"v_cvt_pk_bf16_f32 v{dst+i//2+p}, v{src+i+2*p}, v{src+i+2*p+1}")
def pack(a, src, dst, n):
    for i in range(n // 2): a(f"v_cvt_pk_bf16_f32 v{dst+i}, v{src+2*i}, v{src+2*i+1}")
def unpack(a, src, dst, ndw, smask):
    for i in range(ndw):
        a(f"v_lshlrev_b32 v{dst+2*i}, 16, v{src+i}\nv_and_b32 v{dst+2*i+1}, s{smask}, v{src+i}")

sX, sW, sWO, sQ, sK, sV, sSH, sH, sD, sOUT, sDBG, sWS = 4, 6, 8, 10, 12, 14, 16, 18, 20, 22, 24, 26
sx, sj, srb, shk, shq, sk0, sg_rb, sg_cb, sdb, ssb, sch, sEP = 28, 29, 30, 31, 32, 33, 34, 35, 36, 37, 38, 72
TOUCH = ""
_o = int(opt("wsoff", "0")) * MB
WSOFF = f"s_add_u32 s26, s26, {_o:#x}\ns_addc_u32 s27, s27, 0" if _o else "s_nop 0"
if opt("touch", "0") == "1":
    t = ["s_mov_b32 s52, 0x200000", "s_mov_b32 s53, 0x400000", "s_mov_b32 s54, 0x600000", "s_mov_b32 s55, 0x800000"]
    for base, n in ((sWS, 5), (sOUT, 4), (sQ, 2), (sH, 2), (sWO, 1)):
        for i in range(n): t.append(f"s_load_dword s46, s[{base}:{base+1}], {['0','s52','s53','s54','s55'][i]}")
    TOUCH = "\n".join(t)
STG = 40960
CPY = 4160
UCH = 2 * CPY
U0 = 98304
XCH = U0 + 4 * UCH
HB = XCH + 8192
HP = 2304
HCH = 2 * HP
KVL = HB + 4 * HCH
ZX = KVL + 4096
SYNC = ZX + 512
Y_XC, Y_CW, Y_C2, Y_CU, Y_CY, Y_CD, Y_PQ, Y_EP, Y_W1, Y_CO, Y_UOK, Y_YOK, Y_UB = 0, 96, 20, 28, 32, 36, 40, 56, 60, 64, 72, 76, 80
Y_WM = Y_W1
Y_FR, Y_KD, Y_K2 = 112, 128, 40
LDS = 163840


def spoll(a, lab, soff, sc):
    if opt("poll", "s") == "v":
        a(f"v_and_b32 v254, 15, v4\nv_lshlrev_b32 v254, 2, v254")
        vpoll(a, lab, 254, soff, 255, sc); return
    a(f"""
s_mov_b32 s{sc}, 0
s_branch {lab}_go
{lab}:
s_sleep {PSLEEP}
{lab}_go:
s_load_dwordx16 s[4:19], s[{sWS}:{sWS+1}], s{soff} glc
s_add_u32 s{sc}, s{sc}, 1
s_cmp_gt_u32 s{sc}, 0x8000
s_cbranch_scc1 {lab}_done
s_waitcnt lgkmcnt(0)
""")
    for i in range(8): a(f"s_cmp_eq_u64 s[{4+2*i}:{5+2*i}], s[{sEP}:{sEP+1}]\ns_cbranch_scc0 {lab}")
    a(f"{lab}_done:\ns_waitcnt lgkmcnt(0)")
def vpoll(a, lab, v16x4, soff, vt, sc):
    a(f"""
s_mov_b32 s{sc}, 0
{lab}:
buffer_load_dword v{vt}, v{v16x4}, s[48:51], s{soff} offen sc1
s_waitcnt vmcnt(0)
v_cmp_eq_u32 vcc, s{sEP}, v{vt}
s_add_u32 s{sc}, s{sc}, 1
s_nop 2
s_cmp_eq_u64 vcc, -1
s_cbranch_scc1 {lab}_done
s_sleep {PSLEEP}
s_cmp_lt_u32 s{sc}, 0x4000
s_cbranch_scc1 {lab}
{lab}_done:
""")
def lead_poll(a, lab, soff, sc, st, vY, off, vOne, vT):
    a(f"s_mov_b32 s{sc}, 0\ns_cmp_eq_u32 s3, 0\ns_cbranch_scc0 {lab}_f")
    spoll(a, lab, soff, sc)
    a(f"ds_write_b32 v{vY}, v{vOne} offset:{off}\ns_branch {lab}_f_done")
    a(f"{lab}_f:"); a.l.pop()
    lspin(a, lab + "_f", vY, off, "1", vT, sc, st, init=False, slp=3)
def lspin(a, lab, vaddr, off, target, vt, sc, st, init=True, slp=1):
    if init: a(f"s_mov_b32 s{sc}, 0")
    a(f"""
{lab}:
ds_read_b32 v{vt}, v{vaddr} offset:{off}
s_add_u32 s{sc}, s{sc}, 1
s_waitcnt lgkmcnt(0)
v_readfirstlane_b32 s{st}, v{vt}
s_cmp_gt_u32 s{sc}, 0x40000
s_cbranch_scc1 {lab}_done
s_cmp_ge_u32 s{st}, {target}
s_cbranch_scc1 {lab}_done
s_sleep {slp}
s_branch {lab}
{lab}_done:
""")
def ladd(a, vaddr, off, vone):
    a(f"s_mov_b64 exec, 1\nds_add_u32 v{vaddr}, v{vone} offset:{off}\ns_mov_b64 exec, -1")
def flag_store(a, srdn, soff, vep, vl128, mask="0xffff"):
    a(f"s_mov_b64 exec, {mask}\nbuffer_store_dword v{vep}, v{vl128}, s[{srdn}:{srdn+3}], s{soff} offen sc1\ns_mov_b64 exec, -1")
def wg_flag(a, lab, vaddr, off, vone, vt, st, srdn, soff, vep, vzero):
    a(f"""
s_mov_b64 exec, 1
ds_add_rtn_u32 v{vt}, v{vaddr}, v{vone} offset:{off}
s_waitcnt lgkmcnt(0)
v_readfirstlane_b32 s{st}, v{vt}
s_nop 3
s_cmp_eq_u32 s{st}, 3
s_cbranch_scc0 {lab}
buffer_store_dword v{vep}, v{vzero}, s[{srdn}:{srdn+3}], s{soff} offen sc1
{lab}:
s_mov_b64 exec, -1
""")

def ids2(a):
    if opt("rm", "0") in "12":
        CBMAP = f"s_lshr_b32 vcc_lo, s{sj}, 2\ns_add_u32 vcc_lo, vcc_lo, 3\ns_and_b32 vcc_lo, vcc_lo, 3\ns_and_b32 s{sg_cb}, s{sx}, 4\ns_add_u32 s{sg_cb}, s{sg_cb}, vcc_lo\ns_lshr_b32 vcc_lo, s{sj}, 4\ns_lshl3_add_u32 s{sg_cb}, vcc_lo, s{sg_cb}"
    else: CBMAP = f"s_lshr_b32 s{sg_cb}, s{sx}, 2\ns_lshl_b32 s{sg_cb}, s{sg_cb}, 3\ns_lshr_b32 vcc_lo, s{sj}, 2\ns_add_u32 s{sg_cb}, s{sg_cb}, vcc_lo"
    a(f"""
s_and_b32 s{sg_rb}, s{sx}, 3
s_lshl_b32 s{sg_rb}, s{sg_rb}, 2
s_and_b32 vcc_lo, s{sj}, 3
s_add_u32 s{sg_rb}, s{sg_rb}, vcc_lo
{CBMAP}
s_and_b32 s{sdb}, s{sj}, 15
s_lshr_b32 s{ssb}, s{sj}, 4
s_lshl_b32 vcc_lo, s{sx}, 1
s_add_u32 s{ssb}, s{ssb}, vcc_lo
s_lshl_b32 s{sch}, s{sx}, 5
s_add_u32 s{sch}, s{sch}, s{sj}
s_lshl_b32 s{sch}, s{sch}, 2
""")

def kernel(a):
    a(f"""
{KN}:
s_cmp_ge_u32 s2, 256
s_cbranch_scc1 L_exit
s_load_dwordx16 s[4:19], s[0:1], 0
s_load_dwordx8 s[20:27], s[0:1], 64
s_getpc_b64 s[48:49]
L_pc:
s_and_b32 s45, s2, 24
s_lshl_b32 s45, s45, 4
v_lshl_add_u32 v2, v0, 9, s45
v_cmp_gt_u32 vcc, L_code_end-L_pc-4, v2
s_and_saveexec_b64 s[50:51], vcc
s_cbranch_execz L_pf
global_load_dword v252, v2, s[48:49]
L_pf:
s_mov_b64 exec, s[50:51]
""")
    for i in range(10): a.stamp(i)
    a(f"""
v_lshrrev_b32 v1, 6, v0
v_and_b32 v4, 63, v0
v_readfirstlane_b32 s3, v1
v_lshlrev_b32 v5, 4, v4
s_and_b32 s{sx}, s2, 7
s_lshr_b32 s{sj}, s2, 3
s_and_b32 s{srb}, s{sx}, 1
s_lshl_b32 s{srb}, s{srb}, 3
s_and_b32 s40, s{sj}, 7
s_add_u32 s{srb}, s{srb}, s40
s_lshr_b32 s40, s{sx}, 1
""")
    if opt("rm", "0") in "13":
        a(f"""
s_and_b32 s41, s{sx}, 4
s_and_b32 s42, s{sx}, 2
s_lshl2_add_u32 s41, s42, s41
s_lshr_b32 s42, s{sj}, 3
s_add_u32 s{shq}, s41, s42
s_add_u32 s42, s42, 3
s_and_b32 s42, s42, 3
s_add_u32 s{shk}, s41, s42
""")
    else: a(f"""
s_lshl_b32 s41, s40, 2
s_lshr_b32 s42, s{sj}, 3
s_add_u32 s{shk}, s41, s42
s_add_u32 s42, s42, 1
s_and_b32 s42, s42, 3
s_add_u32 s{shq}, s41, s42
""")
    if KROT.startswith("f"):
        a_, b_, c_, d_ = [int(t) for t in KROT[1:].split("_")]
        a(f"s_mul_i32 s{sk0}, s{srb}, {a_}\ns_mul_i32 s41, s{shk}, {b_}\ns_add_u32 s{sk0}, s{sk0}, s41\ns_and_b32 s41, s{sx}, 1\ns_mul_i32 s41, s41, {c_}\ns_add_u32 s{sk0}, s{sk0}, s41\ns_mul_i32 s41, s40, {d_}\ns_add_u32 s{sk0}, s{sk0}, s41\ns_and_b32 s{sk0}, s{sk0}, 15")
    elif KROT == "q8":
        a(f"""
s_lshl_b32 s{sk0}, s40, 1
s_and_b32 s41, s{shk}, 1
s_add_u32 s{sk0}, s{sk0}, s41
s_lshl_b32 s41, s{sx}, 2
s_add_u32 s{sk0}, s{sk0}, s41
s_and_b32 s41, s{srb}, 3
s_add_u32 s{sk0}, s{sk0}, s41
s_and_b32 s{sk0}, s{sk0}, 7
s_lshl_b32 s{sk0}, s{sk0}, 1
""")
    elif KROT in ("q8e", "q8f", "q8g"):
        a(f"s_and_b32 s41, s{srb}, 1\ns_lshl_b32 s{sk0}, s41, 1\ns_and_b32 s41, s{srb}, 2\ns_lshl_b32 s41, s41, 2\ns_add_u32 s{sk0}, s{sk0}, s41\ns_and_b32 s41, s{sx}, 1\ns_lshl_b32 s41, s41, 2\ns_add_u32 s{sk0}, s{sk0}, s41")
        if KROT == "q8e": a(f"s_and_b32 s41, s{shk}, 1\ns_lshl_b32 s41, s41, 1\ns_sub_u32 s{sk0}, s{sk0}, s41")
        elif KROT == "q8f": a(f"s_and_b32 s41, s{shk}, 2\ns_sub_u32 s{sk0}, s{sk0}, s41")
        else: a(f"s_add_u32 s41, s{shk}, 1\ns_and_b32 s41, s41, 3\ns_add_u32 s{sk0}, s{sk0}, s41")
        a(f"s_lshl_b32 s41, s40, 2\ns_add_u32 s{sk0}, s{sk0}, s41\ns_and_b32 s{sk0}, s{sk0}, 15")
    elif KROT in ("q8b", "q8c", "q8d"):
        if KROT == "q8c": a(f"s_and_b32 s41, s{srb}, 1\ns_lshl_b32 s{sk0}, s41, 1\ns_and_b32 s41, s{srb}, 2\ns_lshl_b32 s41, s41, 2\ns_add_u32 s{sk0}, s{sk0}, s41\ns_and_b32 s41, s{sx}, 1\ns_lshl_b32 s41, s41, 2\ns_add_u32 s{sk0}, s{sk0}, s41")
        else: a(f"s_and_b32 s41, s{srb}, 3\ns_lshl_b32 s{sk0}, s41, 2\ns_and_b32 s41, s{sx}, 1\ns_lshl_b32 s41, s41, 1\ns_add_u32 s{sk0}, s{sk0}, s41")
        if KROT == "q8b": a(f"s_and_b32 s41, s{shk}, 1\ns_lshl_b32 s41, s41, 3\ns_add_u32 s{sk0}, s{sk0}, s41\ns_lshl_b32 s41, s40, 1\ns_add_u32 s{sk0}, s{sk0}, s41")
        else: a(f"s_and_b32 s41, s{shk}, 1\ns_lshl_b32 s41, s41, 1\ns_add_u32 s{sk0}, s{sk0}, s41\ns_lshl_b32 s41, s40, 2\ns_add_u32 s{sk0}, s{sk0}, s41")
        a(f"s_and_b32 s{sk0}, s{sk0}, 15")
    elif KROT == "q4c":
        a(f"""
s_and_b32 s41, s{sx}, 1
s_add_u32 s{sk0}, s40, s41
s_lshl_b32 s41, s{srb}, 1
s_add_u32 s{sk0}, s{sk0}, s41
s_and_b32 s{sk0}, s{sk0}, 3
s_lshl_b32 s{sk0}, s{sk0}, 2
""")
        SL = opt("sl", "0")
        if SL != "0":
            a(f"s_and_b32 s41, s{shk}, {7 if SL == '1' else 6}\ns_cmp_eq_u32 s41, {3 if SL == '1' else 2}\ns_cselect_b32 s41, 6, 0\ns_and_b32 s41, s41, s{srb}\ns_sub_u32 s{sk0}, s{sk0}, s41\ns_and_b32 s{sk0}, s{sk0}, 15")
    elif KROT == "q4":
        a(f"""
s_lshl_b32 s41, s{sx}, 1
s_add_u32 s{sk0}, s40, s41
s_and_b32 s41, s{srb}, 1
s_add_u32 s{sk0}, s{sk0}, s41
s_and_b32 s{sk0}, s{sk0}, 3
s_lshl_b32 s{sk0}, s{sk0}, 2
""")
    elif KROT == "q2":
        a(f"s_xor_b32 s41, s{sx}, s40\ns_and_b32 s41, s41, 1\ns_lshl_b32 s{sk0}, s41, 3")
    elif KROT == "q3":
        a(f"""
s_and_b32 s41, s{sx}, 1
s_lshl_b32 s41, s41, 1
s_add_u32 s{sk0}, s40, s41
s_and_b32 s41, s{srb}, 1
s_add_u32 s{sk0}, s{sk0}, s41
s_mul_i32 s41, s{sk0}, 11
s_lshr_b32 s41, s41, 5
s_mul_i32 s41, s41, 3
s_sub_u32 s{sk0}, s{sk0}, s41
s_mul_i32 s{sk0}, s{sk0}, 11
s_lshr_b32 s{sk0}, s{sk0}, 1
""")
    else: a(f"s_mov_b32 s{sk0}, 0")
    a.jon = True
    a("s_cmp_lt_u32 s3, 4\ns_cbranch_scc1 L_comp")
    aux(a)
    compute(a)
    a("L_exit:\ns_endpgm\nL_code_end:")

def inter2(a, mf, others, per=2):
    o = list(others)
    for m in mf:
        a(m)
        for _ in range(per):
            if o: a(o.pop(0))
    for x in o: a(x)
def inter3(a, mf, l1, n1, l2, n2):
    l1 = list(l1); l2 = list(l2)
    for m in mf:
        a(m)
        for _ in range(n2):
            if l2: a(l2.pop(0))
        for _ in range(n1):
            if l1: a(l1.pop(0))
    assert not l1 and not l2
class L:
    def __init__(s): s.l = []
    def __call__(s, t): s.l += [x.strip() for x in t.strip("\n").split("\n")]
def maskbuild(a, sm, st, lo=4, step=2):
    a(f"s_mov_b32 s{sm}, 0")
    for i in range(8): a(f"s_cmp_eq_u64 s[{lo+2*i}:{lo+1+2*i}], s[{sEP}:{sEP+1}]\ns_cselect_b32 s{st}, {1 << (step*i):#x}, 0\ns_or_b32 s{sm}, s{sm}, s{st}")

def compute(a):
    vAb, vA, vBb, vB = 8, 10, 12, 14
    vY, vPW = 20, 21
    X, Y, ACC = 24, 64, 104
    vOne, vZero, vEp, vT, vL128 = 232, 233, 234, 235, 254
    QT = lambda dt, mt: ACC + 4 * (mt * 2 + dt)
    KK = lambda mt, nt: ACC + 32 + 4 * ((nt * 2 + (mt >> 1)) * 2 + (mt & 1))
    VV = lambda mt, nt: ACC + 64 + 4 * ((nt * 2 + (mt >> 1)) * 2 + (mt & 1))
    GATE = opt("gate", "kv")
    a("L_comp:")
    a.sst(2)
    KR, WR, KF, WF, TM, VF, UT = 200, 242, 24, 68, 84, 56, 200
    VR = [222, 224, 226, 228, 230, 236, 238, 240]
    vP0, vP1, vP2, vTW = 16, 17, 18, 19
    ids2(a)
    a(f"""
s_lshl_b32 s45, s{ssb}, 18
s_lshl_b32 s46, s3, 16
s_add_u32 s45, s45, s46
s_lshl_b32 s46, s{sdb}, 7
s_add_u32 s45, s45, s46
v_lshrrev_b32 v2, 4, v4
v_and_b32 v1, 15, v4
v_lshlrev_b32 v3, 3, v1
v_lshl_add_u32 v{vP0}, v2, 14, v3
v_add_u32 v{vP0}, s45, v{vP0}
v_subrev_u32 v{vP1}, 6144, v{vP0}
s_movk_i32 s57, 4096
s_movk_i32 s58, 8192
s_movk_i32 s59, 12288
s_mov_b32 s62, {4*MB:#x}
s_mov_b32 s63, 0x20000
s_mov_b32 s66, {4*MB:#x}
s_mov_b32 s67, 0x20000
s_mov_b32 s70, 8192
s_mov_b32 s71, 0x20000
v_lshlrev_b32 v{vP2}, 5, v1
s_lshl_b32 s46, s{sdb}, 9
v_add_u32 v{vP2}, s46, v{vP2}
v_sub_u32 v3, 3, v2
s_lshl_b32 s45, s3, 2
s_sub_u32 s45, 12, s45
v_add_u32 v3, s45, v3
v_and_b32 v6, 7, v4
v_xor_b32 v3, v3, v6
v_lshlrev_b32 v3, 4, v3
v_lshl_add_u32 v3, v1, 10, v3
v_add_u32 v{vTW}, {HB}, v3
s_and_b32 s40, s3, 1
s_lshr_b32 s41, s3, 1
v_bfe_u32 v3, v4, 1, 3
v_xor_b32 v3, v2, v3
v_lshlrev_b32 v3, 4, v3
v_lshl_add_u32 v3, v1, 7, v3
s_lshl_b32 s45, s40, 13
v_add_u32 v{vAb}, s45, v3
v_xor_b32 v{vAb+1}, 64, v{vAb}
v_bfe_u32 v22, v4, 2, 2
v_lshl_add_u32 v3, v2, 3, v22
v_lshlrev_b32 v3, 7, v3
v_and_b32 v7, 3, v4
v_lshlrev_b32 v6, 3, v7
s_lshl_b32 s45, s41, 6
v_add_u32 v6, s45, v6
v_bfe_u32 v7, v4, 3, 1
v_lshlrev_b32 v7, 6, v7
v_xor_b32 v6, v6, v7
v_bfe_u32 v23, v4, 4, 1
v_lshlrev_b32 v7, 5, v23
v_xor_b32 v6, v6, v7
v_add_u32 v3, v3, v6
v_add_u32 v{vBb}, 0x4000, v3
v_xor_b32 v{vBb+1}, 32, v{vBb}
v_mov_b32 v{vB}, v{vBb}
v_mov_b32 v{vB+1}, v{vBb+1}
v_mov_b32 v{vA}, v{vAb}
v_mov_b32 v{vA+1}, v{vAb+1}
v_lshlrev_b32 v{vL128}, 7, v4
v_mov_b32 v{vY}, {SYNC}
v_mov_b32 v{vOne}, 1
v_mov_b32 v{vZero}, 0
v_lshlrev_b32 v6, 2, v4
v_add_u32 v6, {SYNC}, v6
ds_write_b32 v6, v{vZero}
s_lshl_b32 s45, s3, 2
v_add_u32 v{vPW}, s45, v{vY}
s_mov_b32 s53, 0
s_mov_b32 s56, 0xffff0000
s_waitcnt lgkmcnt(0)
{WSOFF}
s_mov_b64 s[60:61], s[{sK}:{sK+1}]
s_mov_b64 s[64:65], s[{sV}:{sV+1}]
s_mov_b64 s[68:69], s[{sSH}:{sSH+1}]
""")
    a.sst(3); a("s_barrier"); a.sst(4)
    so = ["0", "s57", "s58", "s59"]
    for r in range(3): a(f"buffer_load_dwordx2 {vr(KR+2*r,2)}, v{vP1}, s[60:63], {so[r//2]} offen offset:{2048*(r%2)} {FL_KV}")
    for r in range(8): a(f"buffer_load_dwordx2 {vr(KR+6+2*r,2)}, v{vP0}, s[60:63], {so[r//2]} offen offset:{2048*(r%2)} {FL_KV}")
    for i in range(2): a(f"buffer_load_dwordx4 {vr(WR+4*i,4)}, v{vP2}, s[68:71], 0 offen offset:{16*i}")
    for r in range(8): a(f"buffer_load_dwordx2 {vr(VR[r],2)}, v{vP0}, s[64:67], {so[r//2]} offen offset:{2048*(r%2)} {FL_KV}")
    a.sst(5)
    a("s_barrier")
    a.stamp(1)
    A0, A1, BB = 24, 200, 56
    NORD = [2, 3, 4, 5, 0, 1]
    def rdA(A): return [f"ds_read_b128 {vr(A+8*mt+4*k2,4)}, v{vA+k2} offset:{2048*mt}" for mt in range(4) for k2 in range(2)]
    def rdB(g):
        n = NORD[g]
        return [f"ds_read_b64_tr_b16 {vr(BB+8*g+4*k2+2*i2,2)}, v{vB+(n&1)} offset:{(n//2)*8192+k2*4096+i2*512}" for k2 in range(2) for i2 in range(2)]
    def grp(A, g, zero=False):
        r = []
        for mt in range(4):
            for k2 in range(2):
                c = "0" if zero and k2 == 0 else None
                x, y = A + 8 * mt + 4 * k2, BB + 8 * g + 4 * k2
                if g < 2: r.append(mfma16(KK(mt, g), x, y, c))
                elif g < 4: r.append(mfma16(VV(mt, g - 2), x, y, c))
                else: r.append(mfma16(QT(g - 4, mt), y, x, c))
        return r
    advs = [f"s_add_u32 s52, s52, {STG}", f"s_cmp_eq_u32 s52, {3*STG}", "s_cselect_b32 s52, 0, s52"]
    advv = [f"v_add_u32 v{vA}, s52, v{vAb}", f"v_add_u32 v{vA+1}, s52, v{vAb+1}", f"v_add_u32 v{vB}, s52, v{vBb}", f"v_add_u32 v{vB+1}, s52, v{vBb+1}"]
    for r in rdA(A0)[:2] + rdB(0) + rdA(A0)[2:] + rdB(1): a(r)
    a("s_mov_b32 s52, 0")
    w = L(); srd(w, 60, sWS, 32 * MB); srd(w, 68, sOUT, 8 * MB)
    vTR, vUS, TD = [1, 2, 3, 6], 16, 236
    UF = int(opt("uf", "2"))
    w(f"""
v_lshlrev_b32 v3, 12, v2
v_lshl_add_u32 v{vUS}, v1, 4, v3
s_lshl_b32 s45, s{sdb}, 18
s_lshl_b32 s46, s3, 16
s_add_u32 s45, s45, s46
s_lshl_b32 s46, s{ssb}, 8
s_sub_u32 s45, s45, s46
s_add_u32 s45, s45, {WS_UT + 3840}
v_add_u32 v{vUS}, s45, v{vUS}
s_lshl_b32 s45, s3, 12
s_add_u32 s45, s45, {HB}
v_add_u32 v1, s45, v5
s_lshl_b32 s45, s40, 6
v_xor_b32 v1, s45, v1
v_xor_b32 v2, 16, v1
v_xor_b32 v3, 32, v1
v_xor_b32 v6, 48, v1
s_movk_i32 s57, 0x4000
s_mov_b32 s58, 0x8000
s_mov_b32 s59, 0xc000
s_lshl_b32 s43, s{sdb}, 2
s_add_u32 s43, s43, s3
s_lshl_b32 s43, s43, 4
s_add_u32 s43, s43, s{ssb}
s_lshl_b32 s43, s43, 2
{FA(43, FL_U)}
s_movk_i32 s42, {1 + (1 << UF)}
""")
    a("s_waitcnt lgkmcnt(10)")
    m = grp(A0, 0, True)
    a(m[0]); a(m[1])
    for x in rdB(2): a(x)
    a("s_waitcnt lgkmcnt(8)")
    interleave(a, m[2:], rdB(3) + rdB(4)[:2])
    a("s_waitcnt lgkmcnt(10)")
    interleave(a, grp(A0, 1, True), rdB(4)[2:] + rdB(5))
    a("s_waitcnt lgkmcnt(0)")
    interleave(a, grp(A0, 2, True) + grp(A0, 3, True) + grp(A0, 4, True) + grp(A0, 5, True), advs + advv + w.l, 2)
    a("s_waitcnt vmcnt(10)")
    a.sst(6)
    unpack(a, KR, KF, 22, 56)
    a("s_waitcnt vmcnt(8)")
    for p in range(4):
        a(f"v_lshlrev_b32 v{WF+p}, 16, v{WR+2*p}\nv_and_b32 v{WF+4+p}, s56, v{WR+2*p}")
        a(f"v_lshlrev_b32 v{WF+8+p}, 16, v{WR+2*p+1}\nv_and_b32 v{WF+12+p}, s56, v{WR+2*p+1}")
    for i0 in range(0, 8, 2):
        ch = [(i, h) for i in (i0, i0 + 1) for h in range(2)]
        for c, (i, h) in enumerate(ch): a(f"v_pk_mul_f32 {vr(TM+2*c,2)}, {vr(KF+4*(i+3)+2*h,2)}, {vr(WF+2*h,2)}")
        for t in (2, 1):
            for c, (i, h) in enumerate(ch): a(f"v_pk_fma_f32 {vr(TM+2*c,2)}, {vr(KF+4*(i+t)+2*h,2)}, {vr(WF+4*(3-t)+2*h,2)}, {vr(TM+2*c,2)}")
        for c, (i, h) in enumerate(ch): a(f"v_pk_fma_f32 {vr(KF+4*i+2*h,2)}, {vr(KF+4*i+2*h,2)}, {vr(WF+12+2*h,2)}, {vr(TM+2*c,2)}")
    a("s_waitcnt vmcnt(0)")
    for r in range(8): unpack(a, VR[r], VF + 4 * r, 2, 56)
    for h in range(2):
        for i in range(8): a(f"v_pk_mul_f32 {vr(KF+4*i+2*h,2)}, {vr(KF+4*i+2*h,2)}, {vr(VF+4*i+2*h,2)}")
        for e in (2 * h, 2 * h + 1):
            for d in range(4): a(f"v_cvt_pk_bf16_f32 v{UT+4*e+d}, v{KF+4*(7-2*d)+e}, v{KF+4*(6-2*d)+e}")
            a(f"ds_write_b128 v{vTW}, {vr(UT+4*e,4)} offset:{256*e}")
    a("s_waitcnt lgkmcnt(0)\ns_barrier")
    for r in rdA(A0)[:2] + rdB(0) + rdA(A0)[2:]: a(r)
    a("s_waitcnt lgkmcnt(6)")
    for r in rdB(1) + rdB(2): a(r)
    a("s_waitcnt lgkmcnt(8)")
    for r in rdB(3) + rdB(4): a(r)
    a("s_waitcnt lgkmcnt(8)")
    for e in range(4): a(f"ds_read_b128 {vr(TD+4*e,4)}, v{vTR[e]} offset:{1024*e}")
    a("s_branch L_loop1\nL_side:\ns_cmp_eq_u32 s53, 0\ns_cbranch_scc0 L_side2")
    for e in range(4): a(f"buffer_store_dwordx4 {vr(TD+4*e,4)}, v{vUS}, s[60:63], {['0','s57','s58','s59'][e]} offen sc1")
    a(f"""
s_branch L_back
L_side2:
v_readfirstlane_b32 s{sEP}, v{vEp}
s_mov_b32 s45, 0
s_waitcnt vmcnt(0)
s_cmp_lg_u32 s{sEP}, 0
s_cbranch_scc1 L_cepok
L_cep:
ds_read_b32 v{vEp}, v{vY} offset:{Y_EP}
s_add_u32 s45, s45, 1
s_waitcnt lgkmcnt(0)
v_readfirstlane_b32 s{sEP}, v{vEp}
s_cmp_gt_u32 s45, 0x40000
s_cbranch_scc1 L_cepok
s_cmp_eq_u32 s{sEP}, 0
s_cbranch_scc1 L_cep
L_cepok:
s_mov_b32 s{sEP+1}, s{sEP}
""")
    flag_store(a, 60, 43, vEp, vL128)
    a(f"""
s_branch L_back
{opt("lal", "")}
L_loop1:
""")
    def stage(A, An, first):
        interleave(a, grp(A, 0), rdB(5) + ["\n".join(advs)] + ["\n".join(advv[:2]), "\n".join(advv[2:])])
        m = grp(A, 1)
        a("s_waitcnt lgkmcnt(0)"); a(m[0]); a("s_barrier")
        interleave(a, m[1:], rdB(0) + rdA(An)[:3])
        interleave(a, grp(A, 2), rdB(1) + rdA(An)[3:7])
        interleave(a, grp(A, 3), rdB(2) + rdA(An)[7:] + (["s_bitcmp1_b32 s42, s53", "s_cbranch_scc1 L_side\nL_back:"] if first else []))
        interleave(a, grp(A, 4), rdB(3) + ([f"ds_read_b32 v{vEp}, v{vY} offset:{Y_EP}"] if first else []))
        interleave(a, grp(A, 5), ["s_waitcnt lgkmcnt(4)\n" + rdB(4)[0]] + rdB(4)[1:] + ([] if first else ["s_add_u32 s53, s53, 1", "s_cmp_lt_u32 s53, 7"]))
    stage(A0, A1, True); stage(A1, A0, False)
    a("s_cbranch_scc1 L_loop1")
    PK, PV, ONES, T, KV, Z, R, PQ = ACC + 32, ACC + 64, 200, 204, 212, 56, 236, ACC
    pre = [f"s_mov_b32 s54, {LOG2E:#x}", f"s_mov_b32 s55, {LOG2E:#x}", f"s_mov_b32 s56, {EPS:#x}",
           f"s_lshl_b32 s57, s{shk}, 2", "s_add_u32 s57, s57, s3", "s_lshl_b32 s57, s57, 4", f"s_add_u32 s57, s57, s{srb}",
           "s_lshl_b32 s58, s57, 10", f"s_add_u32 s58, s58, {WS_KVP:#x}", "s_lshr_b32 s59, s57, 4", "s_lshl_b32 s59, s59, 11",
           f"s_lshl_b32 s45, s{srb}, 4", "s_add_u32 s59, s59, s45", f"s_add_u32 s59, s59, {WS_ZP:#x}", "s_lshr_b32 s57, s57, 4", "s_lshl_b32 s57, s57, 11", f"s_add_u32 s57, s57, {FL_P:#x}"]
    PROT = opt("prot", "1") == "1"
    pre += ["v_and_b32 v19, 7, v4", f"v_lshlrev_b32 v19, {1 if PROT else 4}, v19", f"v_sub_u32 v19, s{srb}, v19", "v_and_b32 v19, 15, v19", f"v_lshl_add_u32 v19, v19, 2, v{vL128}"]
    pre += ["s_lshl_b32 s45, s3, 11", f"s_add_u32 s45, s45, {XCH}", "v_add_u32 v6, s45, v5", "v_xor_b32 v7, 2048, v6", "s_lshl_b32 s45, s3, 7", f"s_add_u32 s45, s45, {ZX}",
            "v_and_b32 v3, 0x30, v4", "v_add_u32 v16, s45, v3", "v_xor_b32 v17, 128, v16", f"v_xor_b32 v18, 4, v{vPW}"]
    pre += [f"v_mov_b32 v{ONES+i}, 0x3f803f80" for i in range(4)]
    inter3(a, grp(A0, 0) + grp(A0, 1)[:2], pre, 4, rdB(5), 1)
    a(f"s_waitcnt lgkmcnt(0)\nds_write_b32 v{vPW}, v{vOne} offset:{Y_FR}")
    w = L(); phi_pack_np(w, PK, PK, 16, T, 54, 56)
    P1 = opt("p1", "0") == "1"
    if P1: phi_pack_np(w, PK + 16, PK + 16, 16, T, 54, 56)
    inter2(a, grp(A0, 1)[2:] + grp(A0, 2) + grp(A0, 3), w.l, int(opt("kfi", "3")))
    a.stamp(2)
    a(f"s_setprio {opt('cprio', '2')}")
    pk1 = phi_pack if GATE != "none" else phi_pack_np
    pack(a, PV, PV, 32)
    for dt in range(2):
        if dt == 1 and not P1: pk1(a, PK + 16, PK + 16, 16, T, 54, 56)
        a("s_nop 1")
        for p in range(2):
            c = "0" if p == 0 else None
            for et in range(2): a(mfma16(KV + 4 * (et * 2 + dt), PK + 16 * dt + 4 * p, PV + 8 * et + 4 * p, c))
            a(mfma16(Z + 4 * dt, PK + 16 * dt + 4 * p, ONES, c))
    a("s_cmp_eq_u32 s40, 0\ns_nop 5\ns_cbranch_scc1 L_x0")
    for i in range(8): a(f"v_swap_b32 v{KV+i}, v{KV+8+i}")
    a("L_x0:")
    a(f"ds_write_b128 v6, {vr(KV+8,4)}\nds_write_b128 v6, {vr(KV+12,4)} offset:1024")
    a(f"ds_write_b128 v16, {vr(Z,4)}\nds_write_b128 v16, {vr(Z+4,4)} offset:64")
    a(f"""
ds_write_b32 v{vPW}, v{vOne} offset:{Y_XC}
s_mov_b32 s45, 0
L_xspin:
ds_read_b32 v{vT}, v18 offset:{Y_XC}
ds_read_b128 {vr(R,4)}, v7
ds_read_b128 {vr(R+4,4)}, v7 offset:1024
ds_read_b128 {vr(R+8,4)}, v17
ds_read_b128 {vr(R+12,4)}, v17 offset:64
s_add_u32 s45, s45, 1
s_waitcnt lgkmcnt(4)
v_readfirstlane_b32 s46, v{vT}
s_cmp_gt_u32 s45, 0x40000
s_cbranch_scc1 L_xdone
s_cmp_eq_u32 s46, 0
s_cbranch_scc1 L_xspin
L_xdone:
s_waitcnt lgkmcnt(2)
""")
    def add8(d, r):
        if GATE != "none":
            for i in range(4): a(f"v_pk_add_f32 {vr(d+2*i,2)}, {vr(d+2*i,2)}, {vr(r+2*i,2)}")
        else:
            for i in range(8): a(f"v_add_f32 v{d+i}, v{d+i}, v{r+i}")
    add8(KV, R)
    pack(a, KV, KV + 8, 8)
    a(f"buffer_store_dwordx4 {vr(KV+8,4)}, v5, s[60:63], s58 offen sc1")
    a("s_waitcnt lgkmcnt(0)")
    add8(Z, R + 8)
    pack(a, Z, KV + 12, 8)
    a("s_mov_b32 exec_lo, 0x10001\ns_mov_b32 exec_hi, 0x10001")
    a(f"buffer_store_dwordx4 {vr(KV+12,4)}, v5, s[60:63], s59 offen sc1")
    a("s_mov_b64 exec, -1")
    if GATE == "kv": a(f"ds_write_b32 v{vPW}, v{vOne} offset:{Y_KD}")
    a.stamp(3)
    PP, AC, ZZ, SEL, D1, B2, DN, EQ, KO, KP = 24, 88, 96, 8, 212, 136, 152, 168, 172, 176
    PS = opt("ps", "0") == "1"
    if PS: PQ = 180
    su = L()
    su(f"""
s_lshl_b32 s47, s{shq}, 1
s_add_u32 s47, s47, s41
s_lshl_b32 s44, s{shq}, 2
s_add_u32 s44, s44, s3
s_lshl_b32 s58, s44, 14
s_add_u32 s58, s58, {WS_KVP:#x}
s_lshl_b32 s59, s44, 11
s_add_u32 s59, s59, {WS_ZP:#x}
s_lshl_b32 s44, s44, 6
{FC(44, FL_P, srb)}
s_lshl_b32 s45, s41, 2
v_add_u32 v14, s45, v{vY}
v_mov_b32 v6, 0x3f80
v_and_b32 v7, 1, v4
v_lshlrev_b32 v7, 4, v7
v_lshlrev_b32 v6, v7, v6
v_lshrrev_b32 v2, 4, v4
v_cmp_eq_u32 vcc, v2, v22
v_bfe_u32 v7, v4, 1, 1
v_mov_b32 v{SEL}, 0
v_cndmask_b32 v6, 0, v6, vcc
v_cmp_eq_u32 vcc, 0, v7
v_mov_b32 v{SEL+1}, 0
v_mov_b32 v{SEL+4}, 0
v_cndmask_b32 v{SEL+2}, 0, v6, vcc
v_cndmask_b32 v{SEL+3}, v6, v{vZero}, vcc
v_mov_b32 v{SEL+5}, 0
s_lshl_b32 s45, s3, 10
s_add_u32 s45, s45, {KVL}
v_add_u32 v6, s45, v5
s_xor_b32 s45, s3, 1
s_lshl_b32 s45, s45, 10
s_add_u32 s45, s45, {KVL}
v_add_u32 v7, s45, v5
s_lshl_b32 s48, s{srb}, 3
s_lshl_b32 s45, s40, 2
s_add_u32 s48, s48, s45
s_lshl_b32 s48, s48, 15
s_lshl_b32 s45, s47, 10
s_add_u32 s48, s48, s45
s_add_u32 s48, s48, {WS_O:#x}
s_lshl_b32 s49, s{srb}, 1
s_add_u32 s49, s49, s40
s_lshl_b32 s49, s49, 7
s_lshl_b32 s45, s47, 2
s_add_u32 s49, s49, s45
{FA(49, FL_O)}
s_mov_b32 s50, 0
s_mov_b32 s51, 0
s_mov_b32 s53, 0
s_mov_b32 s46, 0
s_and_b32 s43, s{srb}, {7 if PROT else 0}
""")
    g4, g5 = grp(A0, 4), grp(A0, 5)
    qm = [x for mt in range(4) for x in g4[2 * mt:2 * mt + 2] + g5[2 * mt:2 * mt + 2]]
    inter2(a, qm, su.l, 4)
    phiq = phi_keep if PS else phi_pack if GATE == "pq" else phi_pack_np
    NQ1 = int(opt("nq1", "2"))
    if NQ1: phiq(a, ACC, PQ, 8 * NQ1, T, 54, 56)
    a("s_waitcnt vmcnt(0)")
    flag_store(a, 60, 57, vEp, 19)
    a(f"s_load_dwordx16 s[4:19], s[{sWS}:{sWS+1}], s44 glc")
    a.stamp(4)
    for mt in range(NQ1, 4): phiq(a, ACC + 8 * mt, PQ + 4 * mt, 8, T, 54, 56)
    if GATE == "pq": a(f"ds_write_b32 v{vPW}, v{vOne} offset:{Y_KD}")
    for i in range(4): a(f"v_mov_b64 {vr(AC+2*i,2)}, 0\nv_mov_b64 {vr(B2+4*i+2,2)}, 0\nv_mov_b32 v{EQ+i}, s56")
    a("s_setprio 3")
    def accm(j):
        for i in range(2):
            a(mfma16(AC, SEL + 2, PP + 8 * j + 4 * i)); a(mfma16(AC + 4, SEL, PP + 8 * j + 4 * i))
    for k in range(8):
        a(f"s_cmp_eq_u32 s46, 0\ns_cbranch_scc1 L_poll{k}\nL_go{k}:\ns_ff1_i32_b32 s45, s46\ns_bitset0_b32 s46, s45\ns_add_u32 s45, s45, s43\ns_and_b32 s45, s45, 7\ns_lshl_b32 s45, s45, 11\ns_add_u32 s45, s45, s58")
        for i in range(2): a(f"buffer_load_dwordx4 {vr(PP+8*k+4*i,4)}, v5, s[60:63], s45 offen offset:{1024*i} sc1")
        a(f"s_bitset1_b32 s51, {k}")
    a("s_branch L_fin")
    for k in range(8):
        a(f"L_poll{k}:\ns_waitcnt lgkmcnt(0)")
        for i in range(7, -1, -1): a(f"s_cmp_eq_u64 s[{4+2*i}:{5+2*i}], s[{sEP}:{sEP+1}]\ns_addc_u32 s46, s46, s46")
        a(f"""
s_add_u32 s53, s53, 1
s_cmp_gt_u32 s53, 0x8000
s_cselect_b32 s46, 0xff, s46
s_andn2_b32 s46, s46, s50
s_or_b32 s50, s50, s46
s_cmp_eq_u32 s50, 0xff
s_cbranch_scc0 L_pm{k}
buffer_load_dwordx4 {vr(ZZ,4)}, v5, s[60:63], s59 offen sc1
s_mov_b32 s47, s51
s_mov_b32 s52, {k}
""")
        if STAMP: a.stamp(5)
        a(f"""
s_branch L_go{k}
L_pm{k}:
s_load_dwordx16 s[4:19], s[{sWS}:{sWS+1}], s44 glc
s_cmp_lg_u32 s46, 0
s_cbranch_scc1 L_go{k}
""")
        if k == 0: a("s_branch L_poll0")
        else: a(f"s_cmp_eq_u32 s51, 0\ns_cbranch_scc1 L_poll{k}\ns_mov_b32 s52, {k}\ns_branch L_acc")
    a("L_acc:\ns_waitcnt vmcnt(0)")
    for j in range(7):
        a(f"s_bitcmp1_b32 s51, {j}\ns_cbranch_scc0 L_ac{j}"); accm(j); a(f"L_ac{j}:")
    a("s_mov_b32 s51, 0")
    for k in range(1, 7): a(f"s_cmp_eq_u32 s52, {k}\ns_cbranch_scc1 L_poll{k}")
    a("s_branch L_poll7\nL_fin:")
    a("s_cmp_eq_u32 s47, 0\ns_cbranch_scc1 L_pz")
    for k in range(1, 7): a(f"s_cmp_eq_u32 s52, {k}\ns_cbranch_scc1 L_pv{k}")
    a("s_waitcnt vmcnt(3)\ns_branch L_pvd")
    for k in range(1, 7): a(f"L_pv{k}:\ns_waitcnt vmcnt({2*(8-k)+1})" + ("\ns_branch L_pvd" if k < 6 else ""))
    a("L_pvd:")
    for j in range(7):
        a(f"s_bitcmp1_b32 s47, {j}\ns_cbranch_scc0 L_ao{j}"); accm(j); a(f"L_ao{j}:")
    a("L_pz:")
    OST = opt("ost", "0") == "1"
    for k in range(7): a(f"s_cmp_eq_u32 s52, {k}\ns_cbranch_scc1 L_pw{k}")
    a("s_waitcnt vmcnt(2)\ns_branch L_pwd")
    for k in range(7): a(f"L_pw{k}:\ns_waitcnt vmcnt({2*(8-k)})" + ("\ns_branch L_pwd" if k < 6 else ""))
    a("L_pwd:")
    if OST: a.stamp(7)
    for i in range(4): a(mfma16(D1 + 4 * i, ZZ, PQ + 4 * i, "0"))
    a("s_nop 4")
    for i in range(4): a(f"v_cvt_pk_bf16_f32 v{B2+4*i}, v{D1+4*i}, v{D1+4*i+1}\nv_cvt_pk_bf16_f32 v{B2+4*i+1}, v{D1+4*i+2}, v{D1+4*i+3}")
    a("s_nop 0")
    for i in range(4): a(mfma16(DN + 4 * i, ONES, B2 + 4 * i, vr(EQ, 4)))
    if PS:
        a("s_nop 4")
        for i in range(4): a(f"v_rcp_f32 v{DN+4*i}, v{DN+4*i}")
        for i in range(4):
            for p in range(8): a(f"v_mul_f32 v{ACC+8*i+p}, v{ACC+8*i+p}, v{DN+4*i}")
            pack(a, ACC + 8 * i, PQ + 4 * i, 8)
    for k in range(7, 0, -1): a(f"s_cmp_eq_u32 s52, {k}\ns_cbranch_scc1 L_an{k}")
    for j in range(8):
        a(f"L_an{j}:\ns_waitcnt vmcnt({2*(7-j)})"); accm(j)
    if OST: a.stamp(8)
    if PS: a("s_nop 7")
    else:
        a("s_nop 3")
        for i in range(4): a(f"v_rcp_f32 v{DN+4*i}, v{DN+4*i}")
    pack(a, AC, KO, 8)
    NO, NP, OP = 24, 40, 56
    a(f"ds_write_b128 v6, {vr(KO,4)}\nds_write_b32 v{vPW}, v{vOne} offset:{Y_K2}\nds_read_b32 v{vT}, v18 offset:{Y_K2}\nds_read_b128 {vr(KP,4)}, v7")
    for i in range(4): a(mfma16(NO + 4 * i, KO, PQ + 4 * i, "0"))
    a("s_mov_b32 s45, 0\ns_nop 3\ns_cmp_eq_u32 s40, 0")
    OPK = opt("opk", "0") == "1"
    def mul4(r, d):
        if PS: return
        if OPK:
            for p in range(2): a(f"v_pk_mul_f32 {vr(r+2*p,2)}, {vr(r+2*p,2)}, {vr(d,2)} op_sel_hi:[1,0]")
        else:
            for p in range(4): a(f"v_mul_f32 v{r+p}, v{r+p}, v{d}")
    for i in range(4): mul4(NO + 4 * i, DN + 4 * i)
    a("s_cbranch_scc0 L_o1")
    for wr in range(2):
        if wr: a("L_o1:")
        for i in range(4): pack(a, NO + 4 * i, OP + 4 * i + 2 * wr, 4)
        a(f"""
s_branch L_ks{wr}g
L_ks{wr}:
ds_read_b32 v{vT}, v18 offset:{Y_K2}
ds_read_b128 {vr(KP,4)}, v7
L_ks{wr}g:
s_add_u32 s45, s45, 1
s_waitcnt lgkmcnt(0)
v_readfirstlane_b32 s46, v{vT}
s_cmp_gt_u32 s45, 0x40000
s_cbranch_scc1 L_kd{wr}
s_cmp_eq_u32 s46, 0
s_cbranch_scc1 L_ks{wr}
L_kd{wr}:
""")
        for i in range(4): a(mfma16(NP + 4 * i, KP, PQ + 4 * i, "0"))
        a("s_nop 4")
        for i in range(4):
            if PS and i: a("s_nop 0")
            mul4(NP + 4 * i, DN + 4 * i)
            pack(a, NP + 4 * i, OP + 4 * i + 2 * (1 - wr), 4)
            a(f"buffer_store_dwordx4 {vr(OP+4*i,4)}, v5, s[60:63], s48 offen sc1")
            if i < 3: a("s_add_u32 s48, s48, 0x8000")
        if wr == 0: a("s_branch L_o2")
    a("L_o2:")
    if GATE == "o": a(f"ds_write_b32 v{vPW}, v{vOne} offset:{Y_KD}")
    a.stamp(9)
    OF, WX, WY, C, PO = 24, 88, 104, 120, 172
    vWb, vWA, vWB = 236, 8, 244
    a(f"""
s_lshl_b32 s59, s{sg_rb}, 3
s_lshl_b32 s45, s3, 1
s_add_u32 s59, s59, s45
s_lshl_b32 s45, s59, 15
s_add_u32 s45, s45, {WS_O:#x}
v_add_u32 v242, 0x8000, v5
s_mov_b32 s51, 0x55555555
""")
    srd_off(a, 64, sWS, "s45", 65536)
    a(f"""
s_lshl_b32 s52, s{sg_rb}, 8
s_lshl_b32 s46, s3, 6
s_add_u32 s52, s52, s46
{FC(52, FL_O, sg_cb)}
v_lshrrev_b32 v6, 2, v4
v_lshlrev_b32 v6, 7, v6
v_and_b32 v7, 3, v4
v_lshl_add_u32 v6, v7, 3, v6
v_bfe_u32 v7, v4, 3, 1
v_lshl_add_u32 v6, v7, 6, v6
v_lshl_add_u32 v{vWb}, v23, 5, v6
v_xor_b32 v{vWb+1}, 32, v{vWb}
v_xor_b32 v{vWb+2}, 64, v{vWb}
v_xor_b32 v{vWb+3}, 0x60, v{vWb}
s_lshl_b32 s57, s3, 11
s_add_u32 s57, s57, {XCH}
v_lshrrev_b32 v7, 5, v4
v_lshl_add_u32 v6, v23, 1, v7
v_and_b32 v7, 7, v4
v_xor_b32 v6, v6, v7
v_lshlrev_b32 v6, 4, v6
v_and_b32 v3, 15, v4
v_lshl_add_u32 v6, v3, 7, v6
v_add_u32 v15, s57, v6
v_xor_b32 v18, 64, v15
v_lshrrev_b32 v6, 3, v4
v_lshlrev_b32 v3, 4, v7
v_lshl_add_u32 v17, v6, 12, v3
v_xor_b32 v7, v7, v6
v_lshlrev_b32 v7, 4, v7
v_lshl_add_u32 v6, v6, 7, v7
v_add_u32 v16, s57, v6
s_mov_b32 s50, 0
s_mov_b32 s53, 0
s_mov_b32 s54, 0
s_lshl_b32 s55, s40, 4
s_and_b32 s42, s{sg_rb}, {3 if opt("wrot", "1") == "1" else 0}
s_lshl_b32 s42, s42, 3
""")
    for i in range(10): a(f"v_mov_b64 {vr(C+2*i,2)}, 0")
    a(f"s_load_dwordx16 s[4:19], s[{sWS}:{sWS+1}], s52 glc")
    for i in range(10, 16): a(f"v_mov_b64 {vr(C+2*i,2)}, 0")
    a("s_waitcnt vmcnt(0)")
    flag_store(a, 60, 49, vEp, vL128)
    a.stamp(6)
    a("s_waitcnt lgkmcnt(0)")
    maskbuild(a, 54, 46)
    a(f"s_lshl_b32 s46, s54, s55\ns_mov_b32 s47, s46\ns_lshr_b64 s[46:47], s[46:47], s42\nv_mov_b32 v{vT}, s46\ns_mov_b64 exec, 1\nds_or_b32 v14, v{vT} offset:{Y_CO}\ns_mov_b64 exec, -1")
    a(f"s_setprio {opt('gprio', '2')}")
    selno = [0]
    def select(slot):
        n = selno[0]; selno[0] += 1
        a(f"""
s_cmp_lg_u32 s50, 0
s_cbranch_scc1 L_sel{n}_ok
s_mov_b32 s45, 0
s_cmp_lg_u32 s51, 0
s_cbranch_scc1 L_sel{n}
s_mov_b32 s66, 0
s_mov_b32 s50, 0x55555555
s_branch L_sel{n}_ok
L_sel{n}:
ds_read_b32 v{vT}, v14 offset:{Y_CO}
ds_read_b32 v13, v{vY} offset:{Y_WM}
s_add_u32 s45, s45, 1
s_waitcnt lgkmcnt(0)
v_and_b32 v13, v13, v{vT}
s_cmp_gt_u32 s45, 0x40000
s_cselect_b32 s46, -1, 0
v_readfirstlane_b32 s50, v13
s_nop 3
s_or_b32 s50, s50, s46
s_and_b32 s50, s50, s51
s_cbranch_scc1 L_sel{n}_ok
s_cmp_lg_u32 s54, 0x5555
s_cbranch_scc1 L_sel{n}_p
s_sleep 1
s_branch L_sel{n}
L_sel{n}_p:
s_load_dwordx16 s[4:19], s[{sWS}:{sWS+1}], s52 glc
s_add_u32 s45, s45, 8
s_waitcnt lgkmcnt(0)
""")
        maskbuild(a, 54, 46)
        a(f"s_lshl_b32 s46, s54, s55\ns_mov_b32 s47, s46\ns_lshr_b64 s[46:47], s[46:47], s42\nv_mov_b32 v{vT}, s46\ns_mov_b64 exec, 1\nds_or_b32 v14, v{vT} offset:{Y_CO}\ns_mov_b64 exec, -1")
        a(f"s_branch L_sel{n}\nL_sel{n}_ok:")
        return [f"s_ff1_i32_b32 s46, s50", "s_bitset0_b32 s50, s46\ns_add_u32 s48, s46, s42", "s_and_b32 s48, s48, 31\ns_lshl_b32 s48, s48, 10", "s_bitset0_b32 s51, s46", f"s_lshl_b32 s{28+slot}, s46, 12"]
    def oload(slot):
        return [f"buffer_load_dwordx4 {vr(OF+16*slot+8*hh+4*rt,4)}, v{[5,242][rt]}, s[64:67], s48 offen offset:{1024*hh} {OSC}" for hh in range(2) for rt in range(2)]
    def wreads(S, hh, vw):
        return [f"ds_read_b64_tr_b16 {vr(S+4*ct+2*i2,2)}, v{vw+ct} offset:{hh*4096+i2*2048}" for ct in range(4) for i2 in range(2)]
    def wset(slot, vw): return [f"v_add_u32 v{vw+i}, s{28+slot}, v{vWb+i}" for i in range(4)]
    for sl in range(3):
        for x in select(sl): a(x)
        if sl == 0 and not OST: a.stamp(7)
        for x in oload(sl): a(x)
    for x in wset(0, vWA): a(x)
    for r in wreads(WX, 0, vWA): a(r)
    a("L_gloop:")
    for u in range(4):
        cur, nxt = (vWA, vWB) if u % 2 == 0 else (vWB, vWA)
        sel = select((u + 3) % 4)
        ol = oload((u + 3) % 4)
        a("s_waitcnt vmcnt(10) lgkmcnt(0)")
        if TRACE: a("s_memrealtime s[100:101]")
        m = [mfma16(C + 4 * (rt * 4 + ct), WX + 4 * ct, OF + 16 * u + 4 * rt) for rt in range(2) for ct in range(4)]
        interleave(a, m, wreads(WY, 1, cur) + wset((u + 1) % 4, nxt) + sel[:4], 2)
        a("s_waitcnt vmcnt(8) lgkmcnt(0)")
        if TRACE: a(f"s_lshl_b32 m0, s53, 2\ns_add_u32 m0, m0, {u}\ns_nop 0\nv_writelane_b32 v252, s100, m0")
        m = [mfma16(C + 4 * (rt * 4 + ct), WY + 4 * ct, OF + 16 * u + 8 + 4 * rt) for rt in range(2) for ct in range(4)]
        if u == 3: oth = wreads(WX, 0, nxt) + [ol[0], ol[1], sel[4], ol[2], "s_add_u32 s53, s53, 1", ol[3], "s_cmp_lt_u32 s53, 4"]
        else: oth = wreads(WX, 0, nxt) + [ol[0], sel[4], ol[1]] + [None, ol[2], None, ol[3]]
        o2 = list(oth)
        for mm in m:
            a(mm)
            for _ in range(2):
                if o2:
                    x = o2.pop(0)
                    if x: a(x)
        for x in o2:
            if x: a(x)
    a("s_cbranch_scc1 L_gloop")
    if not OST: a.stamp(8)
    a(f"""
s_lshl_b32 s48, s59, 16
s_lshl_b32 s49, s{sg_cb}, 7
s_add_u32 s48, s48, s49
s_add_u32 s49, s48, 0x8000
s_add_u32 s50, s48, 0x10000
s_add_u32 s51, s48, 0x18000
s_waitcnt lgkmcnt(0)
""")
    pack(a, C, PO, 32)
    a("s_nop 1")
    for q in range(4):
        a(f"v_permlane16_swap_b32 v{PO+4*q}, v{PO+4*q+2}\nv_permlane16_swap_b32 v{PO+4*q+1}, v{PO+4*q+3}")
    for rt in range(2):
        for qq in range(2): a(f"ds_write_b128 v{[15,18][qq]}, {vr(PO+8*rt+4*qq,4)}")
        for i in range(2): a(f"ds_read_b128 {vr(WX+8*rt+4*i,4)}, v16 offset:{1024*i}")
    for q in range(4):
        a(f"s_waitcnt lgkmcnt({[5,4,1,0][q]})")
        a(f"buffer_store_dwordx4 {vr(WX+4*q,4)}, v17, s[68:71], s{48+q} offen {FL_OUT}")
    if TRACE:
        a(f"v_writelane_b32 v252, s90, 16\ns_lshl_b32 s100, s2, 10\ns_add_u32 s100, s100, {WS_ST + 0x200000:#x}\nv_lshlrev_b32 v253, 2, v0\nbuffer_store_dword v252, v253, s[60:63], s100 offen")
    a.end()

def aux(a):
    vOA, vOB = 8, 12
    vZero, vEp, vOne, vY, vT = 6, 7, 14, 15, 3
    a(f"""
s_sub_u32 s3, s3, 4
v_lshrrev_b32 v1, 3, v4
v_and_b32 v2, 7, v4
v_lshrrev_b32 v3, 4, v4
v_xor_b32 v6, v2, v3
v_lshlrev_b32 v6, 4, v6
v_lshl_add_u32 v6, v1, 11, v6
s_lshl_b32 s60, s{srb}, 7
s_lshl_b32 s61, s3, 5
s_add_u32 s60, s60, s61
s_lshl_b32 s60, s60, 11
v_add_u32 v{vOA}, s60, v6
v_xor_b32 v6, 64, v{vOA}
v_add_u32 v{vOA+1}, {16384-1024}, v6
v_add_u32 v{vOA+2}, {2*(16384-1024)}, v{vOA}
v_add_u32 v{vOA+3}, {3*(16384-1024)}, v6
v_and_b32 v3, 1, v3
v_lshlrev_b32 v3, 2, v3
v_xor_b32 v7, v2, v3
v_lshlrev_b32 v7, 4, v7
v_xor_b32 v6, 32, v7
s_movk_i32 s61, 6144
v_mad_u32_u24 v7, v1, s61, v7
v_mad_u32_u24 v6, v1, s61, v6
s_mul_i32 s60, s3, {16*6144}
v_add_u32 v{vOB}, s60, v7
s_add_u32 s60, s60, {8*6144-1024}
v_add_u32 v{vOB+1}, s60, v6
s_lshl_b32 s65, s3, 12
s_lshl_b32 s66, s3, 11
s_add_u32 s66, s66, 0x4000
s_mov_b32 s64, 0
s_mov_b32 s67, s{sk0}
s_lshl_b32 s74, s{shq}, 7
s_lshl_b32 s75, s{shk}, 7
s_add_u32 s75, s75, 2048
s_mov_b32 s42, {4*MB:#x}
s_mov_b32 s43, 0x20000
s_mov_b32 s46, {6*MB:#x}
s_mov_b32 s47, 0x20000
s_waitcnt lgkmcnt(0)
s_mov_b64 s[40:41], s[{sX}:{sX+1}]
s_mov_b64 s[44:45], s[{sW}:{sW+1}]
""")
    vm = VM(a)
    def issue(tag):
        a(f"s_add_u32 m0, s64, s65\ns_lshl_b32 s60, s67, 7\ns_mul_i32 s63, s67, {64*6144}")
        for i in range(4): a(f"buffer_load_dwordx4 v{vOA+i}, s[40:43], s60 offen offset:{1024*i} lds")
        a(f"s_add_u32 m0, s64, s66\ns_add_u32 s61, s63, s74\ns_add_u32 s62, s63, s75")
        for i in range(2): a(f"buffer_load_dwordx4 v{vOB+i}, s[44:47], s61 offen offset:{1024*i} lds")
        a(f"s_add_u32 m0, m0, 8192\ns_add_u32 s63, s62, 2048")
        for i in range(2): a(f"buffer_load_dwordx4 v{vOB+i}, s[44:47], s62 offen offset:{1024*i} lds")
        a(f"s_add_u32 m0, m0, 8192\ns_add_u32 s67, s67, 1")
        for i in range(2): a(f"buffer_load_dwordx4 v{vOB+i}, s[44:47], s63 offen offset:{1024*i} lds")
        a(f"s_and_b32 s67, s67, 15\ns_add_u32 s64, s64, {STG}\ns_cmp_eq_u32 s64, {3*STG}\ns_cselect_b32 s64, 0, s64")
        vm.issue(tag, 10)
    def B(i): vm.wait(i); a.bar()
    a.sst(2)
    issue(0)
    a.sst(3)
    a("s_barrier")
    a.sst(4)
    ids2(a)
    a(f"v_mov_b32 v{vZero}, 0\nv_mov_b32 v{vOne}, 1\nv_mov_b32 v{vY}, {SYNC}\nv_lshlrev_b32 v255, 7, v4\n{WSOFF}")
    srd(a, 48, sWS, 32 * MB)
    srd(a, 52, sDBG, 256)
    a(f"""
s_or_b32 s60, s2, s3
s_cmp_eq_u32 s60, 0
s_cbranch_scc0 L_noep
s_memrealtime s[60:61]
s_waitcnt lgkmcnt(0)
s_or_b32 s60, s60, 1
v_mov_b32 v{vEp}, s60
s_mov_b64 exec, 1
buffer_store_dword v{vEp}, v{vZero}, s[52:55], 0 offen sc1
s_mov_b64 exec, -1
L_noep:
""")
    P, Qs, CACC, W2, QQ = 32, 96, 160, 192, 224
    VU = [240, 241, 242, 243]; vH, vE, vS, vTR, vHP = 244, 245, 246, 247, 251
    vUS, vHL, vO = 25, 26, 20
    a(f"""
s_mul_i32 s68, s3, {HCH}
s_add_u32 s68, s68, {HB}
s_lshl_b32 s69, s{ssb}, 7
s_lshl_b32 s70, s3, 5
s_add_u32 s69, s69, s70
v_lshrrev_b32 v28, 4, v4
v_bfe_u32 v29, v4, 2, 2
v_and_b32 v30, 3, v4
v_and_b32 v31, 15, v4
s_lshl_b32 s60, s3, 12
s_add_u32 s60, s60, {HB}
v_add_u32 v{vTR}, s60, v5
s_and_b32 s60, s3, 1
s_lshl_b32 s60, s60, 6
v_xor_b32 v{vTR}, s60, v{vTR}
v_xor_b32 v{vTR+1}, 16, v{vTR}
v_xor_b32 v{vTR+2}, 32, v{vTR}
v_xor_b32 v{vTR+3}, 48, v{vTR}
v_lshlrev_b32 v3, 12, v28
v_lshl_add_u32 v{vUS}, v31, 4, v3
s_lshl_b32 s60, s{sdb}, 18
s_lshl_b32 s61, s3, 16
s_add_u32 s60, s60, s61
s_lshl_b32 s61, s{ssb}, 8
s_sub_u32 s60, s60, s61
s_add_u32 s60, s60, {WS_UT + 3840}
v_add_u32 v{vUS}, s60, v{vUS}
v_lshlrev_b32 v{vHL}, 5, v4
v_and_b32 v3, 1, v28
v_lshlrev_b32 v3, 2, v3
v_xor_b32 v3, v2, v3
v_lshrrev_b32 v27, 5, v4
v_lshlrev_b32 v27, 1, v27
v_xor_b32 v3, v27, v3
v_lshlrev_b32 v3, 4, v3
v_lshl_add_u32 v3, v1, 11, v3
s_lshl_b32 s60, s{sg_cb}, 7
v_add_u32 v{vO}, s60, v3
v_add_u32 v{vO+1}, {16384-1024}, v{vO}
v_add_u32 v{vO+2}, {2*(16384-1024)}, v{vO}
v_add_u32 v{vO+3}, {3*(16384-1024)}, v{vO}
s_mov_b32 s70, 0xffff0000
v_and_b32 v3, 1, v28
s_movk_i32 s60, {HP}
v_mul_u32_u24 v3, s60, v3
v_lshl_add_u32 v3, v31, 4, v3
v_add_u32 v{vHP}, s68, v3
s_mul_i32 s71, s3, {UCH}
s_add_u32 s71, s71, {U0}
v_add_u32 v19, s71, v5
s_movk_i32 s61, {CPY}
v_and_b32 v24, 1, v29
v_mul_u32_u24 v24, s61, v24
v_lshl_add_u32 v24, v30, 4, v24
v_add_u32 v24, s71, v24
v_add_u32 v3, 1, v31
v_and_b32 v16, 1, v3
v_add_u32 v17, v16, v31
v_mul_u32_u24 v3, s61, v16
v_lshl_add_u32 v3, v28, 5, v3
v_lshlrev_b32 v17, 1, v17
v_sub_u32 v3, v3, v17
s_add_u32 s60, s71, {4014 - 512 - 16}
v_add_u32 v{VU[0]}, s60, v3
v_subrev_u32 v{VU[1]}, 1024, v{VU[0]}
v_subrev_u32 v{VU[2]}, 2048, v{VU[0]}
v_subrev_u32 v{VU[3]}, 3072, v{VU[0]}
v_add_u32 v3, v31, v28
s_add_u32 s60, s68, 208
v_lshlrev_b32 v3, 4, v3
v_add_u32 v{vH}, s60, v3
v_lshlrev_b32 v3, 5, v31
v_lshl_add_u32 v16, v28, 3, v3
s_add_u32 s60, s71, {4088 - 3584}
v_sub_u32 v{vE}, s60, v16
v_and_b32 v16, 1, v28
v_lshl_add_u32 v3, v16, 9, v3
v_lshrrev_b32 v16, 5, v4
v_lshl_add_u32 v{vS}, v16, 4, v3
v_lshlrev_b32 v27, 4, v2
v_lshl_add_u32 v16, v1, 11, v27
v_lshl_add_u32 v17, v1, 12, v27
s_add_u32 s39, s{sch}, s3
s_and_b32 s60, s39, 0xfffffffe
s_lshl_b32 s60, s60, 1
s_load_dword s71, s[{sD}:{sD+1}], s60
s_lshl_b32 s61, s39, 12
""")
    for i in range(16): a(f"v_mov_b64 {vr(CACC+2*i,2)}, 0")
    srd_off(a, 52, sH, "s61", 4096); srd(a, 56, sWO, 2 * MB)
    a(f"s_waitcnt lgkmcnt(0)\ns_mov_b32 s20, s{sQ}\ns_mov_b32 s21, s{sQ+1}")
    def hload():
        a(f"s_add_u32 m0, s68, 256\ns_movk_i32 s60, 1024\ns_movk_i32 s61, 1040")
        a(f"buffer_load_dwordx4 v{vHL}, s[52:55], 0 offen {FL_KV} lds\nbuffer_load_dwordx4 v{vHL}, s[52:55], s60 offen offset:1024 {FL_KV} lds")
        a(f"s_add_u32 m0, s68, {HP+256}\ns_nop 0")
        a(f"buffer_load_dwordx4 v{vHL}, s[52:55], 16 offen {FL_KV} lds\nbuffer_load_dwordx4 v{vHL}, s[52:55], s61 offen offset:1024 {FL_KV} lds")
        vm.issue("h", 4)
    def epoch():
        a(f"""
s_waitcnt lgkmcnt(0)
s_mov_b32 s60, 0
L_eploop:
s_cmp_lg_u32 s{sEP}, 0
s_cbranch_scc1 L_epok
s_sleep 8
s_load_dword s{sEP}, s[{sDBG}:{sDBG+1}], 0 glc
s_add_u32 s60, s60, 1
s_cmp_gt_u32 s60, 0x4000
s_waitcnt lgkmcnt(0)
s_cbranch_scc0 L_eploop
L_epok:
s_mov_b32 s{sEP+1}, s{sEP}
v_mov_b32 v{vEp}, s{sEP}
ds_write_b32 v{vY}, v{vEp} offset:{Y_EP}
""")
    a.sst(5); vm.wait(0); a.sst(6)
    B(0); issue(1); issue(2)
    B(1); issue(3)
    a.stamp(9)
    B(2); issue(4)
    a(f"s_load_dword s{sEP}, s[{sDBG}:{sDBG+1}], 0")
    D, E, O = 32, 48, 52
    H0 = int(opt("h0", "14")); D0 = int(opt("d0", "14")); HN = int(opt("hn", "1")); DN_ = int(opt("dn", "1"))
    hl = [(f"s_add_u32 m0, s68, 256", f"buffer_load_dwordx4 v{vHL}, s[52:55], 0 offen {FL_KV} lds"),
          (f"s_add_u32 m0, s68, 256\ns_movk_i32 s60, 1024", f"buffer_load_dwordx4 v{vHL}, s[52:55], s60 offen offset:1024 {FL_KV} lds"),
          (f"s_add_u32 m0, s68, {HP+256}", f"buffer_load_dwordx4 v{vHL}, s[52:55], 16 offen {FL_KV} lds"),
          (f"s_add_u32 m0, s68, {HP+256}\ns_movk_i32 s60, 1040", f"buffer_load_dwordx4 v{vHL}, s[52:55], s60 offen offset:1024 {FL_KV} lds")]
    dl = [f"buffer_load_dwordx4 {vr(D+4*j,4)}, v5, s[48:51], s39 offen offset:{1024*j} sc1" for j in range(4)]
    a(f"s_lshl_b32 s33, s39, 7\ns_add_u32 s33, s33, {FL_U:#x}\ns_lshl_b32 s39, s39, 12")
    def uchk():
        a("s_waitcnt lgkmcnt(0)")
        for i in range(8): a(f"s_cmp_eq_u64 s[{4+2*i}:{5+2*i}], s[{sEP}:{sEP+1}]\ns_cbranch_scc0 L_us")
        a("s_branch L_upoll_done\nL_us:")
        spoll(a, "L_upoll", 33, 60)
    for b in range(3, 14):
        B(b)
        if b == 3:
            epoch(); a(f"ds_write_b128 v{vHP}, {vr(CACC,4)}")
        issue(b + 2)
        if b == min(D0, 14) - 1: a(f"s_load_dwordx16 s[4:19], s[{sWS}:{sWS+1}], s33 glc")
        if b == D0: uchk()
        if b >= H0:
            for _ in range(HN):
                if hl:
                    x = hl.pop(0); a(x[0]); a("s_nop 0"); a(x[1]); vm.issue("h")
        if b >= D0:
            for _ in range(DN_):
                if dl: a(dl.pop(0)); vm.issue("d")
    srd(a, 40, 20, 4 * MB); srd(a, 44, sOUT, 8 * MB)
    sPo = {0: 3, 1: 75, 2: 65, 3: 31}
    a(f"s_and_b32 s28, s{sg_rb}, {3 if opt('wrot', '1') == '1' else 0}\ns_lshl_b32 s74, s28, 2\ns_lshl_b32 s28, s28, 3")
    a("s_add_u32 s65, s3, 5\ns_add_u32 s75, s3, 9\ns_cmp_eq_u32 s3, 3\ns_cselect_b32 s75, 4, s75\ns_add_u32 s31, s3, 12")
    def usrc(g): return [f"s_add_u32 s60, s{sPo[g]}, s74", "s_and_b32 s60, s60, 15", "s_lshl_b32 s60, s60, 17", "s_add_u32 s61, s60, 0x10000"]
    def w2(g):
        r = usrc(g)
        for hh in range(2):
            for i in range(4): r.append(f"buffer_load_dwordx4 {vr(W2+16*hh+4*i,4)}, v{vO+i}, s[56:59], s{60+hh} offen offset:{1024*i} {FL_WO}")
        vm.issue(f"w{g}", 8)
        return r
    def wb(g):
        a(f"s_lshl_b32 m0, s{sPo[g]}, 13")
        for x in usrc(g): a(x)
        for hh in range(2):
            for i in range(4): a(f"buffer_load_dwordx4 v{vO+i}, s[56:59], s{60+hh} offen offset:{1024*i} {FL_WO} lds")
            if hh == 0: a("s_add_u32 m0, m0, 4096\ns_nop 0")
        vm.issue(f"w{g}", 8)
    def wm_lines(bits):
        r = ["s_mov_b32 s61, 0"]
        for g in bits: r += [f"s_lshl_b32 s60, s{sPo[g]}, 1", "s_bitset1_b32 s61, s60"]
        return r + [f"v_mov_b32 v{vT}, s61", f"s_mov_b64 exec, 1\nds_or_b32 v{vY}, v{vT} offset:{Y_WM}\ns_mov_b64 exec, -1"]
    B(14)
    if D0 >= 14: uchk()
    for x in dl: a(x); vm.issue("d")
    for x in hl: a(x[0]); a("s_nop 0"); a(x[1]); vm.issue("h")
    W14 = len(dl) + len(hl) <= 4
    if W14: wb(2)
    B(15)
    a.stamp(1)
    a(f"ds_write_b128 v24, {vr(CACC,4)} offset:4096")
    if not W14: wb(2)
    vm.wait("d")
    for j in range(3): a(f"v_mov_b32_dpp v{E+j}, v{D+4*j+4} wave_rol:1 row_mask:0xf bank_mask:0xf")
    a(f"v_mov_b32 v{E+3}, 0\ns_nop 0")
    for j in range(4): a(f"v_mov_b32_dpp v{E+j}, v{D+4*j} wave_shl:1 row_mask:0xf bank_mask:0xf")
    for j in range(4):
        d = [D + 4 * j + i for i in range(4)] + [E + j]
        o = O + 4 * j
        a(f"ds_write_b128 v19, {vr(D+4*j,4)} offset:{1024*j}")
        for i in range(4): a(f"v_alignbit_b32 v{o+i}, v{d[i+1]}, v{d[i]}, 16")
        a(f"ds_write_b128 v19, {vr(o,4)} offset:{CPY+1024*j}")
    def wait4(lab, off, slp=1, T=68):
        a(f"""
s_mov_b32 s60, 0
{lab}:
ds_read_b128 v[{T}:{T+3}], v{vY} offset:{off}
s_add_u32 s60, s60, 1
s_waitcnt lgkmcnt(0)
v_and_b32 v{T}, v{T}, v{T+1}
v_and_b32 v{T+2}, v{T+2}, v{T+3}
v_and_b32 v{T}, v{T}, v{T+2}
s_cmp_gt_u32 s60, 0x40000
s_cbranch_scc1 {lab}_d
v_readfirstlane_b32 s61, v{T}
s_nop 3
s_cmp_eq_u32 s61, 1
s_cbranch_scc1 {lab}_d
s_sleep {slp}
s_branch {lab}
{lab}_d:
""")
    wait4("L_fr", Y_FR)
    a.stamp(2)
    wb(1); wb(0)
    a(f"""
s_lshl_b32 s30, s69, 11
s_lshl_b32 s61, s{sdb}, 7
s_add_u32 s30, s30, s61
s_lshl_b32 s63, s69, 12
s_add_u32 s63, s63, s61
s_add_u32 s63, s63, 2048
s_lshl_b32 s66, s{sg_rb}, 8
s_lshl_b32 s61, s3, 6
s_add_u32 s66, s66, s61
{FC(66, FL_O, sg_cb)}
s_bitcmp1_b32 s3, 0
s_cselect_b32 s60, 0, 16
s_cselect_b32 s33, 16, 0
s_lshl_b32 s71, s71, s60
s_and_b32 s71, s71, 0xffff0000
s_lshr_b32 s60, s3, 1
v_lshl_add_u32 v19, s60, 2, v{vY}
s_mov_b32 s32, s{sch}
{FA(32, FL_Y, 8192)}
s_lshl_b32 s67, s{sdb}, 6
s_lshl_b32 s60, s{ssb}, 2
s_add_u32 s60, s60, s3
{FC(67, FL_Y, 60, 8192)}
s_mov_b32 s64, 0
""")
    def creads(S, rho):
        r = []
        for i in range(8):
            o0 = 128 * (1 - i % 2) + 4 * (1 - rho)
            r.append(f"ds_read2_b32 {vr(S+4*i,2)}, v{VU[i//2]} offset0:{o0} offset1:{o0+1}")
            r.append(f"ds_read2_b32 {vr(S+4*i+2,2)}, v{VU[i//2]} offset0:{o0+2} offset1:{o0+3}")
            r.append(f"ds_read_b128 {vr(S+32+4*i,4)}, v{vH} offset:{256*i+(HP if rho == 0 else 0)}")
        return r
    def cmf(S):
        if opt("cch", "1") == "1": return [mfma16(CACC + 4 * t, S + 4 * x, S + 32 + 4 * (t - x)) for t in range(7, -1, -1) for x in range(t + 1)]
        return [mfma16(CACC + 4 * (x + y), S + 4 * x, S + 32 + 4 * y) for x in range(8) for y in range(8 - x)]
    vm.wait("h")
    for r in creads(P, 0): a(r)
    if opt("gate", "kv") != "none": wait4("L_kd", Y_KD, T=Qs)
    a.stamp(3)
    a(f"s_setprio {opt('vprio', '0')}")
    adv = [f"v_subrev_u32 v{x}, 128, v{x}" for x in VU] + [f"v_subrev_u32 v{vH}, 64, v{vH}"]
    pn = [0]
    def Pissue(): return f"s_load_dwordx16 s[4:19], s[{sWS}:{sWS+1}], s66 glc"
    def Pcheck(w):
        n = pn[0]; pn[0] += 1
        maskbuild(w, 62, 60)
        w(f"s_mov_b32 s64, s62\ns_lshl_b32 s60, s62, s33\ns_mov_b32 s61, s60\ns_lshr_b64 s[60:61], s[60:61], s28\nv_mov_b32 v{vT}, s60")
        g = f"s_mov_b64 exec, 1\nds_or_b32 v19, v{vT} offset:{Y_CO}\ns_mov_b64 exec, -1"
        if isinstance(w, L): w.l.append(g)
        else: w(g)
    a("s_waitcnt lgkmcnt(0)")
    interleave(a, cmf(P), creads(Qs, 1) + adv)
    a("s_waitcnt lgkmcnt(0)")
    vm.wait("w0")
    ex = wm_lines((0, 1, 2)) + w2(3)
    ex += [x for i in range(4) for x in ([f"buffer_load_dwordx4 {vr(QQ+4*i,4)}, v16, s[40:43], s30 offen {FL_KV}"] + (["s_add_u32 s30, s30, 0x4000"] if i < 3 else []))]
    vm.issue("q", 4)
    CVP = opt("cvpoll", "0") == "1"
    inter3(a, cmf(Qs), ["s_mov_b32 s29, 1"] + ([Pissue()] if CVP else []) + ex, 1, creads(P, 0), 1)
    a("L_cloop:\ns_waitcnt lgkmcnt(0)")
    w = L(); Pcheck(w)
    inter3(a, cmf(P), w.l + [Pissue()] if CVP else [], 3, creads(Qs, 1) + adv, 1)
    a("s_waitcnt lgkmcnt(0)")
    w = L(); Pcheck(w)
    inter3(a, cmf(Qs), w.l + [Pissue()] if CVP else [], 3, creads(P, 0) + ["s_add_u32 s29, s29, 1", "s_cmp_lt_u32 s29, 4"], 1)
    a("s_cbranch_scc1 L_cloop")
    a.stamp(4)
    UU, T = Qs + 40, Qs + 56
    for t in range(8): a(f"ds_read_b64 {vr(UU+2*t,2)}, v{vE} offset:{512*(7-t)}")
    ladd(a, vY, Y_CD, vOne)
    a(f"s_setprio {opt('yprio', '3')}\ns_waitcnt lgkmcnt(0)")
    YP = opt("yp", "0")
    if YP != "0": a(Pissue())
    for t in range(8):
        a(f"v_and_b32 v{T}, s70, v{UU+2*t+1}\nv_lshlrev_b32 v{T+1}, 16, v{UU+2*t+1}")
        a(f"v_and_b32 v{T+2}, s70, v{UU+2*t}\nv_lshlrev_b32 v{T+3}, 16, v{UU+2*t}")
        for i in range(4): a(f"v_fmac_f32 v{CACC+4*t+i}, s71, v{T+i}")
        a(f"v_cvt_pk_bf16_f32 v{UU+2*t}, v{CACC+4*t}, v{CACC+4*t+1}")
        a(f"v_cvt_pk_bf16_f32 v{UU+2*t+1}, v{CACC+4*t+2}, v{CACC+4*t+3}")
    a("s_nop 1")
    for t in range(0, 8, 2):
        a(f"v_permlane16_swap_b32 v{UU+2*t}, v{UU+2*t+2}\nv_permlane16_swap_b32 v{UU+2*t+1}, v{UU+2*t+3}")
    vm.wait("w3")
    for t in range(0, 8, 2): a(f"buffer_store_dwordx4 {vr(UU+2*t,4)}, v{vS}, s[48:51], s39 offen offset:{512*t} sc1")
    if YP != "0":
        a("s_waitcnt lgkmcnt(0)"); Pcheck(a)
    if YP == "2": a(Pissue())
    lspin(a, "L_cdspin", vY, Y_CD, "4", vT, 60, 61, slp=0)
    if YP == "2": Pcheck(a)
    a(f"s_lshl_b32 s60, s3, 13\ns_add_u32 s60, s60, {U0}\nv_add_u32 v18, s60, v5")
    for i in range(8): a(f"ds_write_b128 v18, {vr(W2+4*i,4)} offset:{1024*i}")
    for x in wm_lines((3,)): a(x)
    a.stamp(5)
    a(f"""
s_lshl_b32 s65, s{sdb}, 18
s_lshl_b32 s60, s69, 1
s_add_u32 s65, s65, s60
s_add_u32 s65, s65, {WS_YT:#x}
v_lshrrev_b32 v18, 2, v4
v_lshlrev_b32 v18, 12, v18
v_lshl_add_u32 v18, v30, 4, v18
v_lshl_add_u32 v20, v28, 3, v29
v_lshlrev_b32 v20, 6, v20
v_lshl_add_u32 v20, v30, 3, v20
v_add_u32 v20, s68, v20
s_movk_i32 s60, 144
v_mul_u32_u24 v24, s60, v31
v_lshl_add_u32 v24, v28, 4, v24
v_add_u32 v24, s68, v24
v_mul_u32_u24 v25, s60, v1
v_add3_u32 v25, v25, v27, s68
s_mov_b32 m0, s68
s_waitcnt vmcnt(0)
s_mov_b64 exec, 1
ds_add_rtn_u32 v{vT}, v{vY}, v{vOne} offset:{Y_CY}
s_mov_b64 exec, -1
s_waitcnt lgkmcnt(0)
v_readfirstlane_b32 s60, v{vT}
s_nop 3
s_cmp_eq_u32 s60, 3
s_cbranch_scc0 L_yfl
""")
    flag_store(a, 48, 32, vEp, 255, "-1")
    a("L_yfl:")
    a.stamp(6)
    a("s_setprio 0")
    unpack(a, QQ, 96, 16, 70)
    a("s_mov_b32 s29, 0\nL_yloop:\ns_cmp_eq_u32 s64, 0x5555\ns_cbranch_scc1 L_ynop")
    a(Pissue() + "\ns_waitcnt lgkmcnt(0)"); Pcheck(a)
    a(f"L_ynop:\ns_load_dwordx16 s[4:19], s[{sWS}:{sWS+1}], s67 glc\ns_add_u32 s29, s29, 1\ns_cmp_gt_u32 s29, 0x8000\ns_cbranch_scc1 L_ydone\ns_waitcnt lgkmcnt(0)")
    for i in range(8): a(f"s_cmp_eq_u64 s[{4+2*i}:{5+2*i}], s[{sEP}:{sEP+1}]\ns_cbranch_scc0 L_yloop")
    a("L_ydone:\ns_waitcnt lgkmcnt(0)")
    a.stamp(7)
    for i in range(4):
        a(f"buffer_load_dwordx4 v18, s[48:51], s65 offen offset:{1024*i} sc1 lds")
        if i < 3: a(f"s_add_u32 s65, s65, {0x10000-1024}")
    YY, T = 48, 64
    a("s_waitcnt vmcnt(0)")
    a.stamp(8)
    for sh in range(2):
        for oh in range(2):
            for i2 in range(2):
                a(f"ds_read_b64_tr_b16 {vr(YY+8*sh+4*oh+2*i2,2)}, v20 offset:{32*sh+2048*oh+256*i2}")
    a("s_waitcnt lgkmcnt(0)")
    for sh in range(2):
        for oh in range(2): a(f"ds_write_b128 v24, {vr(YY+8*sh+4*oh,4)} offset:{16*144*sh+64*oh}")
    for j in range(4): a(f"ds_read_b128 {vr(YY+32+4*j,4)}, v25 offset:{8*144*j}")
    for j in range(4):
        a(f"s_waitcnt lgkmcnt({3-j})")
        unpack(a, YY + 32 + 4 * j, T, 4, 70)
        for e in range(8): a(f"v_mul_f32 v{T+e}, v{T+e}, v{96+8*j+e}")
        pack(a, T, QQ + 4 * j, 8)
        a(f"buffer_store_dwordx4 {vr(QQ+4*j,4)}, v17, s[44:47], s63 offen {FL_OUT}")
        if j < 3: a("s_add_u32 s63, s63, 0x8000")
    a.trace_out()
    a.end()

def desc(name, vgpr, sgpr=102):
    return f""".amdhsa_kernel {name}
  .amdhsa_next_free_vgpr {vgpr}
  .amdhsa_next_free_sgpr {sgpr}
  .amdhsa_accum_offset {(vgpr + 3) // 4 * 4}
  .amdhsa_group_segment_fixed_size 0
  .amdhsa_kernarg_size 96
  .amdhsa_user_sgpr_count 2
  .amdhsa_user_sgpr_kernarg_segment_ptr 1
  .amdhsa_system_sgpr_workgroup_id_x 1
.end_amdhsa_kernel
"""
def main():
    out = open("cdna_kernels/" + NAME + ".s.ref").read().split("; Override launch")[0]
    KS = [KN]
    if AMP:
        out += f"; @launch kernel={KN} grid=(256,1,1) block=(512,1,1) lds={LDS}\n"
        out += "; @launch kernel=kd_kernel grid=(1,1,1) block=(64,1,1) lds=0\n"; KS.append("kd_kernel")
    else:
        out += f"; @launch grid=(256,1,1) block=(512,1,1) lds={LDS}\n"
    out += '.amdgcn_target "amdgcn-amd-amdhsa--gfx950"\n.text\n'
    for k in KS: out += f".globl {k}\n.type {k},@function\n"
    if opt("pal", ""): out += f".p2align {opt('pal', '')}\n"
    out += ".p2align 8\n"
    a = A()
    kernel(a)
    if AMP: kd.kernel_d(a, AMP, WS_ST)
    out += a.text()
    out += '.section .rodata,"a"\n'
    for k in KS: out += ".p2align 6\n" + desc(k, 256)
    path = sys.argv[1] if len(sys.argv) > 1 and not sys.argv[1].startswith("--") else "cdna_kernels/" + NAME + ".s"
    open(path, "w").write(out)
main()
```

```python
import sys, os
sys.path.insert(0, os.path.dirname(os.path.abspath(__file__)))
import kd
NAME = "concat_heads__linear_attn_block__ssm_conv_h3__prompt"
KN = NAME + "_kernel"
MB = 1 << 20
WS_UT, WS_KVP, WS_ZP, WS_FL, WS_O, WS_YT, WS_ST = 0, 8 * MB, 9 * MB, 9 * MB + 0x40000, 4 * MB, 0, 24 * MB
LOG2E, EPS = 0x3FB8AA3B, 0x358637BD
STAMP = "--stamp" in sys.argv
TRACE = "--trace" in sys.argv
def opt(name, default):
    for x in sys.argv:
        if x.startswith("--" + name + "="): return x.split("=", 1)[1]
    return default
FL_U, FL_P, FL_O, FL_Y = [WS_FL + k * 131072 for k in range(4)]
def FA(r, base, grp=2048):
    return f"s_lshr_b32 vcc_lo, s{r}, 6\ns_mul_i32 vcc_lo, vcc_lo, {grp-64}\ns_add_u32 s{r}, s{r}, vcc_lo\ns_add_u32 s{r}, s{r}, {base:#x}"
def FC(r, base, own, grp=2048):
    return FA(r, base, grp) + f"\ns_lshl_b32 vcc_lo, s{own}, 7\ns_add_u32 s{r}, s{r}, vcc_lo"
if opt("ysep", "0") == "1": WS_YT = 10 * MB
FL_KV = opt("kv", "")
FL_WO = opt("wo", "")
FL_XW = opt("xw", "")
FL_OUT = opt("outst", "sc1")
AMP = opt("amp", "")
KROT = opt("krot", "q8c")
ROT2 = opt("rot2", "0") == "1"
ROTW = opt("rotw", "1") == "1"
G2 = opt("g2", "")
OSC = "" if "nosc1" in G2 else "sc1"
DEPTH = int(opt("depth", "6"))
PSLEEP = opt("psleep", "0")

SST = opt("sst", "0") == "1"
class A:
    def __init__(self): self.l = []
    def __call__(self, s):
        for x in s.strip("\n").split("\n"):
            x = x.strip()
            self.l.append(x if x.endswith(":") else "    " + x)
    jn = 0
    def stamp(self, i):
        J = opt("jitter", "")
        if J and i > 0 and getattr(self, "jon", False):
            n = self.jn; self.jn += 1
            self(f"""
s_cselect_b32 s101, 1, 0
s_memrealtime s[98:99]
s_waitcnt lgkmcnt(0)
s_lshr_b32 s100, s98, 2
s_xor_b32 s100, s100, s2
s_mul_i32 s100, s100, {2654435761 + 2*n + int(J)}
s_add_u32 s100, s100, s3
s_mul_i32 s100, s100, 40503
s_lshr_b32 s100, s100, 29
s_cmp_lt_u32 s100, 6
s_cbranch_scc1 L_j{n}
s_sleep 60
s_cmp_lt_u32 s100, 7
s_cbranch_scc1 L_j{n}
s_sleep 127
L_j{n}:
s_cmp_lg_u32 s101, 0
""")
        if STAMP and not (SST and getattr(self, "jon", False) and 2 <= i <= 6): self(f"s_memrealtime s[{76+2*i}:{77+2*i}]")
    def sst(self, i):
        if STAMP and SST: self(f"s_memrealtime s[{76+2*i}:{77+2*i}]")
    def end(self):
        if STAMP:
            self(f"""
s_memrealtime s[96:97]
s_mov_b64 exec, 1
v_lshrrev_b32 v1, 6, v0
s_waitcnt vmcnt(0) lgkmcnt(0)
s_memrealtime s[98:99]
s_mov_b32 s40, s26
s_mov_b32 s41, s27
s_mov_b32 s42, 0x2000000
s_mov_b32 s43, 0x20000
s_lshl_b32 s100, s2, 3
v_add_u32 v1, s100, v1
v_lshlrev_b32 v1, 5, v1
v_add_u32 v1, {WS_ST}, v1
v_add_u32 v2, 65536, v1
s_waitcnt lgkmcnt(0)
""")
            for i in range(12): self(f"v_mov_b32 v{4+i}, s{76+2*i}")
            self("""
buffer_store_dwordx4 v[4:7], v1, s[40:43], 0 offen
buffer_store_dwordx4 v[8:11], v1, s[40:43], 0 offen offset:16
buffer_store_dwordx4 v[12:15], v2, s[40:43], 0 offen
buffer_store_dwordx4 v[12:15], v2, s[40:43], 0 offen offset:16
""")
        self("s_endpgm")
    tn = 0
    def trace(self):
        if TRACE:
            self(f"s_memrealtime s[96:97]\ns_waitcnt lgkmcnt(0)\nv_writelane_b32 v252, s96, {self.tn}"); self.tn += 1
    def bar(self):
        self.trace(); self("s_barrier"); self.trace()
    def trace_out(self):
        if TRACE: self(f"""
s_lshl_b32 s96, s2, 10
s_add_u32 s96, s96, {WS_ST + 0x100000:#x}
v_lshlrev_b32 v253, 2, v0
v_subrev_u32 v253, 1024, v253
buffer_store_dword v252, v253, s[48:51], s96 offen
""")
    def text(self): return "\n".join(self.l) + "\n"

class VM:
    def __init__(self, a): self.a = a; self.q = []
    def issue(self, tag, n=1): self.q += [tag] * n; assert len(self.q) <= 63, len(self.q)
    def wait(self, tag):
        if tag not in self.q: return
        idx = max(i for i, t in enumerate(self.q) if t == tag)
        n = len(self.q) - 1 - idx
        self.q = self.q[idx + 1:]
        self.a(f"s_waitcnt vmcnt({n})")
    def drained(self): self.q = []

def vr(b, n=1): return f"v{b}" if n == 1 else f"v[{b}:{b+n-1}]"
def sr(b, n=1): return f"s{b}" if n == 1 else f"s[{b}:{b+n-1}]"
def srd(a, d, lo, nbytes):
    a(f"s_mov_b32 s{d}, s{lo}\ns_mov_b32 s{d+1}, s{lo+1}\ns_mov_b32 s{d+2}, {nbytes:#x}\ns_mov_b32 s{d+3}, 0x20000")
def srd_off(a, d, lo, off, nbytes):
    a(f"s_add_u32 s{d}, s{lo}, {off}\ns_addc_u32 s{d+1}, s{lo+1}, 0\ns_mov_b32 s{d+2}, {nbytes:#x}\ns_mov_b32 s{d+3}, 0x20000")
def mfma16(d, x, y, c=None):
    c = vr(d, 4) if c is None else c
    return f"v_mfma_f32_16x16x32_bf16 {vr(d,4)}, {vr(x,4)}, {vr(y,4)}, {c}"
def interleave(a, mf, others, per_gap=1):
    o = list(others)
    for m in mf:
        a(m)
        for _ in range(per_gap):
            if o: a(o.pop(0))
    for x in o: a(x)
def phi_pack(a, src, dst, n, t, sL, sE):
    for i in range(0, n, 8):
        for p in range(4): a(f"v_pk_mul_f32 {vr(t+2*p,2)}, {vr(src+i+2*p,2)}, {sr(sL,2)}")
        for p in range(8): a(f"v_exp_f32_e64 v{t+p}, v{t+p} clamp")
        for p in range(8): a(f"v_max_f32 v{src+i+p}, s{sE}, v{src+i+p}")
        for p in range(4): a(f"v_pk_add_f32 {vr(t+2*p,2)}, {vr(t+2*p,2)}, {vr(src+i+2*p,2)}")
        for p in range(4): a(f"v_cvt_pk_bf16_f32 v{dst+i//2+p}, v{t+2*p}, v{t+2*p+1}")
def phi_pack_np(a, src, dst, n, t, sL, sE):
    for i in range(0, n, 8):
        for p in range(8): a(f"v_mul_f32 v{t+p}, s{sL}, v{src+i+p}")
        for p in range(8): a(f"v_exp_f32_e64 v{t+p}, v{t+p} clamp")
        for p in range(8): a(f"v_max_f32 v{src+i+p}, s{sE}, v{src+i+p}")
        for p in range(8): a(f"v_add_f32 v{t+p}, v{t+p}, v{src+i+p}")
        for p in range(4): a(f"v_cvt_pk_bf16_f32 v{dst+i//2+p}, v{t+2*p}, v{t+2*p+1}")
def phi_keep(a, src, dst, n, t, sL, sE):
    for i in range(0, n, 8):
        for p in range(8): a(f"v_mul_f32 v{t+p}, s{sL}, v{src+i+p}")
        for p in range(8): a(f"v_exp_f32_e64 v{t+p}, v{t+p} clamp")
        for p in range(8): a(f"v_max_f32 v{src+i+p}, s{sE}, v{src+i+p}")
        for p in range(8): a(f"v_add_f32 v{src+i+p}, v{t+p}, v{src+i+p}")
        for p in range(4): a(f"v_cvt_pk_bf16_f32 v{dst+i//2+p}, v{src+i+2*p}, v{src+i+2*p+1}")
def pack(a, src, dst, n):
    for i in range(n // 2): a(f"v_cvt_pk_bf16_f32 v{dst+i}, v{src+2*i}, v{src+2*i+1}")
def unpack(a, src, dst, ndw, smask):
    for i in range(ndw):
        a(f"v_lshlrev_b32 v{dst+2*i}, 16, v{src+i}\nv_and_b32 v{dst+2*i+1}, s{smask}, v{src+i}")

sX, sW, sWO, sQ, sK, sV, sSH, sH, sD, sOUT, sDBG, sWS = 4, 6, 8, 10, 12, 14, 16, 18, 20, 22, 24, 26
sx, sj, srb, shk, shq, sk0, sg_rb, sg_cb, sdb, ssb, sch, sEP = 28, 29, 30, 31, 32, 33, 34, 35, 36, 37, 38, 72
TOUCH = ""
_o = int(opt("wsoff", "0")) * MB
WSOFF = f"s_add_u32 s26, s26, {_o:#x}\ns_addc_u32 s27, s27, 0" if _o else "s_nop 0"
if opt("touch", "0") == "1":
    t = ["s_mov_b32 s52, 0x200000", "s_mov_b32 s53, 0x400000", "s_mov_b32 s54, 0x600000", "s_mov_b32 s55, 0x800000"]
    for base, n in ((sWS, 5), (sOUT, 4), (sQ, 2), (sH, 2), (sWO, 1)):
        for i in range(n): t.append(f"s_load_dword s46, s[{base}:{base+1}], {['0','s52','s53','s54','s55'][i]}")
    TOUCH = "\n".join(t)
STG = 40960
CPY = 4160
UCH = 2 * CPY
U0 = 98304
XCH = U0 + 4 * UCH
HB = XCH + 8192
HP = 2304
HCH = 2 * HP
KVL = HB + 4 * HCH
ZX = KVL + 4096
SYNC = ZX + 512
Y_XC, Y_CW, Y_C2, Y_CU, Y_CY, Y_CD, Y_PQ, Y_EP, Y_W1, Y_CO, Y_UOK, Y_YOK, Y_UB = 0, 96, 20, 28, 32, 36, 40, 56, 60, 64, 72, 76, 80
Y_WM = Y_W1
Y_FR, Y_KD, Y_K2 = 112, 128, 40
LDS = 163840


def spoll(a, lab, soff, sc):
    if opt("poll", "s") == "v":
        a(f"v_and_b32 v254, 15, v4\nv_lshlrev_b32 v254, 2, v254")
        vpoll(a, lab, 254, soff, 255, sc); return
    a(f"""
s_mov_b32 s{sc}, 0
s_branch {lab}_go
{lab}:
s_sleep {PSLEEP}
{lab}_go:
s_load_dwordx16 s[4:19], s[{sWS}:{sWS+1}], s{soff} glc
s_add_u32 s{sc}, s{sc}, 1
s_cmp_gt_u32 s{sc}, 0x8000
s_cbranch_scc1 {lab}_done
s_waitcnt lgkmcnt(0)
""")
    for i in range(8): a(f"s_cmp_eq_u64 s[{4+2*i}:{5+2*i}], s[{sEP}:{sEP+1}]\ns_cbranch_scc0 {lab}")
    a(f"{lab}_done:\ns_waitcnt lgkmcnt(0)")
def vpoll(a, lab, v16x4, soff, vt, sc):
    a(f"""
s_mov_b32 s{sc}, 0
{lab}:
buffer_load_dword v{vt}, v{v16x4}, s[48:51], s{soff} offen sc1
s_waitcnt vmcnt(0)
v_cmp_eq_u32 vcc, s{sEP}, v{vt}
s_add_u32 s{sc}, s{sc}, 1
s_nop 2
s_cmp_eq_u64 vcc, -1
s_cbranch_scc1 {lab}_done
s_sleep {PSLEEP}
s_cmp_lt_u32 s{sc}, 0x4000
s_cbranch_scc1 {lab}
{lab}_done:
""")
def lead_poll(a, lab, soff, sc, st, vY, off, vOne, vT):
    a(f"s_mov_b32 s{sc}, 0\ns_cmp_eq_u32 s3, 0\ns_cbranch_scc0 {lab}_f")
    spoll(a, lab, soff, sc)
    a(f"ds_write_b32 v{vY}, v{vOne} offset:{off}\ns_branch {lab}_f_done")
    a(f"{lab}_f:"); a.l.pop()
    lspin(a, lab + "_f", vY, off, "1", vT, sc, st, init=False, slp=3)
def lspin(a, lab, vaddr, off, target, vt, sc, st, init=True, slp=1):
    if init: a(f"s_mov_b32 s{sc}, 0")
    a(f"""
{lab}:
ds_read_b32 v{vt}, v{vaddr} offset:{off}
s_add_u32 s{sc}, s{sc}, 1
s_waitcnt lgkmcnt(0)
v_readfirstlane_b32 s{st}, v{vt}
s_cmp_gt_u32 s{sc}, 0x40000
s_cbranch_scc1 {lab}_done
s_cmp_ge_u32 s{st}, {target}
s_cbranch_scc1 {lab}_done
s_sleep {slp}
s_branch {lab}
{lab}_done:
""")
def ladd(a, vaddr, off, vone):
    a(f"s_mov_b64 exec, 1\nds_add_u32 v{vaddr}, v{vone} offset:{off}\ns_mov_b64 exec, -1")
def flag_store(a, srdn, soff, vep, vl128, mask="0xffff"):
    a(f"s_mov_b64 exec, {mask}\nbuffer_store_dword v{vep}, v{vl128}, s[{srdn}:{srdn+3}], s{soff} offen sc1\ns_mov_b64 exec, -1")
def wg_flag(a, lab, vaddr, off, vone, vt, st, srdn, soff, vep, vzero):
    a(f"""
s_mov_b64 exec, 1
ds_add_rtn_u32 v{vt}, v{vaddr}, v{vone} offset:{off}
s_waitcnt lgkmcnt(0)
v_readfirstlane_b32 s{st}, v{vt}
s_nop 3
s_cmp_eq_u32 s{st}, 3
s_cbranch_scc0 {lab}
buffer_store_dword v{vep}, v{vzero}, s[{srdn}:{srdn+3}], s{soff} offen sc1
{lab}:
s_mov_b64 exec, -1
""")

def ids2(a):
    if opt("rm", "3") in "12":
        CBMAP = f"s_lshr_b32 vcc_lo, s{sj}, 2\ns_add_u32 vcc_lo, vcc_lo, 3\ns_and_b32 vcc_lo, vcc_lo, 3\ns_and_b32 s{sg_cb}, s{sx}, 4\ns_add_u32 s{sg_cb}, s{sg_cb}, vcc_lo\ns_lshr_b32 vcc_lo, s{sj}, 4\ns_lshl3_add_u32 s{sg_cb}, vcc_lo, s{sg_cb}"
    else: CBMAP = f"s_lshr_b32 s{sg_cb}, s{sx}, 2\ns_lshl_b32 s{sg_cb}, s{sg_cb}, 3\ns_lshr_b32 vcc_lo, s{sj}, 2\ns_add_u32 s{sg_cb}, s{sg_cb}, vcc_lo"
    a(f"""
s_and_b32 s{sg_rb}, s{sx}, 3
s_lshl_b32 s{sg_rb}, s{sg_rb}, 2
s_and_b32 vcc_lo, s{sj}, 3
s_add_u32 s{sg_rb}, s{sg_rb}, vcc_lo
{CBMAP}
s_and_b32 s{sdb}, s{sj}, 15
s_lshr_b32 s{ssb}, s{sj}, 4
s_lshl_b32 vcc_lo, s{sx}, 1
s_add_u32 s{ssb}, s{ssb}, vcc_lo
s_lshl_b32 s{sch}, s{sx}, 5
s_add_u32 s{sch}, s{sch}, s{sj}
s_lshl_b32 s{sch}, s{sch}, 2
""")

def kernel(a):
    a(f"""
{KN}:
s_cmp_ge_u32 s2, 256
s_cbranch_scc1 L_exit
s_load_dwordx16 s[4:19], s[0:1], 0
s_load_dwordx8 s[20:27], s[0:1], 64
s_getpc_b64 s[48:49]
L_pc:
s_and_b32 s45, s2, 24
s_lshl_b32 s45, s45, 4
v_lshl_add_u32 v2, v0, 9, s45
v_cmp_gt_u32 vcc, L_code_end-L_pc-4, v2
s_and_saveexec_b64 s[50:51], vcc
s_cbranch_execz L_pf
global_load_dword v252, v2, s[48:49]
L_pf:
s_mov_b64 exec, s[50:51]
""")
    for i in range(10): a.stamp(i)
    a(f"""
v_lshrrev_b32 v1, 6, v0
v_and_b32 v4, 63, v0
v_readfirstlane_b32 s3, v1
v_lshlrev_b32 v5, 4, v4
s_and_b32 s{sx}, s2, 7
s_lshr_b32 s{sj}, s2, 3
s_and_b32 s{srb}, s{sx}, 1
s_lshl_b32 s{srb}, s{srb}, 3
s_and_b32 s40, s{sj}, 7
s_add_u32 s{srb}, s{srb}, s40
s_lshr_b32 s40, s{sx}, 1
""")
    if opt("rm", "3") in "13":
        a(f"""
s_and_b32 s41, s{sx}, 4
s_and_b32 s42, s{sx}, 2
s_lshl2_add_u32 s41, s42, s41
s_lshr_b32 s42, s{sj}, 3
s_add_u32 s{shq}, s41, s42
s_add_u32 s42, s42, 3
s_and_b32 s42, s42, 3
s_add_u32 s{shk}, s41, s42
""")
    else: a(f"""
s_lshl_b32 s41, s40, 2
s_lshr_b32 s42, s{sj}, 3
s_add_u32 s{shk}, s41, s42
s_add_u32 s42, s42, 1
s_and_b32 s42, s42, 3
s_add_u32 s{shq}, s41, s42
""")
    if KROT.startswith("f"):
        a_, b_, c_, d_ = [int(t) for t in KROT[1:].split("_")]
        a(f"s_mul_i32 s{sk0}, s{srb}, {a_}\ns_mul_i32 s41, s{shk}, {b_}\ns_add_u32 s{sk0}, s{sk0}, s41\ns_and_b32 s41, s{sx}, 1\ns_mul_i32 s41, s41, {c_}\ns_add_u32 s{sk0}, s{sk0}, s41\ns_mul_i32 s41, s40, {d_}\ns_add_u32 s{sk0}, s{sk0}, s41\ns_and_b32 s{sk0}, s{sk0}, 15")
    elif KROT == "q8":
        a(f"""
s_lshl_b32 s{sk0}, s40, 1
s_and_b32 s41, s{shk}, 1
s_add_u32 s{sk0}, s{sk0}, s41
s_lshl_b32 s41, s{sx}, 2
s_add_u32 s{sk0}, s{sk0}, s41
s_and_b32 s41, s{srb}, 3
s_add_u32 s{sk0}, s{sk0}, s41
s_and_b32 s{sk0}, s{sk0}, 7
s_lshl_b32 s{sk0}, s{sk0}, 1
""")
    elif KROT in ("q8h", "q8i"):
        a(f"s_and_b32 s41, s{shk}, 1\ns_lshl_b32 s41, s41, 1\ns_sub_u32 s42, 14, s41\ns_bitcmp{1 if KROT == 'q8h' else 0}_b32 s{srb}, 0\ns_cselect_b32 s{sk0}, s42, s41")
        a(f"s_and_b32 s41, s{srb}, 2\ns_lshl2_add_u32 s{sk0}, s41, s{sk0}\ns_and_b32 s41, s{sx}, 1\ns_add_u32 s41, s41, s40\ns_lshl2_add_u32 s{sk0}, s41, s{sk0}\ns_and_b32 s{sk0}, s{sk0}, 15")
    elif KROT in ("q8e", "q8f", "q8g"):
        a(f"s_and_b32 s41, s{srb}, 1\ns_lshl_b32 s{sk0}, s41, 1\ns_and_b32 s41, s{srb}, 2\ns_lshl_b32 s41, s41, 2\ns_add_u32 s{sk0}, s{sk0}, s41\ns_and_b32 s41, s{sx}, 1\ns_lshl_b32 s41, s41, 2\ns_add_u32 s{sk0}, s{sk0}, s41")
        if KROT == "q8e": a(f"s_and_b32 s41, s{shk}, 1\ns_lshl_b32 s41, s41, 1\ns_sub_u32 s{sk0}, s{sk0}, s41")
        elif KROT == "q8f": a(f"s_and_b32 s41, s{shk}, 2\ns_sub_u32 s{sk0}, s{sk0}, s41")
        else: a(f"s_add_u32 s41, s{shk}, 1\ns_and_b32 s41, s41, 3\ns_add_u32 s{sk0}, s{sk0}, s41")
        a(f"s_lshl_b32 s41, s40, 2\ns_add_u32 s{sk0}, s{sk0}, s41\ns_and_b32 s{sk0}, s{sk0}, 15")
    elif KROT in ("q8b", "q8c", "q8d"):
        if KROT == "q8c": a(f"s_and_b32 s41, s{srb}, 1\ns_lshl_b32 s{sk0}, s41, 1\ns_and_b32 s41, s{srb}, 2\ns_lshl_b32 s41, s41, 2\ns_add_u32 s{sk0}, s{sk0}, s41\ns_and_b32 s41, s{sx}, 1\ns_lshl_b32 s41, s41, 2\ns_add_u32 s{sk0}, s{sk0}, s41")
        else: a(f"s_and_b32 s41, s{srb}, 3\ns_lshl_b32 s{sk0}, s41, 2\ns_and_b32 s41, s{sx}, 1\ns_lshl_b32 s41, s41, 1\ns_add_u32 s{sk0}, s{sk0}, s41")
        if KROT == "q8b": a(f"s_and_b32 s41, s{shk}, 1\ns_lshl_b32 s41, s41, 3\ns_add_u32 s{sk0}, s{sk0}, s41\ns_lshl_b32 s41, s40, 1\ns_add_u32 s{sk0}, s{sk0}, s41")
        else: a(f"s_and_b32 s41, s{shk}, 1\ns_lshl_b32 s41, s41, 1\ns_add_u32 s{sk0}, s{sk0}, s41\ns_lshl_b32 s41, s40, 2\ns_add_u32 s{sk0}, s{sk0}, s41")
        a(f"s_and_b32 s{sk0}, s{sk0}, 15")
    elif KROT == "q4c":
        a(f"""
s_and_b32 s41, s{sx}, 1
s_add_u32 s{sk0}, s40, s41
s_lshl_b32 s41, s{srb}, 1
s_add_u32 s{sk0}, s{sk0}, s41
s_and_b32 s{sk0}, s{sk0}, 3
s_lshl_b32 s{sk0}, s{sk0}, 2
""")
        SL = opt("sl", "0")
        if SL != "0":
            a(f"s_and_b32 s41, s{shk}, {7 if SL == '1' else 6}\ns_cmp_eq_u32 s41, {3 if SL == '1' else 2}\ns_cselect_b32 s41, 6, 0\ns_and_b32 s41, s41, s{srb}\ns_sub_u32 s{sk0}, s{sk0}, s41\ns_and_b32 s{sk0}, s{sk0}, 15")
    elif KROT == "q4":
        a(f"""
s_lshl_b32 s41, s{sx}, 1
s_add_u32 s{sk0}, s40, s41
s_and_b32 s41, s{srb}, 1
s_add_u32 s{sk0}, s{sk0}, s41
s_and_b32 s{sk0}, s{sk0}, 3
s_lshl_b32 s{sk0}, s{sk0}, 2
""")
    elif KROT == "q2":
        a(f"s_xor_b32 s41, s{sx}, s40\ns_and_b32 s41, s41, 1\ns_lshl_b32 s{sk0}, s41, 3")
    elif KROT == "q3":
        a(f"""
s_and_b32 s41, s{sx}, 1
s_lshl_b32 s41, s41, 1
s_add_u32 s{sk0}, s40, s41
s_and_b32 s41, s{srb}, 1
s_add_u32 s{sk0}, s{sk0}, s41
s_mul_i32 s41, s{sk0}, 11
s_lshr_b32 s41, s41, 5
s_mul_i32 s41, s41, 3
s_sub_u32 s{sk0}, s{sk0}, s41
s_mul_i32 s{sk0}, s{sk0}, 11
s_lshr_b32 s{sk0}, s{sk0}, 1
""")
    else: a(f"s_mov_b32 s{sk0}, 0")
    a.jon = True
    a("s_cmp_lt_u32 s3, 4\ns_cbranch_scc1 L_comp")
    aux(a)
    compute(a)
    a("L_exit:\ns_endpgm\nL_code_end:")

def inter2(a, mf, others, per=2):
    o = list(others)
    for m in mf:
        a(m)
        for _ in range(per):
            if o: a(o.pop(0))
    for x in o: a(x)
def inter3(a, mf, l1, n1, l2, n2):
    l1 = list(l1); l2 = list(l2)
    for m in mf:
        a(m)
        for _ in range(n2):
            if l2: a(l2.pop(0))
        for _ in range(n1):
            if l1: a(l1.pop(0))
    assert not l1 and not l2
class L:
    def __init__(s): s.l = []
    def __call__(s, t): s.l += [x.strip() for x in t.strip("\n").split("\n")]
def maskbuild(a, sm, st, lo=4, step=2):
    a(f"s_mov_b32 s{sm}, 0")
    for i in range(8): a(f"s_cmp_eq_u64 s[{lo+2*i}:{lo+1+2*i}], s[{sEP}:{sEP+1}]\ns_cselect_b32 s{st}, {1 << (step*i):#x}, 0\ns_or_b32 s{sm}, s{sm}, s{st}")

def compute(a):
    vAb, vA, vBb, vB = 8, 10, 12, 14
    vY, vPW = 20, 21
    X, Y, ACC = 24, 64, 104
    vOne, vZero, vEp, vT, vL128 = 232, 233, 234, 235, 254
    QT = lambda dt, mt: ACC + 4 * (mt * 2 + dt)
    KK = lambda mt, nt: ACC + 32 + 4 * ((nt * 2 + (mt >> 1)) * 2 + (mt & 1))
    VV = lambda mt, nt: ACC + 64 + 4 * ((nt * 2 + (mt >> 1)) * 2 + (mt & 1))
    GATE = opt("gate", "kv")
    a("L_comp:")
    a.sst(2)
    KR, WR, KF, WF, TM, VF, UT = 200, 242, 24, 68, 84, 56, 200
    VR = [222, 224, 226, 228, 230, 236, 238, 240]
    vP0, vP1, vP2, vTW = 16, 17, 18, 19
    ids2(a)
    a(f"""
s_lshl_b32 s45, s{ssb}, 18
s_lshl_b32 s46, s3, 16
s_add_u32 s45, s45, s46
s_lshl_b32 s46, s{sdb}, 7
s_add_u32 s45, s45, s46
v_lshrrev_b32 v2, 4, v4
v_and_b32 v1, 15, v4
v_lshlrev_b32 v3, 3, v1
v_lshl_add_u32 v{vP0}, v2, 14, v3
v_add_u32 v{vP0}, s45, v{vP0}
v_subrev_u32 v{vP1}, 6144, v{vP0}
s_movk_i32 s57, 4096
s_movk_i32 s58, 8192
s_movk_i32 s59, 12288
s_mov_b32 s62, {4*MB:#x}
s_mov_b32 s63, 0x20000
s_mov_b32 s66, {4*MB:#x}
s_mov_b32 s67, 0x20000
s_mov_b32 s70, 8192
s_mov_b32 s71, 0x20000
v_lshlrev_b32 v{vP2}, 5, v1
s_lshl_b32 s46, s{sdb}, 9
v_add_u32 v{vP2}, s46, v{vP2}
v_sub_u32 v3, 3, v2
s_lshl_b32 s45, s3, 2
s_sub_u32 s45, 12, s45
v_add_u32 v3, s45, v3
v_and_b32 v6, 7, v4
v_xor_b32 v3, v3, v6
v_lshlrev_b32 v3, 4, v3
v_lshl_add_u32 v3, v1, 10, v3
v_add_u32 v{vTW}, {HB}, v3
s_and_b32 s40, s3, 1
s_lshr_b32 s41, s3, 1
v_bfe_u32 v3, v4, 1, 3
v_xor_b32 v3, v2, v3
v_lshlrev_b32 v3, 4, v3
v_lshl_add_u32 v3, v1, 7, v3
s_lshl_b32 s45, s40, 13
v_add_u32 v{vAb}, s45, v3
v_xor_b32 v{vAb+1}, 64, v{vAb}
v_bfe_u32 v22, v4, 2, 2
v_lshl_add_u32 v3, v2, 3, v22
v_lshlrev_b32 v3, 7, v3
v_and_b32 v7, 3, v4
v_lshlrev_b32 v6, 3, v7
s_lshl_b32 s45, s41, 6
v_add_u32 v6, s45, v6
v_bfe_u32 v7, v4, 3, 1
v_lshlrev_b32 v7, 6, v7
v_xor_b32 v6, v6, v7
v_bfe_u32 v23, v4, 4, 1
v_lshlrev_b32 v7, 5, v23
v_xor_b32 v6, v6, v7
v_add_u32 v3, v3, v6
v_add_u32 v{vBb}, 0x4000, v3
v_xor_b32 v{vBb+1}, 32, v{vBb}
v_mov_b32 v{vB}, v{vBb}
v_mov_b32 v{vB+1}, v{vBb+1}
v_mov_b32 v{vA}, v{vAb}
v_mov_b32 v{vA+1}, v{vAb+1}
v_lshlrev_b32 v{vL128}, 7, v4
v_mov_b32 v{vY}, {SYNC}
v_mov_b32 v{vOne}, 1
v_mov_b32 v{vZero}, 0
v_lshlrev_b32 v6, 2, v4
v_add_u32 v6, {SYNC}, v6
ds_write_b32 v6, v{vZero}
s_lshl_b32 s45, s3, 2
v_add_u32 v{vPW}, s45, v{vY}
s_mov_b32 s53, 0
s_mov_b32 s56, 0xffff0000
s_waitcnt lgkmcnt(0)
{WSOFF}
s_mov_b64 s[60:61], s[{sK}:{sK+1}]
s_mov_b64 s[64:65], s[{sV}:{sV+1}]
s_mov_b64 s[68:69], s[{sSH}:{sSH+1}]
""")
    a.sst(3); a("s_barrier"); a.sst(4)
    so = ["0", "s57", "s58", "s59"]
    for r in range(3): a(f"buffer_load_dwordx2 {vr(KR+2*r,2)}, v{vP1}, s[60:63], {so[r//2]} offen offset:{2048*(r%2)} {FL_KV}")
    for r in range(8): a(f"buffer_load_dwordx2 {vr(KR+6+2*r,2)}, v{vP0}, s[60:63], {so[r//2]} offen offset:{2048*(r%2)} {FL_KV}")
    for i in range(2): a(f"buffer_load_dwordx4 {vr(WR+4*i,4)}, v{vP2}, s[68:71], 0 offen offset:{16*i}")
    for r in range(8): a(f"buffer_load_dwordx2 {vr(VR[r],2)}, v{vP0}, s[64:67], {so[r//2]} offen offset:{2048*(r%2)} {FL_KV}")
    a.sst(5)
    a("s_barrier")
    a.stamp(1)
    A0, A1, BB = 24, 200, 56
    NORD = [2, 3, 4, 5, 0, 1]
    def rdA(A): return [f"ds_read_b128 {vr(A+8*mt+4*k2,4)}, v{vA+k2} offset:{2048*mt}" for mt in range(4) for k2 in range(2)]
    def rdB(g):
        n = NORD[g]
        return [f"ds_read_b64_tr_b16 {vr(BB+8*g+4*k2+2*i2,2)}, v{vB+(n&1)} offset:{(n//2)*8192+k2*4096+i2*512}" for k2 in range(2) for i2 in range(2)]
    def grp(A, g, zero=False):
        r = []
        for mt in range(4):
            for k2 in range(2):
                c = "0" if zero and k2 == 0 else None
                x, y = A + 8 * mt + 4 * k2, BB + 8 * g + 4 * k2
                if g < 2: r.append(mfma16(KK(mt, g), x, y, c))
                elif g < 4: r.append(mfma16(VV(mt, g - 2), x, y, c))
                else: r.append(mfma16(QT(g - 4, mt), y, x, c))
        return r
    advs = [f"s_add_u32 s52, s52, {STG}", f"s_cmp_eq_u32 s52, {3*STG}", "s_cselect_b32 s52, 0, s52"]
    advv = [f"v_add_u32 v{vA}, s52, v{vAb}", f"v_add_u32 v{vA+1}, s52, v{vAb+1}", f"v_add_u32 v{vB}, s52, v{vBb}", f"v_add_u32 v{vB+1}, s52, v{vBb+1}"]
    for r in rdA(A0)[:2] + rdB(0) + rdA(A0)[2:] + rdB(1): a(r)
    a("s_mov_b32 s52, 0")
    w = L(); srd(w, 60, sWS, 32 * MB); srd(w, 68, sOUT, 8 * MB)
    vTR, vUS, TD = [1, 2, 3, 6], 16, 236
    UF = int(opt("uf", "2"))
    w(f"""
v_lshlrev_b32 v3, 12, v2
v_lshl_add_u32 v{vUS}, v1, 4, v3
s_lshl_b32 s45, s{sdb}, 18
s_lshl_b32 s46, s3, 16
s_add_u32 s45, s45, s46
s_lshl_b32 s46, s{ssb}, 8
s_sub_u32 s45, s45, s46
s_add_u32 s45, s45, {WS_UT + 3840}
v_add_u32 v{vUS}, s45, v{vUS}
s_lshl_b32 s45, s3, 12
s_add_u32 s45, s45, {HB}
v_add_u32 v1, s45, v5
s_lshl_b32 s45, s40, 6
v_xor_b32 v1, s45, v1
v_xor_b32 v2, 16, v1
v_xor_b32 v3, 32, v1
v_xor_b32 v6, 48, v1
s_movk_i32 s57, 0x4000
s_mov_b32 s58, 0x8000
s_mov_b32 s59, 0xc000
s_lshl_b32 s43, s{sdb}, 2
s_add_u32 s43, s43, s3
s_lshl_b32 s43, s43, 4
s_add_u32 s43, s43, s{ssb}
s_lshl_b32 s43, s43, 2
{FA(43, FL_U)}
s_movk_i32 s42, {1 + (1 << UF)}
""")
    a("s_waitcnt lgkmcnt(10)")
    m = grp(A0, 0, True)
    a(m[0]); a(m[1])
    for x in rdB(2): a(x)
    a("s_waitcnt lgkmcnt(8)")
    interleave(a, m[2:], rdB(3) + rdB(4)[:2])
    a("s_waitcnt lgkmcnt(10)")
    interleave(a, grp(A0, 1, True), rdB(4)[2:] + rdB(5))
    a("s_waitcnt lgkmcnt(0)")
    interleave(a, grp(A0, 2, True) + grp(A0, 3, True) + grp(A0, 4, True) + grp(A0, 5, True), advs + advv + w.l, 2)
    a("s_waitcnt vmcnt(10)")
    a.sst(6)
    unpack(a, KR, KF, 22, 56)
    a("s_waitcnt vmcnt(8)")
    for p in range(4):
        a(f"v_lshlrev_b32 v{WF+p}, 16, v{WR+2*p}\nv_and_b32 v{WF+4+p}, s56, v{WR+2*p}")
        a(f"v_lshlrev_b32 v{WF+8+p}, 16, v{WR+2*p+1}\nv_and_b32 v{WF+12+p}, s56, v{WR+2*p+1}")
    for i0 in range(0, 8, 2):
        ch = [(i, h) for i in (i0, i0 + 1) for h in range(2)]
        for c, (i, h) in enumerate(ch): a(f"v_pk_mul_f32 {vr(TM+2*c,2)}, {vr(KF+4*(i+3)+2*h,2)}, {vr(WF+2*h,2)}")
        for t in (2, 1):
            for c, (i, h) in enumerate(ch): a(f"v_pk_fma_f32 {vr(TM+2*c,2)}, {vr(KF+4*(i+t)+2*h,2)}, {vr(WF+4*(3-t)+2*h,2)}, {vr(TM+2*c,2)}")
        for c, (i, h) in enumerate(ch): a(f"v_pk_fma_f32 {vr(KF+4*i+2*h,2)}, {vr(KF+4*i+2*h,2)}, {vr(WF+12+2*h,2)}, {vr(TM+2*c,2)}")
    a("s_waitcnt vmcnt(0)")
    for r in range(8): unpack(a, VR[r], VF + 4 * r, 2, 56)
    for h in range(2):
        for i in range(8): a(f"v_pk_mul_f32 {vr(KF+4*i+2*h,2)}, {vr(KF+4*i+2*h,2)}, {vr(VF+4*i+2*h,2)}")
        for e in (2 * h, 2 * h + 1):
            for d in range(4): a(f"v_cvt_pk_bf16_f32 v{UT+4*e+d}, v{KF+4*(7-2*d)+e}, v{KF+4*(6-2*d)+e}")
            a(f"ds_write_b128 v{vTW}, {vr(UT+4*e,4)} offset:{256*e}")
    a("s_waitcnt lgkmcnt(0)\ns_barrier")
    for r in rdA(A0)[:2] + rdB(0) + rdA(A0)[2:]: a(r)
    a("s_waitcnt lgkmcnt(6)")
    for r in rdB(1) + rdB(2): a(r)
    a("s_waitcnt lgkmcnt(8)")
    for r in rdB(3) + rdB(4): a(r)
    a("s_waitcnt lgkmcnt(8)")
    for e in range(4): a(f"ds_read_b128 {vr(TD+4*e,4)}, v{vTR[e]} offset:{1024*e}")
    a("s_branch L_loop1\nL_side:\ns_cmp_eq_u32 s53, 0\ns_cbranch_scc0 L_side2")
    for e in range(4): a(f"buffer_store_dwordx4 {vr(TD+4*e,4)}, v{vUS}, s[60:63], {['0','s57','s58','s59'][e]} offen sc1")
    a(f"""
s_branch L_back
L_side2:
v_readfirstlane_b32 s{sEP}, v{vEp}
s_mov_b32 s45, 0
s_waitcnt vmcnt(0)
s_cmp_lg_u32 s{sEP}, 0
s_cbranch_scc1 L_cepok
L_cep:
ds_read_b32 v{vEp}, v{vY} offset:{Y_EP}
s_add_u32 s45, s45, 1
s_waitcnt lgkmcnt(0)
v_readfirstlane_b32 s{sEP}, v{vEp}
s_cmp_gt_u32 s45, 0x40000
s_cbranch_scc1 L_cepok
s_cmp_eq_u32 s{sEP}, 0
s_cbranch_scc1 L_cep
L_cepok:
s_mov_b32 s{sEP+1}, s{sEP}
""")
    flag_store(a, 60, 43, vEp, vL128)
    a(f"""
s_branch L_back
{opt("lal", "")}
L_loop1:
""")
    def stage(A, An, first):
        interleave(a, grp(A, 0), rdB(5) + ["\n".join(advs)] + ["\n".join(advv[:2]), "\n".join(advv[2:])])
        m = grp(A, 1)
        a("s_waitcnt lgkmcnt(0)"); a(m[0]); a("s_barrier")
        interleave(a, m[1:], rdB(0) + rdA(An)[:3])
        interleave(a, grp(A, 2), rdB(1) + rdA(An)[3:7])
        interleave(a, grp(A, 3), rdB(2) + rdA(An)[7:] + (["s_bitcmp1_b32 s42, s53", "s_cbranch_scc1 L_side\nL_back:"] if first else []))
        interleave(a, grp(A, 4), rdB(3) + ([f"ds_read_b32 v{vEp}, v{vY} offset:{Y_EP}"] if first else []))
        interleave(a, grp(A, 5), ["s_waitcnt lgkmcnt(4)\n" + rdB(4)[0]] + rdB(4)[1:] + ([] if first else ["s_add_u32 s53, s53, 1", "s_cmp_lt_u32 s53, 7"]))
    stage(A0, A1, True); stage(A1, A0, False)
    a("s_cbranch_scc1 L_loop1")
    PK, PV, ONES, T, KV, Z, R, PQ = ACC + 32, ACC + 64, 200, 204, 212, 56, 236, ACC
    pre = [f"s_mov_b32 s54, {LOG2E:#x}", f"s_mov_b32 s55, {LOG2E:#x}", f"s_mov_b32 s56, {EPS:#x}",
           f"s_lshl_b32 s57, s{shk}, 2", "s_add_u32 s57, s57, s3", "s_lshl_b32 s57, s57, 4", f"s_add_u32 s57, s57, s{srb}",
           "s_lshl_b32 s58, s57, 10", f"s_add_u32 s58, s58, {WS_KVP:#x}", "s_lshr_b32 s59, s57, 4", "s_lshl_b32 s59, s59, 11",
           f"s_lshl_b32 s45, s{srb}, 4", "s_add_u32 s59, s59, s45", f"s_add_u32 s59, s59, {WS_ZP:#x}", "s_lshr_b32 s57, s57, 4", "s_lshl_b32 s57, s57, 11", f"s_add_u32 s57, s57, {FL_P:#x}"]
    PROT = opt("prot", "1") == "1"
    pre += ["v_and_b32 v19, 7, v4", f"v_lshlrev_b32 v19, {1 if PROT else 4}, v19", f"v_sub_u32 v19, s{srb}, v19", "v_and_b32 v19, 15, v19", f"v_lshl_add_u32 v19, v19, 2, v{vL128}"]
    pre += ["s_lshl_b32 s45, s3, 11", f"s_add_u32 s45, s45, {XCH}", "v_add_u32 v6, s45, v5", "v_xor_b32 v7, 2048, v6", "s_lshl_b32 s45, s3, 7", f"s_add_u32 s45, s45, {ZX}",
            "v_and_b32 v3, 0x30, v4", "v_add_u32 v16, s45, v3", "v_xor_b32 v17, 128, v16", f"v_xor_b32 v18, 4, v{vPW}"]
    pre += [f"v_mov_b32 v{ONES+i}, 0x3f803f80" for i in range(4)]
    inter3(a, grp(A0, 0) + grp(A0, 1)[:2], pre, 4, rdB(5), 1)
    a(f"s_waitcnt lgkmcnt(0)\nds_write_b32 v{vPW}, v{vOne} offset:{Y_FR}")
    w = L(); phi_pack_np(w, PK, PK, 16, T, 54, 56)
    P1 = opt("p1", "0") == "1"
    if P1: phi_pack_np(w, PK + 16, PK + 16, 16, T, 54, 56)
    inter2(a, grp(A0, 1)[2:] + grp(A0, 2) + grp(A0, 3), w.l, int(opt("kfi", "3")))
    a.stamp(2)
    a(f"s_setprio {opt('cprio', '2')}")
    pk1 = phi_pack if GATE != "none" else phi_pack_np
    pack(a, PV, PV, 32)
    for dt in range(2):
        if dt == 1 and not P1: pk1(a, PK + 16, PK + 16, 16, T, 54, 56)
        a("s_nop 1")
        for p in range(2):
            c = "0" if p == 0 else None
            for et in range(2): a(mfma16(KV + 4 * (et * 2 + dt), PK + 16 * dt + 4 * p, PV + 8 * et + 4 * p, c))
            a(mfma16(Z + 4 * dt, PK + 16 * dt + 4 * p, ONES, c))
    a("s_cmp_eq_u32 s40, 0\ns_nop 5\ns_cbranch_scc1 L_x0")
    for i in range(8): a(f"v_swap_b32 v{KV+i}, v{KV+8+i}")
    a("L_x0:")
    a(f"ds_write_b128 v6, {vr(KV+8,4)}\nds_write_b128 v6, {vr(KV+12,4)} offset:1024")
    a(f"ds_write_b128 v16, {vr(Z,4)}\nds_write_b128 v16, {vr(Z+4,4)} offset:64")
    a(f"""
ds_write_b32 v{vPW}, v{vOne} offset:{Y_XC}
s_mov_b32 s45, 0
L_xspin:
ds_read_b32 v{vT}, v18 offset:{Y_XC}
ds_read_b128 {vr(R,4)}, v7
ds_read_b128 {vr(R+4,4)}, v7 offset:1024
ds_read_b128 {vr(R+8,4)}, v17
ds_read_b128 {vr(R+12,4)}, v17 offset:64
s_add_u32 s45, s45, 1
s_waitcnt lgkmcnt(4)
v_readfirstlane_b32 s46, v{vT}
s_cmp_gt_u32 s45, 0x40000
s_cbranch_scc1 L_xdone
s_cmp_eq_u32 s46, 0
s_cbranch_scc1 L_xspin
L_xdone:
s_waitcnt lgkmcnt(2)
""")
    def add8(d, r):
        if GATE != "none":
            for i in range(4): a(f"v_pk_add_f32 {vr(d+2*i,2)}, {vr(d+2*i,2)}, {vr(r+2*i,2)}")
        else:
            for i in range(8): a(f"v_add_f32 v{d+i}, v{d+i}, v{r+i}")
    add8(KV, R)
    pack(a, KV, KV + 8, 8)
    a(f"buffer_store_dwordx4 {vr(KV+8,4)}, v5, s[60:63], s58 offen sc1")
    a("s_waitcnt lgkmcnt(0)")
    add8(Z, R + 8)
    pack(a, Z, KV + 12, 8)
    a("s_mov_b32 exec_lo, 0x10001\ns_mov_b32 exec_hi, 0x10001")
    a(f"buffer_store_dwordx4 {vr(KV+12,4)}, v5, s[60:63], s59 offen sc1")
    a("s_mov_b64 exec, -1")
    if GATE == "kv": a(f"ds_write_b32 v{vPW}, v{vOne} offset:{Y_KD}")
    a.stamp(3)
    PP, AC, ZZ, SEL, D1, B2, DN, EQ, KO, KP = 24, 88, 96, 8, 212, 136, 152, 168, 172, 176
    PS = opt("ps", "0") == "1"
    if PS: PQ = 180
    su = L()
    su(f"""
s_lshl_b32 s47, s{shq}, 1
s_add_u32 s47, s47, s41
s_lshl_b32 s44, s{shq}, 2
s_add_u32 s44, s44, s3
s_lshl_b32 s58, s44, 14
s_add_u32 s58, s58, {WS_KVP:#x}
s_lshl_b32 s59, s44, 11
s_add_u32 s59, s59, {WS_ZP:#x}
s_lshl_b32 s44, s44, 6
{FC(44, FL_P, srb)}
s_lshl_b32 s45, s41, 2
v_add_u32 v14, s45, v{vY}
v_mov_b32 v6, 0x3f80
v_and_b32 v7, 1, v4
v_lshlrev_b32 v7, 4, v7
v_lshlrev_b32 v6, v7, v6
v_lshrrev_b32 v2, 4, v4
v_cmp_eq_u32 vcc, v2, v22
v_bfe_u32 v7, v4, 1, 1
v_mov_b32 v{SEL}, 0
v_cndmask_b32 v6, 0, v6, vcc
v_cmp_eq_u32 vcc, 0, v7
v_mov_b32 v{SEL+1}, 0
v_mov_b32 v{SEL+4}, 0
v_cndmask_b32 v{SEL+2}, 0, v6, vcc
v_cndmask_b32 v{SEL+3}, v6, v{vZero}, vcc
v_mov_b32 v{SEL+5}, 0
s_lshl_b32 s45, s3, 10
s_add_u32 s45, s45, {KVL}
v_add_u32 v6, s45, v5
s_xor_b32 s45, s3, 1
s_lshl_b32 s45, s45, 10
s_add_u32 s45, s45, {KVL}
v_add_u32 v7, s45, v5
s_lshl_b32 s48, s{srb}, 3
s_lshl_b32 s45, s40, 2
s_add_u32 s48, s48, s45
s_lshl_b32 s48, s48, 15
s_lshl_b32 s45, s47, 10
s_add_u32 s48, s48, s45
s_add_u32 s48, s48, {WS_O:#x}
s_lshl_b32 s49, s{srb}, 1
s_add_u32 s49, s49, s40
s_lshl_b32 s49, s49, 7
s_lshl_b32 s45, s47, 2
s_add_u32 s49, s49, s45
{FA(49, FL_O)}
s_mov_b32 s50, 0
s_mov_b32 s51, 0
s_mov_b32 s53, 0
s_mov_b32 s46, 0
s_and_b32 s43, s{srb}, {7 if PROT else 0}
""")
    g4, g5 = grp(A0, 4), grp(A0, 5)
    qm = [x for mt in range(4) for x in g4[2 * mt:2 * mt + 2] + g5[2 * mt:2 * mt + 2]]
    inter2(a, qm, su.l, 4)
    phiq = phi_keep if PS else phi_pack if GATE == "pq" else phi_pack_np
    NQ1 = int(opt("nq1", "2"))
    if NQ1: phiq(a, ACC, PQ, 8 * NQ1, T, 54, 56)
    a("s_waitcnt vmcnt(0)")
    flag_store(a, 60, 57, vEp, 19)
    a(f"s_load_dwordx16 s[4:19], s[{sWS}:{sWS+1}], s44 glc")
    a.stamp(4)
    for mt in range(NQ1, 4): phiq(a, ACC + 8 * mt, PQ + 4 * mt, 8, T, 54, 56)
    if GATE == "pq": a(f"ds_write_b32 v{vPW}, v{vOne} offset:{Y_KD}")
    for i in range(4): a(f"v_mov_b64 {vr(AC+2*i,2)}, 0\nv_mov_b64 {vr(B2+4*i+2,2)}, 0\nv_mov_b32 v{EQ+i}, s56")
    a("s_setprio 3")
    def accm(j):
        for i in range(2):
            a(mfma16(AC, SEL + 2, PP + 8 * j + 4 * i)); a(mfma16(AC + 4, SEL, PP + 8 * j + 4 * i))
    for k in range(8):
        a(f"s_cmp_eq_u32 s46, 0\ns_cbranch_scc1 L_poll{k}\nL_go{k}:\ns_ff1_i32_b32 s45, s46\ns_bitset0_b32 s46, s45\ns_add_u32 s45, s45, s43\ns_and_b32 s45, s45, 7\ns_lshl_b32 s45, s45, 11\ns_add_u32 s45, s45, s58")
        for i in range(2): a(f"buffer_load_dwordx4 {vr(PP+8*k+4*i,4)}, v5, s[60:63], s45 offen offset:{1024*i} sc1")
        a(f"s_bitset1_b32 s51, {k}")
    a("s_branch L_fin")
    for k in range(8):
        a(f"L_poll{k}:\ns_waitcnt lgkmcnt(0)")
        for i in range(7, -1, -1): a(f"s_cmp_eq_u64 s[{4+2*i}:{5+2*i}], s[{sEP}:{sEP+1}]\ns_addc_u32 s46, s46, s46")
        a(f"""
s_add_u32 s53, s53, 1
s_cmp_gt_u32 s53, 0x8000
s_cselect_b32 s46, 0xff, s46
s_andn2_b32 s46, s46, s50
s_or_b32 s50, s50, s46
s_cmp_eq_u32 s50, 0xff
s_cbranch_scc0 L_pm{k}
buffer_load_dwordx4 {vr(ZZ,4)}, v5, s[60:63], s59 offen sc1
s_mov_b32 s47, s51
s_mov_b32 s52, {k}
""")
        if STAMP: a.stamp(5)
        a(f"""
s_branch L_go{k}
L_pm{k}:
s_load_dwordx16 s[4:19], s[{sWS}:{sWS+1}], s44 glc
s_cmp_lg_u32 s46, 0
s_cbranch_scc1 L_go{k}
""")
        if k == 0: a("s_branch L_poll0")
        else: a(f"s_cmp_eq_u32 s51, 0\ns_cbranch_scc1 L_poll{k}\ns_mov_b32 s52, {k}\ns_branch L_acc")
    a("L_acc:\ns_waitcnt vmcnt(0)")
    for j in range(7):
        a(f"s_bitcmp1_b32 s51, {j}\ns_cbranch_scc0 L_ac{j}"); accm(j); a(f"L_ac{j}:")
    a("s_mov_b32 s51, 0")
    for k in range(1, 7): a(f"s_cmp_eq_u32 s52, {k}\ns_cbranch_scc1 L_poll{k}")
    a("s_branch L_poll7\nL_fin:")
    a("s_cmp_eq_u32 s47, 0\ns_cbranch_scc1 L_pz")
    for k in range(1, 7): a(f"s_cmp_eq_u32 s52, {k}\ns_cbranch_scc1 L_pv{k}")
    a("s_waitcnt vmcnt(3)\ns_branch L_pvd")
    for k in range(1, 7): a(f"L_pv{k}:\ns_waitcnt vmcnt({2*(8-k)+1})" + ("\ns_branch L_pvd" if k < 6 else ""))
    a("L_pvd:")
    for j in range(7):
        a(f"s_bitcmp1_b32 s47, {j}\ns_cbranch_scc0 L_ao{j}"); accm(j); a(f"L_ao{j}:")
    a("L_pz:")
    OST = opt("ost", "0") == "1"
    for k in range(7): a(f"s_cmp_eq_u32 s52, {k}\ns_cbranch_scc1 L_pw{k}")
    a("s_waitcnt vmcnt(2)\ns_branch L_pwd")
    for k in range(7): a(f"L_pw{k}:\ns_waitcnt vmcnt({2*(8-k)})" + ("\ns_branch L_pwd" if k < 6 else ""))
    a("L_pwd:")
    if OST: a.stamp(7)
    for i in range(4): a(mfma16(D1 + 4 * i, ZZ, PQ + 4 * i, "0"))
    a("s_nop 4")
    for i in range(4): a(f"v_cvt_pk_bf16_f32 v{B2+4*i}, v{D1+4*i}, v{D1+4*i+1}\nv_cvt_pk_bf16_f32 v{B2+4*i+1}, v{D1+4*i+2}, v{D1+4*i+3}")
    a("s_nop 0")
    for i in range(4): a(mfma16(DN + 4 * i, ONES, B2 + 4 * i, vr(EQ, 4)))
    if PS:
        a("s_nop 4")
        for i in range(4): a(f"v_rcp_f32 v{DN+4*i}, v{DN+4*i}")
        for i in range(4):
            for p in range(8): a(f"v_mul_f32 v{ACC+8*i+p}, v{ACC+8*i+p}, v{DN+4*i}")
            pack(a, ACC + 8 * i, PQ + 4 * i, 8)
    for k in range(7, 0, -1): a(f"s_cmp_eq_u32 s52, {k}\ns_cbranch_scc1 L_an{k}")
    for j in range(8):
        a(f"L_an{j}:\ns_waitcnt vmcnt({2*(7-j)})"); accm(j)
    if OST: a.stamp(8)
    if PS: a("s_nop 7")
    else:
        a("s_nop 3")
        for i in range(4): a(f"v_rcp_f32 v{DN+4*i}, v{DN+4*i}")
    pack(a, AC, KO, 8)
    NO, NP, OP = 24, 40, 56
    a(f"ds_write_b128 v6, {vr(KO,4)}\nds_write_b32 v{vPW}, v{vOne} offset:{Y_K2}\nds_read_b32 v{vT}, v18 offset:{Y_K2}\nds_read_b128 {vr(KP,4)}, v7")
    for i in range(4): a(mfma16(NO + 4 * i, KO, PQ + 4 * i, "0"))
    a("s_mov_b32 s45, 0\ns_nop 3\ns_cmp_eq_u32 s40, 0")
    OPK = opt("opk", "0") == "1"
    def mul4(r, d):
        if PS: return
        if OPK:
            for p in range(2): a(f"v_pk_mul_f32 {vr(r+2*p,2)}, {vr(r+2*p,2)}, {vr(d,2)} op_sel_hi:[1,0]")
        else:
            for p in range(4): a(f"v_mul_f32 v{r+p}, v{r+p}, v{d}")
    for i in range(4): mul4(NO + 4 * i, DN + 4 * i)
    a("s_cbranch_scc0 L_o1")
    for wr in range(2):
        if wr: a("L_o1:")
        for i in range(4): pack(a, NO + 4 * i, OP + 4 * i + 2 * wr, 4)
        a(f"""
s_branch L_ks{wr}g
L_ks{wr}:
ds_read_b32 v{vT}, v18 offset:{Y_K2}
ds_read_b128 {vr(KP,4)}, v7
L_ks{wr}g:
s_add_u32 s45, s45, 1
s_waitcnt lgkmcnt(0)
v_readfirstlane_b32 s46, v{vT}
s_cmp_gt_u32 s45, 0x40000
s_cbranch_scc1 L_kd{wr}
s_cmp_eq_u32 s46, 0
s_cbranch_scc1 L_ks{wr}
L_kd{wr}:
""")
        for i in range(4): a(mfma16(NP + 4 * i, KP, PQ + 4 * i, "0"))
        a("s_nop 4")
        for i in range(4):
            if PS and i: a("s_nop 0")
            mul4(NP + 4 * i, DN + 4 * i)
            pack(a, NP + 4 * i, OP + 4 * i + 2 * (1 - wr), 4)
            a(f"buffer_store_dwordx4 {vr(OP+4*i,4)}, v5, s[60:63], s48 offen sc1")
            if i < 3: a("s_add_u32 s48, s48, 0x8000")
        if wr == 0: a("s_branch L_o2")
    a("L_o2:")
    if GATE == "o": a(f"ds_write_b32 v{vPW}, v{vOne} offset:{Y_KD}")
    a.stamp(9)
    OF, WX, WY, C, PO = 24, 88, 104, 120, 172
    vWb, vWA, vWB = 236, 8, 244
    a(f"""
s_lshl_b32 s59, s{sg_rb}, 3
s_lshl_b32 s45, s3, 1
s_add_u32 s59, s59, s45
s_lshl_b32 s45, s59, 15
s_add_u32 s45, s45, {WS_O:#x}
v_add_u32 v242, 0x8000, v5
s_mov_b32 s51, 0x55555555
""")
    srd_off(a, 64, sWS, "s45", 65536)
    a(f"""
s_lshl_b32 s52, s{sg_rb}, 8
s_lshl_b32 s46, s3, 6
s_add_u32 s52, s52, s46
{FC(52, FL_O, sg_cb)}
v_lshrrev_b32 v6, 2, v4
v_lshlrev_b32 v6, 7, v6
v_and_b32 v7, 3, v4
v_lshl_add_u32 v6, v7, 3, v6
v_bfe_u32 v7, v4, 3, 1
v_lshl_add_u32 v6, v7, 6, v6
v_lshl_add_u32 v{vWb}, v23, 5, v6
v_xor_b32 v{vWb+1}, 32, v{vWb}
v_xor_b32 v{vWb+2}, 64, v{vWb}
v_xor_b32 v{vWb+3}, 0x60, v{vWb}
s_lshl_b32 s57, s3, 11
s_add_u32 s57, s57, {XCH}
v_lshrrev_b32 v7, 5, v4
v_lshl_add_u32 v6, v23, 1, v7
v_and_b32 v7, 7, v4
v_xor_b32 v6, v6, v7
v_lshlrev_b32 v6, 4, v6
v_and_b32 v3, 15, v4
v_lshl_add_u32 v6, v3, 7, v6
v_add_u32 v15, s57, v6
v_xor_b32 v18, 64, v15
v_lshrrev_b32 v6, 3, v4
v_lshlrev_b32 v3, 4, v7
v_lshl_add_u32 v17, v6, 12, v3
v_xor_b32 v7, v7, v6
v_lshlrev_b32 v7, 4, v7
v_lshl_add_u32 v6, v6, 7, v7
v_add_u32 v16, s57, v6
s_mov_b32 s50, 0
s_mov_b32 s53, 0
s_mov_b32 s54, 0
s_lshl_b32 s55, s40, 4
s_and_b32 s42, s{sg_rb}, {3 if opt("wrot", "1") == "1" else 0}
s_lshl_b32 s42, s42, 3
""")
    for i in range(10): a(f"v_mov_b64 {vr(C+2*i,2)}, 0")
    a(f"s_load_dwordx16 s[4:19], s[{sWS}:{sWS+1}], s52 glc")
    for i in range(10, 16): a(f"v_mov_b64 {vr(C+2*i,2)}, 0")
    a("s_waitcnt vmcnt(0)")
    flag_store(a, 60, 49, vEp, vL128)
    a.stamp(6)
    a("s_waitcnt lgkmcnt(0)")
    maskbuild(a, 54, 46)
    a(f"s_lshl_b32 s46, s54, s55\ns_mov_b32 s47, s46\ns_lshr_b64 s[46:47], s[46:47], s42\nv_mov_b32 v{vT}, s46\ns_mov_b64 exec, 1\nds_or_b32 v14, v{vT} offset:{Y_CO}\ns_mov_b64 exec, -1")
    a(f"s_setprio {opt('gprio', '2')}")
    selno = [0]
    def select(slot):
        n = selno[0]; selno[0] += 1
        a(f"""
s_cmp_lg_u32 s50, 0
s_cbranch_scc1 L_sel{n}_ok
s_mov_b32 s45, 0
s_cmp_lg_u32 s51, 0
s_cbranch_scc1 L_sel{n}
s_mov_b32 s66, 0
s_mov_b32 s50, 0x55555555
s_branch L_sel{n}_ok
L_sel{n}:
ds_read_b32 v{vT}, v14 offset:{Y_CO}
ds_read_b32 v13, v{vY} offset:{Y_WM}
s_add_u32 s45, s45, 1
s_waitcnt lgkmcnt(0)
v_and_b32 v13, v13, v{vT}
s_cmp_gt_u32 s45, 0x40000
s_cselect_b32 s46, -1, 0
v_readfirstlane_b32 s50, v13
s_nop 3
s_or_b32 s50, s50, s46
s_and_b32 s50, s50, s51
s_cbranch_scc1 L_sel{n}_ok
s_cmp_lg_u32 s54, 0x5555
s_cbranch_scc1 L_sel{n}_p
s_sleep 1
s_branch L_sel{n}
L_sel{n}_p:
s_load_dwordx16 s[4:19], s[{sWS}:{sWS+1}], s52 glc
s_add_u32 s45, s45, 8
s_waitcnt lgkmcnt(0)
""")
        maskbuild(a, 54, 46)
        a(f"s_lshl_b32 s46, s54, s55\ns_mov_b32 s47, s46\ns_lshr_b64 s[46:47], s[46:47], s42\nv_mov_b32 v{vT}, s46\ns_mov_b64 exec, 1\nds_or_b32 v14, v{vT} offset:{Y_CO}\ns_mov_b64 exec, -1")
        a(f"s_branch L_sel{n}\nL_sel{n}_ok:")
        return [f"s_ff1_i32_b32 s46, s50", "s_bitset0_b32 s50, s46\ns_add_u32 s48, s46, s42", "s_and_b32 s48, s48, 31\ns_lshl_b32 s48, s48, 10", "s_bitset0_b32 s51, s46", f"s_lshl_b32 s{28+slot}, s46, 12"]
    def oload(slot):
        return [f"buffer_load_dwordx4 {vr(OF+16*slot+8*hh+4*rt,4)}, v{[5,242][rt]}, s[64:67], s48 offen offset:{1024*hh} {OSC}" for hh in range(2) for rt in range(2)]
    def wreads(S, hh, vw):
        return [f"ds_read_b64_tr_b16 {vr(S+4*ct+2*i2,2)}, v{vw+ct} offset:{hh*4096+i2*2048}" for ct in range(4) for i2 in range(2)]
    def wset(slot, vw): return [f"v_add_u32 v{vw+i}, s{28+slot}, v{vWb+i}" for i in range(4)]
    for sl in range(3):
        for x in select(sl): a(x)
        if sl == 0 and not OST: a.stamp(7)
        for x in oload(sl): a(x)
    for x in wset(0, vWA): a(x)
    for r in wreads(WX, 0, vWA): a(r)
    a("L_gloop:")
    for u in range(4):
        cur, nxt = (vWA, vWB) if u % 2 == 0 else (vWB, vWA)
        sel = select((u + 3) % 4)
        ol = oload((u + 3) % 4)
        a("s_waitcnt vmcnt(10) lgkmcnt(0)")
        if TRACE: a("s_memrealtime s[100:101]")
        m = [mfma16(C + 4 * (rt * 4 + ct), WX + 4 * ct, OF + 16 * u + 4 * rt) for rt in range(2) for ct in range(4)]
        interleave(a, m, wreads(WY, 1, cur) + wset((u + 1) % 4, nxt) + sel[:4], 2)
        a("s_waitcnt vmcnt(8) lgkmcnt(0)")
        if TRACE: a(f"s_lshl_b32 m0, s53, 2\ns_add_u32 m0, m0, {u}\ns_nop 0\nv_writelane_b32 v252, s100, m0")
        m = [mfma16(C + 4 * (rt * 4 + ct), WY + 4 * ct, OF + 16 * u + 8 + 4 * rt) for rt in range(2) for ct in range(4)]
        if u == 3: oth = wreads(WX, 0, nxt) + [ol[0], ol[1], sel[4], ol[2], "s_add_u32 s53, s53, 1", ol[3], "s_cmp_lt_u32 s53, 4"]
        else: oth = wreads(WX, 0, nxt) + [ol[0], sel[4], ol[1]] + [None, ol[2], None, ol[3]]
        o2 = list(oth)
        for mm in m:
            a(mm)
            for _ in range(2):
                if o2:
                    x = o2.pop(0)
                    if x: a(x)
        for x in o2:
            if x: a(x)
    a("s_cbranch_scc1 L_gloop")
    if not OST: a.stamp(8)
    a(f"""
s_lshl_b32 s48, s59, 16
s_lshl_b32 s49, s{sg_cb}, 7
s_add_u32 s48, s48, s49
s_add_u32 s49, s48, 0x8000
s_add_u32 s50, s48, 0x10000
s_add_u32 s51, s48, 0x18000
s_waitcnt lgkmcnt(0)
""")
    pack(a, C, PO, 32)
    a("s_nop 1")
    for q in range(4):
        a(f"v_permlane16_swap_b32 v{PO+4*q}, v{PO+4*q+2}\nv_permlane16_swap_b32 v{PO+4*q+1}, v{PO+4*q+3}")
    for rt in range(2):
        for qq in range(2): a(f"ds_write_b128 v{[15,18][qq]}, {vr(PO+8*rt+4*qq,4)}")
        for i in range(2): a(f"ds_read_b128 {vr(WX+8*rt+4*i,4)}, v16 offset:{1024*i}")
    for q in range(4):
        a(f"s_waitcnt lgkmcnt({[5,4,1,0][q]})")
        a(f"buffer_store_dwordx4 {vr(WX+4*q,4)}, v17, s[68:71], s{48+q} offen {FL_OUT}")
    if TRACE:
        a(f"v_writelane_b32 v252, s90, 16\ns_lshl_b32 s100, s2, 10\ns_add_u32 s100, s100, {WS_ST + 0x200000:#x}\nv_lshlrev_b32 v253, 2, v0\nbuffer_store_dword v252, v253, s[60:63], s100 offen")
    a.end()

def aux(a):
    vOA, vOB = 8, 12
    vZero, vEp, vOne, vY, vT = 6, 7, 14, 15, 3
    a(f"""
s_sub_u32 s3, s3, 4
v_lshrrev_b32 v1, 3, v4
v_and_b32 v2, 7, v4
v_lshrrev_b32 v3, 4, v4
v_xor_b32 v6, v2, v3
v_lshlrev_b32 v6, 4, v6
v_lshl_add_u32 v6, v1, 11, v6
s_lshl_b32 s60, s{srb}, 7
s_lshl_b32 s61, s3, 5
s_add_u32 s60, s60, s61
s_lshl_b32 s60, s60, 11
v_add_u32 v{vOA}, s60, v6
v_xor_b32 v6, 64, v{vOA}
v_add_u32 v{vOA+1}, {16384-1024}, v6
v_add_u32 v{vOA+2}, {2*(16384-1024)}, v{vOA}
v_add_u32 v{vOA+3}, {3*(16384-1024)}, v6
v_and_b32 v3, 1, v3
v_lshlrev_b32 v3, 2, v3
v_xor_b32 v7, v2, v3
v_lshlrev_b32 v7, 4, v7
v_xor_b32 v6, 32, v7
s_movk_i32 s61, 6144
v_mad_u32_u24 v7, v1, s61, v7
v_mad_u32_u24 v6, v1, s61, v6
s_mul_i32 s60, s3, {16*6144}
v_add_u32 v{vOB}, s60, v7
s_add_u32 s60, s60, {8*6144-1024}
v_add_u32 v{vOB+1}, s60, v6
s_lshl_b32 s65, s3, 12
s_lshl_b32 s66, s3, 11
s_add_u32 s66, s66, 0x4000
s_mov_b32 s64, 0
s_mov_b32 s67, s{sk0}
s_lshl_b32 s74, s{shq}, 7
s_lshl_b32 s75, s{shk}, 7
s_add_u32 s75, s75, 2048
s_mov_b32 s42, {4*MB:#x}
s_mov_b32 s43, 0x20000
s_mov_b32 s46, {6*MB:#x}
s_mov_b32 s47, 0x20000
s_waitcnt lgkmcnt(0)
s_mov_b64 s[40:41], s[{sX}:{sX+1}]
s_mov_b64 s[44:45], s[{sW}:{sW+1}]
""")
    vm = VM(a)
    def issue(tag):
        a(f"s_add_u32 m0, s64, s65\ns_lshl_b32 s60, s67, 7\ns_mul_i32 s63, s67, {64*6144}")
        for i in range(4): a(f"buffer_load_dwordx4 v{vOA+i}, s[40:43], s60 offen offset:{1024*i} {FL_XW} lds")
        a(f"s_add_u32 m0, s64, s66\ns_add_u32 s61, s63, s74\ns_add_u32 s62, s63, s75")
        for i in range(2): a(f"buffer_load_dwordx4 v{vOB+i}, s[44:47], s61 offen offset:{1024*i} {FL_XW} lds")
        a(f"s_add_u32 m0, m0, 8192\ns_add_u32 s63, s62, 2048")
        for i in range(2): a(f"buffer_load_dwordx4 v{vOB+i}, s[44:47], s62 offen offset:{1024*i} {FL_XW} lds")
        a(f"s_add_u32 m0, m0, 8192\ns_add_u32 s67, s67, 1")
        for i in range(2): a(f"buffer_load_dwordx4 v{vOB+i}, s[44:47], s63 offen offset:{1024*i} {FL_XW} lds")
        a(f"s_and_b32 s67, s67, 15\ns_add_u32 s64, s64, {STG}\ns_cmp_eq_u32 s64, {3*STG}\ns_cselect_b32 s64, 0, s64")
        vm.issue(tag, 10)
    def B(i): vm.wait(i); a.bar()
    a.sst(2)
    issue(0)
    a.sst(3)
    a("s_barrier")
    a.sst(4)
    ids2(a)
    a(f"v_mov_b32 v{vZero}, 0\nv_mov_b32 v{vOne}, 1\nv_mov_b32 v{vY}, {SYNC}\nv_lshlrev_b32 v255, 7, v4\n{WSOFF}")
    srd(a, 48, sWS, 32 * MB)
    srd(a, 52, sDBG, 256)
    a(f"""
s_or_b32 s60, s2, s3
s_cmp_eq_u32 s60, 0
s_cbranch_scc0 L_noep
s_memrealtime s[60:61]
s_waitcnt lgkmcnt(0)
s_or_b32 s60, s60, 1
v_mov_b32 v{vEp}, s60
s_mov_b64 exec, 1
buffer_store_dword v{vEp}, v{vZero}, s[52:55], 0 offen sc1
s_mov_b64 exec, -1
L_noep:
""")
    P, Qs, CACC, W2, QQ = 32, 96, 160, 192, 224
    VU = [240, 241, 242, 243]; vH, vE, vS, vTR, vHP = 244, 245, 246, 247, 251
    vUS, vHL, vO = 25, 26, 20
    a(f"""
s_mul_i32 s68, s3, {HCH}
s_add_u32 s68, s68, {HB}
s_lshl_b32 s69, s{ssb}, 7
s_lshl_b32 s70, s3, 5
s_add_u32 s69, s69, s70
v_lshrrev_b32 v28, 4, v4
v_bfe_u32 v29, v4, 2, 2
v_and_b32 v30, 3, v4
v_and_b32 v31, 15, v4
s_lshl_b32 s60, s3, 12
s_add_u32 s60, s60, {HB}
v_add_u32 v{vTR}, s60, v5
s_and_b32 s60, s3, 1
s_lshl_b32 s60, s60, 6
v_xor_b32 v{vTR}, s60, v{vTR}
v_xor_b32 v{vTR+1}, 16, v{vTR}
v_xor_b32 v{vTR+2}, 32, v{vTR}
v_xor_b32 v{vTR+3}, 48, v{vTR}
v_lshlrev_b32 v3, 12, v28
v_lshl_add_u32 v{vUS}, v31, 4, v3
s_lshl_b32 s60, s{sdb}, 18
s_lshl_b32 s61, s3, 16
s_add_u32 s60, s60, s61
s_lshl_b32 s61, s{ssb}, 8
s_sub_u32 s60, s60, s61
s_add_u32 s60, s60, {WS_UT + 3840}
v_add_u32 v{vUS}, s60, v{vUS}
v_lshlrev_b32 v{vHL}, 5, v4
v_and_b32 v3, 1, v28
v_lshlrev_b32 v3, 2, v3
v_xor_b32 v3, v2, v3
v_lshrrev_b32 v27, 5, v4
v_lshlrev_b32 v27, 1, v27
v_xor_b32 v3, v27, v3
v_lshlrev_b32 v3, 4, v3
v_lshl_add_u32 v3, v1, 11, v3
s_lshl_b32 s60, s{sg_cb}, 7
v_add_u32 v{vO}, s60, v3
v_add_u32 v{vO+1}, {16384-1024}, v{vO}
v_add_u32 v{vO+2}, {2*(16384-1024)}, v{vO}
v_add_u32 v{vO+3}, {3*(16384-1024)}, v{vO}
s_mov_b32 s70, 0xffff0000
v_and_b32 v3, 1, v28
s_movk_i32 s60, {HP}
v_mul_u32_u24 v3, s60, v3
v_lshl_add_u32 v3, v31, 4, v3
v_add_u32 v{vHP}, s68, v3
s_mul_i32 s71, s3, {UCH}
s_add_u32 s71, s71, {U0}
v_add_u32 v19, s71, v5
s_movk_i32 s61, {CPY}
v_and_b32 v24, 1, v29
v_mul_u32_u24 v24, s61, v24
v_lshl_add_u32 v24, v30, 4, v24
v_add_u32 v24, s71, v24
v_add_u32 v3, 1, v31
v_and_b32 v16, 1, v3
v_add_u32 v17, v16, v31
v_mul_u32_u24 v3, s61, v16
v_lshl_add_u32 v3, v28, 5, v3
v_lshlrev_b32 v17, 1, v17
v_sub_u32 v3, v3, v17
s_add_u32 s60, s71, {4014 - 512 - 16}
v_add_u32 v{VU[0]}, s60, v3
v_subrev_u32 v{VU[1]}, 1024, v{VU[0]}
v_subrev_u32 v{VU[2]}, 2048, v{VU[0]}
v_subrev_u32 v{VU[3]}, 3072, v{VU[0]}
v_add_u32 v3, v31, v28
s_add_u32 s60, s68, 208
v_lshlrev_b32 v3, 4, v3
v_add_u32 v{vH}, s60, v3
v_lshlrev_b32 v3, 5, v31
v_lshl_add_u32 v16, v28, 3, v3
s_add_u32 s60, s71, {4088 - 3584}
v_sub_u32 v{vE}, s60, v16
v_and_b32 v16, 1, v28
v_lshl_add_u32 v3, v16, 9, v3
v_lshrrev_b32 v16, 5, v4
v_lshl_add_u32 v{vS}, v16, 4, v3
v_lshlrev_b32 v27, 4, v2
v_lshl_add_u32 v16, v1, 11, v27
v_lshl_add_u32 v17, v1, 12, v27
s_add_u32 s39, s{sch}, s3
s_and_b32 s60, s39, 0xfffffffe
s_lshl_b32 s60, s60, 1
s_load_dword s71, s[{sD}:{sD+1}], s60
s_lshl_b32 s61, s39, 12
""")
    for i in range(16): a(f"v_mov_b64 {vr(CACC+2*i,2)}, 0")
    srd_off(a, 52, sH, "s61", 4096); srd(a, 56, sWO, 2 * MB)
    a(f"s_waitcnt lgkmcnt(0)\ns_mov_b32 s20, s{sQ}\ns_mov_b32 s21, s{sQ+1}")
    def hload():
        a(f"s_add_u32 m0, s68, 256\ns_movk_i32 s60, 1024\ns_movk_i32 s61, 1040")
        a(f"buffer_load_dwordx4 v{vHL}, s[52:55], 0 offen {FL_KV} lds\nbuffer_load_dwordx4 v{vHL}, s[52:55], s60 offen offset:1024 {FL_KV} lds")
        a(f"s_add_u32 m0, s68, {HP+256}\ns_nop 0")
        a(f"buffer_load_dwordx4 v{vHL}, s[52:55], 16 offen {FL_KV} lds\nbuffer_load_dwordx4 v{vHL}, s[52:55], s61 offen offset:1024 {FL_KV} lds")
        vm.issue("h", 4)
    def epoch():
        a(f"""
s_waitcnt lgkmcnt(0)
s_mov_b32 s60, 0
L_eploop:
s_cmp_lg_u32 s{sEP}, 0
s_cbranch_scc1 L_epok
s_sleep 8
s_load_dword s{sEP}, s[{sDBG}:{sDBG+1}], 0 glc
s_add_u32 s60, s60, 1
s_cmp_gt_u32 s60, 0x4000
s_waitcnt lgkmcnt(0)
s_cbranch_scc0 L_eploop
L_epok:
s_mov_b32 s{sEP+1}, s{sEP}
v_mov_b32 v{vEp}, s{sEP}
ds_write_b32 v{vY}, v{vEp} offset:{Y_EP}
""")
    a.sst(5); vm.wait(0); a.sst(6)
    B(0); issue(1); issue(2)
    B(1); issue(3)
    a.stamp(9)
    B(2); issue(4)
    a(f"s_load_dword s{sEP}, s[{sDBG}:{sDBG+1}], 0")
    D, E, O = 32, 48, 52
    H0 = int(opt("h0", "14")); D0 = int(opt("d0", "14")); HN = int(opt("hn", "1")); DN_ = int(opt("dn", "1"))
    hl = [(f"s_add_u32 m0, s68, 256", f"buffer_load_dwordx4 v{vHL}, s[52:55], 0 offen {FL_KV} lds"),
          (f"s_add_u32 m0, s68, 256\ns_movk_i32 s60, 1024", f"buffer_load_dwordx4 v{vHL}, s[52:55], s60 offen offset:1024 {FL_KV} lds"),
          (f"s_add_u32 m0, s68, {HP+256}", f"buffer_load_dwordx4 v{vHL}, s[52:55], 16 offen {FL_KV} lds"),
          (f"s_add_u32 m0, s68, {HP+256}\ns_movk_i32 s60, 1040", f"buffer_load_dwordx4 v{vHL}, s[52:55], s60 offen offset:1024 {FL_KV} lds")]
    dl = [f"buffer_load_dwordx4 {vr(D+4*j,4)}, v5, s[48:51], s39 offen offset:{1024*j} sc1" for j in range(4)]
    a(f"s_lshl_b32 s33, s39, 7\ns_add_u32 s33, s33, {FL_U:#x}\ns_lshl_b32 s39, s39, 12")
    def uchk():
        a("s_waitcnt lgkmcnt(0)")
        for i in range(8): a(f"s_cmp_eq_u64 s[{4+2*i}:{5+2*i}], s[{sEP}:{sEP+1}]\ns_cbranch_scc0 L_us")
        a("s_branch L_upoll_done\nL_us:")
        spoll(a, "L_upoll", 33, 60)
    for b in range(3, 14):
        B(b)
        if b == 3:
            epoch(); a(f"ds_write_b128 v{vHP}, {vr(CACC,4)}")
        issue(b + 2)
        if b == min(D0, 14) - 1: a(f"s_load_dwordx16 s[4:19], s[{sWS}:{sWS+1}], s33 glc")
        if b == D0: uchk()
        if b >= H0:
            for _ in range(HN):
                if hl:
                    x = hl.pop(0); a(x[0]); a("s_nop 0"); a(x[1]); vm.issue("h")
        if b >= D0:
            for _ in range(DN_):
                if dl: a(dl.pop(0)); vm.issue("d")
    srd(a, 40, 20, 4 * MB); srd(a, 44, sOUT, 8 * MB)
    sPo = {0: 3, 1: 75, 2: 65, 3: 31}
    a(f"s_and_b32 s28, s{sg_rb}, {3 if opt('wrot', '1') == '1' else 0}\ns_lshl_b32 s74, s28, 2\ns_lshl_b32 s28, s28, 3")
    a("s_add_u32 s65, s3, 5\ns_add_u32 s75, s3, 9\ns_cmp_eq_u32 s3, 3\ns_cselect_b32 s75, 4, s75\ns_add_u32 s31, s3, 12")
    def usrc(g): return [f"s_add_u32 s60, s{sPo[g]}, s74", "s_and_b32 s60, s60, 15", "s_lshl_b32 s60, s60, 17", "s_add_u32 s61, s60, 0x10000"]
    def w2(g):
        r = usrc(g)
        for hh in range(2):
            for i in range(4): r.append(f"buffer_load_dwordx4 {vr(W2+16*hh+4*i,4)}, v{vO+i}, s[56:59], s{60+hh} offen offset:{1024*i} {FL_WO}")
        vm.issue(f"w{g}", 8)
        return r
    def wb(g):
        a(f"s_lshl_b32 m0, s{sPo[g]}, 13")
        for x in usrc(g): a(x)
        for hh in range(2):
            for i in range(4): a(f"buffer_load_dwordx4 v{vO+i}, s[56:59], s{60+hh} offen offset:{1024*i} {FL_WO} lds")
            if hh == 0: a("s_add_u32 m0, m0, 4096\ns_nop 0")
        vm.issue(f"w{g}", 8)
    def wm_lines(bits):
        r = ["s_mov_b32 s61, 0"]
        for g in bits: r += [f"s_lshl_b32 s60, s{sPo[g]}, 1", "s_bitset1_b32 s61, s60"]
        return r + [f"v_mov_b32 v{vT}, s61", f"s_mov_b64 exec, 1\nds_or_b32 v{vY}, v{vT} offset:{Y_WM}\ns_mov_b64 exec, -1"]
    B(14)
    if D0 >= 14: uchk()
    for x in dl: a(x); vm.issue("d")
    for x in hl: a(x[0]); a("s_nop 0"); a(x[1]); vm.issue("h")
    W14 = len(dl) + len(hl) <= 4
    if W14: wb(2)
    B(15)
    a.stamp(1)
    a(f"ds_write_b128 v24, {vr(CACC,4)} offset:4096")
    if not W14: wb(2)
    vm.wait("d")
    for j in range(3): a(f"v_mov_b32_dpp v{E+j}, v{D+4*j+4} wave_rol:1 row_mask:0xf bank_mask:0xf")
    a(f"v_mov_b32 v{E+3}, 0\ns_nop 0")
    for j in range(4): a(f"v_mov_b32_dpp v{E+j}, v{D+4*j} wave_shl:1 row_mask:0xf bank_mask:0xf")
    for j in range(4):
        d = [D + 4 * j + i for i in range(4)] + [E + j]
        o = O + 4 * j
        a(f"ds_write_b128 v19, {vr(D+4*j,4)} offset:{1024*j}")
        for i in range(4): a(f"v_alignbit_b32 v{o+i}, v{d[i+1]}, v{d[i]}, 16")
        a(f"ds_write_b128 v19, {vr(o,4)} offset:{CPY+1024*j}")
    def wait4(lab, off, slp=1, T=68):
        a(f"""
s_mov_b32 s60, 0
{lab}:
ds_read_b128 v[{T}:{T+3}], v{vY} offset:{off}
s_add_u32 s60, s60, 1
s_waitcnt lgkmcnt(0)
v_and_b32 v{T}, v{T}, v{T+1}
v_and_b32 v{T+2}, v{T+2}, v{T+3}
v_and_b32 v{T}, v{T}, v{T+2}
s_cmp_gt_u32 s60, 0x40000
s_cbranch_scc1 {lab}_d
v_readfirstlane_b32 s61, v{T}
s_nop 3
s_cmp_eq_u32 s61, 1
s_cbranch_scc1 {lab}_d
s_sleep {slp}
s_branch {lab}
{lab}_d:
""")
    wait4("L_fr", Y_FR)
    a.stamp(2)
    wb(1); wb(0)
    a(f"""
s_lshl_b32 s30, s69, 11
s_lshl_b32 s61, s{sdb}, 7
s_add_u32 s30, s30, s61
s_lshl_b32 s63, s69, 12
s_add_u32 s63, s63, s61
s_add_u32 s63, s63, 2048
s_lshl_b32 s66, s{sg_rb}, 8
s_lshl_b32 s61, s3, 6
s_add_u32 s66, s66, s61
{FC(66, FL_O, sg_cb)}
s_bitcmp1_b32 s3, 0
s_cselect_b32 s60, 0, 16
s_cselect_b32 s33, 16, 0
s_lshl_b32 s71, s71, s60
s_and_b32 s71, s71, 0xffff0000
s_lshr_b32 s60, s3, 1
v_lshl_add_u32 v19, s60, 2, v{vY}
s_mov_b32 s32, s{sch}
{FA(32, FL_Y, 8192)}
s_lshl_b32 s67, s{sdb}, 6
s_lshl_b32 s60, s{ssb}, 2
s_add_u32 s60, s60, s3
{FC(67, FL_Y, 60, 8192)}
s_mov_b32 s64, 0
""")
    def creads(S, rho):
        r = []
        for i in range(8):
            o0 = 128 * (1 - i % 2) + 4 * (1 - rho)
            r.append(f"ds_read2_b32 {vr(S+4*i,2)}, v{VU[i//2]} offset0:{o0} offset1:{o0+1}")
            r.append(f"ds_read2_b32 {vr(S+4*i+2,2)}, v{VU[i//2]} offset0:{o0+2} offset1:{o0+3}")
            r.append(f"ds_read_b128 {vr(S+32+4*i,4)}, v{vH} offset:{256*i+(HP if rho == 0 else 0)}")
        return r
    def cmf(S):
        if opt("cch", "1") == "1": return [mfma16(CACC + 4 * t, S + 4 * x, S + 32 + 4 * (t - x)) for t in range(7, -1, -1) for x in range(t + 1)]
        return [mfma16(CACC + 4 * (x + y), S + 4 * x, S + 32 + 4 * y) for x in range(8) for y in range(8 - x)]
    vm.wait("h")
    for r in creads(P, 0): a(r)
    if opt("gate", "kv") != "none": wait4("L_kd", Y_KD, T=Qs)
    a.stamp(3)
    a(f"s_setprio {opt('vprio', '0')}")
    adv = [f"v_subrev_u32 v{x}, 128, v{x}" for x in VU] + [f"v_subrev_u32 v{vH}, 64, v{vH}"]
    pn = [0]
    def Pissue(): return f"s_load_dwordx16 s[4:19], s[{sWS}:{sWS+1}], s66 glc"
    def Pcheck(w):
        n = pn[0]; pn[0] += 1
        maskbuild(w, 62, 60)
        w(f"s_mov_b32 s64, s62\ns_lshl_b32 s60, s62, s33\ns_mov_b32 s61, s60\ns_lshr_b64 s[60:61], s[60:61], s28\nv_mov_b32 v{vT}, s60")
        g = f"s_mov_b64 exec, 1\nds_or_b32 v19, v{vT} offset:{Y_CO}\ns_mov_b64 exec, -1"
        if isinstance(w, L): w.l.append(g)
        else: w(g)
    a("s_waitcnt lgkmcnt(0)")
    interleave(a, cmf(P), creads(Qs, 1) + adv)
    a("s_waitcnt lgkmcnt(0)")
    vm.wait("w0")
    ex = wm_lines((0, 1, 2)) + w2(3)
    ex += [x for i in range(4) for x in ([f"buffer_load_dwordx4 {vr(QQ+4*i,4)}, v16, s[40:43], s30 offen {FL_KV}"] + (["s_add_u32 s30, s30, 0x4000"] if i < 3 else []))]
    vm.issue("q", 4)
    CVP = opt("cvpoll", "0") == "1"
    inter3(a, cmf(Qs), ["s_mov_b32 s29, 1"] + ([Pissue()] if CVP else []) + ex, 1, creads(P, 0), 1)
    a("L_cloop:\ns_waitcnt lgkmcnt(0)")
    w = L(); Pcheck(w)
    inter3(a, cmf(P), w.l + [Pissue()] if CVP else [], 3, creads(Qs, 1) + adv, 1)
    a("s_waitcnt lgkmcnt(0)")
    w = L(); Pcheck(w)
    inter3(a, cmf(Qs), w.l + [Pissue()] if CVP else [], 3, creads(P, 0) + ["s_add_u32 s29, s29, 1", "s_cmp_lt_u32 s29, 4"], 1)
    a("s_cbranch_scc1 L_cloop")
    a.stamp(4)
    UU, T = Qs + 40, Qs + 56
    for t in range(8): a(f"ds_read_b64 {vr(UU+2*t,2)}, v{vE} offset:{512*(7-t)}")
    ladd(a, vY, Y_CD, vOne)
    a(f"s_setprio {opt('yprio', '3')}\ns_waitcnt lgkmcnt(0)")
    YP = opt("yp", "0")
    if YP != "0": a(Pissue())
    for t in range(8):
        a(f"v_and_b32 v{T}, s70, v{UU+2*t+1}\nv_lshlrev_b32 v{T+1}, 16, v{UU+2*t+1}")
        a(f"v_and_b32 v{T+2}, s70, v{UU+2*t}\nv_lshlrev_b32 v{T+3}, 16, v{UU+2*t}")
        for i in range(4): a(f"v_fmac_f32 v{CACC+4*t+i}, s71, v{T+i}")
        a(f"v_cvt_pk_bf16_f32 v{UU+2*t}, v{CACC+4*t}, v{CACC+4*t+1}")
        a(f"v_cvt_pk_bf16_f32 v{UU+2*t+1}, v{CACC+4*t+2}, v{CACC+4*t+3}")
    a("s_nop 1")
    for t in range(0, 8, 2):
        a(f"v_permlane16_swap_b32 v{UU+2*t}, v{UU+2*t+2}\nv_permlane16_swap_b32 v{UU+2*t+1}, v{UU+2*t+3}")
    vm.wait("w3")
    for t in range(0, 8, 2): a(f"buffer_store_dwordx4 {vr(UU+2*t,4)}, v{vS}, s[48:51], s39 offen offset:{512*t} sc1")
    if YP != "0":
        a("s_waitcnt lgkmcnt(0)"); Pcheck(a)
    if YP == "2": a(Pissue())
    lspin(a, "L_cdspin", vY, Y_CD, "4", vT, 60, 61, slp=0)
    if YP == "2": Pcheck(a)
    a(f"s_lshl_b32 s60, s3, 13\ns_add_u32 s60, s60, {U0}\nv_add_u32 v18, s60, v5")
    for i in range(8): a(f"ds_write_b128 v18, {vr(W2+4*i,4)} offset:{1024*i}")
    for x in wm_lines((3,)): a(x)
    a.stamp(5)
    a(f"""
s_lshl_b32 s65, s{sdb}, 18
s_lshl_b32 s60, s69, 1
s_add_u32 s65, s65, s60
s_add_u32 s65, s65, {WS_YT:#x}
v_lshrrev_b32 v18, 2, v4
v_lshlrev_b32 v18, 12, v18
v_lshl_add_u32 v18, v30, 4, v18
v_lshl_add_u32 v20, v28, 3, v29
v_lshlrev_b32 v20, 6, v20
v_lshl_add_u32 v20, v30, 3, v20
v_add_u32 v20, s68, v20
s_movk_i32 s60, 144
v_mul_u32_u24 v24, s60, v31
v_lshl_add_u32 v24, v28, 4, v24
v_add_u32 v24, s68, v24
v_mul_u32_u24 v25, s60, v1
v_add3_u32 v25, v25, v27, s68
s_mov_b32 m0, s68
s_waitcnt vmcnt(0)
s_mov_b64 exec, 1
ds_add_rtn_u32 v{vT}, v{vY}, v{vOne} offset:{Y_CY}
s_mov_b64 exec, -1
s_waitcnt lgkmcnt(0)
v_readfirstlane_b32 s60, v{vT}
s_nop 3
s_cmp_eq_u32 s60, 3
s_cbranch_scc0 L_yfl
""")
    flag_store(a, 48, 32, vEp, 255, "-1")
    a("L_yfl:")
    a.stamp(6)
    a("s_setprio 0")
    unpack(a, QQ, 96, 16, 70)
    a("s_mov_b32 s29, 0\nL_yloop:\ns_cmp_eq_u32 s64, 0x5555\ns_cbranch_scc1 L_ynop")
    a(Pissue() + "\ns_waitcnt lgkmcnt(0)"); Pcheck(a)
    a(f"L_ynop:\ns_load_dwordx16 s[4:19], s[{sWS}:{sWS+1}], s67 glc\ns_add_u32 s29, s29, 1\ns_cmp_gt_u32 s29, 0x8000\ns_cbranch_scc1 L_ydone\ns_waitcnt lgkmcnt(0)")
    for i in range(8): a(f"s_cmp_eq_u64 s[{4+2*i}:{5+2*i}], s[{sEP}:{sEP+1}]\ns_cbranch_scc0 L_yloop")
    a("L_ydone:\ns_waitcnt lgkmcnt(0)")
    a.stamp(7)
    for i in range(4):
        a(f"buffer_load_dwordx4 v18, s[48:51], s65 offen offset:{1024*i} sc1 lds")
        if i < 3: a(f"s_add_u32 s65, s65, {0x10000-1024}")
    YY, T = 48, 64
    a("s_waitcnt vmcnt(0)")
    a.stamp(8)
    for sh in range(2):
        for oh in range(2):
            for i2 in range(2):
                a(f"ds_read_b64_tr_b16 {vr(YY+8*sh+4*oh+2*i2,2)}, v20 offset:{32*sh+2048*oh+256*i2}")
    a("s_waitcnt lgkmcnt(0)")
    for sh in range(2):
        for oh in range(2): a(f"ds_write_b128 v24, {vr(YY+8*sh+4*oh,4)} offset:{16*144*sh+64*oh}")
    for j in range(4): a(f"ds_read_b128 {vr(YY+32+4*j,4)}, v25 offset:{8*144*j}")
    for j in range(4):
        a(f"s_waitcnt lgkmcnt({3-j})")
        unpack(a, YY + 32 + 4 * j, T, 4, 70)
        for e in range(8): a(f"v_mul_f32 v{T+e}, v{T+e}, v{96+8*j+e}")
        pack(a, T, QQ + 4 * j, 8)
        a(f"buffer_store_dwordx4 {vr(QQ+4*j,4)}, v17, s[44:47], s63 offen {FL_OUT}")
        if j < 3: a("s_add_u32 s63, s63, 0x8000")
    a.trace_out()
    a.end()

def desc(name, vgpr, sgpr=102):
    return f""".amdhsa_kernel {name}
  .amdhsa_next_free_vgpr {vgpr}
  .amdhsa_next_free_sgpr {sgpr}
  .amdhsa_accum_offset {(vgpr + 3) // 4 * 4}
  .amdhsa_group_segment_fixed_size 0
  .amdhsa_kernarg_size 96
  .amdhsa_user_sgpr_count 2
  .amdhsa_user_sgpr_kernarg_segment_ptr 1
  .amdhsa_system_sgpr_workgroup_id_x 1
.end_amdhsa_kernel
"""
def main():
    out = open("cdna_kernels/" + NAME + ".s.ref").read().split("; Override launch")[0]
    KS = [KN]
    if AMP:
        out += f"; @launch kernel={KN} grid=(256,1,1) block=(512,1,1) lds={LDS}\n"
        out += "; @launch kernel=kd_kernel grid=(1,1,1) block=(64,1,1) lds=0\n"; KS.append("kd_kernel")
    else:
        out += f"; @launch grid=(256,1,1) block=(512,1,1) lds={LDS}\n"
    out += '.amdgcn_target "amdgcn-amd-amdhsa--gfx950"\n.text\n'
    for k in KS: out += f".globl {k}\n.type {k},@function\n"
    if opt("pal", ""): out += f".p2align {opt('pal', '')}\n"
    out += ".p2align 8\n"
    a = A()
    kernel(a)
    if AMP: kd.kernel_d(a, AMP, WS_ST)
    out += a.text()
    out += '.section .rodata,"a"\n'
    for k in KS: out += ".p2align 6\n" + desc(k, 256)
    path = sys.argv[1] if len(sys.argv) > 1 and not sys.argv[1].startswith("--") else "cdna_kernels/" + NAME + ".s"
    open(path, "w").write(out)
main()
```

```python
import sys, os
sys.path.insert(0, os.path.dirname(os.path.abspath(__file__)))
import kd
NAME = "concat_heads__linear_attn_block__ssm_conv_h3__prompt"
KN = NAME + "_kernel"
MB = 1 << 20
WS_UT, WS_KVP, WS_ZP, WS_FL, WS_O, WS_YT, WS_ST = 0, 8 * MB, 9 * MB, 9 * MB + 0x40000, 4 * MB, 0, 24 * MB
LOG2E, EPS = 0x3FB8AA3B, 0x358637BD
STAMP = "--stamp" in sys.argv
TRACE = "--trace" in sys.argv
def opt(name, default):
    for x in sys.argv:
        if x.startswith("--" + name + "="): return x.split("=", 1)[1]
    return default
FL_U, FL_P, FL_O, FL_Y = [WS_FL + k * 131072 for k in range(4)]
def FA(r, base, grp=2048):
    return f"s_lshr_b32 vcc_lo, s{r}, 6\ns_mul_i32 vcc_lo, vcc_lo, {grp-64}\ns_add_u32 s{r}, s{r}, vcc_lo\ns_add_u32 s{r}, s{r}, {base:#x}"
def FC(r, base, own, grp=2048):
    return FA(r, base, grp) + f"\ns_lshl_b32 vcc_lo, s{own}, 7\ns_add_u32 s{r}, s{r}, vcc_lo"
if opt("ysep", "0") == "1": WS_YT = 10 * MB
FL_KV = opt("kv", "")
FL_WO = opt("wo", "")
FL_XW = opt("xw", "")
FL_OUT = opt("outst", "sc1")
AMP = opt("amp", "")
KROT = opt("krot", "q8c")
ROT2 = opt("rot2", "0") == "1"
ROTW = opt("rotw", "1") == "1"
G2 = opt("g2", "")
OSC = "" if "nosc1" in G2 else "sc1"
DEPTH = int(opt("depth", "6"))
PSLEEP = opt("psleep", "0")

SST = opt("sst", "0") == "1"
class A:
    def __init__(self): self.l = []
    def __call__(self, s):
        for x in s.strip("\n").split("\n"):
            x = x.strip()
            self.l.append(x if x.endswith(":") else "    " + x)
    jn = 0
    def stamp(self, i):
        J = opt("jitter", "")
        if J and i > 0 and getattr(self, "jon", False):
            n = self.jn; self.jn += 1
            self(f"""
s_cselect_b32 s101, 1, 0
s_memrealtime s[98:99]
s_waitcnt lgkmcnt(0)
s_lshr_b32 s100, s98, 2
s_xor_b32 s100, s100, s2
s_mul_i32 s100, s100, {2654435761 + 2*n + int(J)}
s_add_u32 s100, s100, s3
s_mul_i32 s100, s100, 40503
s_lshr_b32 s100, s100, 29
s_cmp_lt_u32 s100, 6
s_cbranch_scc1 L_j{n}
s_sleep 60
s_cmp_lt_u32 s100, 7
s_cbranch_scc1 L_j{n}
s_sleep 127
L_j{n}:
s_cmp_lg_u32 s101, 0
""")
        if STAMP and not (SST and getattr(self, "jon", False) and 2 <= i <= 6): self(f"s_memrealtime s[{76+2*i}:{77+2*i}]")
    def sst(self, i):
        if STAMP and SST: self(f"s_memrealtime s[{76+2*i}:{77+2*i}]")
    def end(self):
        if STAMP:
            self(f"""
s_memrealtime s[96:97]
s_mov_b64 exec, 1
v_lshrrev_b32 v1, 6, v0
s_waitcnt vmcnt(0) lgkmcnt(0)
s_memrealtime s[98:99]
s_mov_b32 s40, s26
s_mov_b32 s41, s27
s_mov_b32 s42, 0x2000000
s_mov_b32 s43, 0x20000
s_lshl_b32 s100, s2, 3
v_add_u32 v1, s100, v1
v_lshlrev_b32 v1, 5, v1
v_add_u32 v1, {WS_ST}, v1
v_add_u32 v2, 65536, v1
s_waitcnt lgkmcnt(0)
""")
            for i in range(12): self(f"v_mov_b32 v{4+i}, s{76+2*i}")
            self("""
buffer_store_dwordx4 v[4:7], v1, s[40:43], 0 offen
buffer_store_dwordx4 v[8:11], v1, s[40:43], 0 offen offset:16
buffer_store_dwordx4 v[12:15], v2, s[40:43], 0 offen
buffer_store_dwordx4 v[12:15], v2, s[40:43], 0 offen offset:16
""")
        self("s_endpgm")
    tn = 0
    def trace(self):
        if TRACE:
            self(f"s_memrealtime s[96:97]\ns_waitcnt lgkmcnt(0)\nv_writelane_b32 v252, s96, {self.tn}"); self.tn += 1
    def bar(self):
        self.trace(); self("s_barrier"); self.trace()
    def trace_out(self):
        if TRACE: self(f"""
s_lshl_b32 s96, s2, 10
s_add_u32 s96, s96, {WS_ST + 0x100000:#x}
v_lshlrev_b32 v253, 2, v0
v_subrev_u32 v253, 1024, v253
buffer_store_dword v252, v253, s[48:51], s96 offen
""")
    def text(self): return "\n".join(self.l) + "\n"

class VM:
    def __init__(self, a): self.a = a; self.q = []
    def issue(self, tag, n=1): self.q += [tag] * n; assert len(self.q) <= 63, len(self.q)
    def wait(self, tag):
        if tag not in self.q: return
        idx = max(i for i, t in enumerate(self.q) if t == tag)
        n = len(self.q) - 1 - idx
        self.q = self.q[idx + 1:]
        self.a(f"s_waitcnt vmcnt({n})")
    def drained(self): self.q = []

def vr(b, n=1): return f"v{b}" if n == 1 else f"v[{b}:{b+n-1}]"
def sr(b, n=1): return f"s{b}" if n == 1 else f"s[{b}:{b+n-1}]"
def srd(a, d, lo, nbytes):
    a(f"s_mov_b32 s{d}, s{lo}\ns_mov_b32 s{d+1}, s{lo+1}\ns_mov_b32 s{d+2}, {nbytes:#x}\ns_mov_b32 s{d+3}, 0x20000")
def srd_off(a, d, lo, off, nbytes):
    a(f"s_add_u32 s{d}, s{lo}, {off}\ns_addc_u32 s{d+1}, s{lo+1}, 0\ns_mov_b32 s{d+2}, {nbytes:#x}\ns_mov_b32 s{d+3}, 0x20000")
def mfma16(d, x, y, c=None):
    c = vr(d, 4) if c is None else c
    return f"v_mfma_f32_16x16x32_bf16 {vr(d,4)}, {vr(x,4)}, {vr(y,4)}, {c}"
def interleave(a, mf, others, per_gap=1):
    o = list(others)
    for m in mf:
        a(m)
        for _ in range(per_gap):
            if o: a(o.pop(0))
    for x in o: a(x)
def phi_pack(a, src, dst, n, t, sL, sE):
    for i in range(0, n, 8):
        for p in range(4): a(f"v_pk_mul_f32 {vr(t+2*p,2)}, {vr(src+i+2*p,2)}, {sr(sL,2)}")
        for p in range(8): a(f"v_exp_f32_e64 v{t+p}, v{t+p} clamp")
        for p in range(8): a(f"v_max_f32 v{src+i+p}, s{sE}, v{src+i+p}")
        for p in range(4): a(f"v_pk_add_f32 {vr(t+2*p,2)}, {vr(t+2*p,2)}, {vr(src+i+2*p,2)}")
        for p in range(4): a(f"v_cvt_pk_bf16_f32 v{dst+i//2+p}, v{t+2*p}, v{t+2*p+1}")
def phi_pack_np(a, src, dst, n, t, sL, sE):
    for i in range(0, n, 8):
        for p in range(8): a(f"v_mul_f32 v{t+p}, s{sL}, v{src+i+p}")
        for p in range(8): a(f"v_exp_f32_e64 v{t+p}, v{t+p} clamp")
        for p in range(8): a(f"v_max_f32 v{src+i+p}, s{sE}, v{src+i+p}")
        for p in range(8): a(f"v_add_f32 v{t+p}, v{t+p}, v{src+i+p}")
        for p in range(4): a(f"v_cvt_pk_bf16_f32 v{dst+i//2+p}, v{t+2*p}, v{t+2*p+1}")
def phi_keep(a, src, dst, n, t, sL, sE):
    for i in range(0, n, 8):
        for p in range(8): a(f"v_mul_f32 v{t+p}, s{sL}, v{src+i+p}")
        for p in range(8): a(f"v_exp_f32_e64 v{t+p}, v{t+p} clamp")
        for p in range(8): a(f"v_max_f32 v{src+i+p}, s{sE}, v{src+i+p}")
        for p in range(8): a(f"v_add_f32 v{src+i+p}, v{t+p}, v{src+i+p}")
        for p in range(4): a(f"v_cvt_pk_bf16_f32 v{dst+i//2+p}, v{src+i+2*p}, v{src+i+2*p+1}")
def pack(a, src, dst, n):
    for i in range(n // 2): a(f"v_cvt_pk_bf16_f32 v{dst+i}, v{src+2*i}, v{src+2*i+1}")
def unpack(a, src, dst, ndw, smask):
    for i in range(ndw):
        a(f"v_lshlrev_b32 v{dst+2*i}, 16, v{src+i}\nv_and_b32 v{dst+2*i+1}, s{smask}, v{src+i}")

sX, sW, sWO, sQ, sK, sV, sSH, sH, sD, sOUT, sDBG, sWS = 4, 6, 8, 10, 12, 14, 16, 18, 20, 22, 24, 26
sx, sj, srb, shk, shq, sk0, sg_rb, sg_cb, sdb, ssb, sch, sEP = 28, 29, 30, 31, 32, 33, 34, 35, 36, 37, 38, 72
TOUCH = ""
_o = int(opt("wsoff", "0")) * MB
WSOFF = f"s_add_u32 s26, s26, {_o:#x}\ns_addc_u32 s27, s27, 0" if _o else "s_nop 0"
if opt("touch", "0") == "1":
    t = ["s_mov_b32 s52, 0x200000", "s_mov_b32 s53, 0x400000", "s_mov_b32 s54, 0x600000", "s_mov_b32 s55, 0x800000"]
    for base, n in ((sWS, 5), (sOUT, 4), (sQ, 2), (sH, 2), (sWO, 1)):
        for i in range(n): t.append(f"s_load_dword s46, s[{base}:{base+1}], {['0','s52','s53','s54','s55'][i]}")
    TOUCH = "\n".join(t)
STG = 40960
CPY = 4160
UCH = 2 * CPY
U0 = 98304
XCH = U0 + 4 * UCH
HB = XCH + 8192
HP = 2304
HCH = 2 * HP
KVL = HB + 4 * HCH
ZX = KVL + 4096
SYNC = ZX + 512
Y_XC, Y_CW, Y_C2, Y_CU, Y_CY, Y_CD, Y_PQ, Y_EP, Y_W1, Y_CO, Y_UOK, Y_YOK, Y_UB = 0, 96, 20, 28, 32, 36, 40, 56, 60, 64, 72, 76, 80
Y_WM = Y_W1
Y_FR, Y_KD, Y_K2 = 112, 128, 40
LDS = 163840


def spoll(a, lab, soff, sc):
    if opt("poll", "s") == "v":
        a(f"v_and_b32 v254, 15, v4\nv_lshlrev_b32 v254, 2, v254")
        vpoll(a, lab, 254, soff, 255, sc); return
    a(f"""
s_mov_b32 s{sc}, 0
s_branch {lab}_go
{lab}:
s_sleep {PSLEEP}
{lab}_go:
s_load_dwordx16 s[4:19], s[{sWS}:{sWS+1}], s{soff} glc
s_add_u32 s{sc}, s{sc}, 1
s_cmp_gt_u32 s{sc}, 0x8000
s_cbranch_scc1 {lab}_done
s_waitcnt lgkmcnt(0)
""")
    for i in range(8): a(f"s_cmp_eq_u64 s[{4+2*i}:{5+2*i}], s[{sEP}:{sEP+1}]\ns_cbranch_scc0 {lab}")
    a(f"{lab}_done:\ns_waitcnt lgkmcnt(0)")
def vpoll(a, lab, v16x4, soff, vt, sc):
    a(f"""
s_mov_b32 s{sc}, 0
{lab}:
buffer_load_dword v{vt}, v{v16x4}, s[48:51], s{soff} offen sc1
s_waitcnt vmcnt(0)
v_cmp_eq_u32 vcc, s{sEP}, v{vt}
s_add_u32 s{sc}, s{sc}, 1
s_nop 2
s_cmp_eq_u64 vcc, -1
s_cbranch_scc1 {lab}_done
s_sleep {PSLEEP}
s_cmp_lt_u32 s{sc}, 0x4000
s_cbranch_scc1 {lab}
{lab}_done:
""")
def lead_poll(a, lab, soff, sc, st, vY, off, vOne, vT):
    a(f"s_mov_b32 s{sc}, 0\ns_cmp_eq_u32 s3, 0\ns_cbranch_scc0 {lab}_f")
    spoll(a, lab, soff, sc)
    a(f"ds_write_b32 v{vY}, v{vOne} offset:{off}\ns_branch {lab}_f_done")
    a(f"{lab}_f:"); a.l.pop()
    lspin(a, lab + "_f", vY, off, "1", vT, sc, st, init=False, slp=3)
def lspin(a, lab, vaddr, off, target, vt, sc, st, init=True, slp=1):
    if init: a(f"s_mov_b32 s{sc}, 0")
    a(f"""
{lab}:
ds_read_b32 v{vt}, v{vaddr} offset:{off}
s_add_u32 s{sc}, s{sc}, 1
s_waitcnt lgkmcnt(0)
v_readfirstlane_b32 s{st}, v{vt}
s_cmp_gt_u32 s{sc}, 0x40000
s_cbranch_scc1 {lab}_done
s_cmp_ge_u32 s{st}, {target}
s_cbranch_scc1 {lab}_done
s_sleep {slp}
s_branch {lab}
{lab}_done:
""")
def ladd(a, vaddr, off, vone):
    a(f"s_mov_b64 exec, 1\nds_add_u32 v{vaddr}, v{vone} offset:{off}\ns_mov_b64 exec, -1")
def flag_store(a, srdn, soff, vep, vl128, mask="0xffff"):
    a(f"s_mov_b64 exec, {mask}\nbuffer_store_dword v{vep}, v{vl128}, s[{srdn}:{srdn+3}], s{soff} offen sc1\ns_mov_b64 exec, -1")
def wg_flag(a, lab, vaddr, off, vone, vt, st, srdn, soff, vep, vzero):
    a(f"""
s_mov_b64 exec, 1
ds_add_rtn_u32 v{vt}, v{vaddr}, v{vone} offset:{off}
s_waitcnt lgkmcnt(0)
v_readfirstlane_b32 s{st}, v{vt}
s_nop 3
s_cmp_eq_u32 s{st}, 3
s_cbranch_scc0 {lab}
buffer_store_dword v{vep}, v{vzero}, s[{srdn}:{srdn+3}], s{soff} offen sc1
{lab}:
s_mov_b64 exec, -1
""")

def ids2(a):
    if opt("rm", "3") in "12":
        CBMAP = f"s_lshr_b32 vcc_lo, s{sj}, 2\ns_add_u32 vcc_lo, vcc_lo, 3\ns_and_b32 vcc_lo, vcc_lo, 3\ns_and_b32 s{sg_cb}, s{sx}, 4\ns_add_u32 s{sg_cb}, s{sg_cb}, vcc_lo\ns_lshr_b32 vcc_lo, s{sj}, 4\ns_lshl3_add_u32 s{sg_cb}, vcc_lo, s{sg_cb}"
    else: CBMAP = f"s_lshr_b32 s{sg_cb}, s{sx}, 2\ns_lshl_b32 s{sg_cb}, s{sg_cb}, 3\ns_lshr_b32 vcc_lo, s{sj}, 2\ns_add_u32 s{sg_cb}, s{sg_cb}, vcc_lo"
    if opt("rm", "3") == "4": CBMAP += f"\ns_lshr_b32 vcc_lo, 0x820, s{sg_cb}\ns_bitcmp1_b32 vcc_lo, 0\ns_cselect_b32 vcc_lo, 14, 0\ns_xor_b32 s{sg_cb}, s{sg_cb}, vcc_lo"
    RBMAP = f"s_and_b32 s{sg_rb}, s{sx}, 3\ns_lshl_b32 s{sg_rb}, s{sg_rb}, 2\ns_and_b32 vcc_lo, s{sj}, 3\ns_add_u32 s{sg_rb}, s{sg_rb}, vcc_lo"
    if opt("gm", "0") == "1":
        RBMAP = f"s_mov_b32 s{sg_rb}, s{srb}"
        CBMAP = f"s_add_u32 s{sg_cb}, s{shq}, 2\ns_and_b32 s{sg_cb}, s{sg_cb}, 3\ns_and_b32 vcc_lo, s{shq}, 12\ns_add_u32 s{sg_cb}, s{sg_cb}, vcc_lo"
    if opt("gm", "0") == "2":
        RBMAP = f"s_and_b32 vcc_lo, s{sj}, 1\ns_lshl1_add_u32 s{sg_rb}, s{sx}, vcc_lo"
        CBMAP = f"s_lshr_b32 s{sg_cb}, s{sj}, 1"
    a(f"""
{RBMAP}
{CBMAP}
s_and_b32 s{sdb}, s{sj}, 15
s_lshr_b32 s{ssb}, s{sj}, 4
s_lshl_b32 vcc_lo, s{sx}, 1
s_add_u32 s{ssb}, s{ssb}, vcc_lo
s_lshl_b32 s{sch}, s{sx}, 5
s_add_u32 s{sch}, s{sch}, s{sj}
s_lshl_b32 s{sch}, s{sch}, 2
""")

def kernel(a):
    a(f"""
{KN}:
s_cmp_ge_u32 s2, 256
s_cbranch_scc1 L_exit
s_load_dwordx16 s[4:19], s[0:1], 0
s_load_dwordx8 s[20:27], s[0:1], 64
s_getpc_b64 s[48:49]
L_pc:
s_and_b32 s45, s2, 24
s_lshl_b32 s45, s45, 4
v_lshl_add_u32 v2, v0, 9, s45
v_cmp_gt_u32 vcc, L_code_end-L_pc-4, v2
s_and_saveexec_b64 s[50:51], vcc
s_cbranch_execz L_pf
global_load_dword v252, v2, s[48:49]
L_pf:
s_mov_b64 exec, s[50:51]
""")
    for i in range(10): a.stamp(i)
    a(f"""
v_lshrrev_b32 v1, 6, v0
v_and_b32 v4, 63, v0
v_readfirstlane_b32 s3, v1
v_lshlrev_b32 v5, 4, v4
s_and_b32 s{sx}, s2, 7
s_lshr_b32 s{sj}, s2, 3
s_and_b32 s{srb}, s{sx}, 1
s_lshl_b32 s{srb}, s{srb}, 3
s_and_b32 s40, s{sj}, 7
s_add_u32 s{srb}, s{srb}, s40
s_lshr_b32 s40, s{sx}, 1
""")
    if opt("rm", "3") in "134":
        a(f"""
s_and_b32 s41, s{sx}, 4
s_and_b32 s42, s{sx}, 2
s_lshl2_add_u32 s41, s42, s41
s_lshr_b32 s42, s{sj}, 3
s_add_u32 s{shq}, s41, s42
s_add_u32 s42, s42, 3
s_and_b32 s42, s42, 3
s_add_u32 s{shk}, s41, s42
""")
    else: a(f"""
s_lshl_b32 s41, s40, 2
s_lshr_b32 s42, s{sj}, 3
s_add_u32 s{shk}, s41, s42
s_add_u32 s42, s42, 1
s_and_b32 s42, s42, 3
s_add_u32 s{shq}, s41, s42
""")
    if KROT.startswith("f"):
        a_, b_, c_, d_ = [int(t) for t in KROT[1:].split("_")]
        a(f"s_mul_i32 s{sk0}, s{srb}, {a_}\ns_mul_i32 s41, s{shk}, {b_}\ns_add_u32 s{sk0}, s{sk0}, s41\ns_and_b32 s41, s{sx}, 1\ns_mul_i32 s41, s41, {c_}\ns_add_u32 s{sk0}, s{sk0}, s41\ns_mul_i32 s41, s40, {d_}\ns_add_u32 s{sk0}, s{sk0}, s41\ns_and_b32 s{sk0}, s{sk0}, 15")
    elif KROT == "q8":
        a(f"""
s_lshl_b32 s{sk0}, s40, 1
s_and_b32 s41, s{shk}, 1
s_add_u32 s{sk0}, s{sk0}, s41
s_lshl_b32 s41, s{sx}, 2
s_add_u32 s{sk0}, s{sk0}, s41
s_and_b32 s41, s{srb}, 3
s_add_u32 s{sk0}, s{sk0}, s41
s_and_b32 s{sk0}, s{sk0}, 7
s_lshl_b32 s{sk0}, s{sk0}, 1
""")
    elif KROT.startswith("g"):
        a_, b_, c_, d_, e_ = [int(t) for t in KROT[1:].split("_")]
        a(f"s_and_b32 s41, s{srb}, 1\ns_mul_i32 s{sk0}, s41, {a_}\ns_bfe_u32 s41, s{srb}, 0x10001\ns_mul_i32 s41, s41, {b_}\ns_add_u32 s{sk0}, s{sk0}, s41\ns_and_b32 s41, s{shk}, 1\ns_mul_i32 s41, s41, {c_}\ns_add_u32 s{sk0}, s{sk0}, s41")
        a(f"s_and_b32 s41, s{sx}, 1\ns_mul_i32 s41, s41, {d_}\ns_add_u32 s{sk0}, s{sk0}, s41\ns_mul_i32 s41, s40, {e_}\ns_add_u32 s{sk0}, s{sk0}, s41\ns_and_b32 s{sk0}, s{sk0}, 15")
    elif KROT in ("q8h", "q8i"):
        a(f"s_and_b32 s41, s{shk}, 1\ns_lshl_b32 s41, s41, 1\ns_sub_u32 s42, 14, s41\ns_bitcmp{1 if KROT == 'q8h' else 0}_b32 s{srb}, 0\ns_cselect_b32 s{sk0}, s42, s41")
        a(f"s_and_b32 s41, s{srb}, 2\ns_lshl2_add_u32 s{sk0}, s41, s{sk0}\ns_and_b32 s41, s{sx}, 1\ns_add_u32 s41, s41, s40\ns_lshl2_add_u32 s{sk0}, s41, s{sk0}\ns_and_b32 s{sk0}, s{sk0}, 15")
    elif KROT in ("q8e", "q8f", "q8g"):
        a(f"s_and_b32 s41, s{srb}, 1\ns_lshl_b32 s{sk0}, s41, 1\ns_and_b32 s41, s{srb}, 2\ns_lshl_b32 s41, s41, 2\ns_add_u32 s{sk0}, s{sk0}, s41\ns_and_b32 s41, s{sx}, 1\ns_lshl_b32 s41, s41, 2\ns_add_u32 s{sk0}, s{sk0}, s41")
        if KROT == "q8e": a(f"s_and_b32 s41, s{shk}, 1\ns_lshl_b32 s41, s41, 1\ns_sub_u32 s{sk0}, s{sk0}, s41")
        elif KROT == "q8f": a(f"s_and_b32 s41, s{shk}, 2\ns_sub_u32 s{sk0}, s{sk0}, s41")
        else: a(f"s_add_u32 s41, s{shk}, 1\ns_and_b32 s41, s41, 3\ns_add_u32 s{sk0}, s{sk0}, s41")
        a(f"s_lshl_b32 s41, s40, 2\ns_add_u32 s{sk0}, s{sk0}, s41\ns_and_b32 s{sk0}, s{sk0}, 15")
    elif KROT in ("q8b", "q8c", "q8d"):
        if KROT == "q8c": a(f"s_and_b32 s41, s{srb}, 1\ns_lshl_b32 s{sk0}, s41, 1\ns_and_b32 s41, s{srb}, 2\ns_lshl_b32 s41, s41, 2\ns_add_u32 s{sk0}, s{sk0}, s41\ns_and_b32 s41, s{sx}, 1\ns_lshl_b32 s41, s41, 2\ns_add_u32 s{sk0}, s{sk0}, s41")
        else: a(f"s_and_b32 s41, s{srb}, 3\ns_lshl_b32 s{sk0}, s41, 2\ns_and_b32 s41, s{sx}, 1\ns_lshl_b32 s41, s41, 1\ns_add_u32 s{sk0}, s{sk0}, s41")
        if KROT == "q8b": a(f"s_and_b32 s41, s{shk}, 1\ns_lshl_b32 s41, s41, 3\ns_add_u32 s{sk0}, s{sk0}, s41\ns_lshl_b32 s41, s40, 1\ns_add_u32 s{sk0}, s{sk0}, s41")
        else: a(f"s_and_b32 s41, s{shk}, 1\ns_lshl_b32 s41, s41, 1\ns_add_u32 s{sk0}, s{sk0}, s41\ns_lshl_b32 s41, s40, 2\ns_add_u32 s{sk0}, s{sk0}, s41")
        a(f"s_and_b32 s{sk0}, s{sk0}, 15")
    elif KROT == "q4c":
        a(f"""
s_and_b32 s41, s{sx}, 1
s_add_u32 s{sk0}, s40, s41
s_lshl_b32 s41, s{srb}, 1
s_add_u32 s{sk0}, s{sk0}, s41
s_and_b32 s{sk0}, s{sk0}, 3
s_lshl_b32 s{sk0}, s{sk0}, 2
""")
        SL = opt("sl", "0")
        if SL != "0":
            a(f"s_and_b32 s41, s{shk}, {7 if SL == '1' else 6}\ns_cmp_eq_u32 s41, {3 if SL == '1' else 2}\ns_cselect_b32 s41, 6, 0\ns_and_b32 s41, s41, s{srb}\ns_sub_u32 s{sk0}, s{sk0}, s41\ns_and_b32 s{sk0}, s{sk0}, 15")
    elif KROT == "q4":
        a(f"""
s_lshl_b32 s41, s{sx}, 1
s_add_u32 s{sk0}, s40, s41
s_and_b32 s41, s{srb}, 1
s_add_u32 s{sk0}, s{sk0}, s41
s_and_b32 s{sk0}, s{sk0}, 3
s_lshl_b32 s{sk0}, s{sk0}, 2
""")
    elif KROT == "q2":
        a(f"s_xor_b32 s41, s{sx}, s40\ns_and_b32 s41, s41, 1\ns_lshl_b32 s{sk0}, s41, 3")
    elif KROT == "q3":
        a(f"""
s_and_b32 s41, s{sx}, 1
s_lshl_b32 s41, s41, 1
s_add_u32 s{sk0}, s40, s41
s_and_b32 s41, s{srb}, 1
s_add_u32 s{sk0}, s{sk0}, s41
s_mul_i32 s41, s{sk0}, 11
s_lshr_b32 s41, s41, 5
s_mul_i32 s41, s41, 3
s_sub_u32 s{sk0}, s{sk0}, s41
s_mul_i32 s{sk0}, s{sk0}, 11
s_lshr_b32 s{sk0}, s{sk0}, 1
""")
    else: a(f"s_mov_b32 s{sk0}, 0")
    a.jon = True
    a("s_cmp_lt_u32 s3, 4\ns_cbranch_scc1 L_comp")
    aux(a)
    compute(a)
    a("L_exit:\ns_endpgm\nL_code_end:")

def inter2(a, mf, others, per=2):
    o = list(others)
    for m in mf:
        a(m)
        for _ in range(per):
            if o: a(o.pop(0))
    for x in o: a(x)
def inter3(a, mf, l1, n1, l2, n2):
    l1 = list(l1); l2 = list(l2)
    for m in mf:
        a(m)
        for _ in range(n2):
            if l2: a(l2.pop(0))
        for _ in range(n1):
            if l1: a(l1.pop(0))
    assert not l1 and not l2
class L:
    def __init__(s): s.l = []
    def __call__(s, t): s.l += [x.strip() for x in t.strip("\n").split("\n")]
def maskbuild(a, sm, st, lo=4, step=2):
    a(f"s_mov_b32 s{sm}, 0")
    for i in range(8): a(f"s_cmp_eq_u64 s[{lo+2*i}:{lo+1+2*i}], s[{sEP}:{sEP+1}]\ns_cselect_b32 s{st}, {1 << (step*i):#x}, 0\ns_or_b32 s{sm}, s{sm}, s{st}")

def compute(a):
    vAb, vA, vBb, vB = 8, 10, 12, 14
    vY, vPW = 20, 21
    X, Y, ACC = 24, 64, 104
    vOne, vZero, vEp, vT, vL128 = 232, 233, 234, 235, 254
    QT = lambda dt, mt: ACC + 4 * (mt * 2 + dt)
    KK = lambda mt, nt: ACC + 32 + 4 * ((nt * 2 + (mt >> 1)) * 2 + (mt & 1))
    VV = lambda mt, nt: ACC + 64 + 4 * ((nt * 2 + (mt >> 1)) * 2 + (mt & 1))
    GATE = opt("gate", "kv")
    a("L_comp:")
    a.sst(2)
    KR, WR, KF, WF, TM, VF, UT = 200, 242, 24, 68, 84, 56, 200
    VR = [222, 224, 226, 228, 230, 236, 238, 240]
    vP0, vP1, vP2, vTW = 16, 17, 18, 19
    ids2(a)
    a(f"""
s_lshl_b32 s45, s{ssb}, 18
s_lshl_b32 s46, s3, 16
s_add_u32 s45, s45, s46
s_lshl_b32 s46, s{sdb}, 7
s_add_u32 s45, s45, s46
v_lshrrev_b32 v2, 4, v4
v_and_b32 v1, 15, v4
v_lshlrev_b32 v3, 3, v1
v_lshl_add_u32 v{vP0}, v2, 14, v3
v_add_u32 v{vP0}, s45, v{vP0}
v_subrev_u32 v{vP1}, 6144, v{vP0}
s_movk_i32 s57, 4096
s_movk_i32 s58, 8192
s_movk_i32 s59, 12288
s_mov_b32 s62, {4*MB:#x}
s_mov_b32 s63, 0x20000
s_mov_b32 s66, {4*MB:#x}
s_mov_b32 s67, 0x20000
s_mov_b32 s70, 8192
s_mov_b32 s71, 0x20000
v_lshlrev_b32 v{vP2}, 5, v1
s_lshl_b32 s46, s{sdb}, 9
v_add_u32 v{vP2}, s46, v{vP2}
v_sub_u32 v3, 3, v2
s_lshl_b32 s45, s3, 2
s_sub_u32 s45, 12, s45
v_add_u32 v3, s45, v3
v_and_b32 v6, 7, v4
v_xor_b32 v3, v3, v6
v_lshlrev_b32 v3, 4, v3
v_lshl_add_u32 v3, v1, 10, v3
v_add_u32 v{vTW}, {HB}, v3
s_and_b32 s40, s3, 1
s_lshr_b32 s41, s3, 1
v_bfe_u32 v3, v4, 1, 3
v_xor_b32 v3, v2, v3
v_lshlrev_b32 v3, 4, v3
v_lshl_add_u32 v3, v1, 7, v3
s_lshl_b32 s45, s40, 13
v_add_u32 v{vAb}, s45, v3
v_xor_b32 v{vAb+1}, 64, v{vAb}
v_bfe_u32 v22, v4, 2, 2
v_lshl_add_u32 v3, v2, 3, v22
v_lshlrev_b32 v3, 7, v3
v_and_b32 v7, 3, v4
v_lshlrev_b32 v6, 3, v7
s_lshl_b32 s45, s41, 6
v_add_u32 v6, s45, v6
v_bfe_u32 v7, v4, 3, 1
v_lshlrev_b32 v7, 6, v7
v_xor_b32 v6, v6, v7
v_bfe_u32 v23, v4, 4, 1
v_lshlrev_b32 v7, 5, v23
v_xor_b32 v6, v6, v7
v_add_u32 v3, v3, v6
v_add_u32 v{vBb}, 0x4000, v3
v_xor_b32 v{vBb+1}, 32, v{vBb}
v_mov_b32 v{vB}, v{vBb}
v_mov_b32 v{vB+1}, v{vBb+1}
v_mov_b32 v{vA}, v{vAb}
v_mov_b32 v{vA+1}, v{vAb+1}
s_lshl_b32 s39, s40, 5
v_lshlrev_b32 v{vL128}, 7, v4
v_mov_b32 v{vY}, {SYNC}
v_mov_b32 v{vOne}, 1
v_mov_b32 v{vZero}, 0
v_lshlrev_b32 v6, 2, v4
v_add_u32 v6, {SYNC}, v6
ds_write_b32 v6, v{vZero}
s_lshl_b32 s45, s3, 2
v_add_u32 v{vPW}, s45, v{vY}
s_mov_b32 s53, 0
s_mov_b32 s56, 0xffff0000
s_waitcnt lgkmcnt(0)
{WSOFF}
s_mov_b64 s[60:61], s[{sK}:{sK+1}]
s_mov_b64 s[64:65], s[{sV}:{sV+1}]
s_mov_b64 s[68:69], s[{sSH}:{sSH+1}]
""")
    a.sst(3); a("s_barrier"); a.sst(4)
    so = ["0", "s57", "s58", "s59"]
    for r in range(3): a(f"buffer_load_dwordx2 {vr(KR+2*r,2)}, v{vP1}, s[60:63], {so[r//2]} offen offset:{2048*(r%2)} {FL_KV}")
    for r in range(8): a(f"buffer_load_dwordx2 {vr(KR+6+2*r,2)}, v{vP0}, s[60:63], {so[r//2]} offen offset:{2048*(r%2)} {FL_KV}")
    for i in range(2): a(f"buffer_load_dwordx4 {vr(WR+4*i,4)}, v{vP2}, s[68:71], 0 offen offset:{16*i}")
    for r in range(8): a(f"buffer_load_dwordx2 {vr(VR[r],2)}, v{vP0}, s[64:67], {so[r//2]} offen offset:{2048*(r%2)} {FL_KV}")
    a(f"v_xor_b32 v17, s39, v{vB}\nv_xor_b32 v18, s39, v{vB+1}")
    a.sst(5)
    a("s_barrier")
    a.stamp(1)
    A0, A1, BB = 24, 200, 56
    NORD = [2, 3, 4, 5, 0, 1]
    def rdA(A): return [f"ds_read_b128 {vr(A+8*mt+4*k2,4)}, v{vA+k2} offset:{2048*mt}" for mt in range(4) for k2 in range(2)]
    vV, BQ2 = 17, 236
    def rdB(g, dst=None):
        n = NORD[g]; dst = BB + 8 * g if dst is None else dst
        return [f"ds_read_b64_tr_b16 {vr(dst+4*k2+2*i2,2)}, v{(vV if n >= 4 else vB)+(n&1)} offset:{(n//2)*8192+k2*4096+i2*512}" for k2 in range(2) for i2 in range(2)]
    def grp(A, g, zero=False, B=None):
        r = []; B = BB + 8 * g if B is None else B
        for mt in range(4):
            for k2 in range(2):
                c = "0" if zero and k2 == 0 else None
                x, y = A + 8 * mt + 4 * k2, B + 4 * k2
                if g < 2: r.append(mfma16(KK(mt, g), x, y, c))
                elif g < 4: r.append(mfma16(VV(mt, g - 2), x, y, c))
                else: r.append(mfma16(QT(g - 4, mt), y, x, c))
        return r
    advs = [f"s_add_u32 s52, s52, {STG}", f"s_cmp_eq_u32 s52, {3*STG}", "s_cselect_b32 s52, 0, s52"]
    advv = [f"v_add_u32 v{vA}, s52, v{vAb}", f"v_add_u32 v{vA+1}, s52, v{vAb+1}", f"v_add_u32 v{vB}, s52, v{vBb}", f"v_add_u32 v{vB+1}, s52, v{vBb+1}",
            f"v_xor_b32 v{vV}, s39, v{vB}", f"v_xor_b32 v{vV+1}, s39, v{vB+1}"]
    for r in rdA(A0)[:2] + rdB(0) + rdA(A0)[2:] + rdB(1): a(r)
    a("s_mov_b32 s52, 0")
    w = L(); srd(w, 60, sWS, 32 * MB); srd(w, 68, sOUT, 8 * MB)
    vTR, vUS, TD = [1, 2, 3, 6], 16, 236
    UF = int(opt("uf", "2"))
    w(f"""
v_lshlrev_b32 v3, 12, v2
v_lshl_add_u32 v{vUS}, v1, 4, v3
s_lshl_b32 s45, s{sdb}, 18
s_lshl_b32 s46, s3, 16
s_add_u32 s45, s45, s46
s_lshl_b32 s46, s{ssb}, 8
s_sub_u32 s45, s45, s46
s_add_u32 s45, s45, {WS_UT + 3840}
v_add_u32 v{vUS}, s45, v{vUS}
s_lshl_b32 s45, s3, 12
s_add_u32 s45, s45, {HB}
v_add_u32 v1, s45, v5
s_lshl_b32 s45, s40, 6
v_xor_b32 v1, s45, v1
v_xor_b32 v2, 16, v1
v_xor_b32 v3, 32, v1
v_xor_b32 v6, 48, v1
s_movk_i32 s57, 0x4000
s_mov_b32 s58, 0x8000
s_mov_b32 s59, 0xc000
s_lshl_b32 s43, s{sdb}, 2
s_add_u32 s43, s43, s3
s_lshl_b32 s43, s43, 4
s_add_u32 s43, s43, s{ssb}
s_lshl_b32 s43, s43, 2
{FA(43, FL_U)}
s_movk_i32 s42, {1 + (1 << UF)}
""")
    a("s_waitcnt lgkmcnt(10)")
    m = grp(A0, 0, True)
    a(m[0]); a(m[1])
    for x in rdB(2): a(x)
    a("s_waitcnt lgkmcnt(8)")
    interleave(a, m[2:], rdB(3) + rdB(4)[:2])
    a("s_waitcnt lgkmcnt(10)")
    interleave(a, grp(A0, 1, True), rdB(4)[2:] + rdB(5))
    a("s_waitcnt lgkmcnt(0)")
    interleave(a, grp(A0, 2, True) + grp(A0, 3, True) + grp(A0, 4, True) + grp(A0, 5, True), advs + advv + w.l, 2)
    a("s_waitcnt vmcnt(10)")
    a.sst(6)
    unpack(a, KR, KF, 22, 56)
    a("s_waitcnt vmcnt(8)")
    for p in range(4):
        a(f"v_lshlrev_b32 v{WF+p}, 16, v{WR+2*p}\nv_and_b32 v{WF+4+p}, s56, v{WR+2*p}")
        a(f"v_lshlrev_b32 v{WF+8+p}, 16, v{WR+2*p+1}\nv_and_b32 v{WF+12+p}, s56, v{WR+2*p+1}")
    for i0 in range(0, 8, 2):
        ch = [(i, h) for i in (i0, i0 + 1) for h in range(2)]
        for c, (i, h) in enumerate(ch): a(f"v_pk_mul_f32 {vr(TM+2*c,2)}, {vr(KF+4*(i+3)+2*h,2)}, {vr(WF+2*h,2)}")
        for t in (2, 1):
            for c, (i, h) in enumerate(ch): a(f"v_pk_fma_f32 {vr(TM+2*c,2)}, {vr(KF+4*(i+t)+2*h,2)}, {vr(WF+4*(3-t)+2*h,2)}, {vr(TM+2*c,2)}")
        for c, (i, h) in enumerate(ch): a(f"v_pk_fma_f32 {vr(KF+4*i+2*h,2)}, {vr(KF+4*i+2*h,2)}, {vr(WF+12+2*h,2)}, {vr(TM+2*c,2)}")
    a("s_waitcnt vmcnt(0)")
    for r in range(8): unpack(a, VR[r], VF + 4 * r, 2, 56)
    for h in range(2):
        for i in range(8): a(f"v_pk_mul_f32 {vr(KF+4*i+2*h,2)}, {vr(KF+4*i+2*h,2)}, {vr(VF+4*i+2*h,2)}")
        for e in (2 * h, 2 * h + 1):
            for d in range(4): a(f"v_cvt_pk_bf16_f32 v{UT+4*e+d}, v{KF+4*(7-2*d)+e}, v{KF+4*(6-2*d)+e}")
            a(f"ds_write_b128 v{vTW}, {vr(UT+4*e,4)} offset:{256*e}")
    a("s_waitcnt lgkmcnt(0)\ns_barrier")
    for r in rdA(A0)[:2] + rdB(0) + rdA(A0)[2:]: a(r)
    a("s_waitcnt lgkmcnt(6)")
    for r in rdB(1) + rdB(2): a(r)
    a("s_waitcnt lgkmcnt(8)")
    for r in rdB(3) + rdB(4): a(r)
    a("s_waitcnt lgkmcnt(8)")
    for e in range(4): a(f"ds_read_b128 {vr(TD+4*e,4)}, v{vTR[e]} offset:{1024*e}")
    a("s_branch L_loop1\nL_side:\ns_cmp_eq_u32 s53, 0\ns_cbranch_scc0 L_side2")
    for e in range(4): a(f"buffer_store_dwordx4 {vr(TD+4*e,4)}, v{vUS}, s[60:63], {['0','s57','s58','s59'][e]} offen sc1")
    a(f"""
s_branch L_back
L_side2:
v_readfirstlane_b32 s{sEP}, v{vEp}
s_mov_b32 s45, 0
s_waitcnt vmcnt(0)
s_cmp_lg_u32 s{sEP}, 0
s_cbranch_scc1 L_cepok
L_cep:
ds_read_b32 v{vEp}, v{vY} offset:{Y_EP}
s_add_u32 s45, s45, 1
s_waitcnt lgkmcnt(0)
v_readfirstlane_b32 s{sEP}, v{vEp}
s_cmp_gt_u32 s45, 0x40000
s_cbranch_scc1 L_cepok
s_cmp_eq_u32 s{sEP}, 0
s_cbranch_scc1 L_cep
L_cepok:
s_mov_b32 s{sEP+1}, s{sEP}
""")
    flag_store(a, 60, 43, vEp, vL128)
    a(f"""
s_branch L_back
{opt("lal", "")}
L_loop1:
""")
    def stage(A, An, first, plain=False):
        interleave(a, grp(A, 0), rdB(5) + ["\n".join(advs)] + ["\n".join(advv[:2]), "\n".join(advv[2:4]), "\n".join(advv[4:])])
        m = grp(A, 1)
        a("s_waitcnt lgkmcnt(0)"); a(m[0]); a("s_barrier")
        interleave(a, m[1:], rdB(0) + rdA(An)[:3])
        interleave(a, grp(A, 2), rdB(1) + rdA(An)[3:7])
        interleave(a, grp(A, 3), rdB(2) + rdA(An)[7:] + (["s_bitcmp1_b32 s42, s53", "s_cbranch_scc1 L_side\nL_back:"] if first and not plain else []))
        interleave(a, grp(A, 4), rdB(3) + ([f"ds_read_b32 v{vEp}, v{vY} offset:{Y_EP}"] if first and not plain else []))
        interleave(a, grp(A, 5), ["s_waitcnt lgkmcnt(4)\n" + rdB(4)[0]] + rdB(4)[1:] + ([] if first else ["s_add_u32 s53, s53, 1", "s_cmp_lt_u32 s53, 6"]))
    stage(A0, A1, True); stage(A1, A0, False)
    a("s_cbranch_scc1 L_loop1")
    stage(A0, A1, True, True)
    PK, PV, ONES, T, KV, Z, R, PQ = ACC + 32, ACC + 64, ACC + 56, 56, 72, 64, ACC + 80, ACC
    pre = [f"s_mov_b32 s54, {LOG2E:#x}", f"s_mov_b32 s55, {LOG2E:#x}", f"s_mov_b32 s56, {EPS:#x}",
           f"s_lshl_b32 s57, s{shk}, 2", "s_add_u32 s57, s57, s3", "s_lshl_b32 s57, s57, 4", f"s_add_u32 s57, s57, s{srb}",
           "s_lshl_b32 s58, s57, 10", f"s_add_u32 s58, s58, {WS_KVP:#x}", "s_lshr_b32 s59, s57, 4", "s_lshl_b32 s59, s59, 11",
           f"s_lshl_b32 s45, s{srb}, 4", "s_add_u32 s59, s59, s45", f"s_add_u32 s59, s59, {WS_ZP:#x}", "s_lshr_b32 s57, s57, 4", "s_lshl_b32 s57, s57, 11", f"s_add_u32 s57, s57, {FL_P:#x}"]
    PROT = opt("prot", "1") == "1"
    pre += ["v_and_b32 v19, 7, v4", f"v_lshlrev_b32 v19, {1 if PROT else 4}, v19", f"v_sub_u32 v19, s{srb}, v19", "v_and_b32 v19, 15, v19", f"v_lshl_add_u32 v19, v19, 2, v{vL128}"]
    pre += ["s_lshl_b32 s45, s3, 11", f"s_add_u32 s45, s45, {XCH}", "v_add_u32 v6, s45, v5", "v_xor_b32 v7, 2048, v6", "s_lshl_b32 s45, s3, 7", f"s_add_u32 s45, s45, {ZX}",
            "v_and_b32 v3, 0x30, v4", "v_add_u32 v16, s45, v3", "v_xor_b32 v253, 128, v16", f"v_xor_b32 v255, 4, v{vPW}"]
    interleave(a, grp(A1, 0), rdB(5) + ["\n".join(advs)] + ["\n".join(advv[:2]), "\n".join(advv[2:4]), "\n".join(advv[4:])])
    m = grp(A1, 1)
    a("s_waitcnt lgkmcnt(0)"); a(m[0]); a("s_barrier")
    interleave(a, m[1:], rdB(0) + rdA(A0)[:3])
    inter3(a, grp(A1, 2) + grp(A1, 3), pre, 3, rdB(1) + rdA(A0)[3:8] + rdB(2), 1)
    a("s_waitcnt lgkmcnt(4)")
    interleave(a, grp(A0, 0) + grp(A0, 1)[:2], rdB(3) + rdB(4, BQ2) + rdB(5, BQ2 + 8), 2)
    a(f"s_waitcnt lgkmcnt(0)\nds_write_b32 v{vPW}, v{vOne} offset:{Y_FR}")
    w = L(); phi_pack_np(w, PK, PK, 16, T, 54, 56)
    P1 = opt("p1", "0") == "1"
    if P1: phi_pack_np(w, PK + 16, PK + 16, 16, T, 54, 56)
    inter2(a, grp(A0, 1)[2:] + grp(A0, 2) + grp(A0, 3), w.l, int(opt("kfi", "3")))
    a.stamp(2)
    a(f"s_setprio {opt('cprio', '2')}")
    pk1 = phi_pack if GATE != "none" else phi_pack_np
    pack(a, PV, PV, 32)
    ON0 = ACC + 40
    for i in range(4): a(f"v_mov_b32 v{ON0+i}, 0x3f803f80")
    for dt in range(2):
        if dt == 1:
            w = L(); pk1(w, PK + 16, PK + 16, 16, T, 54, 56)
            k = len(w.l) // 2
            for x in w.l[:k]: a(x)
            a(f"ds_write_b128 v6, {vr(KV+8,4)}\nds_write_b128 v16, {vr(Z,4)}")
            for x in w.l[k:]: a(x)
        a("s_nop 1")
        for p in range(2):
            c = "0" if p == 0 else None
            a(mfma16(KV + 4 * (2 + dt), PK + 16 * dt + 4 * p, PV + 8 + 4 * p, c))
            a(mfma16(Z + 4 * dt, PK + 16 * dt + 4 * p, ON0, c))
            a(mfma16(KV + 4 * dt, PK + 16 * dt + 4 * p, PV + 4 * p, c))
    KST = opt("kst", "0") == "1"
    if KST: a.stamp(7)
    for i in range(4): a(f"v_mov_b32 v{ONES+i}, 0x3f803f80")
    a(f"s_nop 1\nds_write_b128 v6, {vr(KV+12,4)} offset:1024\nds_write_b128 v16, {vr(Z+4,4)} offset:64")
    a(f"""
ds_write_b32 v{vPW}, v{vOne} offset:{Y_XC}
s_mov_b32 s45, 0
L_xspin:
ds_read_b32 v{vT}, v255 offset:{Y_XC}
ds_read_b128 {vr(R,4)}, v7
ds_read_b128 {vr(R+4,4)}, v7 offset:1024
ds_read_b128 {vr(R+8,4)}, v253
ds_read_b128 {vr(R+12,4)}, v253 offset:64
s_add_u32 s45, s45, 1
s_waitcnt lgkmcnt(4)
v_readfirstlane_b32 s46, v{vT}
s_cmp_gt_u32 s45, 0x40000
s_cbranch_scc1 L_xdone
s_cmp_eq_u32 s46, 0
s_cbranch_scc1 L_xspin
L_xdone:
s_waitcnt lgkmcnt(2)
""")
    if KST: a.stamp(8)
    def add8(d, r):
        if GATE != "none":
            for i in range(4): a(f"v_pk_add_f32 {vr(d+2*i,2)}, {vr(d+2*i,2)}, {vr(r+2*i,2)}")
        else:
            for i in range(8): a(f"v_add_f32 v{d+i}, v{d+i}, v{r+i}")
    add8(KV, R)
    pack(a, KV, KV + 8, 8)
    a(f"buffer_store_dwordx4 {vr(KV+8,4)}, v5, s[60:63], s58 offen sc1")
    a("s_waitcnt lgkmcnt(0)")
    add8(Z, R + 8)
    pack(a, Z, KV + 12, 8)
    a("s_mov_b32 exec_lo, 0x10001\ns_mov_b32 exec_hi, 0x10001")
    a(f"buffer_store_dwordx4 {vr(KV+12,4)}, v5, s[60:63], s59 offen sc1")
    a("s_mov_b64 exec, -1")
    if GATE == "kv": a(f"ds_write_b32 v{vPW}, v{vOne} offset:{Y_KD}")
    a.stamp(3)
    PP, AC, ZZ, SEL, D1, B2, DN, EQ, KO, KP = 24, 88, 96, 8, 184, 136, 212, 168, 172, 176
    T = 204
    PS = opt("ps", "0") == "1"
    if PS: PQ = 180
    su = L()
    su(f"""
s_lshl_b32 s47, s{shq}, 1
s_add_u32 s47, s47, s41
s_lshl_b32 s44, s{shq}, 2
s_add_u32 s44, s44, s3
s_lshl_b32 s58, s44, 14
s_add_u32 s58, s58, {WS_KVP:#x}
s_lshl_b32 s59, s44, 11
s_add_u32 s59, s59, {WS_ZP:#x}
s_lshl_b32 s44, s44, 6
{FC(44, FL_P, srb)}
s_lshl_b32 s45, s41, 2
v_add_u32 v14, s45, v{vY}
v_mov_b32 v6, 0x3f80
v_and_b32 v7, 1, v4
v_lshlrev_b32 v7, 4, v7
v_lshlrev_b32 v6, v7, v6
v_lshrrev_b32 v2, 4, v4
v_cmp_eq_u32 vcc, v2, v22
v_bfe_u32 v7, v4, 1, 1
v_mov_b32 v{SEL}, 0
v_cndmask_b32 v6, 0, v6, vcc
v_cmp_eq_u32 vcc, 0, v7
v_mov_b32 v{SEL+1}, 0
v_mov_b32 v{SEL+4}, 0
v_cndmask_b32 v{SEL+2}, 0, v6, vcc
v_cndmask_b32 v{SEL+3}, v6, v{vZero}, vcc
v_mov_b32 v{SEL+5}, 0
s_lshl_b32 s45, s3, 10
s_add_u32 s45, s45, {KVL}
v_add_u32 v6, s45, v5
s_xor_b32 s45, s3, 1
s_lshl_b32 s45, s45, 10
s_add_u32 s45, s45, {KVL}
v_add_u32 v7, s45, v5
s_lshl_b32 s48, s{srb}, 3
s_lshl_b32 s45, s40, 2
s_add_u32 s48, s48, s45
s_lshl_b32 s48, s48, 15
s_lshl_b32 s45, s47, 10
s_add_u32 s48, s48, s45
s_add_u32 s48, s48, {WS_O:#x}
s_lshl_b32 s49, s{srb}, 1
s_add_u32 s49, s49, s40
s_lshl_b32 s49, s49, 7
s_lshl_b32 s45, s47, 2
s_add_u32 s49, s49, s45
{FA(49, FL_O)}
s_mov_b32 s50, 0
s_mov_b32 s51, 0
s_mov_b32 s53, 0
s_mov_b32 s46, 0
s_and_b32 s43, s{srb}, {7 if PROT else 0}
""")
    gq = [grp(A1, 4), grp(A0, 4, B=BQ2), grp(A1, 5), grp(A0, 5, B=BQ2 + 8)]
    qm = [x for mt in range(4) for g in gq for x in g[2 * mt:2 * mt + 2]]
    inter2(a, qm, su.l, 2)
    phiq = phi_keep if PS else phi_pack if GATE == "pq" else phi_pack_np
    NQ1 = int(opt("nq1", "0"))
    if NQ1: phiq(a, ACC, PQ, 8 * NQ1, T, 54, 56)
    a("s_waitcnt vmcnt(0)")
    flag_store(a, 60, 57, vEp, 19)
    a(f"s_load_dwordx16 s[4:19], s[{sWS}:{sWS+1}], s44 glc")
    a.stamp(4)
    for mt in range(NQ1, 4): phiq(a, ACC + 8 * mt, PQ + 4 * mt, 8, T, 54, 56)
    if GATE == "pq": a(f"ds_write_b32 v{vPW}, v{vOne} offset:{Y_KD}")
    for i in range(4): a(f"v_mov_b64 {vr(AC+2*i,2)}, 0\nv_mov_b64 {vr(B2+4*i+2,2)}, 0\nv_mov_b32 v{EQ+i}, s56")
    a("s_setprio 3")
    def accm(j):
        for i in range(2):
            a(mfma16(AC, SEL + 2, PP + 8 * j + 4 * i)); a(mfma16(AC + 4, SEL, PP + 8 * j + 4 * i))
    for k in range(8):
        a(f"s_cmp_eq_u32 s46, 0\ns_cbranch_scc1 L_poll{k}\nL_go{k}:\ns_ff1_i32_b32 s45, s46\ns_bitset0_b32 s46, s45\ns_add_u32 s45, s45, s43\ns_and_b32 s45, s45, 7\ns_lshl_b32 s45, s45, 11\ns_add_u32 s45, s45, s58")
        for i in range(2): a(f"buffer_load_dwordx4 {vr(PP+8*k+4*i,4)}, v5, s[60:63], s45 offen offset:{1024*i} sc1")
        a(f"s_bitset1_b32 s51, {k}")
    a("s_branch L_fin")
    for k in range(8):
        a(f"L_poll{k}:\ns_waitcnt lgkmcnt(0)")
        for i in range(7, -1, -1): a(f"s_cmp_eq_u64 s[{4+2*i}:{5+2*i}], s[{sEP}:{sEP+1}]\ns_addc_u32 s46, s46, s46")
        a(f"""
s_add_u32 s53, s53, 1
s_cmp_gt_u32 s53, 0x8000
s_cselect_b32 s46, 0xff, s46
s_andn2_b32 s46, s46, s50
s_or_b32 s50, s50, s46
s_cmp_eq_u32 s50, 0xff
s_cbranch_scc0 L_pm{k}
buffer_load_dwordx4 {vr(ZZ,4)}, v5, s[60:63], s59 offen sc1
s_mov_b32 s47, s51
s_mov_b32 s52, {k}
""")
        if STAMP: a.stamp(5)
        a(f"""
s_branch L_go{k}
L_pm{k}:
s_load_dwordx16 s[4:19], s[{sWS}:{sWS+1}], s44 glc
s_cmp_lg_u32 s46, 0
s_cbranch_scc1 L_go{k}
""")
        if k == 0: a("s_branch L_poll0")
        else: a(f"s_cmp_eq_u32 s51, 0\ns_cbranch_scc1 L_poll{k}\ns_mov_b32 s52, {k}\ns_branch L_acc")
    a("L_acc:\ns_waitcnt vmcnt(0)")
    for j in range(7):
        a(f"s_bitcmp1_b32 s51, {j}\ns_cbranch_scc0 L_ac{j}"); accm(j); a(f"L_ac{j}:")
    a("s_mov_b32 s51, 0")
    for k in range(1, 7): a(f"s_cmp_eq_u32 s52, {k}\ns_cbranch_scc1 L_poll{k}")
    a("s_branch L_poll7\nL_fin:")
    a("s_cmp_eq_u32 s47, 0\ns_cbranch_scc1 L_pz")
    for k in range(1, 7): a(f"s_cmp_eq_u32 s52, {k}\ns_cbranch_scc1 L_pv{k}")
    a("s_waitcnt vmcnt(3)\ns_branch L_pvd")
    for k in range(1, 7): a(f"L_pv{k}:\ns_waitcnt vmcnt({2*(8-k)+1})" + ("\ns_branch L_pvd" if k < 6 else ""))
    a("L_pvd:")
    for j in range(7):
        a(f"s_bitcmp1_b32 s47, {j}\ns_cbranch_scc0 L_ao{j}"); accm(j); a(f"L_ao{j}:")
    a("L_pz:")
    OST = opt("ost", "0") == "1"
    NOG = OST or KST
    for k in range(7): a(f"s_cmp_eq_u32 s52, {k}\ns_cbranch_scc1 L_pw{k}")
    a("s_waitcnt vmcnt(2)\ns_branch L_pwd")
    for k in range(7): a(f"L_pw{k}:\ns_waitcnt vmcnt({2*(8-k)})" + ("\ns_branch L_pwd" if k < 6 else ""))
    a("L_pwd:")
    if OST: a.stamp(7)
    for i in range(4): a(mfma16(D1 + 4 * i, ZZ, PQ + 4 * i, "0"))
    a("s_nop 4")
    for i in range(4): a(f"v_cvt_pk_bf16_f32 v{B2+4*i}, v{D1+4*i}, v{D1+4*i+1}\nv_cvt_pk_bf16_f32 v{B2+4*i+1}, v{D1+4*i+2}, v{D1+4*i+3}")
    a("s_nop 0")
    for i in range(4): a(mfma16(DN + 4 * i, ONES, B2 + 4 * i, vr(EQ, 4)))
    if PS:
        a("s_nop 4")
        for i in range(4): a(f"v_rcp_f32 v{DN+4*i}, v{DN+4*i}")
        for i in range(4):
            for p in range(8): a(f"v_mul_f32 v{ACC+8*i+p}, v{ACC+8*i+p}, v{DN+4*i}")
            pack(a, ACC + 8 * i, PQ + 4 * i, 8)
    for k in range(7, 0, -1): a(f"s_cmp_eq_u32 s52, {k}\ns_cbranch_scc1 L_an{k}")
    for j in range(8):
        a(f"L_an{j}:\ns_waitcnt vmcnt({2*(7-j)})"); accm(j)
    if OST: a.stamp(8)
    if PS: a("s_nop 7")
    else:
        a("s_nop 3")
        for i in range(4): a(f"v_rcp_f32 v{DN+4*i}, v{DN+4*i}")
    pack(a, AC, KO, 8)
    NO, NP, OP = 24, 40, 56
    a(f"ds_write_b128 v6, {vr(KO,4)}\nds_write_b32 v{vPW}, v{vOne} offset:{Y_K2}\nds_read_b32 v{vT}, v255 offset:{Y_K2}\nds_read_b128 {vr(KP,4)}, v7")
    for i in range(4): a(mfma16(NO + 4 * i, KO, PQ + 4 * i, "0"))
    a("s_mov_b32 s45, 0\ns_nop 3\ns_cmp_eq_u32 s40, 0")
    OPK = opt("opk", "0") == "1"
    def mul4(r, d):
        if PS: return
        if OPK:
            for p in range(2): a(f"v_pk_mul_f32 {vr(r+2*p,2)}, {vr(r+2*p,2)}, {vr(d,2)} op_sel_hi:[1,0]")
        else:
            for p in range(4): a(f"v_mul_f32 v{r+p}, v{r+p}, v{d}")
    for i in range(4): mul4(NO + 4 * i, DN + 4 * i)
    a("s_cbranch_scc0 L_o1")
    for wr in range(2):
        if wr: a("L_o1:")
        for i in range(4): pack(a, NO + 4 * i, OP + 4 * i + 2 * wr, 4)
        a(f"""
s_branch L_ks{wr}g
L_ks{wr}:
ds_read_b32 v{vT}, v255 offset:{Y_K2}
ds_read_b128 {vr(KP,4)}, v7
L_ks{wr}g:
s_add_u32 s45, s45, 1
s_waitcnt lgkmcnt(0)
v_readfirstlane_b32 s46, v{vT}
s_cmp_gt_u32 s45, 0x40000
s_cbranch_scc1 L_kd{wr}
s_cmp_eq_u32 s46, 0
s_cbranch_scc1 L_ks{wr}
L_kd{wr}:
""")
        for i in range(4): a(mfma16(NP + 4 * i, KP, PQ + 4 * i, "0"))
        a("s_nop 4")
        for i in range(4):
            if PS and i: a("s_nop 0")
            mul4(NP + 4 * i, DN + 4 * i)
            pack(a, NP + 4 * i, OP + 4 * i + 2 * (1 - wr), 4)
            a(f"buffer_store_dwordx4 {vr(OP+4*i,4)}, v5, s[60:63], s48 offen sc1")
            if i < 3: a("s_add_u32 s48, s48, 0x8000")
        if wr == 0: a("s_branch L_o2")
    a("L_o2:")
    if GATE == "o": a(f"ds_write_b32 v{vPW}, v{vOne} offset:{Y_KD}")
    a.stamp(9)
    OF, WX, WY, C, PO = 24, 88, 104, 120, 172
    vWb, vWA, vWB = 236, 8, 244
    a(f"""
s_lshl_b32 s59, s{sg_rb}, 3
s_lshl_b32 s45, s3, 1
s_add_u32 s59, s59, s45
s_lshl_b32 s45, s59, 15
s_add_u32 s45, s45, {WS_O:#x}
v_add_u32 v242, 0x8000, v5
s_mov_b32 s51, 0x55555555
""")
    srd_off(a, 64, sWS, "s45", 65536)
    a(f"""
s_lshl_b32 s52, s{sg_rb}, 8
s_lshl_b32 s46, s3, 6
s_add_u32 s52, s52, s46
{FC(52, FL_O, sg_cb)}
v_lshrrev_b32 v6, 2, v4
v_lshlrev_b32 v6, 7, v6
v_and_b32 v7, 3, v4
v_lshl_add_u32 v6, v7, 3, v6
v_bfe_u32 v7, v4, 3, 1
v_lshl_add_u32 v6, v7, 6, v6
v_lshl_add_u32 v{vWb}, v23, 5, v6
v_xor_b32 v{vWb+1}, 32, v{vWb}
v_xor_b32 v{vWb+2}, 64, v{vWb}
v_xor_b32 v{vWb+3}, 0x60, v{vWb}
s_lshl_b32 s57, s3, 11
s_add_u32 s57, s57, {XCH}
v_lshrrev_b32 v7, 5, v4
v_lshl_add_u32 v6, v23, 1, v7
v_and_b32 v7, 7, v4
v_xor_b32 v6, v6, v7
v_lshlrev_b32 v6, 4, v6
v_and_b32 v3, 15, v4
v_lshl_add_u32 v6, v3, 7, v6
v_add_u32 v15, s57, v6
v_xor_b32 v18, 64, v15
v_lshrrev_b32 v6, 3, v4
v_lshlrev_b32 v3, 4, v7
v_lshl_add_u32 v17, v6, 12, v3
v_xor_b32 v7, v7, v6
v_lshlrev_b32 v7, 4, v7
v_lshl_add_u32 v6, v6, 7, v7
v_add_u32 v16, s57, v6
s_mov_b32 s50, 0
s_mov_b32 s53, 0
s_mov_b32 s54, 0
s_lshl_b32 s55, s40, 4
s_and_b32 s42, s{sg_rb}, {3 if opt("wrot", "1") == "1" else 0}
s_lshl_b32 s42, s42, 3
""")
    for i in range(10): a(f"v_mov_b64 {vr(C+2*i,2)}, 0")
    a(f"s_load_dwordx16 s[4:19], s[{sWS}:{sWS+1}], s52 glc")
    for i in range(10, 16): a(f"v_mov_b64 {vr(C+2*i,2)}, 0")
    a("s_waitcnt vmcnt(0)")
    flag_store(a, 60, 49, vEp, vL128)
    a.stamp(6)
    a("s_waitcnt lgkmcnt(0)")
    maskbuild(a, 54, 46)
    a(f"s_lshl_b32 s46, s54, s55\ns_mov_b32 s47, s46\ns_lshr_b64 s[46:47], s[46:47], s42\nv_mov_b32 v{vT}, s46\ns_mov_b64 exec, 1\nds_or_b32 v14, v{vT} offset:{Y_CO}\ns_mov_b64 exec, -1")
    a(f"s_setprio {opt('gprio', '2')}")
    selno = [0]
    def select(slot):
        n = selno[0]; selno[0] += 1
        a(f"""
s_cmp_lg_u32 s50, 0
s_cbranch_scc1 L_sel{n}_ok
s_mov_b32 s45, 0
s_cmp_lg_u32 s51, 0
s_cbranch_scc1 L_sel{n}
s_mov_b32 s66, 0
s_mov_b32 s50, 0x55555555
s_branch L_sel{n}_ok
L_sel{n}:
ds_read_b32 v{vT}, v14 offset:{Y_CO}
ds_read_b32 v13, v{vY} offset:{Y_WM}
s_add_u32 s45, s45, 1
s_waitcnt lgkmcnt(0)
v_and_b32 v13, v13, v{vT}
s_cmp_gt_u32 s45, 0x40000
s_cselect_b32 s46, -1, 0
v_readfirstlane_b32 s50, v13
s_nop 3
s_or_b32 s50, s50, s46
s_and_b32 s50, s50, s51
s_cbranch_scc1 L_sel{n}_ok
s_cmp_lg_u32 s54, 0x5555
s_cbranch_scc1 L_sel{n}_p
s_sleep 1
s_branch L_sel{n}
L_sel{n}_p:
s_load_dwordx16 s[4:19], s[{sWS}:{sWS+1}], s52 glc
s_add_u32 s45, s45, 8
s_waitcnt lgkmcnt(0)
""")
        maskbuild(a, 54, 46)
        a(f"s_lshl_b32 s46, s54, s55\ns_mov_b32 s47, s46\ns_lshr_b64 s[46:47], s[46:47], s42\nv_mov_b32 v{vT}, s46\ns_mov_b64 exec, 1\nds_or_b32 v14, v{vT} offset:{Y_CO}\ns_mov_b64 exec, -1")
        a(f"s_branch L_sel{n}\nL_sel{n}_ok:")
        return [f"s_ff1_i32_b32 s46, s50", "s_bitset0_b32 s50, s46\ns_add_u32 s48, s46, s42", "s_and_b32 s48, s48, 31\ns_lshl_b32 s48, s48, 10", "s_bitset0_b32 s51, s46", f"s_lshl_b32 s{28+slot}, s46, 12"]
    def oload(slot):
        return [f"buffer_load_dwordx4 {vr(OF+16*slot+8*hh+4*rt,4)}, v{[5,242][rt]}, s[64:67], s48 offen offset:{1024*hh} {OSC}" for hh in range(2) for rt in range(2)]
    def wreads(S, hh, vw):
        return [f"ds_read_b64_tr_b16 {vr(S+4*ct+2*i2,2)}, v{vw+ct} offset:{hh*4096+i2*2048}" for ct in range(4) for i2 in range(2)]
    def wset(slot, vw): return [f"v_add_u32 v{vw+i}, s{28+slot}, v{vWb+i}" for i in range(4)]
    for sl in range(3):
        for x in select(sl): a(x)
        if sl == 0 and not NOG: a.stamp(7)
        for x in oload(sl): a(x)
    for x in wset(0, vWA): a(x)
    for r in wreads(WX, 0, vWA): a(r)
    a("L_gloop:")
    for u in range(4):
        cur, nxt = (vWA, vWB) if u % 2 == 0 else (vWB, vWA)
        sel = select((u + 3) % 4)
        ol = oload((u + 3) % 4)
        a("s_waitcnt vmcnt(10) lgkmcnt(0)")
        if TRACE: a("s_memrealtime s[100:101]")
        m = [mfma16(C + 4 * (rt * 4 + ct), WX + 4 * ct, OF + 16 * u + 4 * rt) for rt in range(2) for ct in range(4)]
        interleave(a, m, wreads(WY, 1, cur) + wset((u + 1) % 4, nxt) + sel[:4], 2)
        a("s_waitcnt vmcnt(8) lgkmcnt(0)")
        if TRACE: a(f"s_lshl_b32 m0, s53, 2\ns_add_u32 m0, m0, {u}\ns_nop 0\nv_writelane_b32 v252, s100, m0")
        m = [mfma16(C + 4 * (rt * 4 + ct), WY + 4 * ct, OF + 16 * u + 8 + 4 * rt) for rt in range(2) for ct in range(4)]
        if u == 3: oth = wreads(WX, 0, nxt) + [ol[0], ol[1], sel[4], ol[2], "s_add_u32 s53, s53, 1", ol[3], "s_cmp_lt_u32 s53, 4"]
        else: oth = wreads(WX, 0, nxt) + [ol[0], sel[4], ol[1]] + [None, ol[2], None, ol[3]]
        o2 = list(oth)
        for mm in m:
            a(mm)
            for _ in range(2):
                if o2:
                    x = o2.pop(0)
                    if x: a(x)
        for x in o2:
            if x: a(x)
    a("s_cbranch_scc1 L_gloop")
    if not NOG: a.stamp(8)
    a(f"""
s_lshl_b32 s48, s59, 16
s_lshl_b32 s49, s{sg_cb}, 7
s_add_u32 s48, s48, s49
s_add_u32 s49, s48, 0x8000
s_add_u32 s50, s48, 0x10000
s_add_u32 s51, s48, 0x18000
s_waitcnt lgkmcnt(0)
""")
    pack(a, C, PO, 32)
    a("s_nop 1")
    for q in range(4):
        a(f"v_permlane16_swap_b32 v{PO+4*q}, v{PO+4*q+2}\nv_permlane16_swap_b32 v{PO+4*q+1}, v{PO+4*q+3}")
    for rt in range(2):
        for qq in range(2): a(f"ds_write_b128 v{[15,18][qq]}, {vr(PO+8*rt+4*qq,4)}")
        for i in range(2): a(f"ds_read_b128 {vr(WX+8*rt+4*i,4)}, v16 offset:{1024*i}")
    for q in range(4):
        a(f"s_waitcnt lgkmcnt({[5,4,1,0][q]})")
        a(f"buffer_store_dwordx4 {vr(WX+4*q,4)}, v17, s[68:71], s{48+q} offen {FL_OUT}")
    if TRACE:
        a(f"v_writelane_b32 v252, s90, 16\ns_lshl_b32 s100, s2, 10\ns_add_u32 s100, s100, {WS_ST + 0x200000:#x}\nv_lshlrev_b32 v253, 2, v0\nbuffer_store_dword v252, v253, s[60:63], s100 offen")
    a.end()

def aux(a):
    vOA, vOB = 8, 12
    vZero, vEp, vOne, vY, vT = 6, 7, 14, 15, 3
    a(f"""
s_sub_u32 s3, s3, 4
v_lshrrev_b32 v1, 3, v4
v_and_b32 v2, 7, v4
v_lshrrev_b32 v3, 4, v4
v_xor_b32 v6, v2, v3
v_lshlrev_b32 v6, 4, v6
v_lshl_add_u32 v6, v1, 11, v6
s_lshl_b32 s60, s{srb}, 7
s_lshl_b32 s61, s3, 5
s_add_u32 s60, s60, s61
s_lshl_b32 s60, s60, 11
v_add_u32 v{vOA}, s60, v6
v_xor_b32 v6, 64, v{vOA}
v_add_u32 v{vOA+1}, {16384-1024}, v6
v_add_u32 v{vOA+2}, {2*(16384-1024)}, v{vOA}
v_add_u32 v{vOA+3}, {3*(16384-1024)}, v6
v_and_b32 v3, 1, v3
v_lshlrev_b32 v3, 2, v3
v_xor_b32 v7, v2, v3
v_lshlrev_b32 v7, 4, v7
v_xor_b32 v6, 32, v7
s_movk_i32 s61, 6144
v_mad_u32_u24 v7, v1, s61, v7
v_mad_u32_u24 v6, v1, s61, v6
s_mul_i32 s60, s3, {16*6144}
v_add_u32 v{vOB}, s60, v7
s_add_u32 s60, s60, {8*6144-1024}
v_add_u32 v{vOB+1}, s60, v6
s_lshl_b32 s65, s3, 12
s_lshl_b32 s66, s3, 11
s_add_u32 s66, s66, 0x4000
s_mov_b32 s64, 0
s_mov_b32 s67, s{sk0}
s_lshl_b32 s74, s{shq}, 7
s_lshl_b32 s75, s{shk}, 7
s_add_u32 s75, s75, 2048
s_mov_b32 s42, {4*MB:#x}
s_mov_b32 s43, 0x20000
s_mov_b32 s46, {6*MB:#x}
s_mov_b32 s47, 0x20000
s_waitcnt lgkmcnt(0)
s_mov_b64 s[40:41], s[{sX}:{sX+1}]
s_mov_b64 s[44:45], s[{sW}:{sW+1}]
""")
    vm = VM(a)
    def issue(tag):
        a(f"s_add_u32 m0, s64, s65\ns_lshl_b32 s60, s67, 7\ns_mul_i32 s63, s67, {64*6144}")
        for i in range(4): a(f"buffer_load_dwordx4 v{vOA+i}, s[40:43], s60 offen offset:{1024*i} {FL_XW} lds")
        a(f"s_add_u32 m0, s64, s66\ns_add_u32 s61, s63, s74\ns_add_u32 s62, s63, s75")
        for i in range(2): a(f"buffer_load_dwordx4 v{vOB+i}, s[44:47], s61 offen offset:{1024*i} {FL_XW} lds")
        a(f"s_add_u32 m0, m0, 8192\ns_add_u32 s63, s62, 2048")
        for i in range(2): a(f"buffer_load_dwordx4 v{vOB+i}, s[44:47], s62 offen offset:{1024*i} {FL_XW} lds")
        a(f"s_add_u32 m0, m0, 8192\ns_add_u32 s67, s67, 1")
        for i in range(2): a(f"buffer_load_dwordx4 v{vOB+i}, s[44:47], s63 offen offset:{1024*i} {FL_XW} lds")
        a(f"s_and_b32 s67, s67, 15\ns_add_u32 s64, s64, {STG}\ns_cmp_eq_u32 s64, {3*STG}\ns_cselect_b32 s64, 0, s64")
        vm.issue(tag, 10)
    def B(i): vm.wait(i); a.bar()
    a.sst(2)
    issue(0)
    a.sst(3)
    a("s_barrier")
    a.sst(4)
    ids2(a)
    a(f"v_mov_b32 v{vZero}, 0\nv_mov_b32 v{vOne}, 1\nv_mov_b32 v{vY}, {SYNC}\nv_lshlrev_b32 v255, 7, v4\n{WSOFF}")
    srd(a, 48, sWS, 32 * MB)
    srd(a, 52, sDBG, 256)
    a(f"""
s_or_b32 s60, s2, s3
s_cmp_eq_u32 s60, 0
s_cbranch_scc0 L_noep
s_memrealtime s[60:61]
s_waitcnt lgkmcnt(0)
s_or_b32 s60, s60, 1
v_mov_b32 v{vEp}, s60
s_mov_b64 exec, 1
buffer_store_dword v{vEp}, v{vZero}, s[52:55], 0 offen sc1
s_mov_b64 exec, -1
L_noep:
""")
    P, Qs, CACC, W2, QQ = 32, 96, 160, 192, 224
    VU = [240, 241, 242, 243]; vH, vE, vS, vTR, vHP = 244, 245, 246, 247, 251
    vUS, vHL, vO = 25, 26, 20
    a(f"""
s_mul_i32 s68, s3, {HCH}
s_add_u32 s68, s68, {HB}
s_lshl_b32 s69, s{ssb}, 7
s_lshl_b32 s70, s3, 5
s_add_u32 s69, s69, s70
v_lshrrev_b32 v28, 4, v4
v_bfe_u32 v29, v4, 2, 2
v_and_b32 v30, 3, v4
v_and_b32 v31, 15, v4
s_lshl_b32 s60, s3, 12
s_add_u32 s60, s60, {HB}
v_add_u32 v{vTR}, s60, v5
s_and_b32 s60, s3, 1
s_lshl_b32 s60, s60, 6
v_xor_b32 v{vTR}, s60, v{vTR}
v_xor_b32 v{vTR+1}, 16, v{vTR}
v_xor_b32 v{vTR+2}, 32, v{vTR}
v_xor_b32 v{vTR+3}, 48, v{vTR}
v_lshlrev_b32 v3, 12, v28
v_lshl_add_u32 v{vUS}, v31, 4, v3
s_lshl_b32 s60, s{sdb}, 18
s_lshl_b32 s61, s3, 16
s_add_u32 s60, s60, s61
s_lshl_b32 s61, s{ssb}, 8
s_sub_u32 s60, s60, s61
s_add_u32 s60, s60, {WS_UT + 3840}
v_add_u32 v{vUS}, s60, v{vUS}
v_lshlrev_b32 v{vHL}, 5, v4
v_and_b32 v3, 1, v28
v_lshlrev_b32 v3, 2, v3
v_xor_b32 v3, v2, v3
v_lshrrev_b32 v27, 5, v4
v_lshlrev_b32 v27, 1, v27
v_xor_b32 v3, v27, v3
v_lshlrev_b32 v3, 4, v3
v_lshl_add_u32 v3, v1, 11, v3
s_lshl_b32 s60, s{sg_cb}, 7
v_add_u32 v{vO}, s60, v3
v_add_u32 v{vO+1}, {16384-1024}, v{vO}
v_add_u32 v{vO+2}, {2*(16384-1024)}, v{vO}
v_add_u32 v{vO+3}, {3*(16384-1024)}, v{vO}
s_mov_b32 s70, 0xffff0000
v_and_b32 v3, 1, v28
s_movk_i32 s60, {HP}
v_mul_u32_u24 v3, s60, v3
v_lshl_add_u32 v3, v31, 4, v3
v_add_u32 v{vHP}, s68, v3
s_mul_i32 s71, s3, {UCH}
s_add_u32 s71, s71, {U0}
v_add_u32 v19, s71, v5
s_movk_i32 s61, {CPY}
v_and_b32 v24, 1, v29
v_mul_u32_u24 v24, s61, v24
v_lshl_add_u32 v24, v30, 4, v24
v_add_u32 v24, s71, v24
v_add_u32 v3, 1, v31
v_and_b32 v16, 1, v3
v_add_u32 v17, v16, v31
v_mul_u32_u24 v3, s61, v16
v_lshl_add_u32 v3, v28, 5, v3
v_lshlrev_b32 v17, 1, v17
v_sub_u32 v3, v3, v17
s_add_u32 s60, s71, {4014 - 512 - 16}
v_add_u32 v{VU[0]}, s60, v3
v_subrev_u32 v{VU[1]}, 1024, v{VU[0]}
v_subrev_u32 v{VU[2]}, 2048, v{VU[0]}
v_subrev_u32 v{VU[3]}, 3072, v{VU[0]}
v_add_u32 v3, v31, v28
s_add_u32 s60, s68, 208
v_lshlrev_b32 v3, 4, v3
v_add_u32 v{vH}, s60, v3
v_lshlrev_b32 v3, 5, v31
v_lshl_add_u32 v16, v28, 3, v3
s_add_u32 s60, s71, {4088 - 3584}
v_sub_u32 v{vE}, s60, v16
v_and_b32 v16, 1, v28
v_lshl_add_u32 v3, v16, 9, v3
v_lshrrev_b32 v16, 5, v4
v_lshl_add_u32 v{vS}, v16, 4, v3
v_lshlrev_b32 v27, 4, v2
v_lshl_add_u32 v16, v1, 11, v27
v_lshl_add_u32 v17, v1, 12, v27
s_add_u32 s39, s{sch}, s3
s_and_b32 s60, s39, 0xfffffffe
s_lshl_b32 s60, s60, 1
s_load_dword s71, s[{sD}:{sD+1}], s60
s_lshl_b32 s61, s39, 12
""")
    for i in range(16): a(f"v_mov_b64 {vr(CACC+2*i,2)}, 0")
    srd_off(a, 52, sH, "s61", 4096); srd(a, 56, sWO, 2 * MB)
    a(f"s_waitcnt lgkmcnt(0)\ns_mov_b32 s20, s{sQ}\ns_mov_b32 s21, s{sQ+1}")
    def hload():
        a(f"s_add_u32 m0, s68, 256\ns_movk_i32 s60, 1024\ns_movk_i32 s61, 1040")
        a(f"buffer_load_dwordx4 v{vHL}, s[52:55], 0 offen {FL_KV} lds\nbuffer_load_dwordx4 v{vHL}, s[52:55], s60 offen offset:1024 {FL_KV} lds")
        a(f"s_add_u32 m0, s68, {HP+256}\ns_nop 0")
        a(f"buffer_load_dwordx4 v{vHL}, s[52:55], 16 offen {FL_KV} lds\nbuffer_load_dwordx4 v{vHL}, s[52:55], s61 offen offset:1024 {FL_KV} lds")
        vm.issue("h", 4)
    def epoch():
        a(f"""
s_waitcnt lgkmcnt(0)
s_mov_b32 s60, 0
L_eploop:
s_cmp_lg_u32 s{sEP}, 0
s_cbranch_scc1 L_epok
s_sleep 8
s_load_dword s{sEP}, s[{sDBG}:{sDBG+1}], 0 glc
s_add_u32 s60, s60, 1
s_cmp_gt_u32 s60, 0x4000
s_waitcnt lgkmcnt(0)
s_cbranch_scc0 L_eploop
L_epok:
s_mov_b32 s{sEP+1}, s{sEP}
v_mov_b32 v{vEp}, s{sEP}
ds_write_b32 v{vY}, v{vEp} offset:{Y_EP}
""")
    a.sst(5); vm.wait(0); a.sst(6)
    B(0); issue(1); issue(2)
    B(1); issue(3)
    a.stamp(9)
    B(2); issue(4)
    a(f"s_load_dword s{sEP}, s[{sDBG}:{sDBG+1}], 0")
    D, E, O = 32, 48, 52
    H0 = int(opt("h0", "14")); D0 = int(opt("d0", "14")); HN = int(opt("hn", "1")); DN_ = int(opt("dn", "1"))
    hl = [(f"s_add_u32 m0, s68, 256", f"buffer_load_dwordx4 v{vHL}, s[52:55], 0 offen {FL_KV} lds"),
          (f"s_add_u32 m0, s68, 256\ns_movk_i32 s60, 1024", f"buffer_load_dwordx4 v{vHL}, s[52:55], s60 offen offset:1024 {FL_KV} lds"),
          (f"s_add_u32 m0, s68, {HP+256}", f"buffer_load_dwordx4 v{vHL}, s[52:55], 16 offen {FL_KV} lds"),
          (f"s_add_u32 m0, s68, {HP+256}\ns_movk_i32 s60, 1040", f"buffer_load_dwordx4 v{vHL}, s[52:55], s60 offen offset:1024 {FL_KV} lds")]
    dl = [f"buffer_load_dwordx4 {vr(D+4*j,4)}, v5, s[48:51], s39 offen offset:{1024*j} sc1" for j in range(4)]
    a(f"s_lshl_b32 s33, s39, 7\ns_add_u32 s33, s33, {FL_U:#x}\ns_lshl_b32 s39, s39, 12")
    def uchk():
        a("s_waitcnt lgkmcnt(0)")
        for i in range(8): a(f"s_cmp_eq_u64 s[{4+2*i}:{5+2*i}], s[{sEP}:{sEP+1}]\ns_cbranch_scc0 L_us")
        a("s_branch L_upoll_done\nL_us:")
        spoll(a, "L_upoll", 33, 60)
    for b in range(3, 14):
        B(b)
        if b == 3:
            epoch(); a(f"ds_write_b128 v{vHP}, {vr(CACC,4)}")
        issue(b + 2)
        if b == min(D0, 14) - 1: a(f"s_load_dwordx16 s[4:19], s[{sWS}:{sWS+1}], s33 glc")
        if b == D0: uchk()
        if b >= H0:
            for _ in range(HN):
                if hl:
                    x = hl.pop(0); a(x[0]); a("s_nop 0"); a(x[1]); vm.issue("h")
        if b >= D0:
            for _ in range(DN_):
                if dl: a(dl.pop(0)); vm.issue("d")
    srd(a, 40, 20, 4 * MB); srd(a, 44, sOUT, 8 * MB)
    sPo = {0: 3, 1: 75, 2: 65, 3: 31}
    a(f"s_and_b32 s28, s{sg_rb}, {3 if opt('wrot', '1') == '1' else 0}\ns_lshl_b32 s74, s28, 2\ns_lshl_b32 s28, s28, 3")
    a("s_add_u32 s65, s3, 5\ns_add_u32 s75, s3, 9\ns_cmp_eq_u32 s3, 3\ns_cselect_b32 s75, 4, s75\ns_add_u32 s31, s3, 12")
    def usrc(g): return [f"s_add_u32 s60, s{sPo[g]}, s74", "s_and_b32 s60, s60, 15", "s_lshl_b32 s60, s60, 17", "s_add_u32 s61, s60, 0x10000"]
    def w2(g):
        r = usrc(g)
        for hh in range(2):
            for i in range(4): r.append(f"buffer_load_dwordx4 {vr(W2+16*hh+4*i,4)}, v{vO+i}, s[56:59], s{60+hh} offen offset:{1024*i} {FL_WO}")
        vm.issue(f"w{g}", 8)
        return r
    def wb(g):
        a(f"s_lshl_b32 m0, s{sPo[g]}, 13")
        for x in usrc(g): a(x)
        for hh in range(2):
            for i in range(4): a(f"buffer_load_dwordx4 v{vO+i}, s[56:59], s{60+hh} offen offset:{1024*i} {FL_WO} lds")
            if hh == 0: a("s_add_u32 m0, m0, 4096\ns_nop 0")
        vm.issue(f"w{g}", 8)
    def wm_lines(bits):
        r = ["s_mov_b32 s61, 0"]
        for g in bits: r += [f"s_lshl_b32 s60, s{sPo[g]}, 1", "s_bitset1_b32 s61, s60"]
        return r + [f"v_mov_b32 v{vT}, s61", f"s_mov_b64 exec, 1\nds_or_b32 v{vY}, v{vT} offset:{Y_WM}\ns_mov_b64 exec, -1"]
    B(14)
    if D0 >= 14: uchk()
    for x in dl: a(x); vm.issue("d")
    for x in hl: a(x[0]); a("s_nop 0"); a(x[1]); vm.issue("h")
    W14 = len(dl) + len(hl) <= 4
    if W14: wb(2)
    B(15)
    a.stamp(1)
    a(f"ds_write_b128 v24, {vr(CACC,4)} offset:4096")
    def wait4(lab, off, slp=1, T=68):
        a(f"""
s_mov_b32 s60, 0
{lab}:
ds_read_b128 v[{T}:{T+3}], v{vY} offset:{off}
s_add_u32 s60, s60, 1
s_waitcnt lgkmcnt(0)
v_and_b32 v{T}, v{T}, v{T+1}
v_and_b32 v{T+2}, v{T+2}, v{T+3}
v_and_b32 v{T}, v{T}, v{T+2}
s_cmp_gt_u32 s60, 0x40000
s_cbranch_scc1 {lab}_d
v_readfirstlane_b32 s61, v{T}
s_nop 3
s_cmp_eq_u32 s61, 1
s_cbranch_scc1 {lab}_d
s_sleep {slp}
s_branch {lab}
{lab}_d:
""")
    if not W14: wb(2)
    UO = opt("uo", "0")
    if UO == "1":
        wait4("L_fr", Y_FR); wb(1); wb(0)
    if UO == "2":
        wait4("L_fr", Y_FR); wb(1)
    vm.wait("d")
    for j in range(3): a(f"v_mov_b32_dpp v{E+j}, v{D+4*j+4} wave_rol:1 row_mask:0xf bank_mask:0xf")
    a(f"v_mov_b32 v{E+3}, 0\ns_nop 0")
    for j in range(4): a(f"v_mov_b32_dpp v{E+j}, v{D+4*j} wave_shl:1 row_mask:0xf bank_mask:0xf")
    for j in range(4):
        d = [D + 4 * j + i for i in range(4)] + [E + j]
        o = O + 4 * j
        a(f"ds_write_b128 v19, {vr(D+4*j,4)} offset:{1024*j}")
        for i in range(4): a(f"v_alignbit_b32 v{o+i}, v{d[i+1]}, v{d[i]}, 16")
        a(f"ds_write_b128 v19, {vr(o,4)} offset:{CPY+1024*j}")
    if UO == "0": wait4("L_fr", Y_FR)
    a.stamp(2)
    if UO == "0": wb(1)
    if UO == "2" and opt("gate", "kv") != "none": wait4("L_kdz", Y_KD, T=Qs)
    if UO != "1": wb(0)
    a(f"""
s_lshl_b32 s30, s69, 11
s_lshl_b32 s61, s{sdb}, 7
s_add_u32 s30, s30, s61
s_lshl_b32 s63, s69, 12
s_add_u32 s63, s63, s61
s_add_u32 s63, s63, 2048
s_lshl_b32 s66, s{sg_rb}, 8
s_lshl_b32 s61, s3, 6
s_add_u32 s66, s66, s61
{FC(66, FL_O, sg_cb)}
s_bitcmp1_b32 s3, 0
s_cselect_b32 s60, 0, 16
s_cselect_b32 s33, 16, 0
s_lshl_b32 s71, s71, s60
s_and_b32 s71, s71, 0xffff0000
s_lshr_b32 s60, s3, 1
v_lshl_add_u32 v19, s60, 2, v{vY}
s_mov_b32 s32, s{sch}
{FA(32, FL_Y, 8192)}
s_lshl_b32 s67, s{sdb}, 6
s_lshl_b32 s60, s{ssb}, 2
s_add_u32 s60, s60, s3
{FC(67, FL_Y, 60, 8192)}
s_mov_b32 s64, 0
""")
    def creads(S, rho):
        r = []
        for i in range(8):
            o0 = 128 * (1 - i % 2) + 4 * (1 - rho)
            r.append(f"ds_read2_b32 {vr(S+4*i,2)}, v{VU[i//2]} offset0:{o0} offset1:{o0+1}")
            r.append(f"ds_read2_b32 {vr(S+4*i+2,2)}, v{VU[i//2]} offset0:{o0+2} offset1:{o0+3}")
            r.append(f"ds_read_b128 {vr(S+32+4*i,4)}, v{vH} offset:{256*i+(HP if rho == 0 else 0)}")
        return r
    def cmf(S):
        if opt("cch", "1") == "1": return [mfma16(CACC + 4 * t, S + 4 * x, S + 32 + 4 * (t - x)) for t in range(7, -1, -1) for x in range(t + 1)]
        return [mfma16(CACC + 4 * (x + y), S + 4 * x, S + 32 + 4 * y) for x in range(8) for y in range(8 - x)]
    vm.wait("h")
    for r in creads(P, 0): a(r)
    if opt("gate", "kv") != "none": wait4("L_kd", Y_KD, T=Qs)
    a.stamp(3)
    a(f"s_setprio {opt('vprio', '0')}")
    adv = [f"v_subrev_u32 v{x}, 128, v{x}" for x in VU] + [f"v_subrev_u32 v{vH}, 64, v{vH}"]
    pn = [0]
    def Pissue(): return f"s_load_dwordx16 s[4:19], s[{sWS}:{sWS+1}], s66 glc"
    def Pcheck(w):
        n = pn[0]; pn[0] += 1
        maskbuild(w, 62, 60)
        w(f"s_mov_b32 s64, s62\ns_lshl_b32 s60, s62, s33\ns_mov_b32 s61, s60\ns_lshr_b64 s[60:61], s[60:61], s28\nv_mov_b32 v{vT}, s60")
        g = f"s_mov_b64 exec, 1\nds_or_b32 v19, v{vT} offset:{Y_CO}\ns_mov_b64 exec, -1"
        if isinstance(w, L): w.l.append(g)
        else: w(g)
    a("s_waitcnt lgkmcnt(0)")
    interleave(a, cmf(P), creads(Qs, 1) + adv)
    a("s_waitcnt lgkmcnt(0)")
    vm.wait("w0")
    ex = wm_lines((0, 1, 2)) + w2(3)
    ex += [x for i in range(4) for x in ([f"buffer_load_dwordx4 {vr(QQ+4*i,4)}, v16, s[40:43], s30 offen {FL_KV}"] + (["s_add_u32 s30, s30, 0x4000"] if i < 3 else []))]
    vm.issue("q", 4)
    CVP = opt("cvpoll", "0") == "1"
    inter3(a, cmf(Qs), ["s_mov_b32 s29, 1"] + ([Pissue()] if CVP else []) + ex, 1, creads(P, 0), 1)
    a("L_cloop:\ns_waitcnt lgkmcnt(0)")
    w = L(); Pcheck(w)
    inter3(a, cmf(P), w.l + [Pissue()] if CVP else [], 3, creads(Qs, 1) + adv, 1)
    a("s_waitcnt lgkmcnt(0)")
    w = L(); Pcheck(w)
    inter3(a, cmf(Qs), w.l + [Pissue()] if CVP else [], 3, creads(P, 0) + ["s_add_u32 s29, s29, 1", "s_cmp_lt_u32 s29, 4"], 1)
    a("s_cbranch_scc1 L_cloop")
    a.stamp(4)
    UU, T = Qs + 40, Qs + 56
    for t in range(8): a(f"ds_read_b64 {vr(UU+2*t,2)}, v{vE} offset:{512*(7-t)}")
    ladd(a, vY, Y_CD, vOne)
    a(f"s_setprio {opt('yprio', '3')}\ns_waitcnt lgkmcnt(0)")
    YP = opt("yp", "0")
    if YP != "0": a(Pissue())
    for t in range(8):
        a(f"v_and_b32 v{T}, s70, v{UU+2*t+1}\nv_lshlrev_b32 v{T+1}, 16, v{UU+2*t+1}")
        a(f"v_and_b32 v{T+2}, s70, v{UU+2*t}\nv_lshlrev_b32 v{T+3}, 16, v{UU+2*t}")
        for i in range(4): a(f"v_fmac_f32 v{CACC+4*t+i}, s71, v{T+i}")
        a(f"v_cvt_pk_bf16_f32 v{UU+2*t}, v{CACC+4*t}, v{CACC+4*t+1}")
        a(f"v_cvt_pk_bf16_f32 v{UU+2*t+1}, v{CACC+4*t+2}, v{CACC+4*t+3}")
    a("s_nop 1")
    for t in range(0, 8, 2):
        a(f"v_permlane16_swap_b32 v{UU+2*t}, v{UU+2*t+2}\nv_permlane16_swap_b32 v{UU+2*t+1}, v{UU+2*t+3}")
    vm.wait("w3")
    for t in range(0, 8, 2): a(f"buffer_store_dwordx4 {vr(UU+2*t,4)}, v{vS}, s[48:51], s39 offen offset:{512*t} sc1")
    if YP != "0":
        a("s_waitcnt lgkmcnt(0)"); Pcheck(a)
    if YP == "2": a(Pissue())
    lspin(a, "L_cdspin", vY, Y_CD, "4", vT, 60, 61, slp=0)
    if YP == "2": Pcheck(a)
    a(f"s_lshl_b32 s60, s3, 13\ns_add_u32 s60, s60, {U0}\nv_add_u32 v18, s60, v5")
    for i in range(8): a(f"ds_write_b128 v18, {vr(W2+4*i,4)} offset:{1024*i}")
    for x in wm_lines((3,)): a(x)
    a.stamp(5)
    a(f"""
s_lshl_b32 s65, s{sdb}, 18
s_lshl_b32 s60, s69, 1
s_add_u32 s65, s65, s60
s_add_u32 s65, s65, {WS_YT:#x}
v_lshrrev_b32 v18, 2, v4
v_lshlrev_b32 v18, 12, v18
v_lshl_add_u32 v18, v30, 4, v18
v_lshl_add_u32 v20, v28, 3, v29
v_lshlrev_b32 v20, 6, v20
v_lshl_add_u32 v20, v30, 3, v20
v_add_u32 v20, s68, v20
s_movk_i32 s60, 144
v_mul_u32_u24 v24, s60, v31
v_lshl_add_u32 v24, v28, 4, v24
v_add_u32 v24, s68, v24
v_mul_u32_u24 v25, s60, v1
v_add3_u32 v25, v25, v27, s68
s_mov_b32 m0, s68
s_waitcnt vmcnt(0)
s_mov_b64 exec, 1
ds_add_rtn_u32 v{vT}, v{vY}, v{vOne} offset:{Y_CY}
s_mov_b64 exec, -1
s_waitcnt lgkmcnt(0)
v_readfirstlane_b32 s60, v{vT}
s_nop 3
s_cmp_eq_u32 s60, 3
s_cbranch_scc0 L_yfl
""")
    flag_store(a, 48, 32, vEp, 255, "-1")
    a("L_yfl:")
    a.stamp(6)
    a("s_setprio 0")
    unpack(a, QQ, 96, 16, 70)
    a("s_mov_b32 s29, 0\nL_yloop:\ns_cmp_eq_u32 s64, 0x5555\ns_cbranch_scc1 L_ynop")
    a(Pissue() + "\ns_waitcnt lgkmcnt(0)"); Pcheck(a)
    a(f"L_ynop:\ns_load_dwordx16 s[4:19], s[{sWS}:{sWS+1}], s67 glc\ns_add_u32 s29, s29, 1\ns_cmp_gt_u32 s29, 0x8000\ns_cbranch_scc1 L_ydone\ns_waitcnt lgkmcnt(0)")
    for i in range(8): a(f"s_cmp_eq_u64 s[{4+2*i}:{5+2*i}], s[{sEP}:{sEP+1}]\ns_cbranch_scc0 L_yloop")
    a("L_ydone:\ns_waitcnt lgkmcnt(0)")
    a.stamp(7)
    for i in range(4):
        a(f"buffer_load_dwordx4 v18, s[48:51], s65 offen offset:{1024*i} sc1 lds")
        if i < 3: a(f"s_add_u32 s65, s65, {0x10000-1024}")
    YY, T = 48, 64
    a("s_waitcnt vmcnt(0)")
    a.stamp(8)
    for sh in range(2):
        for oh in range(2):
            for i2 in range(2):
                a(f"ds_read_b64_tr_b16 {vr(YY+8*sh+4*oh+2*i2,2)}, v20 offset:{32*sh+2048*oh+256*i2}")
    a("s_waitcnt lgkmcnt(0)")
    for sh in range(2):
        for oh in range(2): a(f"ds_write_b128 v24, {vr(YY+8*sh+4*oh,4)} offset:{16*144*sh+64*oh}")
    for j in range(4): a(f"ds_read_b128 {vr(YY+32+4*j,4)}, v25 offset:{8*144*j}")
    for j in range(4):
        a(f"s_waitcnt lgkmcnt({3-j})")
        unpack(a, YY + 32 + 4 * j, T, 4, 70)
        for e in range(8): a(f"v_mul_f32 v{T+e}, v{T+e}, v{96+8*j+e}")
        pack(a, T, QQ + 4 * j, 8)
        a(f"buffer_store_dwordx4 {vr(QQ+4*j,4)}, v17, s[44:47], s63 offen {FL_OUT}")
        if j < 3: a("s_add_u32 s63, s63, 0x8000")
    a.trace_out()
    a.end()

def desc(name, vgpr, sgpr=102):
    return f""".amdhsa_kernel {name}
  .amdhsa_next_free_vgpr {vgpr}
  .amdhsa_next_free_sgpr {sgpr}
  .amdhsa_accum_offset {(vgpr + 3) // 4 * 4}
  .amdhsa_group_segment_fixed_size 0
  .amdhsa_kernarg_size 96
  .amdhsa_user_sgpr_count 2
  .amdhsa_user_sgpr_kernarg_segment_ptr 1
  .amdhsa_system_sgpr_workgroup_id_x 1
.end_amdhsa_kernel
"""
def main():
    out = open("cdna_kernels/" + NAME + ".s.ref").read().split("; Override launch")[0]
    KS = [KN]
    if AMP:
        out += f"; @launch kernel={KN} grid=(256,1,1) block=(512,1,1) lds={LDS}\n"
        out += "; @launch kernel=kd_kernel grid=(1,1,1) block=(64,1,1) lds=0\n"; KS.append("kd_kernel")
    else:
        out += f"; @launch grid=(256,1,1) block=(512,1,1) lds={LDS}\n"
    out += '.amdgcn_target "amdgcn-amd-amdhsa--gfx950"\n.text\n'
    for k in KS: out += f".globl {k}\n.type {k},@function\n"
    if opt("pal", ""): out += f".p2align {opt('pal', '')}\n"
    out += ".p2align 8\n"
    a = A()
    kernel(a)
    if AMP: kd.kernel_d(a, AMP, WS_ST)
    out += a.text()
    out += '.section .rodata,"a"\n'
    for k in KS: out += ".p2align 6\n" + desc(k, 256)
    path = sys.argv[1] if len(sys.argv) > 1 and not sys.argv[1].startswith("--") else "cdna_kernels/" + NAME + ".s"
    open(path, "w").write(out)
main()
```

```python
import sys, os
sys.path.insert(0, os.path.dirname(os.path.abspath(__file__)))
import kd
NAME = "concat_heads__linear_attn_block__ssm_conv_h3__prompt"
KN = NAME + "_kernel"
MB = 1 << 20
WS_UT, WS_KVP, WS_ZP, WS_FL, WS_O, WS_YT, WS_ST = 0, 8 * MB, 9 * MB, 9 * MB + 0x40000, 4 * MB, 0, 24 * MB
LOG2E, EPS = 0x3FB8AA3B, 0x358637BD
STAMP = "--stamp" in sys.argv
TRACE = "--trace" in sys.argv
def opt(name, default):
    for x in sys.argv:
        if x.startswith("--" + name + "="): return x.split("=", 1)[1]
    return default
FL_U, FL_P, FL_O, FL_Y = [WS_FL + k * 131072 for k in range(4)]
def FA(r, base, grp=2048):
    return f"s_lshr_b32 vcc_lo, s{r}, 6\ns_mul_i32 vcc_lo, vcc_lo, {grp-64}\ns_add_u32 s{r}, s{r}, vcc_lo\ns_add_u32 s{r}, s{r}, {base:#x}"
def FC(r, base, own, grp=2048):
    return FA(r, base, grp) + f"\ns_lshl_b32 vcc_lo, s{own}, 7\ns_add_u32 s{r}, s{r}, vcc_lo"
if opt("ysep", "0") == "1": WS_YT = 10 * MB
FL_KV = opt("kv", "")
FL_WO = opt("wo", "")
FL_XW = opt("xw", "")
FL_OUT = opt("outst", "sc1")
AMP = opt("amp", "")
KROT = opt("krot", "q8c")
ROT2 = opt("rot2", "0") == "1"
ROTW = opt("rotw", "1") == "1"
G2 = opt("g2", "")
OSC = "" if "nosc1" in G2 else "sc1"
DEPTH = int(opt("depth", "6"))
PSLEEP = opt("psleep", "0")

SST = opt("sst", "0") == "1"
class A:
    def __init__(self): self.l = []
    def __call__(self, s):
        for x in s.strip("\n").split("\n"):
            x = x.strip()
            self.l.append(x if x.endswith(":") else "    " + x)
    jn = 0
    def stamp(self, i):
        J = opt("jitter", "")
        if J and i > 0 and getattr(self, "jon", False):
            n = self.jn; self.jn += 1
            self(f"""
s_cselect_b32 s101, 1, 0
s_memrealtime s[98:99]
s_waitcnt lgkmcnt(0)
s_lshr_b32 s100, s98, 2
s_xor_b32 s100, s100, s2
s_mul_i32 s100, s100, {2654435761 + 2*n + int(J)}
s_add_u32 s100, s100, s3
s_mul_i32 s100, s100, 40503
s_lshr_b32 s100, s100, 29
s_cmp_lt_u32 s100, 6
s_cbranch_scc1 L_j{n}
s_sleep 60
s_cmp_lt_u32 s100, 7
s_cbranch_scc1 L_j{n}
s_sleep 127
L_j{n}:
s_cmp_lg_u32 s101, 0
""")
        if STAMP and not (SST and getattr(self, "jon", False) and 2 <= i <= 6): self(f"s_memrealtime s[{76+2*i}:{77+2*i}]")
    def sst(self, i):
        if STAMP and SST: self(f"s_memrealtime s[{76+2*i}:{77+2*i}]")
    def end(self):
        if STAMP:
            self(f"""
s_memrealtime s[96:97]
s_mov_b64 exec, 1
v_lshrrev_b32 v1, 6, v0
s_waitcnt vmcnt(0) lgkmcnt(0)
s_memrealtime s[98:99]
s_mov_b32 s40, s26
s_mov_b32 s41, s27
s_mov_b32 s42, 0x2000000
s_mov_b32 s43, 0x20000
s_lshl_b32 s100, s2, 3
v_add_u32 v1, s100, v1
v_lshlrev_b32 v1, 5, v1
v_add_u32 v1, {WS_ST}, v1
v_add_u32 v2, 65536, v1
s_waitcnt lgkmcnt(0)
""")
            for i in range(12): self(f"v_mov_b32 v{4+i}, s{76+2*i}")
            self("""
buffer_store_dwordx4 v[4:7], v1, s[40:43], 0 offen
buffer_store_dwordx4 v[8:11], v1, s[40:43], 0 offen offset:16
buffer_store_dwordx4 v[12:15], v2, s[40:43], 0 offen
buffer_store_dwordx4 v[12:15], v2, s[40:43], 0 offen offset:16
""")
        self("s_endpgm")
    tn = 0
    def trace(self):
        if TRACE:
            self(f"s_memrealtime s[96:97]\ns_waitcnt lgkmcnt(0)\nv_writelane_b32 v252, s96, {self.tn}"); self.tn += 1
    def bar(self):
        self.trace(); self("s_barrier"); self.trace()
    def trace_out(self):
        if TRACE: self(f"""
s_lshl_b32 s96, s2, 10
s_add_u32 s96, s96, {WS_ST + 0x100000:#x}
v_lshlrev_b32 v253, 2, v0
v_subrev_u32 v253, 1024, v253
buffer_store_dword v252, v253, s[48:51], s96 offen
""")
    def text(self): return "\n".join(self.l) + "\n"

class VM:
    def __init__(self, a): self.a = a; self.q = []
    def issue(self, tag, n=1): self.q += [tag] * n; assert len(self.q) <= 63, len(self.q)
    def wait(self, tag):
        if tag not in self.q: return
        idx = max(i for i, t in enumerate(self.q) if t == tag)
        n = len(self.q) - 1 - idx
        self.q = self.q[idx + 1:]
        self.a(f"s_waitcnt vmcnt({n})")
    def drained(self): self.q = []

def vr(b, n=1): return f"v{b}" if n == 1 else f"v[{b}:{b+n-1}]"
def sr(b, n=1): return f"s{b}" if n == 1 else f"s[{b}:{b+n-1}]"
def srd(a, d, lo, nbytes):
    a(f"s_mov_b32 s{d}, s{lo}\ns_mov_b32 s{d+1}, s{lo+1}\ns_mov_b32 s{d+2}, {nbytes:#x}\ns_mov_b32 s{d+3}, 0x20000")
def srd_off(a, d, lo, off, nbytes):
    a(f"s_add_u32 s{d}, s{lo}, {off}\ns_addc_u32 s{d+1}, s{lo+1}, 0\ns_mov_b32 s{d+2}, {nbytes:#x}\ns_mov_b32 s{d+3}, 0x20000")
def mfma16(d, x, y, c=None):
    c = vr(d, 4) if c is None else c
    return f"v_mfma_f32_16x16x32_bf16 {vr(d,4)}, {vr(x,4)}, {vr(y,4)}, {c}"
def interleave(a, mf, others, per_gap=1):
    o = list(others)
    for m in mf:
        a(m)
        for _ in range(per_gap):
            if o: a(o.pop(0))
    for x in o: a(x)
def phi_pack(a, src, dst, n, t, sL, sE):
    for i in range(0, n, 8):
        for p in range(4): a(f"v_pk_mul_f32 {vr(t+2*p,2)}, {vr(src+i+2*p,2)}, {sr(sL,2)}")
        for p in range(8): a(f"v_exp_f32_e64 v{t+p}, v{t+p} clamp")
        for p in range(8): a(f"v_max_f32 v{src+i+p}, s{sE}, v{src+i+p}")
        for p in range(4): a(f"v_pk_add_f32 {vr(t+2*p,2)}, {vr(t+2*p,2)}, {vr(src+i+2*p,2)}")
        for p in range(4): a(f"v_cvt_pk_bf16_f32 v{dst+i//2+p}, v{t+2*p}, v{t+2*p+1}")
def phi_pack_np(a, src, dst, n, t, sL, sE):
    for i in range(0, n, 8):
        for p in range(8): a(f"v_mul_f32 v{t+p}, s{sL}, v{src+i+p}")
        for p in range(8): a(f"v_exp_f32_e64 v{t+p}, v{t+p} clamp")
        for p in range(8): a(f"v_max_f32 v{src+i+p}, s{sE}, v{src+i+p}")
        for p in range(8): a(f"v_add_f32 v{t+p}, v{t+p}, v{src+i+p}")
        for p in range(4): a(f"v_cvt_pk_bf16_f32 v{dst+i//2+p}, v{t+2*p}, v{t+2*p+1}")
def phi_keep(a, src, dst, n, t, sL, sE):
    for i in range(0, n, 8):
        for p in range(8): a(f"v_mul_f32 v{t+p}, s{sL}, v{src+i+p}")
        for p in range(8): a(f"v_exp_f32_e64 v{t+p}, v{t+p} clamp")
        for p in range(8): a(f"v_max_f32 v{src+i+p}, s{sE}, v{src+i+p}")
        for p in range(8): a(f"v_add_f32 v{src+i+p}, v{t+p}, v{src+i+p}")
        for p in range(4): a(f"v_cvt_pk_bf16_f32 v{dst+i//2+p}, v{src+i+2*p}, v{src+i+2*p+1}")
def pack(a, src, dst, n):
    for i in range(n // 2): a(f"v_cvt_pk_bf16_f32 v{dst+i}, v{src+2*i}, v{src+2*i+1}")
def unpack(a, src, dst, ndw, smask):
    for i in range(ndw):
        a(f"v_lshlrev_b32 v{dst+2*i}, 16, v{src+i}\nv_and_b32 v{dst+2*i+1}, s{smask}, v{src+i}")

sX, sW, sWO, sQ, sK, sV, sSH, sH, sD, sOUT, sDBG, sWS = 4, 6, 8, 10, 12, 14, 16, 18, 20, 22, 24, 26
sx, sj, srb, shk, shq, sk0, sg_rb, sg_cb, sdb, ssb, sch, sEP = 28, 29, 30, 31, 32, 33, 34, 35, 36, 37, 38, 72
TOUCH = ""
_o = int(opt("wsoff", "0")) * MB
WSOFF = f"s_add_u32 s26, s26, {_o:#x}\ns_addc_u32 s27, s27, 0" if _o else "s_nop 0"
if opt("touch", "0") == "1":
    t = ["s_mov_b32 s52, 0x200000", "s_mov_b32 s53, 0x400000", "s_mov_b32 s54, 0x600000", "s_mov_b32 s55, 0x800000"]
    for base, n in ((sWS, 5), (sOUT, 4), (sQ, 2), (sH, 2), (sWO, 1)):
        for i in range(n): t.append(f"s_load_dword s46, s[{base}:{base+1}], {['0','s52','s53','s54','s55'][i]}")
    TOUCH = "\n".join(t)
STG = 40960
CPY = 4160
UCH = 2 * CPY
U0 = 98304
XCH = U0 + 4 * UCH
HB = XCH + 8192
HP = 2304
HCH = 2 * HP
KVL = HB + 4 * HCH
ZX = KVL + 4096
SYNC = ZX + 512
Y_XC, Y_CW, Y_C2, Y_CU, Y_CY, Y_CD, Y_PQ, Y_EP, Y_W1, Y_CO, Y_UOK, Y_YOK, Y_UB = 0, 96, 20, 28, 32, 36, 40, 56, 60, 64, 72, 76, 80
Y_WM = Y_W1
Y_FR, Y_KD, Y_K2 = 112, 128, 40
LDS = 163840


def spoll(a, lab, soff, sc):
    if opt("poll", "s") == "v":
        a(f"v_and_b32 v254, 15, v4\nv_lshlrev_b32 v254, 2, v254")
        vpoll(a, lab, 254, soff, 255, sc); return
    a(f"""
s_mov_b32 s{sc}, 0
s_branch {lab}_go
{lab}:
s_sleep {PSLEEP}
{lab}_go:
s_load_dwordx16 s[4:19], s[{sWS}:{sWS+1}], s{soff} glc
s_add_u32 s{sc}, s{sc}, 1
s_cmp_gt_u32 s{sc}, 0x8000
s_cbranch_scc1 {lab}_done
s_waitcnt lgkmcnt(0)
""")
    for i in range(8): a(f"s_cmp_eq_u64 s[{4+2*i}:{5+2*i}], s[{sEP}:{sEP+1}]\ns_cbranch_scc0 {lab}")
    a(f"{lab}_done:\ns_waitcnt lgkmcnt(0)")
def vpoll(a, lab, v16x4, soff, vt, sc):
    a(f"""
s_mov_b32 s{sc}, 0
{lab}:
buffer_load_dword v{vt}, v{v16x4}, s[48:51], s{soff} offen sc1
s_waitcnt vmcnt(0)
v_cmp_eq_u32 vcc, s{sEP}, v{vt}
s_add_u32 s{sc}, s{sc}, 1
s_nop 2
s_cmp_eq_u64 vcc, -1
s_cbranch_scc1 {lab}_done
s_sleep {PSLEEP}
s_cmp_lt_u32 s{sc}, 0x4000
s_cbranch_scc1 {lab}
{lab}_done:
""")
def lead_poll(a, lab, soff, sc, st, vY, off, vOne, vT):
    a(f"s_mov_b32 s{sc}, 0\ns_cmp_eq_u32 s3, 0\ns_cbranch_scc0 {lab}_f")
    spoll(a, lab, soff, sc)
    a(f"ds_write_b32 v{vY}, v{vOne} offset:{off}\ns_branch {lab}_f_done")
    a(f"{lab}_f:"); a.l.pop()
    lspin(a, lab + "_f", vY, off, "1", vT, sc, st, init=False, slp=3)
def lspin(a, lab, vaddr, off, target, vt, sc, st, init=True, slp=1):
    if init: a(f"s_mov_b32 s{sc}, 0")
    a(f"""
{lab}:
ds_read_b32 v{vt}, v{vaddr} offset:{off}
s_add_u32 s{sc}, s{sc}, 1
s_waitcnt lgkmcnt(0)
v_readfirstlane_b32 s{st}, v{vt}
s_cmp_gt_u32 s{sc}, 0x40000
s_cbranch_scc1 {lab}_done
s_cmp_ge_u32 s{st}, {target}
s_cbranch_scc1 {lab}_done
s_sleep {slp}
s_branch {lab}
{lab}_done:
""")
def ladd(a, vaddr, off, vone):
    a(f"s_mov_b64 exec, 1\nds_add_u32 v{vaddr}, v{vone} offset:{off}\ns_mov_b64 exec, -1")
def flag_store(a, srdn, soff, vep, vl128, mask="0xffff"):
    a(f"s_mov_b64 exec, {mask}\nbuffer_store_dword v{vep}, v{vl128}, s[{srdn}:{srdn+3}], s{soff} offen sc1\ns_mov_b64 exec, -1")
def wg_flag(a, lab, vaddr, off, vone, vt, st, srdn, soff, vep, vzero):
    a(f"""
s_mov_b64 exec, 1
ds_add_rtn_u32 v{vt}, v{vaddr}, v{vone} offset:{off}
s_waitcnt lgkmcnt(0)
v_readfirstlane_b32 s{st}, v{vt}
s_nop 3
s_cmp_eq_u32 s{st}, 3
s_cbranch_scc0 {lab}
buffer_store_dword v{vep}, v{vzero}, s[{srdn}:{srdn+3}], s{soff} offen sc1
{lab}:
s_mov_b64 exec, -1
""")

def ids2(a):
    if opt("rm", "3") in "12":
        CBMAP = f"s_lshr_b32 vcc_lo, s{sj}, 2\ns_add_u32 vcc_lo, vcc_lo, 3\ns_and_b32 vcc_lo, vcc_lo, 3\ns_and_b32 s{sg_cb}, s{sx}, 4\ns_add_u32 s{sg_cb}, s{sg_cb}, vcc_lo\ns_lshr_b32 vcc_lo, s{sj}, 4\ns_lshl3_add_u32 s{sg_cb}, vcc_lo, s{sg_cb}"
    else: CBMAP = f"s_lshr_b32 s{sg_cb}, s{sx}, 2\ns_lshl_b32 s{sg_cb}, s{sg_cb}, 3\ns_lshr_b32 vcc_lo, s{sj}, 2\ns_add_u32 s{sg_cb}, s{sg_cb}, vcc_lo"
    if opt("rm", "3") == "4": CBMAP += f"\ns_lshr_b32 vcc_lo, 0x820, s{sg_cb}\ns_bitcmp1_b32 vcc_lo, 0\ns_cselect_b32 vcc_lo, 14, 0\ns_xor_b32 s{sg_cb}, s{sg_cb}, vcc_lo"
    RBMAP = f"s_and_b32 s{sg_rb}, s{sx}, 3\ns_lshl_b32 s{sg_rb}, s{sg_rb}, 2\ns_and_b32 vcc_lo, s{sj}, 3\ns_add_u32 s{sg_rb}, s{sg_rb}, vcc_lo"
    if opt("gm", "0") == "1":
        RBMAP = f"s_mov_b32 s{sg_rb}, s{srb}"
        CBMAP = f"s_add_u32 s{sg_cb}, s{shq}, 2\ns_and_b32 s{sg_cb}, s{sg_cb}, 3\ns_and_b32 vcc_lo, s{shq}, 12\ns_add_u32 s{sg_cb}, s{sg_cb}, vcc_lo"
    if opt("gm", "0") == "2":
        RBMAP = f"s_and_b32 vcc_lo, s{sj}, 1\ns_lshl1_add_u32 s{sg_rb}, s{sx}, vcc_lo"
        CBMAP = f"s_lshr_b32 s{sg_cb}, s{sj}, 1"
    a(f"""
{RBMAP}
{CBMAP}
s_and_b32 s{sdb}, s{sj}, 15
s_lshr_b32 s{ssb}, s{sj}, 4
s_lshl_b32 vcc_lo, s{sx}, 1
s_add_u32 s{ssb}, s{ssb}, vcc_lo
s_lshl_b32 s{sch}, s{sx}, 5
s_add_u32 s{sch}, s{sch}, s{sj}
s_lshl_b32 s{sch}, s{sch}, 2
""")

def kernel(a):
    a(f"""
{KN}:
s_cmp_ge_u32 s2, 256
s_cbranch_scc1 L_exit
s_load_dwordx16 s[4:19], s[0:1], 0
s_load_dwordx8 s[20:27], s[0:1], 64
s_getpc_b64 s[48:49]
L_pc:
s_and_b32 s45, s2, 24
s_lshl_b32 s45, s45, 4
v_lshl_add_u32 v2, v0, 9, s45
v_cmp_gt_u32 vcc, L_code_end-L_pc-4, v2
s_and_saveexec_b64 s[50:51], vcc
s_cbranch_execz L_pf
global_load_dword v252, v2, s[48:49]
L_pf:
s_mov_b64 exec, s[50:51]
""")
    for i in range(10): a.stamp(i)
    a(f"""
v_lshrrev_b32 v1, 6, v0
v_and_b32 v4, 63, v0
v_readfirstlane_b32 s3, v1
v_lshlrev_b32 v5, 4, v4
s_and_b32 s{sx}, s2, 7
s_lshr_b32 s{sj}, s2, 3
s_and_b32 s{srb}, s{sx}, 1
s_lshl_b32 s{srb}, s{srb}, 3
s_and_b32 s40, s{sj}, 7
s_add_u32 s{srb}, s{srb}, s40
s_lshr_b32 s40, s{sx}, 1
""")
    if opt("rm", "3") in "134":
        a(f"""
s_and_b32 s41, s{sx}, 4
s_and_b32 s42, s{sx}, 2
s_lshl2_add_u32 s41, s42, s41
s_lshr_b32 s42, s{sj}, 3
s_add_u32 s{shq}, s41, s42
s_add_u32 s42, s42, 3
s_and_b32 s42, s42, 3
s_add_u32 s{shk}, s41, s42
""")
    else: a(f"""
s_lshl_b32 s41, s40, 2
s_lshr_b32 s42, s{sj}, 3
s_add_u32 s{shk}, s41, s42
s_add_u32 s42, s42, 1
s_and_b32 s42, s42, 3
s_add_u32 s{shq}, s41, s42
""")
    if KROT.startswith("f"):
        a_, b_, c_, d_ = [int(t) for t in KROT[1:].split("_")]
        a(f"s_mul_i32 s{sk0}, s{srb}, {a_}\ns_mul_i32 s41, s{shk}, {b_}\ns_add_u32 s{sk0}, s{sk0}, s41\ns_and_b32 s41, s{sx}, 1\ns_mul_i32 s41, s41, {c_}\ns_add_u32 s{sk0}, s{sk0}, s41\ns_mul_i32 s41, s40, {d_}\ns_add_u32 s{sk0}, s{sk0}, s41\ns_and_b32 s{sk0}, s{sk0}, 15")
    elif KROT == "q8":
        a(f"""
s_lshl_b32 s{sk0}, s40, 1
s_and_b32 s41, s{shk}, 1
s_add_u32 s{sk0}, s{sk0}, s41
s_lshl_b32 s41, s{sx}, 2
s_add_u32 s{sk0}, s{sk0}, s41
s_and_b32 s41, s{srb}, 3
s_add_u32 s{sk0}, s{sk0}, s41
s_and_b32 s{sk0}, s{sk0}, 7
s_lshl_b32 s{sk0}, s{sk0}, 1
""")
    elif KROT.startswith("g"):
        a_, b_, c_, d_, e_ = [int(t) for t in KROT[1:].split("_")]
        a(f"s_and_b32 s41, s{srb}, 1\ns_mul_i32 s{sk0}, s41, {a_}\ns_bfe_u32 s41, s{srb}, 0x10001\ns_mul_i32 s41, s41, {b_}\ns_add_u32 s{sk0}, s{sk0}, s41\ns_and_b32 s41, s{shk}, 1\ns_mul_i32 s41, s41, {c_}\ns_add_u32 s{sk0}, s{sk0}, s41")
        a(f"s_and_b32 s41, s{sx}, 1\ns_mul_i32 s41, s41, {d_}\ns_add_u32 s{sk0}, s{sk0}, s41\ns_mul_i32 s41, s40, {e_}\ns_add_u32 s{sk0}, s{sk0}, s41\ns_and_b32 s{sk0}, s{sk0}, 15")
    elif KROT in ("q8h", "q8i"):
        a(f"s_and_b32 s41, s{shk}, 1\ns_lshl_b32 s41, s41, 1\ns_sub_u32 s42, 14, s41\ns_bitcmp{1 if KROT == 'q8h' else 0}_b32 s{srb}, 0\ns_cselect_b32 s{sk0}, s42, s41")
        a(f"s_and_b32 s41, s{srb}, 2\ns_lshl2_add_u32 s{sk0}, s41, s{sk0}\ns_and_b32 s41, s{sx}, 1\ns_add_u32 s41, s41, s40\ns_lshl2_add_u32 s{sk0}, s41, s{sk0}\ns_and_b32 s{sk0}, s{sk0}, 15")
    elif KROT in ("q8e", "q8f", "q8g"):
        a(f"s_and_b32 s41, s{srb}, 1\ns_lshl_b32 s{sk0}, s41, 1\ns_and_b32 s41, s{srb}, 2\ns_lshl_b32 s41, s41, 2\ns_add_u32 s{sk0}, s{sk0}, s41\ns_and_b32 s41, s{sx}, 1\ns_lshl_b32 s41, s41, 2\ns_add_u32 s{sk0}, s{sk0}, s41")
        if KROT == "q8e": a(f"s_and_b32 s41, s{shk}, 1\ns_lshl_b32 s41, s41, 1\ns_sub_u32 s{sk0}, s{sk0}, s41")
        elif KROT == "q8f": a(f"s_and_b32 s41, s{shk}, 2\ns_sub_u32 s{sk0}, s{sk0}, s41")
        else: a(f"s_add_u32 s41, s{shk}, 1\ns_and_b32 s41, s41, 3\ns_add_u32 s{sk0}, s{sk0}, s41")
        a(f"s_lshl_b32 s41, s40, 2\ns_add_u32 s{sk0}, s{sk0}, s41\ns_and_b32 s{sk0}, s{sk0}, 15")
    elif KROT in ("q8b", "q8c", "q8d"):
        if KROT == "q8c": a(f"s_and_b32 s41, s{srb}, 1\ns_lshl_b32 s{sk0}, s41, 1\ns_and_b32 s41, s{srb}, 2\ns_lshl_b32 s41, s41, 2\ns_add_u32 s{sk0}, s{sk0}, s41\ns_and_b32 s41, s{sx}, 1\ns_lshl_b32 s41, s41, 2\ns_add_u32 s{sk0}, s{sk0}, s41")
        else: a(f"s_and_b32 s41, s{srb}, 3\ns_lshl_b32 s{sk0}, s41, 2\ns_and_b32 s41, s{sx}, 1\ns_lshl_b32 s41, s41, 1\ns_add_u32 s{sk0}, s{sk0}, s41")
        if KROT == "q8b": a(f"s_and_b32 s41, s{shk}, 1\ns_lshl_b32 s41, s41, 3\ns_add_u32 s{sk0}, s{sk0}, s41\ns_lshl_b32 s41, s40, 1\ns_add_u32 s{sk0}, s{sk0}, s41")
        else: a(f"s_and_b32 s41, s{shk}, 1\ns_lshl_b32 s41, s41, 1\ns_add_u32 s{sk0}, s{sk0}, s41\ns_lshl_b32 s41, s40, 2\ns_add_u32 s{sk0}, s{sk0}, s41")
        a(f"s_and_b32 s{sk0}, s{sk0}, 15")
    elif KROT == "q4c":
        a(f"""
s_and_b32 s41, s{sx}, 1
s_add_u32 s{sk0}, s40, s41
s_lshl_b32 s41, s{srb}, 1
s_add_u32 s{sk0}, s{sk0}, s41
s_and_b32 s{sk0}, s{sk0}, 3
s_lshl_b32 s{sk0}, s{sk0}, 2
""")
        SL = opt("sl", "0")
        if SL != "0":
            a(f"s_and_b32 s41, s{shk}, {7 if SL == '1' else 6}\ns_cmp_eq_u32 s41, {3 if SL == '1' else 2}\ns_cselect_b32 s41, 6, 0\ns_and_b32 s41, s41, s{srb}\ns_sub_u32 s{sk0}, s{sk0}, s41\ns_and_b32 s{sk0}, s{sk0}, 15")
    elif KROT == "q4":
        a(f"""
s_lshl_b32 s41, s{sx}, 1
s_add_u32 s{sk0}, s40, s41
s_and_b32 s41, s{srb}, 1
s_add_u32 s{sk0}, s{sk0}, s41
s_and_b32 s{sk0}, s{sk0}, 3
s_lshl_b32 s{sk0}, s{sk0}, 2
""")
    elif KROT == "q2":
        a(f"s_xor_b32 s41, s{sx}, s40\ns_and_b32 s41, s41, 1\ns_lshl_b32 s{sk0}, s41, 3")
    elif KROT == "q3":
        a(f"""
s_and_b32 s41, s{sx}, 1
s_lshl_b32 s41, s41, 1
s_add_u32 s{sk0}, s40, s41
s_and_b32 s41, s{srb}, 1
s_add_u32 s{sk0}, s{sk0}, s41
s_mul_i32 s41, s{sk0}, 11
s_lshr_b32 s41, s41, 5
s_mul_i32 s41, s41, 3
s_sub_u32 s{sk0}, s{sk0}, s41
s_mul_i32 s{sk0}, s{sk0}, 11
s_lshr_b32 s{sk0}, s{sk0}, 1
""")
    else: a(f"s_mov_b32 s{sk0}, 0")
    a.jon = True
    a("s_cmp_lt_u32 s3, 4\ns_cbranch_scc1 L_comp")
    aux(a)
    compute(a)
    a("L_exit:\ns_endpgm\nL_code_end:")

def inter2(a, mf, others, per=2):
    o = list(others)
    for m in mf:
        a(m)
        for _ in range(per):
            if o: a(o.pop(0))
    for x in o: a(x)
def inter3(a, mf, l1, n1, l2, n2):
    l1 = list(l1); l2 = list(l2)
    for m in mf:
        a(m)
        for _ in range(n2):
            if l2: a(l2.pop(0))
        for _ in range(n1):
            if l1: a(l1.pop(0))
    assert not l1 and not l2
class L:
    def __init__(s): s.l = []
    def __call__(s, t): s.l += [x.strip() for x in t.strip("\n").split("\n")]
def maskbuild(a, sm, st, lo=4, step=2):
    a(f"s_mov_b32 s{sm}, 0")
    for i in range(8): a(f"s_cmp_eq_u64 s[{lo+2*i}:{lo+1+2*i}], s[{sEP}:{sEP+1}]\ns_cselect_b32 s{st}, {1 << (step*i):#x}, 0\ns_or_b32 s{sm}, s{sm}, s{st}")

def compute(a):
    vAb, vA, vBb, vB = 8, 10, 12, 14
    vY, vPW = 20, 21
    X, Y, ACC = 24, 64, 104
    vOne, vZero, vEp, vT, vL128 = 232, 233, 234, 235, 254
    QT = lambda dt, mt: ACC + 4 * (mt * 2 + dt)
    KK = lambda mt, nt: ACC + 32 + 4 * ((nt * 2 + (mt >> 1)) * 2 + (mt & 1))
    VV = lambda mt, nt: ACC + 64 + 4 * ((nt * 2 + (mt >> 1)) * 2 + (mt & 1))
    GATE = opt("gate", "kv")
    a("L_comp:")
    a.sst(2)
    KR, WR, KF, WF, TM, VF, UT = 200, 242, 24, 68, 84, 56, 200
    VR = [222, 224, 226, 228, 230, 236, 238, 240]
    vP0, vP1, vP2, vTW = 16, 17, 18, 19
    ids2(a)
    a(f"""
s_lshl_b32 s45, s{ssb}, 18
s_lshl_b32 s46, s3, 16
s_add_u32 s45, s45, s46
s_lshl_b32 s46, s{sdb}, 7
s_add_u32 s45, s45, s46
v_lshrrev_b32 v2, 4, v4
v_and_b32 v1, 15, v4
v_lshlrev_b32 v3, 3, v1
v_lshl_add_u32 v{vP0}, v2, 14, v3
v_add_u32 v{vP0}, s45, v{vP0}
v_subrev_u32 v{vP1}, 6144, v{vP0}
s_movk_i32 s57, 4096
s_movk_i32 s58, 8192
s_movk_i32 s59, 12288
s_mov_b32 s62, {4*MB:#x}
s_mov_b32 s63, 0x20000
s_mov_b32 s66, {4*MB:#x}
s_mov_b32 s67, 0x20000
s_mov_b32 s70, 8192
s_mov_b32 s71, 0x20000
v_lshlrev_b32 v{vP2}, 5, v1
s_lshl_b32 s46, s{sdb}, 9
v_add_u32 v{vP2}, s46, v{vP2}
v_sub_u32 v3, 3, v2
s_lshl_b32 s45, s3, 2
s_sub_u32 s45, 12, s45
v_add_u32 v3, s45, v3
v_and_b32 v6, 7, v4
v_xor_b32 v3, v3, v6
v_lshlrev_b32 v3, 4, v3
v_lshl_add_u32 v3, v1, 10, v3
v_add_u32 v{vTW}, {HB}, v3
s_and_b32 s40, s3, 1
s_lshr_b32 s41, s3, 1
v_bfe_u32 v3, v4, 1, 3
v_xor_b32 v3, v2, v3
v_lshlrev_b32 v3, 4, v3
v_lshl_add_u32 v3, v1, 7, v3
s_lshl_b32 s45, s40, 13
v_add_u32 v{vAb}, s45, v3
v_xor_b32 v{vAb+1}, 64, v{vAb}
v_bfe_u32 v22, v4, 2, 2
v_lshl_add_u32 v3, v2, 3, v22
v_lshlrev_b32 v3, 7, v3
v_and_b32 v7, 3, v4
v_lshlrev_b32 v6, 3, v7
s_lshl_b32 s45, s41, 6
v_add_u32 v6, s45, v6
v_bfe_u32 v7, v4, 3, 1
v_lshlrev_b32 v7, 6, v7
v_xor_b32 v6, v6, v7
v_bfe_u32 v23, v4, 4, 1
v_lshlrev_b32 v7, 5, v23
v_xor_b32 v6, v6, v7
v_add_u32 v3, v3, v6
v_add_u32 v{vBb}, 0x4000, v3
v_xor_b32 v{vBb+1}, 32, v{vBb}
v_mov_b32 v{vB}, v{vBb}
v_mov_b32 v{vB+1}, v{vBb+1}
v_mov_b32 v{vA}, v{vAb}
v_mov_b32 v{vA+1}, v{vAb+1}
s_lshl_b32 s39, s40, 5
v_lshlrev_b32 v{vL128}, 7, v4
v_mov_b32 v{vY}, {SYNC}
v_mov_b32 v{vOne}, 1
v_mov_b32 v{vZero}, 0
v_lshlrev_b32 v6, 2, v4
v_add_u32 v6, {SYNC}, v6
ds_write_b32 v6, v{vZero}
s_lshl_b32 s45, s3, 2
v_add_u32 v{vPW}, s45, v{vY}
s_mov_b32 s53, 0
s_mov_b32 s56, 0xffff0000
s_waitcnt lgkmcnt(0)
{WSOFF}
s_mov_b64 s[60:61], s[{sK}:{sK+1}]
s_mov_b64 s[64:65], s[{sV}:{sV+1}]
s_mov_b64 s[68:69], s[{sSH}:{sSH+1}]
""")
    a.sst(3); a("s_barrier"); a.sst(4)
    so = ["0", "s57", "s58", "s59"]
    for r in range(3): a(f"buffer_load_dwordx2 {vr(KR+2*r,2)}, v{vP1}, s[60:63], {so[r//2]} offen offset:{2048*(r%2)} {FL_KV}")
    for r in range(8): a(f"buffer_load_dwordx2 {vr(KR+6+2*r,2)}, v{vP0}, s[60:63], {so[r//2]} offen offset:{2048*(r%2)} {FL_KV}")
    for i in range(2): a(f"buffer_load_dwordx4 {vr(WR+4*i,4)}, v{vP2}, s[68:71], 0 offen offset:{16*i}")
    for r in range(8): a(f"buffer_load_dwordx2 {vr(VR[r],2)}, v{vP0}, s[64:67], {so[r//2]} offen offset:{2048*(r%2)} {FL_KV}")
    a(f"v_xor_b32 v17, s39, v{vB}\nv_xor_b32 v18, s39, v{vB+1}")
    a.sst(5)
    a("s_barrier")
    a.stamp(1)
    A0, A1, BB = 24, 200, 56
    NORD = [2, 3, 4, 5, 0, 1]
    def rdA(A): return [f"ds_read_b128 {vr(A+8*mt+4*k2,4)}, v{vA+k2} offset:{2048*mt}" for mt in range(4) for k2 in range(2)]
    vV, BQ2 = 17, 236
    def rdB(g, dst=None):
        n = NORD[g]; dst = BB + 8 * g if dst is None else dst
        return [f"ds_read_b64_tr_b16 {vr(dst+4*k2+2*i2,2)}, v{(vV if n >= 4 else vB)+(n&1)} offset:{(n//2)*8192+k2*4096+i2*512}" for k2 in range(2) for i2 in range(2)]
    def grp(A, g, zero=False, B=None):
        r = []; B = BB + 8 * g if B is None else B
        for mt in range(4):
            for k2 in range(2):
                c = "0" if zero and k2 == 0 else None
                x, y = A + 8 * mt + 4 * k2, B + 4 * k2
                if g < 2: r.append(mfma16(KK(mt, g), x, y, c))
                elif g < 4: r.append(mfma16(VV(mt, g - 2), x, y, c))
                else: r.append(mfma16(QT(g - 4, mt), y, x, c))
        return r
    advs = [f"s_add_u32 s52, s52, {STG}", f"s_cmp_eq_u32 s52, {3*STG}", "s_cselect_b32 s52, 0, s52"]
    advv = [f"v_add_u32 v{vA}, s52, v{vAb}", f"v_add_u32 v{vA+1}, s52, v{vAb+1}", f"v_add_u32 v{vB}, s52, v{vBb}", f"v_add_u32 v{vB+1}, s52, v{vBb+1}",
            f"v_xor_b32 v{vV}, s39, v{vB}", f"v_xor_b32 v{vV+1}, s39, v{vB+1}"]
    for r in rdA(A0)[:2] + rdB(0) + rdA(A0)[2:] + rdB(1): a(r)
    a("s_mov_b32 s52, 0")
    w = L(); srd(w, 60, sWS, 32 * MB); srd(w, 68, sOUT, 8 * MB)
    vTR, vUS, TD = [1, 2, 3, 6], 16, 236
    UF = int(opt("uf", "2"))
    w(f"""
v_lshlrev_b32 v3, 12, v2
v_lshl_add_u32 v{vUS}, v1, 4, v3
s_lshl_b32 s45, s{sdb}, 18
s_lshl_b32 s46, s3, 16
s_add_u32 s45, s45, s46
s_lshl_b32 s46, s{ssb}, 8
s_sub_u32 s45, s45, s46
s_add_u32 s45, s45, {WS_UT + 3840}
v_add_u32 v{vUS}, s45, v{vUS}
s_lshl_b32 s45, s3, 12
s_add_u32 s45, s45, {HB}
v_add_u32 v1, s45, v5
s_lshl_b32 s45, s40, 6
v_xor_b32 v1, s45, v1
v_xor_b32 v2, 16, v1
v_xor_b32 v3, 32, v1
v_xor_b32 v6, 48, v1
s_movk_i32 s57, 0x4000
s_mov_b32 s58, 0x8000
s_mov_b32 s59, 0xc000
s_lshl_b32 s43, s{sdb}, 2
s_add_u32 s43, s43, s3
s_lshl_b32 s43, s43, 4
s_add_u32 s43, s43, s{ssb}
s_lshl_b32 s43, s43, 2
{FA(43, FL_U)}
s_movk_i32 s42, {1 + (1 << UF)}
""")
    a("s_waitcnt lgkmcnt(10)")
    m = grp(A0, 0, True)
    a(m[0]); a(m[1])
    for x in rdB(2): a(x)
    a("s_waitcnt lgkmcnt(8)")
    interleave(a, m[2:], rdB(3) + rdB(4)[:2])
    a("s_waitcnt lgkmcnt(10)")
    interleave(a, grp(A0, 1, True), rdB(4)[2:] + rdB(5))
    a("s_waitcnt lgkmcnt(0)")
    interleave(a, grp(A0, 2, True) + grp(A0, 3, True) + grp(A0, 4, True) + grp(A0, 5, True), advs + advv + w.l, 2)
    a("s_waitcnt vmcnt(10)")
    a.sst(6)
    unpack(a, KR, KF, 22, 56)
    a("s_waitcnt vmcnt(8)")
    for p in range(4):
        a(f"v_lshlrev_b32 v{WF+p}, 16, v{WR+2*p}\nv_and_b32 v{WF+4+p}, s56, v{WR+2*p}")
        a(f"v_lshlrev_b32 v{WF+8+p}, 16, v{WR+2*p+1}\nv_and_b32 v{WF+12+p}, s56, v{WR+2*p+1}")
    for i0 in range(0, 8, 2):
        ch = [(i, h) for i in (i0, i0 + 1) for h in range(2)]
        for c, (i, h) in enumerate(ch): a(f"v_pk_mul_f32 {vr(TM+2*c,2)}, {vr(KF+4*(i+3)+2*h,2)}, {vr(WF+2*h,2)}")
        for t in (2, 1):
            for c, (i, h) in enumerate(ch): a(f"v_pk_fma_f32 {vr(TM+2*c,2)}, {vr(KF+4*(i+t)+2*h,2)}, {vr(WF+4*(3-t)+2*h,2)}, {vr(TM+2*c,2)}")
        for c, (i, h) in enumerate(ch): a(f"v_pk_fma_f32 {vr(KF+4*i+2*h,2)}, {vr(KF+4*i+2*h,2)}, {vr(WF+12+2*h,2)}, {vr(TM+2*c,2)}")
    a("s_waitcnt vmcnt(0)")
    for r in range(8): unpack(a, VR[r], VF + 4 * r, 2, 56)
    for h in range(2):
        for i in range(8): a(f"v_pk_mul_f32 {vr(KF+4*i+2*h,2)}, {vr(KF+4*i+2*h,2)}, {vr(VF+4*i+2*h,2)}")
        for e in (2 * h, 2 * h + 1):
            for d in range(4): a(f"v_cvt_pk_bf16_f32 v{UT+4*e+d}, v{KF+4*(7-2*d)+e}, v{KF+4*(6-2*d)+e}")
            a(f"ds_write_b128 v{vTW}, {vr(UT+4*e,4)} offset:{256*e}")
    a("s_waitcnt lgkmcnt(0)\ns_barrier")
    for r in rdA(A0)[:2] + rdB(0) + rdA(A0)[2:]: a(r)
    a("s_waitcnt lgkmcnt(6)")
    for r in rdB(1) + rdB(2): a(r)
    a("s_waitcnt lgkmcnt(8)")
    for r in rdB(3) + rdB(4): a(r)
    a("s_waitcnt lgkmcnt(8)")
    for e in range(4): a(f"ds_read_b128 {vr(TD+4*e,4)}, v{vTR[e]} offset:{1024*e}")
    a("s_branch L_loop1\nL_side:\ns_cmp_eq_u32 s53, 0\ns_cbranch_scc0 L_side2")
    for e in range(4): a(f"buffer_store_dwordx4 {vr(TD+4*e,4)}, v{vUS}, s[60:63], {['0','s57','s58','s59'][e]} offen sc1")
    a(f"""
s_branch L_back
L_side2:
v_readfirstlane_b32 s{sEP}, v{vEp}
s_mov_b32 s45, 0
s_waitcnt vmcnt(0)
s_cmp_lg_u32 s{sEP}, 0
s_cbranch_scc1 L_cepok
L_cep:
ds_read_b32 v{vEp}, v{vY} offset:{Y_EP}
s_add_u32 s45, s45, 1
s_waitcnt lgkmcnt(0)
v_readfirstlane_b32 s{sEP}, v{vEp}
s_cmp_gt_u32 s45, 0x40000
s_cbranch_scc1 L_cepok
s_cmp_eq_u32 s{sEP}, 0
s_cbranch_scc1 L_cep
L_cepok:
s_mov_b32 s{sEP+1}, s{sEP}
""")
    flag_store(a, 60, 43, vEp, vL128)
    a(f"""
s_branch L_back
{opt("lal", "")}
L_loop1:
""")
    def stage(A, An, first, plain=False):
        interleave(a, grp(A, 0), rdB(5) + ["\n".join(advs)] + ["\n".join(advv[:2]), "\n".join(advv[2:4]), "\n".join(advv[4:])])
        m = grp(A, 1)
        a("s_waitcnt lgkmcnt(0)"); a(m[0]); a("s_barrier")
        interleave(a, m[1:], rdB(0) + rdA(An)[:3])
        interleave(a, grp(A, 2), rdB(1) + rdA(An)[3:7])
        interleave(a, grp(A, 3), rdB(2) + rdA(An)[7:] + (["s_bitcmp1_b32 s42, s53", "s_cbranch_scc1 L_side\nL_back:"] if first and not plain else []))
        interleave(a, grp(A, 4), rdB(3) + ([f"ds_read_b32 v{vEp}, v{vY} offset:{Y_EP}"] if first and not plain else []))
        interleave(a, grp(A, 5), ["s_waitcnt lgkmcnt(4)\n" + rdB(4)[0]] + rdB(4)[1:] + ([] if first else ["s_add_u32 s53, s53, 1", "s_cmp_lt_u32 s53, 6"]))
    stage(A0, A1, True); stage(A1, A0, False)
    a("s_cbranch_scc1 L_loop1")
    stage(A0, A1, True, True)
    PK, PV, ONES, T, KV, Z, R, PQ = ACC + 32, ACC + 64, ACC + 56, 56, 72, 64, ACC + 80, ACC
    pre = [f"s_mov_b32 s54, {LOG2E:#x}", f"s_mov_b32 s55, {LOG2E:#x}", f"s_mov_b32 s56, {EPS:#x}",
           f"s_lshl_b32 s57, s{shk}, 2", "s_add_u32 s57, s57, s3", "s_lshl_b32 s57, s57, 4", f"s_add_u32 s57, s57, s{srb}",
           "s_lshl_b32 s58, s57, 10", f"s_add_u32 s58, s58, {WS_KVP:#x}", "s_lshr_b32 s59, s57, 4", "s_lshl_b32 s59, s59, 11",
           f"s_lshl_b32 s45, s{srb}, 4", "s_add_u32 s59, s59, s45", f"s_add_u32 s59, s59, {WS_ZP:#x}", "s_lshr_b32 s57, s57, 4", "s_lshl_b32 s57, s57, 11", f"s_add_u32 s57, s57, {FL_P:#x}"]
    PROT = opt("prot", "1") == "1"
    pre += ["v_and_b32 v19, 7, v4", f"v_lshlrev_b32 v19, {1 if PROT else 4}, v19", f"v_sub_u32 v19, s{srb}, v19", "v_and_b32 v19, 15, v19", f"v_lshl_add_u32 v19, v19, 2, v{vL128}"]
    pre += ["s_lshl_b32 s45, s3, 11", f"s_add_u32 s45, s45, {XCH}", "v_add_u32 v6, s45, v5", "v_xor_b32 v7, 2048, v6", "s_lshl_b32 s45, s3, 7", f"s_add_u32 s45, s45, {ZX}",
            "v_and_b32 v3, 0x30, v4", "v_add_u32 v16, s45, v3", "v_xor_b32 v253, 128, v16", f"v_xor_b32 v255, 4, v{vPW}"]
    interleave(a, grp(A1, 0), rdB(5) + ["\n".join(advs)] + ["\n".join(advv[:2]), "\n".join(advv[2:4]), "\n".join(advv[4:])])
    m = grp(A1, 1)
    a("s_waitcnt lgkmcnt(0)"); a(m[0]); a("s_barrier")
    interleave(a, m[1:], rdB(0) + rdA(A0)[:3])
    inter3(a, grp(A1, 2) + grp(A1, 3), pre, 3, rdB(1) + rdA(A0)[3:8] + rdB(2), 1)
    a("s_waitcnt lgkmcnt(4)")
    interleave(a, grp(A0, 0) + grp(A0, 1)[:2], rdB(3) + rdB(4, BQ2) + rdB(5, BQ2 + 8), 2)
    a(f"s_waitcnt lgkmcnt(0)\nds_write_b32 v{vPW}, v{vOne} offset:{Y_FR}")
    w = L(); phi_pack_np(w, PK, PK, 16, T, 54, 56)
    P1 = opt("p1", "0") == "1"
    if P1: phi_pack_np(w, PK + 16, PK + 16, 16, T, 54, 56)
    inter2(a, grp(A0, 1)[2:] + grp(A0, 2) + grp(A0, 3), w.l, int(opt("kfi", "3")))
    a.stamp(2)
    a(f"s_setprio {opt('cprio', '2')}")
    pk1 = phi_pack if GATE != "none" else phi_pack_np
    pack(a, PV, PV, 32)
    ON0 = ACC + 40
    for i in range(4): a(f"v_mov_b32 v{ON0+i}, 0x3f803f80")
    for dt in range(2):
        if dt == 1:
            w = L(); pk1(w, PK + 16, PK + 16, 16, T, 54, 56)
            k = len(w.l) // 2
            for x in w.l[:k]: a(x)
            a(f"ds_write_b128 v6, {vr(KV+8,4)}\nds_write_b128 v16, {vr(Z,4)}")
            for x in w.l[k:]: a(x)
        a("s_nop 1")
        for p in range(2):
            c = "0" if p == 0 else None
            a(mfma16(KV + 4 * (2 + dt), PK + 16 * dt + 4 * p, PV + 8 + 4 * p, c))
            a(mfma16(Z + 4 * dt, PK + 16 * dt + 4 * p, ON0, c))
            a(mfma16(KV + 4 * dt, PK + 16 * dt + 4 * p, PV + 4 * p, c))
    KST = opt("kst", "0") == "1"
    if KST: a.stamp(7)
    for i in range(4): a(f"v_mov_b32 v{ONES+i}, 0x3f803f80")
    a(f"s_nop 1\nds_write_b128 v6, {vr(KV+12,4)} offset:1024\nds_write_b128 v16, {vr(Z+4,4)} offset:64")
    a(f"""
ds_write_b32 v{vPW}, v{vOne} offset:{Y_XC}
s_mov_b32 s45, 0
L_xspin:
ds_read_b32 v{vT}, v255 offset:{Y_XC}
ds_read_b128 {vr(R,4)}, v7
ds_read_b128 {vr(R+4,4)}, v7 offset:1024
ds_read_b128 {vr(R+8,4)}, v253
ds_read_b128 {vr(R+12,4)}, v253 offset:64
s_add_u32 s45, s45, 1
s_waitcnt lgkmcnt(4)
v_readfirstlane_b32 s46, v{vT}
s_cmp_gt_u32 s45, 0x40000
s_cbranch_scc1 L_xdone
s_cmp_eq_u32 s46, 0
s_cbranch_scc1 L_xspin
L_xdone:
s_waitcnt lgkmcnt(2)
""")
    if KST: a.stamp(8)
    def add8(d, r):
        if GATE != "none":
            for i in range(4): a(f"v_pk_add_f32 {vr(d+2*i,2)}, {vr(d+2*i,2)}, {vr(r+2*i,2)}")
        else:
            for i in range(8): a(f"v_add_f32 v{d+i}, v{d+i}, v{r+i}")
    add8(KV, R)
    pack(a, KV, KV + 8, 8)
    a(f"buffer_store_dwordx4 {vr(KV+8,4)}, v5, s[60:63], s58 offen sc1")
    a("s_waitcnt lgkmcnt(0)")
    add8(Z, R + 8)
    pack(a, Z, KV + 12, 8)
    a("s_mov_b32 exec_lo, 0x10001\ns_mov_b32 exec_hi, 0x10001")
    a(f"buffer_store_dwordx4 {vr(KV+12,4)}, v5, s[60:63], s59 offen sc1")
    a("s_mov_b64 exec, -1")
    if GATE == "kv": a(f"ds_write_b32 v{vPW}, v{vOne} offset:{Y_KD}")
    a.stamp(3)
    PP, AC, ZZ, SEL, D1, B2, DN, EQ, KO, KP = 24, 88, 96, 8, 184, 136, 212, 168, 172, 176
    T = 204
    PS = opt("ps", "0") == "1"
    if PS: PQ = 180
    su = L()
    su(f"""
s_lshl_b32 s47, s{shq}, 1
s_add_u32 s47, s47, s41
s_lshl_b32 s44, s{shq}, 2
s_add_u32 s44, s44, s3
s_lshl_b32 s58, s44, 14
s_add_u32 s58, s58, {WS_KVP:#x}
s_lshl_b32 s59, s44, 11
s_add_u32 s59, s59, {WS_ZP:#x}
s_lshl_b32 s44, s44, 6
{FC(44, FL_P, srb)}
s_lshl_b32 s45, s41, 2
v_add_u32 v14, s45, v{vY}
v_mov_b32 v6, 0x3f80
v_and_b32 v7, 1, v4
v_lshlrev_b32 v7, 4, v7
v_lshlrev_b32 v6, v7, v6
v_lshrrev_b32 v2, 4, v4
v_cmp_eq_u32 vcc, v2, v22
v_bfe_u32 v7, v4, 1, 1
v_mov_b32 v{SEL}, 0
v_cndmask_b32 v6, 0, v6, vcc
v_cmp_eq_u32 vcc, 0, v7
v_mov_b32 v{SEL+1}, 0
v_mov_b32 v{SEL+4}, 0
v_cndmask_b32 v{SEL+2}, 0, v6, vcc
v_cndmask_b32 v{SEL+3}, v6, v{vZero}, vcc
v_mov_b32 v{SEL+5}, 0
s_lshl_b32 s45, s3, 10
s_add_u32 s45, s45, {KVL}
v_add_u32 v6, s45, v5
s_xor_b32 s45, s3, 1
s_lshl_b32 s45, s45, 10
s_add_u32 s45, s45, {KVL}
v_add_u32 v7, s45, v5
s_lshl_b32 s48, s{srb}, 3
s_lshl_b32 s45, s40, 2
s_add_u32 s48, s48, s45
s_lshl_b32 s48, s48, 15
s_lshl_b32 s45, s47, 10
s_add_u32 s48, s48, s45
s_add_u32 s48, s48, {WS_O:#x}
s_lshl_b32 s49, s{srb}, 1
s_add_u32 s49, s49, s40
s_lshl_b32 s49, s49, 7
s_lshl_b32 s45, s47, 2
s_add_u32 s49, s49, s45
{FA(49, FL_O)}
s_mov_b32 s50, 0
s_mov_b32 s51, 0
s_mov_b32 s53, 0
s_mov_b32 s46, 0
s_and_b32 s43, s{srb}, {7 if PROT else 0}
""")
    gq = [grp(A1, 4), grp(A0, 4, B=BQ2), grp(A1, 5), grp(A0, 5, B=BQ2 + 8)]
    qm = [x for mt in range(4) for g in gq for x in g[2 * mt:2 * mt + 2]]
    inter2(a, qm, su.l, 2)
    phiq = phi_keep if PS else phi_pack if GATE == "pq" else phi_pack_np
    NQ1 = int(opt("nq1", "0"))
    if NQ1: phiq(a, ACC, PQ, 8 * NQ1, T, 54, 56)
    a("s_waitcnt vmcnt(0)")
    flag_store(a, 60, 57, vEp, 19)
    a(f"s_load_dwordx16 s[4:19], s[{sWS}:{sWS+1}], s44 glc")
    a.stamp(4)
    for mt in range(NQ1, 4): phiq(a, ACC + 8 * mt, PQ + 4 * mt, 8, T, 54, 56)
    if GATE == "pq": a(f"ds_write_b32 v{vPW}, v{vOne} offset:{Y_KD}")
    for i in range(4): a(f"v_mov_b64 {vr(AC+2*i,2)}, 0\nv_mov_b64 {vr(B2+4*i+2,2)}, 0\nv_mov_b32 v{EQ+i}, s56")
    a("s_setprio 3")
    def accm(j):
        for i in range(2):
            a(mfma16(AC, SEL + 2, PP + 8 * j + 4 * i)); a(mfma16(AC + 4, SEL, PP + 8 * j + 4 * i))
    for k in range(8):
        a(f"s_cmp_eq_u32 s46, 0\ns_cbranch_scc1 L_poll{k}\nL_go{k}:\ns_ff1_i32_b32 s45, s46\ns_bitset0_b32 s46, s45\ns_add_u32 s45, s45, s43\ns_and_b32 s45, s45, 7\ns_lshl_b32 s45, s45, 11\ns_add_u32 s45, s45, s58")
        for i in range(2): a(f"buffer_load_dwordx4 {vr(PP+8*k+4*i,4)}, v5, s[60:63], s45 offen offset:{1024*i} sc1")
        a(f"s_bitset1_b32 s51, {k}")
    a("s_branch L_fin")
    for k in range(8):
        a(f"L_poll{k}:\ns_waitcnt lgkmcnt(0)")
        for i in range(7, -1, -1): a(f"s_cmp_eq_u64 s[{4+2*i}:{5+2*i}], s[{sEP}:{sEP+1}]\ns_addc_u32 s46, s46, s46")
        a(f"""
s_add_u32 s53, s53, 1
s_cmp_gt_u32 s53, 0x8000
s_cselect_b32 s46, 0xff, s46
s_andn2_b32 s46, s46, s50
s_or_b32 s50, s50, s46
s_cmp_eq_u32 s50, 0xff
s_cbranch_scc0 L_pm{k}
buffer_load_dwordx4 {vr(ZZ,4)}, v5, s[60:63], s59 offen sc1
s_mov_b32 s47, s51
s_mov_b32 s52, {k}
""")
        if STAMP: a.stamp(5)
        a(f"""
s_branch L_go{k}
L_pm{k}:
s_load_dwordx16 s[4:19], s[{sWS}:{sWS+1}], s44 glc
s_cmp_lg_u32 s46, 0
s_cbranch_scc1 L_go{k}
""")
        if k == 0: a("s_branch L_poll0")
        else: a(f"s_cmp_eq_u32 s51, 0\ns_cbranch_scc1 L_poll{k}\ns_mov_b32 s52, {k}\ns_branch L_acc")
    a("L_acc:\ns_waitcnt vmcnt(0)")
    for j in range(7):
        a(f"s_bitcmp1_b32 s51, {j}\ns_cbranch_scc0 L_ac{j}"); accm(j); a(f"L_ac{j}:")
    a("s_mov_b32 s51, 0")
    for k in range(1, 7): a(f"s_cmp_eq_u32 s52, {k}\ns_cbranch_scc1 L_poll{k}")
    a("s_branch L_poll7\nL_fin:")
    a("s_cmp_eq_u32 s47, 0\ns_cbranch_scc1 L_pz")
    for k in range(1, 7): a(f"s_cmp_eq_u32 s52, {k}\ns_cbranch_scc1 L_pv{k}")
    a("s_waitcnt vmcnt(3)\ns_branch L_pvd")
    for k in range(1, 7): a(f"L_pv{k}:\ns_waitcnt vmcnt({2*(8-k)+1})" + ("\ns_branch L_pvd" if k < 6 else ""))
    a("L_pvd:")
    for j in range(7):
        a(f"s_bitcmp1_b32 s47, {j}\ns_cbranch_scc0 L_ao{j}"); accm(j); a(f"L_ao{j}:")
    a("L_pz:")
    OST = opt("ost", "0") == "1"
    NOG = OST or KST
    for k in range(7): a(f"s_cmp_eq_u32 s52, {k}\ns_cbranch_scc1 L_pw{k}")
    a("s_waitcnt vmcnt(2)\ns_branch L_pwd")
    for k in range(7): a(f"L_pw{k}:\ns_waitcnt vmcnt({2*(8-k)})" + ("\ns_branch L_pwd" if k < 6 else ""))
    a("L_pwd:")
    if OST: a.stamp(7)
    for i in range(4): a(mfma16(D1 + 4 * i, ZZ, PQ + 4 * i, "0"))
    a("s_nop 4")
    for i in range(4): a(f"v_cvt_pk_bf16_f32 v{B2+4*i}, v{D1+4*i}, v{D1+4*i+1}\nv_cvt_pk_bf16_f32 v{B2+4*i+1}, v{D1+4*i+2}, v{D1+4*i+3}")
    a("s_nop 0")
    for i in range(4): a(mfma16(DN + 4 * i, ONES, B2 + 4 * i, vr(EQ, 4)))
    if PS:
        a("s_nop 4")
        for i in range(4): a(f"v_rcp_f32 v{DN+4*i}, v{DN+4*i}")
        for i in range(4):
            for p in range(8): a(f"v_mul_f32 v{ACC+8*i+p}, v{ACC+8*i+p}, v{DN+4*i}")
            pack(a, ACC + 8 * i, PQ + 4 * i, 8)
    for k in range(7, 0, -1): a(f"s_cmp_eq_u32 s52, {k}\ns_cbranch_scc1 L_an{k}")
    for j in range(8):
        a(f"L_an{j}:\ns_waitcnt vmcnt({2*(7-j)})"); accm(j)
    if OST: a.stamp(8)
    if PS: a("s_nop 7")
    else:
        a("s_nop 3")
        for i in range(4): a(f"v_rcp_f32 v{DN+4*i}, v{DN+4*i}")
    pack(a, AC, KO, 8)
    NO, NP, OP = 24, 40, 56
    a(f"ds_write_b128 v6, {vr(KO,4)}\nds_write_b32 v{vPW}, v{vOne} offset:{Y_K2}\nds_read_b32 v{vT}, v255 offset:{Y_K2}\nds_read_b128 {vr(KP,4)}, v7")
    for i in range(4): a(mfma16(NO + 4 * i, KO, PQ + 4 * i, "0"))
    a("s_mov_b32 s45, 0\ns_nop 3\ns_cmp_eq_u32 s40, 0")
    OPK = opt("opk", "0") == "1"
    def mul4(r, d):
        if PS: return
        if OPK:
            for p in range(2): a(f"v_pk_mul_f32 {vr(r+2*p,2)}, {vr(r+2*p,2)}, {vr(d,2)} op_sel_hi:[1,0]")
        else:
            for p in range(4): a(f"v_mul_f32 v{r+p}, v{r+p}, v{d}")
    for i in range(4): mul4(NO + 4 * i, DN + 4 * i)
    a("s_cbranch_scc0 L_o1")
    for wr in range(2):
        if wr: a("L_o1:")
        for i in range(4): pack(a, NO + 4 * i, OP + 4 * i + 2 * wr, 4)
        a(f"""
s_branch L_ks{wr}g
L_ks{wr}:
ds_read_b32 v{vT}, v255 offset:{Y_K2}
ds_read_b128 {vr(KP,4)}, v7
L_ks{wr}g:
s_add_u32 s45, s45, 1
s_waitcnt lgkmcnt(0)
v_readfirstlane_b32 s46, v{vT}
s_cmp_gt_u32 s45, 0x40000
s_cbranch_scc1 L_kd{wr}
s_cmp_eq_u32 s46, 0
s_cbranch_scc1 L_ks{wr}
L_kd{wr}:
""")
        for i in range(4): a(mfma16(NP + 4 * i, KP, PQ + 4 * i, "0"))
        a("s_nop 4")
        for i in range(4):
            if PS and i: a("s_nop 0")
            mul4(NP + 4 * i, DN + 4 * i)
            pack(a, NP + 4 * i, OP + 4 * i + 2 * (1 - wr), 4)
            a(f"buffer_store_dwordx4 {vr(OP+4*i,4)}, v5, s[60:63], s48 offen sc1")
            if i < 3: a("s_add_u32 s48, s48, 0x8000")
        if wr == 0: a("s_branch L_o2")
    a("L_o2:")
    if GATE == "o": a(f"ds_write_b32 v{vPW}, v{vOne} offset:{Y_KD}")
    a.stamp(9)
    OF, WX, WY, C, PO = 24, 88, 104, 120, 172
    vWb, vWA, vWB = 236, 8, 244
    a(f"""
s_lshl_b32 s59, s{sg_rb}, 3
s_lshl_b32 s45, s3, 1
s_add_u32 s59, s59, s45
s_lshl_b32 s45, s59, 15
s_add_u32 s45, s45, {WS_O:#x}
v_add_u32 v242, 0x8000, v5
s_mov_b32 s51, 0x55555555
""")
    srd_off(a, 64, sWS, "s45", 65536)
    a(f"""
s_lshl_b32 s52, s{sg_rb}, 8
s_lshl_b32 s46, s3, 6
s_add_u32 s52, s52, s46
{FC(52, FL_O, sg_cb)}
v_lshrrev_b32 v6, 2, v4
v_lshlrev_b32 v6, 7, v6
v_and_b32 v7, 3, v4
v_lshl_add_u32 v6, v7, 3, v6
v_bfe_u32 v7, v4, 3, 1
v_lshl_add_u32 v6, v7, 6, v6
v_lshl_add_u32 v{vWb}, v23, 5, v6
v_xor_b32 v{vWb+1}, 32, v{vWb}
v_xor_b32 v{vWb+2}, 64, v{vWb}
v_xor_b32 v{vWb+3}, 0x60, v{vWb}
s_lshl_b32 s57, s3, 11
s_add_u32 s57, s57, {XCH}
v_lshrrev_b32 v7, 5, v4
v_lshl_add_u32 v6, v23, 1, v7
v_and_b32 v7, 7, v4
v_xor_b32 v6, v6, v7
v_lshlrev_b32 v6, 4, v6
v_and_b32 v3, 15, v4
v_lshl_add_u32 v6, v3, 7, v6
v_add_u32 v15, s57, v6
v_xor_b32 v18, 64, v15
v_lshrrev_b32 v6, 3, v4
v_lshlrev_b32 v3, 4, v7
v_lshl_add_u32 v17, v6, 12, v3
v_xor_b32 v7, v7, v6
v_lshlrev_b32 v7, 4, v7
v_lshl_add_u32 v6, v6, 7, v7
v_add_u32 v16, s57, v6
s_mov_b32 s50, 0
s_mov_b32 s53, 0
s_mov_b32 s54, 0
s_lshl_b32 s55, s40, 4
s_and_b32 s42, s{sg_rb}, {3 if opt("wrot", "1") == "1" else 0}
s_lshl_b32 s42, s42, 3
""")
    for i in range(10): a(f"v_mov_b64 {vr(C+2*i,2)}, 0")
    a(f"s_load_dwordx16 s[4:19], s[{sWS}:{sWS+1}], s52 glc")
    for i in range(10, 16): a(f"v_mov_b64 {vr(C+2*i,2)}, 0")
    a("s_waitcnt vmcnt(0)")
    flag_store(a, 60, 49, vEp, vL128)
    a.stamp(6)
    a("s_waitcnt lgkmcnt(0)")
    maskbuild(a, 54, 46)
    a(f"s_lshl_b32 s46, s54, s55\ns_mov_b32 s47, s46\ns_lshr_b64 s[46:47], s[46:47], s42\nv_mov_b32 v{vT}, s46\ns_mov_b64 exec, 1\nds_or_b32 v14, v{vT} offset:{Y_CO}\ns_mov_b64 exec, -1")
    a(f"s_setprio {opt('gprio', '2')}")
    if opt("og", "0") == "1":
        a(f"""
ds_write_b32 v{vPW}, v{vOne} offset:160
s_mov_b32 s45, 0
L_og:
ds_read_b128 v[152:155], v{vY} offset:160
s_add_u32 s45, s45, 1
s_waitcnt lgkmcnt(0)
v_and_b32 v152, v152, v153
v_and_b32 v154, v154, v155
v_and_b32 v152, v152, v154
s_cmp_gt_u32 s45, 0x40000
s_cbranch_scc1 L_ogd
v_readfirstlane_b32 s46, v152
s_nop 3
s_cmp_eq_u32 s46, 0
s_cbranch_scc1 L_og
L_ogd:
""")
    selno = [0]
    def select(slot):
        n = selno[0]; selno[0] += 1
        a(f"""
s_cmp_lg_u32 s50, 0
s_cbranch_scc1 L_sel{n}_ok
s_mov_b32 s45, 0
s_cmp_lg_u32 s51, 0
s_cbranch_scc1 L_sel{n}
s_mov_b32 s66, 0
s_mov_b32 s50, 0x55555555
s_branch L_sel{n}_ok
L_sel{n}:
ds_read_b32 v{vT}, v14 offset:{Y_CO}
ds_read_b32 v13, v{vY} offset:{Y_WM}
s_add_u32 s45, s45, 1
s_waitcnt lgkmcnt(0)
v_and_b32 v13, v13, v{vT}
s_cmp_gt_u32 s45, 0x40000
s_cselect_b32 s46, -1, 0
v_readfirstlane_b32 s50, v13
s_nop 3
s_or_b32 s50, s50, s46
s_and_b32 s50, s50, s51
s_cbranch_scc1 L_sel{n}_ok
s_cmp_lg_u32 s54, 0x5555
s_cbranch_scc1 L_sel{n}_p
s_sleep 1
s_branch L_sel{n}
L_sel{n}_p:
s_load_dwordx16 s[4:19], s[{sWS}:{sWS+1}], s52 glc
s_add_u32 s45, s45, 8
s_waitcnt lgkmcnt(0)
""")
        maskbuild(a, 54, 46)
        a(f"s_lshl_b32 s46, s54, s55\ns_mov_b32 s47, s46\ns_lshr_b64 s[46:47], s[46:47], s42\nv_mov_b32 v{vT}, s46\ns_mov_b64 exec, 1\nds_or_b32 v14, v{vT} offset:{Y_CO}\ns_mov_b64 exec, -1")
        a(f"s_branch L_sel{n}\nL_sel{n}_ok:")
        return [f"s_ff1_i32_b32 s46, s50", "s_bitset0_b32 s50, s46\ns_add_u32 s48, s46, s42", "s_and_b32 s48, s48, 31\ns_lshl_b32 s48, s48, 10", "s_bitset0_b32 s51, s46", f"s_lshl_b32 s{28+slot}, s46, 12"]
    def oload(slot):
        return [f"buffer_load_dwordx4 {vr(OF+16*slot+8*hh+4*rt,4)}, v{[5,242][rt]}, s[64:67], s48 offen offset:{1024*hh} {OSC}" for hh in range(2) for rt in range(2)]
    def wreads(S, hh, vw):
        return [f"ds_read_b64_tr_b16 {vr(S+4*ct+2*i2,2)}, v{vw+ct} offset:{hh*4096+i2*2048}" for ct in range(4) for i2 in range(2)]
    def wset(slot, vw): return [f"v_add_u32 v{vw+i}, s{28+slot}, v{vWb+i}" for i in range(4)]
    for sl in range(3):
        for x in select(sl): a(x)
        if sl == 0 and not NOG: a.stamp(7)
        if sl == 0 and opt("lat", "0") == "1": a("s_waitcnt lgkmcnt(0)\ns_mov_b32 s94, s50\ns_bitset1_b32 s94, s46")
        for x in oload(sl): a(x)
    for x in wset(0, vWA): a(x)
    for r in wreads(WX, 0, vWA): a(r)
    a("L_gloop:")
    for u in range(4):
        cur, nxt = (vWA, vWB) if u % 2 == 0 else (vWB, vWA)
        sel = select((u + 3) % 4)
        ol = oload((u + 3) % 4)
        a("s_waitcnt vmcnt(10) lgkmcnt(0)")
        if TRACE: a("s_memrealtime s[100:101]")
        m = [mfma16(C + 4 * (rt * 4 + ct), WX + 4 * ct, OF + 16 * u + 4 * rt) for rt in range(2) for ct in range(4)]
        interleave(a, m, wreads(WY, 1, cur) + wset((u + 1) % 4, nxt) + sel[:4], 2)
        a("s_waitcnt vmcnt(8) lgkmcnt(0)")
        if TRACE: a(f"s_lshl_b32 m0, s53, 2\ns_add_u32 m0, m0, {u}\ns_nop 0\nv_writelane_b32 v252, s100, m0")
        m = [mfma16(C + 4 * (rt * 4 + ct), WY + 4 * ct, OF + 16 * u + 8 + 4 * rt) for rt in range(2) for ct in range(4)]
        if u == 3: oth = wreads(WX, 0, nxt) + [ol[0], ol[1], sel[4], ol[2], "s_add_u32 s53, s53, 1", ol[3], "s_cmp_lt_u32 s53, 4"]
        else: oth = wreads(WX, 0, nxt) + [ol[0], sel[4], ol[1]] + [None, ol[2], None, ol[3]]
        o2 = list(oth)
        for mm in m:
            a(mm)
            for _ in range(2):
                if o2:
                    x = o2.pop(0)
                    if x: a(x)
        for x in o2:
            if x: a(x)
    a("s_cbranch_scc1 L_gloop")
    if not NOG: a.stamp(8)
    a(f"""
s_lshl_b32 s48, s59, 16
s_lshl_b32 s49, s{sg_cb}, 7
s_add_u32 s48, s48, s49
s_add_u32 s49, s48, 0x8000
s_add_u32 s50, s48, 0x10000
s_add_u32 s51, s48, 0x18000
s_waitcnt lgkmcnt(0)
""")
    pack(a, C, PO, 32)
    a("s_nop 1")
    for q in range(4):
        a(f"v_permlane16_swap_b32 v{PO+4*q}, v{PO+4*q+2}\nv_permlane16_swap_b32 v{PO+4*q+1}, v{PO+4*q+3}")
    for rt in range(2):
        for qq in range(2): a(f"ds_write_b128 v{[15,18][qq]}, {vr(PO+8*rt+4*qq,4)}")
        for i in range(2): a(f"ds_read_b128 {vr(WX+8*rt+4*i,4)}, v16 offset:{1024*i}")
    for q in range(4):
        a(f"s_waitcnt lgkmcnt({[5,4,1,0][q]})")
        a(f"buffer_store_dwordx4 {vr(WX+4*q,4)}, v17, s[68:71], s{48+q} offen {FL_OUT}")
    if TRACE:
        a(f"v_writelane_b32 v252, s90, 16\ns_lshl_b32 s100, s2, 10\ns_add_u32 s100, s100, {WS_ST + 0x200000:#x}\nv_lshlrev_b32 v253, 2, v0\nbuffer_store_dword v252, v253, s[60:63], s100 offen")
    a.end()

def aux(a):
    vOA, vOB = 8, 12
    vZero, vEp, vOne, vY, vT = 6, 7, 14, 15, 3
    a(f"""
s_sub_u32 s3, s3, 4
v_lshrrev_b32 v1, 3, v4
v_and_b32 v2, 7, v4
v_lshrrev_b32 v3, 4, v4
v_xor_b32 v6, v2, v3
v_lshlrev_b32 v6, 4, v6
v_lshl_add_u32 v6, v1, 11, v6
s_lshl_b32 s60, s{srb}, 7
s_lshl_b32 s61, s3, 5
s_add_u32 s60, s60, s61
s_lshl_b32 s60, s60, 11
v_add_u32 v{vOA}, s60, v6
v_xor_b32 v6, 64, v{vOA}
v_add_u32 v{vOA+1}, {16384-1024}, v6
v_add_u32 v{vOA+2}, {2*(16384-1024)}, v{vOA}
v_add_u32 v{vOA+3}, {3*(16384-1024)}, v6
v_and_b32 v3, 1, v3
v_lshlrev_b32 v3, 2, v3
v_xor_b32 v7, v2, v3
v_lshlrev_b32 v7, 4, v7
v_xor_b32 v6, 32, v7
s_movk_i32 s61, 6144
v_mad_u32_u24 v7, v1, s61, v7
v_mad_u32_u24 v6, v1, s61, v6
s_mul_i32 s60, s3, {16*6144}
v_add_u32 v{vOB}, s60, v7
s_add_u32 s60, s60, {8*6144-1024}
v_add_u32 v{vOB+1}, s60, v6
s_lshl_b32 s65, s3, 12
s_lshl_b32 s66, s3, 11
s_add_u32 s66, s66, 0x4000
s_mov_b32 s64, 0
s_mov_b32 s67, s{sk0}
s_lshl_b32 s74, s{shq}, 7
s_lshl_b32 s75, s{shk}, 7
s_add_u32 s75, s75, 2048
s_mov_b32 s42, {4*MB:#x}
s_mov_b32 s43, 0x20000
s_mov_b32 s46, {6*MB:#x}
s_mov_b32 s47, 0x20000
s_waitcnt lgkmcnt(0)
s_mov_b64 s[40:41], s[{sX}:{sX+1}]
s_mov_b64 s[44:45], s[{sW}:{sW+1}]
""")
    vm = VM(a)
    def issue(tag):
        a(f"s_add_u32 m0, s64, s65\ns_lshl_b32 s60, s67, 7\ns_mul_i32 s63, s67, {64*6144}")
        for i in range(4): a(f"buffer_load_dwordx4 v{vOA+i}, s[40:43], s60 offen offset:{1024*i} {FL_XW} lds")
        a(f"s_add_u32 m0, s64, s66\ns_add_u32 s61, s63, s74\ns_add_u32 s62, s63, s75")
        for i in range(2): a(f"buffer_load_dwordx4 v{vOB+i}, s[44:47], s61 offen offset:{1024*i} {FL_XW} lds")
        a(f"s_add_u32 m0, m0, 8192\ns_add_u32 s63, s62, 2048")
        for i in range(2): a(f"buffer_load_dwordx4 v{vOB+i}, s[44:47], s62 offen offset:{1024*i} {FL_XW} lds")
        a(f"s_add_u32 m0, m0, 8192\ns_add_u32 s67, s67, 1")
        for i in range(2): a(f"buffer_load_dwordx4 v{vOB+i}, s[44:47], s63 offen offset:{1024*i} {FL_XW} lds")
        a(f"s_and_b32 s67, s67, 15\ns_add_u32 s64, s64, {STG}\ns_cmp_eq_u32 s64, {3*STG}\ns_cselect_b32 s64, 0, s64")
        vm.issue(tag, 10)
    def B(i): vm.wait(i); a.bar()
    a.sst(2)
    issue(0)
    a.sst(3)
    a("s_barrier")
    a.sst(4)
    ids2(a)
    a(f"v_mov_b32 v{vZero}, 0\nv_mov_b32 v{vOne}, 1\nv_mov_b32 v{vY}, {SYNC}\nv_lshlrev_b32 v255, 7, v4\n{WSOFF}")
    srd(a, 48, sWS, 32 * MB)
    srd(a, 52, sDBG, 256)
    a(f"""
s_or_b32 s60, s2, s3
s_cmp_eq_u32 s60, 0
s_cbranch_scc0 L_noep
s_memrealtime s[60:61]
s_waitcnt lgkmcnt(0)
s_or_b32 s60, s60, 1
v_mov_b32 v{vEp}, s60
s_mov_b64 exec, 1
buffer_store_dword v{vEp}, v{vZero}, s[52:55], 0 offen sc1
s_mov_b64 exec, -1
L_noep:
""")
    P, Qs, CACC, W2, QQ = 32, 96, 160, 192, 224
    VU = [240, 241, 242, 243]; vH, vE, vS, vTR, vHP = 244, 245, 246, 247, 251
    vUS, vHL, vO = 25, 26, 20
    a(f"""
s_mul_i32 s68, s3, {HCH}
s_add_u32 s68, s68, {HB}
s_lshl_b32 s69, s{ssb}, 7
s_lshl_b32 s70, s3, 5
s_add_u32 s69, s69, s70
v_lshrrev_b32 v28, 4, v4
v_bfe_u32 v29, v4, 2, 2
v_and_b32 v30, 3, v4
v_and_b32 v31, 15, v4
s_lshl_b32 s60, s3, 12
s_add_u32 s60, s60, {HB}
v_add_u32 v{vTR}, s60, v5
s_and_b32 s60, s3, 1
s_lshl_b32 s60, s60, 6
v_xor_b32 v{vTR}, s60, v{vTR}
v_xor_b32 v{vTR+1}, 16, v{vTR}
v_xor_b32 v{vTR+2}, 32, v{vTR}
v_xor_b32 v{vTR+3}, 48, v{vTR}
v_lshlrev_b32 v3, 12, v28
v_lshl_add_u32 v{vUS}, v31, 4, v3
s_lshl_b32 s60, s{sdb}, 18
s_lshl_b32 s61, s3, 16
s_add_u32 s60, s60, s61
s_lshl_b32 s61, s{ssb}, 8
s_sub_u32 s60, s60, s61
s_add_u32 s60, s60, {WS_UT + 3840}
v_add_u32 v{vUS}, s60, v{vUS}
v_lshlrev_b32 v{vHL}, 5, v4
v_and_b32 v3, 1, v28
v_lshlrev_b32 v3, 2, v3
v_xor_b32 v3, v2, v3
v_lshrrev_b32 v27, 5, v4
v_lshlrev_b32 v27, 1, v27
v_xor_b32 v3, v27, v3
v_lshlrev_b32 v3, 4, v3
v_lshl_add_u32 v3, v1, 11, v3
s_lshl_b32 s60, s{sg_cb}, 7
v_add_u32 v{vO}, s60, v3
v_add_u32 v{vO+1}, {16384-1024}, v{vO}
v_add_u32 v{vO+2}, {2*(16384-1024)}, v{vO}
v_add_u32 v{vO+3}, {3*(16384-1024)}, v{vO}
s_mov_b32 s70, 0xffff0000
v_and_b32 v3, 1, v28
s_movk_i32 s60, {HP}
v_mul_u32_u24 v3, s60, v3
v_lshl_add_u32 v3, v31, 4, v3
v_add_u32 v{vHP}, s68, v3
s_mul_i32 s71, s3, {UCH}
s_add_u32 s71, s71, {U0}
v_add_u32 v19, s71, v5
s_movk_i32 s61, {CPY}
v_and_b32 v24, 1, v29
v_mul_u32_u24 v24, s61, v24
v_lshl_add_u32 v24, v30, 4, v24
v_add_u32 v24, s71, v24
v_add_u32 v3, 1, v31
v_and_b32 v16, 1, v3
v_add_u32 v17, v16, v31
v_mul_u32_u24 v3, s61, v16
v_lshl_add_u32 v3, v28, 5, v3
v_lshlrev_b32 v17, 1, v17
v_sub_u32 v3, v3, v17
s_add_u32 s60, s71, {4014 - 512 - 16}
v_add_u32 v{VU[0]}, s60, v3
v_subrev_u32 v{VU[1]}, 1024, v{VU[0]}
v_subrev_u32 v{VU[2]}, 2048, v{VU[0]}
v_subrev_u32 v{VU[3]}, 3072, v{VU[0]}
v_add_u32 v3, v31, v28
s_add_u32 s60, s68, 208
v_lshlrev_b32 v3, 4, v3
v_add_u32 v{vH}, s60, v3
v_lshlrev_b32 v3, 5, v31
v_lshl_add_u32 v16, v28, 3, v3
s_add_u32 s60, s71, {4088 - 3584}
v_sub_u32 v{vE}, s60, v16
v_and_b32 v16, 1, v28
v_lshl_add_u32 v3, v16, 9, v3
v_lshrrev_b32 v16, 5, v4
v_lshl_add_u32 v{vS}, v16, 4, v3
v_lshlrev_b32 v27, 4, v2
v_lshl_add_u32 v16, v1, 11, v27
v_lshl_add_u32 v17, v1, 12, v27
s_add_u32 s39, s{sch}, s3
s_and_b32 s60, s39, 0xfffffffe
s_lshl_b32 s60, s60, 1
s_load_dword s71, s[{sD}:{sD+1}], s60
s_lshl_b32 s61, s39, 12
""")
    for i in range(16): a(f"v_mov_b64 {vr(CACC+2*i,2)}, 0")
    srd_off(a, 52, sH, "s61", 4096); srd(a, 56, sWO, 2 * MB)
    a(f"s_waitcnt lgkmcnt(0)\ns_mov_b32 s20, s{sQ}\ns_mov_b32 s21, s{sQ+1}")
    def hload():
        a(f"s_add_u32 m0, s68, 256\ns_movk_i32 s60, 1024\ns_movk_i32 s61, 1040")
        a(f"buffer_load_dwordx4 v{vHL}, s[52:55], 0 offen {FL_KV} lds\nbuffer_load_dwordx4 v{vHL}, s[52:55], s60 offen offset:1024 {FL_KV} lds")
        a(f"s_add_u32 m0, s68, {HP+256}\ns_nop 0")
        a(f"buffer_load_dwordx4 v{vHL}, s[52:55], 16 offen {FL_KV} lds\nbuffer_load_dwordx4 v{vHL}, s[52:55], s61 offen offset:1024 {FL_KV} lds")
        vm.issue("h", 4)
    def epoch():
        a(f"""
s_waitcnt lgkmcnt(0)
s_mov_b32 s60, 0
L_eploop:
s_cmp_lg_u32 s{sEP}, 0
s_cbranch_scc1 L_epok
s_sleep 8
s_load_dword s{sEP}, s[{sDBG}:{sDBG+1}], 0 glc
s_add_u32 s60, s60, 1
s_cmp_gt_u32 s60, 0x4000
s_waitcnt lgkmcnt(0)
s_cbranch_scc0 L_eploop
L_epok:
s_mov_b32 s{sEP+1}, s{sEP}
v_mov_b32 v{vEp}, s{sEP}
ds_write_b32 v{vY}, v{vEp} offset:{Y_EP}
""")
    a.sst(5); vm.wait(0); a.sst(6)
    B(0); issue(1); issue(2)
    B(1); issue(3)
    a.stamp(9)
    B(2); issue(4)
    a(f"s_load_dword s{sEP}, s[{sDBG}:{sDBG+1}], 0")
    D, E, O = 32, 48, 52
    H0 = int(opt("h0", "14")); D0 = int(opt("d0", "14")); HN = int(opt("hn", "1")); DN_ = int(opt("dn", "1"))
    hl = [(f"s_add_u32 m0, s68, 256", f"buffer_load_dwordx4 v{vHL}, s[52:55], 0 offen {FL_KV} lds"),
          (f"s_add_u32 m0, s68, 256\ns_movk_i32 s60, 1024", f"buffer_load_dwordx4 v{vHL}, s[52:55], s60 offen offset:1024 {FL_KV} lds"),
          (f"s_add_u32 m0, s68, {HP+256}", f"buffer_load_dwordx4 v{vHL}, s[52:55], 16 offen {FL_KV} lds"),
          (f"s_add_u32 m0, s68, {HP+256}\ns_movk_i32 s60, 1040", f"buffer_load_dwordx4 v{vHL}, s[52:55], s60 offen offset:1024 {FL_KV} lds")]
    dl = [f"buffer_load_dwordx4 {vr(D+4*j,4)}, v5, s[48:51], s39 offen offset:{1024*j} sc1" for j in range(4)]
    a(f"s_lshl_b32 s33, s39, 7\ns_add_u32 s33, s33, {FL_U:#x}\ns_lshl_b32 s39, s39, 12")
    def uchk():
        a("s_waitcnt lgkmcnt(0)")
        for i in range(8): a(f"s_cmp_eq_u64 s[{4+2*i}:{5+2*i}], s[{sEP}:{sEP+1}]\ns_cbranch_scc0 L_us")
        a("s_branch L_upoll_done\nL_us:")
        spoll(a, "L_upoll", 33, 60)
    SP = opt("sp", ""); SN = int(opt("sn", "4")); S0 = int(opt("s0", "4")); SH = int(opt("sh", "1"))
    pf = []
    if SP:
        a(f"""
s_lshl_b32 s60, s69, 11
s_lshl_b32 s61, s{sdb}, 7
s_add_u32 s60, s60, s61
s_add_u32 s0, s20, s60
s_addc_u32 s1, s21, 0
s_lshl2_add_u32 s60, s{sj}, s3
s_lshl_b32 s60, s60, 14
s_and_b32 s61, s{sx}, 4
s_lshl_b32 s61, s61, 8
s_add_u32 s60, s60, s61
s_add_u32 s6, s56, s60
s_addc_u32 s7, s57, 0
""")
        hs = [0] if SH == 1 else [0, 64]
        for c in SP:
            if c == "h": pf += [f"s_load_dword s5, s[52:53], {i*128+o:#x}" for i in range(32) for o in hs]
            if c == "q": pf += [f"s_load_dword s5, s[0:1], {i*2048+o:#x}" for i in range(32) for o in hs]
            if c == "w": pf += [f"s_load_dword s5, s[6:7], {r*2048+c2*128+o:#x}" for r in range(8) for c2 in range(8) for o in hs]
    for b in range(3, 14):
        B(b)
        if b == 3:
            epoch(); a(f"ds_write_b128 v{vHP}, {vr(CACC,4)}")
        issue(b + 2)
        PT = opt("pt", "0")
        if b == 3 and PT != "0":
            fl = "glc" if PT == "glc" else ""
            a(f"""
s_load_dword s5, s[{sWS}:{sWS+1}], s33 {fl}
s_lshl2_add_u32 s60, s{shq}, s3
s_lshl_b32 s61, s60, 11
s_lshl_b32 s62, s{srb}, 6
s_add_u32 s61, s61, s62
s_add_u32 s61, s61, {WS_ZP:#x}
s_load_dword s5, s[{sWS}:{sWS+1}], s61 {fl}
s_lshl_b32 s60, s60, 6
{FC(60, FL_P, srb)}
s_load_dword s5, s[{sWS}:{sWS+1}], s60 {fl}
s_lshl_b32 s60, s{sg_rb}, 8
s_lshl_b32 s61, s3, 6
s_add_u32 s60, s60, s61
{FC(60, FL_O, sg_cb)}
s_load_dword s5, s[{sWS}:{sWS+1}], s60 {fl}
s_lshl_b32 s60, s{sdb}, 6
s_lshl2_add_u32 s61, s{ssb}, s3
{FC(60, FL_Y, 61, 8192)}
s_load_dword s5, s[{sWS}:{sWS+1}], s60 {fl}
""")
        if S0 <= b <= 12:
            for _ in range(SN):
                if pf: a(pf.pop(0))
        if b == 13: a("s_waitcnt lgkmcnt(0)")
        if b == min(D0, 14) - 1: a(f"s_load_dwordx16 s[4:19], s[{sWS}:{sWS+1}], s33 glc")
        if b == D0: uchk()
        if b >= H0:
            for _ in range(HN):
                if hl:
                    x = hl.pop(0); a(x[0]); a("s_nop 0"); a(x[1]); vm.issue("h")
        if b >= D0:
            for _ in range(DN_):
                if dl: a(dl.pop(0)); vm.issue("d")
    srd(a, 40, 20, 4 * MB); srd(a, 44, sOUT, 8 * MB)
    sPo = {0: 3, 1: 75, 2: 65, 3: 31}
    a(f"s_and_b32 s28, s{sg_rb}, {3 if opt('wrot', '1') == '1' else 0}\ns_lshl_b32 s74, s28, 2\ns_lshl_b32 s28, s28, 3")
    a("s_add_u32 s65, s3, 5\ns_add_u32 s75, s3, 9\ns_cmp_eq_u32 s3, 3\ns_cselect_b32 s75, 4, s75\ns_add_u32 s31, s3, 12")
    def usrc(g): return [f"s_add_u32 s60, s{sPo[g]}, s74", "s_and_b32 s60, s60, 15", "s_lshl_b32 s60, s60, 17", "s_add_u32 s61, s60, 0x10000"]
    def w2(g):
        r = usrc(g)
        for hh in range(2):
            for i in range(4): r.append(f"buffer_load_dwordx4 {vr(W2+16*hh+4*i,4)}, v{vO+i}, s[56:59], s{60+hh} offen offset:{1024*i} {FL_WO}")
        vm.issue(f"w{g}", 8)
        return r
    def wb(g):
        a(f"s_lshl_b32 m0, s{sPo[g]}, 13")
        for x in usrc(g): a(x)
        for hh in range(2):
            for i in range(4): a(f"buffer_load_dwordx4 v{vO+i}, s[56:59], s{60+hh} offen offset:{1024*i} {FL_WO} lds")
            if hh == 0: a("s_add_u32 m0, m0, 4096\ns_nop 0")
        vm.issue(f"w{g}", 8)
    def wm_lines(bits):
        r = ["s_mov_b32 s61, 0"]
        for g in bits: r += [f"s_lshl_b32 s60, s{sPo[g]}, 1", "s_bitset1_b32 s61, s60"]
        return r + [f"v_mov_b32 v{vT}, s61", f"s_mov_b64 exec, 1\nds_or_b32 v{vY}, v{vT} offset:{Y_WM}\ns_mov_b64 exec, -1"]
    B(14)
    if D0 >= 14: uchk()
    for x in dl: a(x); vm.issue("d")
    for x in hl: a(x[0]); a("s_nop 0"); a(x[1]); vm.issue("h")
    W14 = len(dl) + len(hl) <= 4
    if W14: wb(2)
    B(15)
    a.stamp(1)
    a(f"ds_write_b128 v24, {vr(CACC,4)} offset:4096")
    def wait4(lab, off, slp=1, T=68):
        a(f"""
s_mov_b32 s60, 0
{lab}:
ds_read_b128 v[{T}:{T+3}], v{vY} offset:{off}
s_add_u32 s60, s60, 1
s_waitcnt lgkmcnt(0)
v_and_b32 v{T}, v{T}, v{T+1}
v_and_b32 v{T+2}, v{T+2}, v{T+3}
v_and_b32 v{T}, v{T}, v{T+2}
s_cmp_gt_u32 s60, 0x40000
s_cbranch_scc1 {lab}_d
v_readfirstlane_b32 s61, v{T}
s_nop 3
s_cmp_eq_u32 s61, 1
s_cbranch_scc1 {lab}_d
s_sleep {slp}
s_branch {lab}
{lab}_d:
""")
    if not W14: wb(2)
    UO = opt("uo", "0")
    if UO == "1":
        wait4("L_fr", Y_FR); wb(1); wb(0)
    if UO == "2":
        wait4("L_fr", Y_FR); wb(1)
    vm.wait("d")
    for j in range(3): a(f"v_mov_b32_dpp v{E+j}, v{D+4*j+4} wave_rol:1 row_mask:0xf bank_mask:0xf")
    a(f"v_mov_b32 v{E+3}, 0\ns_nop 0")
    for j in range(4): a(f"v_mov_b32_dpp v{E+j}, v{D+4*j} wave_shl:1 row_mask:0xf bank_mask:0xf")
    for j in range(4):
        d = [D + 4 * j + i for i in range(4)] + [E + j]
        o = O + 4 * j
        a(f"ds_write_b128 v19, {vr(D+4*j,4)} offset:{1024*j}")
        for i in range(4): a(f"v_alignbit_b32 v{o+i}, v{d[i+1]}, v{d[i]}, 16")
        a(f"ds_write_b128 v19, {vr(o,4)} offset:{CPY+1024*j}")
    if UO == "0": wait4("L_fr", Y_FR)
    a.stamp(2)
    if UO == "0": wb(1)
    if UO == "2" and opt("gate", "kv") != "none": wait4("L_kdz", Y_KD, T=Qs)
    if UO != "1": wb(0)
    a(f"""
s_lshl_b32 s30, s69, 11
s_lshl_b32 s61, s{sdb}, 7
s_add_u32 s30, s30, s61
s_lshl_b32 s63, s69, 12
s_add_u32 s63, s63, s61
s_add_u32 s63, s63, 2048
s_lshl_b32 s66, s{sg_rb}, 8
s_lshl_b32 s61, s3, 6
s_add_u32 s66, s66, s61
{FC(66, FL_O, sg_cb)}
s_bitcmp1_b32 s3, 0
s_cselect_b32 s60, 0, 16
s_cselect_b32 s33, 16, 0
s_lshl_b32 s71, s71, s60
s_and_b32 s71, s71, 0xffff0000
s_lshr_b32 s60, s3, 1
v_lshl_add_u32 v19, s60, 2, v{vY}
s_mov_b32 s32, s{sch}
{FA(32, FL_Y, 8192)}
s_lshl_b32 s67, s{sdb}, 6
s_lshl_b32 s60, s{ssb}, 2
s_add_u32 s60, s60, s3
{FC(67, FL_Y, 60, 8192)}
s_mov_b32 s64, 0
""")
    def creads(S, rho):
        r = []
        for i in range(8):
            o0 = 128 * (1 - i % 2) + 4 * (1 - rho)
            r.append(f"ds_read2_b32 {vr(S+4*i,2)}, v{VU[i//2]} offset0:{o0} offset1:{o0+1}")
            r.append(f"ds_read2_b32 {vr(S+4*i+2,2)}, v{VU[i//2]} offset0:{o0+2} offset1:{o0+3}")
            r.append(f"ds_read_b128 {vr(S+32+4*i,4)}, v{vH} offset:{256*i+(HP if rho == 0 else 0)}")
        return r
    def cmf(S):
        if opt("cch", "1") == "1": return [mfma16(CACC + 4 * t, S + 4 * x, S + 32 + 4 * (t - x)) for t in range(7, -1, -1) for x in range(t + 1)]
        return [mfma16(CACC + 4 * (x + y), S + 4 * x, S + 32 + 4 * y) for x in range(8) for y in range(8 - x)]
    vm.wait("h")
    for r in creads(P, 0): a(r)
    if opt("gate", "kv") != "none": wait4("L_kd", Y_KD, T=Qs)
    a.stamp(3)
    a(f"s_setprio {opt('vprio', '0')}")
    adv = [f"v_subrev_u32 v{x}, 128, v{x}" for x in VU] + [f"v_subrev_u32 v{vH}, 64, v{vH}"]
    pn = [0]
    def Pissue(): return f"s_load_dwordx16 s[4:19], s[{sWS}:{sWS+1}], s66 glc"
    def Pcheck(w):
        n = pn[0]; pn[0] += 1
        maskbuild(w, 62, 60)
        w(f"s_mov_b32 s64, s62\ns_lshl_b32 s60, s62, s33\ns_mov_b32 s61, s60\ns_lshr_b64 s[60:61], s[60:61], s28\nv_mov_b32 v{vT}, s60")
        g = f"s_mov_b64 exec, 1\nds_or_b32 v19, v{vT} offset:{Y_CO}\ns_mov_b64 exec, -1"
        if isinstance(w, L): w.l.append(g)
        else: w(g)
    W3H = int(opt("w3h", "1")); QH = int(opt("qh", "1"))
    ql = [x for i in range(4) for x in ([f"buffer_load_dwordx4 {vr(QQ+4*i,4)}, v16, s[40:43], s30 offen {FL_KV}"] + (["s_add_u32 s30, s30, 0x4000"] if i < 3 else []))]
    for h in range(8):
        S, N = (P, Qs) if h % 2 == 0 else (Qs, P)
        a("s_waitcnt lgkmcnt(0)")
        ex = []
        if h == 1:
            vm.wait("w0"); ex = wm_lines((0, 1, 2))
        if h == W3H: ex = ex + w2(3)
        if h == QH:
            ex = ex + ql; vm.issue("q", 4)
        inter3(a, cmf(S), ex, 1, (creads(N, 1 - h % 2) if h < 7 else []) + (adv if h % 2 == 0 else []), 1)
    a.stamp(4)
    UU, T = Qs + 40, Qs + 56
    for t in range(8): a(f"ds_read_b64 {vr(UU+2*t,2)}, v{vE} offset:{512*(7-t)}")
    ladd(a, vY, Y_CD, vOne)
    a(f"s_setprio {opt('yprio', '3')}\ns_waitcnt lgkmcnt(0)")
    YP = opt("yp", "0")
    if YP != "0": a(Pissue())
    for t in range(8):
        a(f"v_and_b32 v{T}, s70, v{UU+2*t+1}\nv_lshlrev_b32 v{T+1}, 16, v{UU+2*t+1}")
        a(f"v_and_b32 v{T+2}, s70, v{UU+2*t}\nv_lshlrev_b32 v{T+3}, 16, v{UU+2*t}")
        for i in range(4): a(f"v_fmac_f32 v{CACC+4*t+i}, s71, v{T+i}")
        a(f"v_cvt_pk_bf16_f32 v{UU+2*t}, v{CACC+4*t}, v{CACC+4*t+1}")
        a(f"v_cvt_pk_bf16_f32 v{UU+2*t+1}, v{CACC+4*t+2}, v{CACC+4*t+3}")
    a("s_nop 1")
    for t in range(0, 8, 2):
        a(f"v_permlane16_swap_b32 v{UU+2*t}, v{UU+2*t+2}\nv_permlane16_swap_b32 v{UU+2*t+1}, v{UU+2*t+3}")
    vm.wait("w3")
    for t in range(0, 8, 2): a(f"buffer_store_dwordx4 {vr(UU+2*t,4)}, v{vS}, s[48:51], s39 offen offset:{512*t} sc1")
    if YP != "0":
        a("s_waitcnt lgkmcnt(0)"); Pcheck(a)
    if YP == "2": a(Pissue())
    if W3H == 8:
        for x in w2(3): a(x)
    lspin(a, "L_cdspin", vY, Y_CD, "4", vT, 60, 61, slp=0)
    if YP == "2": Pcheck(a)
    def w2write():
        a(f"s_lshl_b32 s60, s3, 13\ns_add_u32 s60, s60, {U0}\nv_add_u32 v21, s60, v5")
        for i in range(8): a(f"ds_write_b128 v21, {vr(W2+4*i,4)} offset:{1024*i}")
        for x in wm_lines((3,)): a(x)
    if W3H != 8: w2write()
    if QH > 7:
        for x in ql: a(x)
    a.stamp(5)
    a(f"""
s_lshl_b32 s65, s{sdb}, 18
s_lshl_b32 s60, s69, 1
s_add_u32 s65, s65, s60
s_add_u32 s65, s65, {WS_YT:#x}
v_lshrrev_b32 v18, 2, v4
v_lshlrev_b32 v18, 12, v18
v_lshl_add_u32 v18, v30, 4, v18
v_lshl_add_u32 v20, v28, 3, v29
v_lshlrev_b32 v20, 6, v20
v_lshl_add_u32 v20, v30, 3, v20
v_add_u32 v20, s68, v20
s_movk_i32 s60, 144
v_mul_u32_u24 v24, s60, v31
v_lshl_add_u32 v24, v28, 4, v24
v_add_u32 v24, s68, v24
v_mul_u32_u24 v25, s60, v1
v_add3_u32 v25, v25, v27, s68
s_mov_b32 m0, s68
s_waitcnt vmcnt({(4 if QH > 7 else 0) + (8 if W3H == 8 else 0)})
s_mov_b64 exec, 1
ds_add_rtn_u32 v{vT}, v{vY}, v{vOne} offset:{Y_CY}
s_mov_b64 exec, -1
s_waitcnt lgkmcnt(0)
v_readfirstlane_b32 s60, v{vT}
s_nop 3
s_cmp_eq_u32 s60, 3
s_cbranch_scc0 L_yfl
""")
    flag_store(a, 48, 32, vEp, 255, "-1")
    a("L_yfl:")
    if W3H == 8:
        a(f"s_waitcnt vmcnt({4 if QH > 7 else 0})"); w2write()
    a.stamp(6)
    a("s_setprio 0\ns_waitcnt vmcnt(0)")
    unpack(a, QQ, 96, 16, 70)
    a("s_mov_b32 s29, 0\nL_yloop:\ns_cmp_eq_u32 s64, 0x5555\ns_cbranch_scc1 L_ynop")
    a(Pissue() + "\ns_waitcnt lgkmcnt(0)"); Pcheck(a)
    a(f"L_ynop:\ns_load_dwordx16 s[4:19], s[{sWS}:{sWS+1}], s67 glc\ns_add_u32 s29, s29, 1\ns_cmp_gt_u32 s29, 0x8000\ns_cbranch_scc1 L_ydone\ns_waitcnt lgkmcnt(0)")
    for i in range(8): a(f"s_cmp_eq_u64 s[{4+2*i}:{5+2*i}], s[{sEP}:{sEP+1}]\ns_cbranch_scc0 L_yloop")
    a("L_ydone:\ns_waitcnt lgkmcnt(0)")
    a.stamp(7)
    for i in range(4):
        a(f"buffer_load_dwordx4 v18, s[48:51], s65 offen offset:{1024*i} sc1 lds")
        if i < 3: a(f"s_add_u32 s65, s65, {0x10000-1024}")
    YY, T = 48, 64
    a("s_waitcnt vmcnt(0)")
    a.stamp(8)
    for sh in range(2):
        for oh in range(2):
            for i2 in range(2):
                a(f"ds_read_b64_tr_b16 {vr(YY+8*sh+4*oh+2*i2,2)}, v20 offset:{32*sh+2048*oh+256*i2}")
    a("s_waitcnt lgkmcnt(0)")
    for sh in range(2):
        for oh in range(2): a(f"ds_write_b128 v24, {vr(YY+8*sh+4*oh,4)} offset:{16*144*sh+64*oh}")
    for j in range(4): a(f"ds_read_b128 {vr(YY+32+4*j,4)}, v25 offset:{8*144*j}")
    for j in range(4):
        a(f"s_waitcnt lgkmcnt({3-j})")
        unpack(a, YY + 32 + 4 * j, T, 4, 70)
        for e in range(8): a(f"v_mul_f32 v{T+e}, v{T+e}, v{96+8*j+e}")
        pack(a, T, QQ + 4 * j, 8)
        a(f"buffer_store_dwordx4 {vr(QQ+4*j,4)}, v17, s[44:47], s63 offen {FL_OUT}")
        if j < 3: a("s_add_u32 s63, s63, 0x8000")
    a.trace_out()
    a.end()

def desc(name, vgpr, sgpr=102):
    return f""".amdhsa_kernel {name}
  .amdhsa_next_free_vgpr {vgpr}
  .amdhsa_next_free_sgpr {sgpr}
  .amdhsa_accum_offset {(vgpr + 3) // 4 * 4}
  .amdhsa_group_segment_fixed_size 0
  .amdhsa_kernarg_size 96
  .amdhsa_user_sgpr_count 2
  .amdhsa_user_sgpr_kernarg_segment_ptr 1
  .amdhsa_system_sgpr_workgroup_id_x 1
.end_amdhsa_kernel
"""
def main():
    out = open("cdna_kernels/" + NAME + ".s.ref").read().split("; Override launch")[0]
    KS = [KN]
    if AMP:
        out += f"; @launch kernel={KN} grid=(256,1,1) block=(512,1,1) lds={LDS}\n"
        out += "; @launch kernel=kd_kernel grid=(1,1,1) block=(64,1,1) lds=0\n"; KS.append("kd_kernel")
    else:
        out += f"; @launch grid=(256,1,1) block=(512,1,1) lds={LDS}\n"
    out += '.amdgcn_target "amdgcn-amd-amdhsa--gfx950"\n.text\n'
    for k in KS: out += f".globl {k}\n.type {k},@function\n"
    if opt("pal", ""): out += f".p2align {opt('pal', '')}\n"
    out += ".p2align 8\n"
    a = A()
    kernel(a)
    if AMP: kd.kernel_d(a, AMP, WS_ST)
    out += a.text()
    out += '.section .rodata,"a"\n'
    for k in KS: out += ".p2align 6\n" + desc(k, 256)
    path = sys.argv[1] if len(sys.argv) > 1 and not sys.argv[1].startswith("--") else "cdna_kernels/" + NAME + ".s"
    open(path, "w").write(out)
main()
```

```python
import sys, os
sys.path.insert(0, os.path.dirname(os.path.abspath(__file__)))
import kd
NAME = "concat_heads__linear_attn_block__ssm_conv_h3__prompt"
KN = NAME + "_kernel"
MB = 1 << 20
WS_UT, WS_KVP, WS_ZP, WS_FL, WS_O, WS_YT, WS_ST = 0, 8 * MB, 9 * MB, 9 * MB + 0x40000, 4 * MB, 0, 24 * MB
LOG2E, EPS = 0x3FB8AA3B, 0x358637BD
STAMP = "--stamp" in sys.argv
TRACE = "--trace" in sys.argv
def opt(name, default):
    for x in sys.argv:
        if x.startswith("--" + name + "="): return x.split("=", 1)[1]
    return default
FL_U, FL_P, FL_O, FL_Y = [WS_FL + k * 131072 for k in range(4)]
def FA(r, base, grp=2048):
    return f"s_lshr_b32 vcc_lo, s{r}, 6\ns_mul_i32 vcc_lo, vcc_lo, {grp-64}\ns_add_u32 s{r}, s{r}, vcc_lo\ns_add_u32 s{r}, s{r}, {base:#x}"
def FC(r, base, own, grp=2048):
    return FA(r, base, grp) + f"\ns_lshl_b32 vcc_lo, s{own}, 7\ns_add_u32 s{r}, s{r}, vcc_lo"
if opt("ysep", "0") == "1": WS_YT = 10 * MB
FL_KV = opt("kv", "")
FL_WO = opt("wo", "")
FL_XW = opt("xw", "")
FL_OUT = opt("outst", "sc1")
AMP = opt("amp", "")
KROT = opt("krot", "q8c")
ROT2 = opt("rot2", "0") == "1"
ROTW = opt("rotw", "1") == "1"
G2 = opt("g2", "")
OSC = "" if "nosc1" in G2 else "sc1"
DEPTH = int(opt("depth", "6"))
PSLEEP = opt("psleep", "0")

SST = opt("sst", "0") == "1"
class A:
    def __init__(self): self.l = []
    def __call__(self, s):
        for x in s.strip("\n").split("\n"):
            x = x.strip()
            self.l.append(x if x.endswith(":") else "    " + x)
    jn = 0
    def stamp(self, i):
        J = opt("jitter", "")
        if J and i > 0 and getattr(self, "jon", False):
            n = self.jn; self.jn += 1
            self(f"""
s_cselect_b32 s101, 1, 0
s_memrealtime s[98:99]
s_waitcnt lgkmcnt(0)
s_lshr_b32 s100, s98, 2
s_xor_b32 s100, s100, s2
s_mul_i32 s100, s100, {2654435761 + 2*n + int(J)}
s_add_u32 s100, s100, s3
s_mul_i32 s100, s100, 40503
s_lshr_b32 s100, s100, 29
s_cmp_lt_u32 s100, 6
s_cbranch_scc1 L_j{n}
s_sleep 60
s_cmp_lt_u32 s100, 7
s_cbranch_scc1 L_j{n}
s_sleep 127
L_j{n}:
s_cmp_lg_u32 s101, 0
""")
        if STAMP and not (SST and getattr(self, "jon", False) and 2 <= i <= 6): self(f"s_memrealtime s[{76+2*i}:{77+2*i}]")
    def sst(self, i):
        if STAMP and SST: self(f"s_memrealtime s[{76+2*i}:{77+2*i}]")
    def end(self):
        if STAMP:
            self(f"""
s_memrealtime s[96:97]
s_mov_b64 exec, 1
v_lshrrev_b32 v1, 6, v0
s_waitcnt vmcnt(0) lgkmcnt(0)
s_memrealtime s[98:99]
s_mov_b32 s40, s26
s_mov_b32 s41, s27
s_mov_b32 s42, 0x2000000
s_mov_b32 s43, 0x20000
s_lshl_b32 s100, s2, 3
v_add_u32 v1, s100, v1
v_lshlrev_b32 v1, 5, v1
v_add_u32 v1, {WS_ST}, v1
v_add_u32 v2, 65536, v1
s_waitcnt lgkmcnt(0)
""")
            for i in range(12): self(f"v_mov_b32 v{4+i}, s{76+2*i}")
            self("""
buffer_store_dwordx4 v[4:7], v1, s[40:43], 0 offen
buffer_store_dwordx4 v[8:11], v1, s[40:43], 0 offen offset:16
buffer_store_dwordx4 v[12:15], v2, s[40:43], 0 offen
buffer_store_dwordx4 v[12:15], v2, s[40:43], 0 offen offset:16
""")
        self("s_endpgm")
    tn = 0
    def trace(self):
        if TRACE:
            self(f"s_memrealtime s[96:97]\ns_waitcnt lgkmcnt(0)\nv_writelane_b32 v252, s96, {self.tn}"); self.tn += 1
    def bar(self):
        self.trace(); self("s_barrier"); self.trace()
    def trace_out(self):
        if TRACE: self(f"""
s_lshl_b32 s96, s2, 10
s_add_u32 s96, s96, {WS_ST + 0x100000:#x}
v_lshlrev_b32 v253, 2, v0
v_subrev_u32 v253, 1024, v253
buffer_store_dword v252, v253, s[48:51], s96 offen
""")
    def text(self): return "\n".join(self.l) + "\n"

class VM:
    def __init__(self, a): self.a = a; self.q = []
    def issue(self, tag, n=1): self.q += [tag] * n; assert len(self.q) <= 63, len(self.q)
    def wait(self, tag):
        if tag not in self.q: return
        idx = max(i for i, t in enumerate(self.q) if t == tag)
        n = len(self.q) - 1 - idx
        self.q = self.q[idx + 1:]
        self.a(f"s_waitcnt vmcnt({n})")
    def drained(self): self.q = []

def vr(b, n=1): return f"v{b}" if n == 1 else f"v[{b}:{b+n-1}]"
def sr(b, n=1): return f"s{b}" if n == 1 else f"s[{b}:{b+n-1}]"
def srd(a, d, lo, nbytes):
    a(f"s_mov_b32 s{d}, s{lo}\ns_mov_b32 s{d+1}, s{lo+1}\ns_mov_b32 s{d+2}, {nbytes:#x}\ns_mov_b32 s{d+3}, 0x20000")
def srd_off(a, d, lo, off, nbytes):
    a(f"s_add_u32 s{d}, s{lo}, {off}\ns_addc_u32 s{d+1}, s{lo+1}, 0\ns_mov_b32 s{d+2}, {nbytes:#x}\ns_mov_b32 s{d+3}, 0x20000")
def mfma16(d, x, y, c=None):
    c = vr(d, 4) if c is None else c
    return f"v_mfma_f32_16x16x32_bf16 {vr(d,4)}, {vr(x,4)}, {vr(y,4)}, {c}"
def interleave(a, mf, others, per_gap=1):
    o = list(others)
    for m in mf:
        a(m)
        for _ in range(per_gap):
            if o: a(o.pop(0))
    for x in o: a(x)
def phi_pack(a, src, dst, n, t, sL, sE):
    for i in range(0, n, 8):
        for p in range(4): a(f"v_pk_mul_f32 {vr(t+2*p,2)}, {vr(src+i+2*p,2)}, {sr(sL,2)}")
        for p in range(8): a(f"v_exp_f32_e64 v{t+p}, v{t+p} clamp")
        for p in range(8): a(f"v_max_f32 v{src+i+p}, s{sE}, v{src+i+p}")
        for p in range(4): a(f"v_pk_add_f32 {vr(t+2*p,2)}, {vr(t+2*p,2)}, {vr(src+i+2*p,2)}")
        for p in range(4): a(f"v_cvt_pk_bf16_f32 v{dst+i//2+p}, v{t+2*p}, v{t+2*p+1}")
def phi_pack_np(a, src, dst, n, t, sL, sE):
    for i in range(0, n, 8):
        for p in range(8): a(f"v_mul_f32 v{t+p}, s{sL}, v{src+i+p}")
        for p in range(8): a(f"v_exp_f32_e64 v{t+p}, v{t+p} clamp")
        for p in range(8): a(f"v_max_f32 v{src+i+p}, s{sE}, v{src+i+p}")
        for p in range(8): a(f"v_add_f32 v{t+p}, v{t+p}, v{src+i+p}")
        for p in range(4): a(f"v_cvt_pk_bf16_f32 v{dst+i//2+p}, v{t+2*p}, v{t+2*p+1}")
def phi_keep(a, src, dst, n, t, sL, sE):
    for i in range(0, n, 8):
        for p in range(8): a(f"v_mul_f32 v{t+p}, s{sL}, v{src+i+p}")
        for p in range(8): a(f"v_exp_f32_e64 v{t+p}, v{t+p} clamp")
        for p in range(8): a(f"v_max_f32 v{src+i+p}, s{sE}, v{src+i+p}")
        for p in range(8): a(f"v_add_f32 v{src+i+p}, v{t+p}, v{src+i+p}")
        for p in range(4): a(f"v_cvt_pk_bf16_f32 v{dst+i//2+p}, v{src+i+2*p}, v{src+i+2*p+1}")
def pack(a, src, dst, n):
    for i in range(n // 2): a(f"v_cvt_pk_bf16_f32 v{dst+i}, v{src+2*i}, v{src+2*i+1}")
def unpack(a, src, dst, ndw, smask):
    for i in range(ndw):
        a(f"v_lshlrev_b32 v{dst+2*i}, 16, v{src+i}\nv_and_b32 v{dst+2*i+1}, s{smask}, v{src+i}")

sX, sW, sWO, sQ, sK, sV, sSH, sH, sD, sOUT, sDBG, sWS = 4, 6, 8, 10, 12, 14, 16, 18, 20, 22, 24, 26
sx, sj, srb, shk, shq, sk0, sg_rb, sg_cb, sdb, ssb, sch, sEP = 28, 29, 30, 31, 32, 33, 34, 35, 36, 37, 38, 72
TOUCH = ""
_o = int(opt("wsoff", "0")) * MB
WSOFF = f"s_add_u32 s26, s26, {_o:#x}\ns_addc_u32 s27, s27, 0" if _o else "s_nop 0"
if opt("touch", "0") == "1":
    t = ["s_mov_b32 s52, 0x200000", "s_mov_b32 s53, 0x400000", "s_mov_b32 s54, 0x600000", "s_mov_b32 s55, 0x800000"]
    for base, n in ((sWS, 5), (sOUT, 4), (sQ, 2), (sH, 2), (sWO, 1)):
        for i in range(n): t.append(f"s_load_dword s46, s[{base}:{base+1}], {['0','s52','s53','s54','s55'][i]}")
    TOUCH = "\n".join(t)
STG = 40960
CPY = 4160
UCH = 2 * CPY
U0 = 98304
XCH = U0 + 4 * UCH
HB = XCH + 8192
HP = 2304
HCH = 2 * HP
KVL = HB + 4 * HCH
ZX = KVL + 4096
SYNC = ZX + 512
Y_XC, Y_CW, Y_C2, Y_CU, Y_CY, Y_CD, Y_PQ, Y_EP, Y_W1, Y_CO, Y_UOK, Y_YOK, Y_UB = 0, 96, 20, 28, 32, 36, 40, 56, 60, 64, 72, 76, 80
Y_WM = Y_W1
Y_FR, Y_KD, Y_K2 = 112, 128, 40
LDS = 163840


def spoll(a, lab, soff, sc):
    if opt("poll", "s") == "v":
        a(f"v_and_b32 v254, 15, v4\nv_lshlrev_b32 v254, 2, v254")
        vpoll(a, lab, 254, soff, 255, sc); return
    a(f"""
s_mov_b32 s{sc}, 0
s_branch {lab}_go
{lab}:
s_sleep {PSLEEP}
{lab}_go:
s_load_dwordx16 s[4:19], s[{sWS}:{sWS+1}], s{soff} glc
s_add_u32 s{sc}, s{sc}, 1
s_cmp_gt_u32 s{sc}, 0x8000
s_cbranch_scc1 {lab}_done
s_waitcnt lgkmcnt(0)
""")
    for i in range(8): a(f"s_cmp_eq_u64 s[{4+2*i}:{5+2*i}], s[{sEP}:{sEP+1}]\ns_cbranch_scc0 {lab}")
    a(f"{lab}_done:\ns_waitcnt lgkmcnt(0)")
def vpoll(a, lab, v16x4, soff, vt, sc):
    a(f"""
s_mov_b32 s{sc}, 0
{lab}:
buffer_load_dword v{vt}, v{v16x4}, s[48:51], s{soff} offen sc1
s_waitcnt vmcnt(0)
v_cmp_eq_u32 vcc, s{sEP}, v{vt}
s_add_u32 s{sc}, s{sc}, 1
s_nop 2
s_cmp_eq_u64 vcc, -1
s_cbranch_scc1 {lab}_done
s_sleep {PSLEEP}
s_cmp_lt_u32 s{sc}, 0x4000
s_cbranch_scc1 {lab}
{lab}_done:
""")
def lead_poll(a, lab, soff, sc, st, vY, off, vOne, vT):
    a(f"s_mov_b32 s{sc}, 0\ns_cmp_eq_u32 s3, 0\ns_cbranch_scc0 {lab}_f")
    spoll(a, lab, soff, sc)
    a(f"ds_write_b32 v{vY}, v{vOne} offset:{off}\ns_branch {lab}_f_done")
    a(f"{lab}_f:"); a.l.pop()
    lspin(a, lab + "_f", vY, off, "1", vT, sc, st, init=False, slp=3)
def lspin(a, lab, vaddr, off, target, vt, sc, st, init=True, slp=1):
    if init: a(f"s_mov_b32 s{sc}, 0")
    a(f"""
{lab}:
ds_read_b32 v{vt}, v{vaddr} offset:{off}
s_add_u32 s{sc}, s{sc}, 1
s_waitcnt lgkmcnt(0)
v_readfirstlane_b32 s{st}, v{vt}
s_cmp_gt_u32 s{sc}, 0x40000
s_cbranch_scc1 {lab}_done
s_cmp_ge_u32 s{st}, {target}
s_cbranch_scc1 {lab}_done
s_sleep {slp}
s_branch {lab}
{lab}_done:
""")
def ladd(a, vaddr, off, vone):
    a(f"s_mov_b64 exec, 1\nds_add_u32 v{vaddr}, v{vone} offset:{off}\ns_mov_b64 exec, -1")
def flag_store(a, srdn, soff, vep, vl128, mask="0xffff"):
    a(f"s_mov_b64 exec, {mask}\nbuffer_store_dword v{vep}, v{vl128}, s[{srdn}:{srdn+3}], s{soff} offen sc1\ns_mov_b64 exec, -1")
def wg_flag(a, lab, vaddr, off, vone, vt, st, srdn, soff, vep, vzero):
    a(f"""
s_mov_b64 exec, 1
ds_add_rtn_u32 v{vt}, v{vaddr}, v{vone} offset:{off}
s_waitcnt lgkmcnt(0)
v_readfirstlane_b32 s{st}, v{vt}
s_nop 3
s_cmp_eq_u32 s{st}, 3
s_cbranch_scc0 {lab}
buffer_store_dword v{vep}, v{vzero}, s[{srdn}:{srdn+3}], s{soff} offen sc1
{lab}:
s_mov_b64 exec, -1
""")

def ids2(a):
    if opt("rm", "3") in "12":
        CBMAP = f"s_lshr_b32 vcc_lo, s{sj}, 2\ns_add_u32 vcc_lo, vcc_lo, 3\ns_and_b32 vcc_lo, vcc_lo, 3\ns_and_b32 s{sg_cb}, s{sx}, 4\ns_add_u32 s{sg_cb}, s{sg_cb}, vcc_lo\ns_lshr_b32 vcc_lo, s{sj}, 4\ns_lshl3_add_u32 s{sg_cb}, vcc_lo, s{sg_cb}"
    else: CBMAP = f"s_lshr_b32 s{sg_cb}, s{sx}, 2\ns_lshl_b32 s{sg_cb}, s{sg_cb}, 3\ns_lshr_b32 vcc_lo, s{sj}, 2\ns_add_u32 s{sg_cb}, s{sg_cb}, vcc_lo"
    if opt("rm", "3") == "4": CBMAP += f"\ns_lshr_b32 vcc_lo, 0x820, s{sg_cb}\ns_bitcmp1_b32 vcc_lo, 0\ns_cselect_b32 vcc_lo, 14, 0\ns_xor_b32 s{sg_cb}, s{sg_cb}, vcc_lo"
    RBMAP = f"s_and_b32 s{sg_rb}, s{sx}, 3\ns_lshl_b32 s{sg_rb}, s{sg_rb}, 2\ns_and_b32 vcc_lo, s{sj}, 3\ns_add_u32 s{sg_rb}, s{sg_rb}, vcc_lo"
    if opt("gm", "0") == "1":
        RBMAP = f"s_mov_b32 s{sg_rb}, s{srb}"
        CBMAP = f"s_add_u32 s{sg_cb}, s{shq}, 2\ns_and_b32 s{sg_cb}, s{sg_cb}, 3\ns_and_b32 vcc_lo, s{shq}, 12\ns_add_u32 s{sg_cb}, s{sg_cb}, vcc_lo"
    if opt("gm", "0") == "2":
        RBMAP = f"s_and_b32 vcc_lo, s{sj}, 1\ns_lshl1_add_u32 s{sg_rb}, s{sx}, vcc_lo"
        CBMAP = f"s_lshr_b32 s{sg_cb}, s{sj}, 1"
    a(f"""
{RBMAP}
{CBMAP}
s_and_b32 s{sdb}, s{sj}, 15
s_lshr_b32 s{ssb}, s{sj}, 4
s_lshl_b32 vcc_lo, s{sx}, 1
s_add_u32 s{ssb}, s{ssb}, vcc_lo
s_lshl_b32 s{sch}, s{sx}, 5
s_add_u32 s{sch}, s{sch}, s{sj}
s_lshl_b32 s{sch}, s{sch}, 2
""")

def kernel(a):
    a(f"""
{KN}:
s_cmp_ge_u32 s2, 256
s_cbranch_scc1 L_exit
s_load_dwordx16 s[4:19], s[0:1], 0
s_load_dwordx8 s[20:27], s[0:1], 64
s_getpc_b64 s[48:49]
L_pc:
s_and_b32 s45, s2, 24
s_lshl_b32 s45, s45, 4
v_lshl_add_u32 v2, v0, 9, s45
v_cmp_gt_u32 vcc, L_code_end-L_pc-4, v2
s_and_saveexec_b64 s[50:51], vcc
s_cbranch_execz L_pf
global_load_dword v252, v2, s[48:49]
L_pf:
s_mov_b64 exec, s[50:51]
""")
    for i in range(10): a.stamp(i)
    a(f"""
v_lshrrev_b32 v1, 6, v0
v_and_b32 v4, 63, v0
v_readfirstlane_b32 s3, v1
v_lshlrev_b32 v5, 4, v4
s_and_b32 s{sx}, s2, 7
s_lshr_b32 s{sj}, s2, 3
s_and_b32 s{srb}, s{sx}, 1
s_lshl_b32 s{srb}, s{srb}, 3
s_and_b32 s40, s{sj}, 7
s_add_u32 s{srb}, s{srb}, s40
s_lshr_b32 s40, s{sx}, 1
""")
    if opt("rm", "3") in "134":
        a(f"""
s_and_b32 s41, s{sx}, 4
s_and_b32 s42, s{sx}, 2
s_lshl2_add_u32 s41, s42, s41
s_lshr_b32 s42, s{sj}, 3
s_add_u32 s{shq}, s41, s42
s_add_u32 s42, s42, 3
s_and_b32 s42, s42, 3
s_add_u32 s{shk}, s41, s42
""")
    else: a(f"""
s_lshl_b32 s41, s40, 2
s_lshr_b32 s42, s{sj}, 3
s_add_u32 s{shk}, s41, s42
s_add_u32 s42, s42, 1
s_and_b32 s42, s42, 3
s_add_u32 s{shq}, s41, s42
""")
    if KROT.startswith("f"):
        a_, b_, c_, d_ = [int(t) for t in KROT[1:].split("_")]
        a(f"s_mul_i32 s{sk0}, s{srb}, {a_}\ns_mul_i32 s41, s{shk}, {b_}\ns_add_u32 s{sk0}, s{sk0}, s41\ns_and_b32 s41, s{sx}, 1\ns_mul_i32 s41, s41, {c_}\ns_add_u32 s{sk0}, s{sk0}, s41\ns_mul_i32 s41, s40, {d_}\ns_add_u32 s{sk0}, s{sk0}, s41\ns_and_b32 s{sk0}, s{sk0}, 15")
    elif KROT == "q8":
        a(f"""
s_lshl_b32 s{sk0}, s40, 1
s_and_b32 s41, s{shk}, 1
s_add_u32 s{sk0}, s{sk0}, s41
s_lshl_b32 s41, s{sx}, 2
s_add_u32 s{sk0}, s{sk0}, s41
s_and_b32 s41, s{srb}, 3
s_add_u32 s{sk0}, s{sk0}, s41
s_and_b32 s{sk0}, s{sk0}, 7
s_lshl_b32 s{sk0}, s{sk0}, 1
""")
    elif KROT.startswith("g"):
        a_, b_, c_, d_, e_ = [int(t) for t in KROT[1:].split("_")]
        a(f"s_and_b32 s41, s{srb}, 1\ns_mul_i32 s{sk0}, s41, {a_}\ns_bfe_u32 s41, s{srb}, 0x10001\ns_mul_i32 s41, s41, {b_}\ns_add_u32 s{sk0}, s{sk0}, s41\ns_and_b32 s41, s{shk}, 1\ns_mul_i32 s41, s41, {c_}\ns_add_u32 s{sk0}, s{sk0}, s41")
        a(f"s_and_b32 s41, s{sx}, 1\ns_mul_i32 s41, s41, {d_}\ns_add_u32 s{sk0}, s{sk0}, s41\ns_mul_i32 s41, s40, {e_}\ns_add_u32 s{sk0}, s{sk0}, s41\ns_and_b32 s{sk0}, s{sk0}, 15")
    elif KROT in ("q8h", "q8i"):
        a(f"s_and_b32 s41, s{shk}, 1\ns_lshl_b32 s41, s41, 1\ns_sub_u32 s42, 14, s41\ns_bitcmp{1 if KROT == 'q8h' else 0}_b32 s{srb}, 0\ns_cselect_b32 s{sk0}, s42, s41")
        a(f"s_and_b32 s41, s{srb}, 2\ns_lshl2_add_u32 s{sk0}, s41, s{sk0}\ns_and_b32 s41, s{sx}, 1\ns_add_u32 s41, s41, s40\ns_lshl2_add_u32 s{sk0}, s41, s{sk0}\ns_and_b32 s{sk0}, s{sk0}, 15")
    elif KROT in ("q8e", "q8f", "q8g"):
        a(f"s_and_b32 s41, s{srb}, 1\ns_lshl_b32 s{sk0}, s41, 1\ns_and_b32 s41, s{srb}, 2\ns_lshl_b32 s41, s41, 2\ns_add_u32 s{sk0}, s{sk0}, s41\ns_and_b32 s41, s{sx}, 1\ns_lshl_b32 s41, s41, 2\ns_add_u32 s{sk0}, s{sk0}, s41")
        if KROT == "q8e": a(f"s_and_b32 s41, s{shk}, 1\ns_lshl_b32 s41, s41, 1\ns_sub_u32 s{sk0}, s{sk0}, s41")
        elif KROT == "q8f": a(f"s_and_b32 s41, s{shk}, 2\ns_sub_u32 s{sk0}, s{sk0}, s41")
        else: a(f"s_add_u32 s41, s{shk}, 1\ns_and_b32 s41, s41, 3\ns_add_u32 s{sk0}, s{sk0}, s41")
        a(f"s_lshl_b32 s41, s40, 2\ns_add_u32 s{sk0}, s{sk0}, s41\ns_and_b32 s{sk0}, s{sk0}, 15")
    elif KROT in ("q8b", "q8c", "q8d"):
        if KROT == "q8c": a(f"s_and_b32 s41, s{srb}, 1\ns_lshl_b32 s{sk0}, s41, 1\ns_and_b32 s41, s{srb}, 2\ns_lshl_b32 s41, s41, 2\ns_add_u32 s{sk0}, s{sk0}, s41\ns_and_b32 s41, s{sx}, 1\ns_lshl_b32 s41, s41, 2\ns_add_u32 s{sk0}, s{sk0}, s41")
        else: a(f"s_and_b32 s41, s{srb}, 3\ns_lshl_b32 s{sk0}, s41, 2\ns_and_b32 s41, s{sx}, 1\ns_lshl_b32 s41, s41, 1\ns_add_u32 s{sk0}, s{sk0}, s41")
        if KROT == "q8b": a(f"s_and_b32 s41, s{shk}, 1\ns_lshl_b32 s41, s41, 3\ns_add_u32 s{sk0}, s{sk0}, s41\ns_lshl_b32 s41, s40, 1\ns_add_u32 s{sk0}, s{sk0}, s41")
        else: a(f"s_and_b32 s41, s{shk}, 1\ns_lshl_b32 s41, s41, 1\ns_add_u32 s{sk0}, s{sk0}, s41\ns_lshl_b32 s41, s40, 2\ns_add_u32 s{sk0}, s{sk0}, s41")
        a(f"s_and_b32 s{sk0}, s{sk0}, 15")
    elif KROT == "q4c":
        a(f"""
s_and_b32 s41, s{sx}, 1
s_add_u32 s{sk0}, s40, s41
s_lshl_b32 s41, s{srb}, 1
s_add_u32 s{sk0}, s{sk0}, s41
s_and_b32 s{sk0}, s{sk0}, 3
s_lshl_b32 s{sk0}, s{sk0}, 2
""")
        SL = opt("sl", "0")
        if SL != "0":
            a(f"s_and_b32 s41, s{shk}, {7 if SL == '1' else 6}\ns_cmp_eq_u32 s41, {3 if SL == '1' else 2}\ns_cselect_b32 s41, 6, 0\ns_and_b32 s41, s41, s{srb}\ns_sub_u32 s{sk0}, s{sk0}, s41\ns_and_b32 s{sk0}, s{sk0}, 15")
    elif KROT == "q4":
        a(f"""
s_lshl_b32 s41, s{sx}, 1
s_add_u32 s{sk0}, s40, s41
s_and_b32 s41, s{srb}, 1
s_add_u32 s{sk0}, s{sk0}, s41
s_and_b32 s{sk0}, s{sk0}, 3
s_lshl_b32 s{sk0}, s{sk0}, 2
""")
    elif KROT == "q2":
        a(f"s_xor_b32 s41, s{sx}, s40\ns_and_b32 s41, s41, 1\ns_lshl_b32 s{sk0}, s41, 3")
    elif KROT == "q3":
        a(f"""
s_and_b32 s41, s{sx}, 1
s_lshl_b32 s41, s41, 1
s_add_u32 s{sk0}, s40, s41
s_and_b32 s41, s{srb}, 1
s_add_u32 s{sk0}, s{sk0}, s41
s_mul_i32 s41, s{sk0}, 11
s_lshr_b32 s41, s41, 5
s_mul_i32 s41, s41, 3
s_sub_u32 s{sk0}, s{sk0}, s41
s_mul_i32 s{sk0}, s{sk0}, 11
s_lshr_b32 s{sk0}, s{sk0}, 1
""")
    else: a(f"s_mov_b32 s{sk0}, 0")
    a.jon = True
    a("s_cmp_lt_u32 s3, 4\ns_cbranch_scc1 L_comp")
    aux(a)
    compute(a)
    a("L_exit:\ns_endpgm\nL_code_end:")

def inter2(a, mf, others, per=2):
    o = list(others)
    for m in mf:
        a(m)
        for _ in range(per):
            if o: a(o.pop(0))
    for x in o: a(x)
def inter3(a, mf, l1, n1, l2, n2):
    l1 = list(l1); l2 = list(l2)
    for m in mf:
        a(m)
        for _ in range(n2):
            if l2: a(l2.pop(0))
        for _ in range(n1):
            if l1: a(l1.pop(0))
    assert not l1 and not l2
class L:
    def __init__(s): s.l = []
    def __call__(s, t): s.l += [x.strip() for x in t.strip("\n").split("\n")]
def maskbuild(a, sm, st, lo=4, step=2):
    a(f"s_mov_b32 s{sm}, 0")
    for i in range(8): a(f"s_cmp_eq_u64 s[{lo+2*i}:{lo+1+2*i}], s[{sEP}:{sEP+1}]\ns_cselect_b32 s{st}, {1 << (step*i):#x}, 0\ns_or_b32 s{sm}, s{sm}, s{st}")

def compute(a):
    vAb, vA, vBb, vB = 8, 10, 12, 14
    vY, vPW = 20, 21
    X, Y, ACC = 24, 64, 104
    vOne, vZero, vEp, vT, vL128 = 232, 233, 234, 235, 254
    QT = lambda dt, mt: ACC + 4 * (mt * 2 + dt)
    KK = lambda mt, nt: ACC + 32 + 4 * ((nt * 2 + (mt >> 1)) * 2 + (mt & 1))
    VV = lambda mt, nt: ACC + 64 + 4 * ((nt * 2 + (mt >> 1)) * 2 + (mt & 1))
    GATE = opt("gate", "kv")
    a("L_comp:")
    a.sst(2)
    KR, WR, KF, WF, TM, VF, UT = 200, 242, 24, 68, 84, 56, 200
    VR = [222, 224, 226, 228, 230, 236, 238, 240]
    vP0, vP1, vP2, vTW = 16, 17, 18, 19
    ids2(a)
    a(f"""
s_lshl_b32 s45, s{ssb}, 18
s_lshl_b32 s46, s3, 16
s_add_u32 s45, s45, s46
s_lshl_b32 s46, s{sdb}, 7
s_add_u32 s45, s45, s46
v_lshrrev_b32 v2, 4, v4
v_and_b32 v1, 15, v4
v_lshlrev_b32 v3, 3, v1
v_lshl_add_u32 v{vP0}, v2, 14, v3
v_add_u32 v{vP0}, s45, v{vP0}
v_subrev_u32 v{vP1}, 6144, v{vP0}
s_movk_i32 s57, 4096
s_movk_i32 s58, 8192
s_movk_i32 s59, 12288
s_mov_b32 s62, {4*MB:#x}
s_mov_b32 s63, 0x20000
s_mov_b32 s66, {4*MB:#x}
s_mov_b32 s67, 0x20000
s_mov_b32 s70, 8192
s_mov_b32 s71, 0x20000
v_lshlrev_b32 v{vP2}, 5, v1
s_lshl_b32 s46, s{sdb}, 9
v_add_u32 v{vP2}, s46, v{vP2}
v_sub_u32 v3, 3, v2
s_lshl_b32 s45, s3, 2
s_sub_u32 s45, 12, s45
v_add_u32 v3, s45, v3
v_and_b32 v6, 7, v4
v_xor_b32 v3, v3, v6
v_lshlrev_b32 v3, 4, v3
v_lshl_add_u32 v3, v1, 10, v3
v_add_u32 v{vTW}, {HB}, v3
s_and_b32 s40, s3, 1
s_lshr_b32 s41, s3, 1
v_bfe_u32 v3, v4, 1, 3
v_xor_b32 v3, v2, v3
v_lshlrev_b32 v3, 4, v3
v_lshl_add_u32 v3, v1, 7, v3
s_lshl_b32 s45, s40, 13
v_add_u32 v{vAb}, s45, v3
v_xor_b32 v{vAb+1}, 64, v{vAb}
v_bfe_u32 v22, v4, 2, 2
v_lshl_add_u32 v3, v2, 3, v22
v_lshlrev_b32 v3, 7, v3
v_and_b32 v7, 3, v4
v_lshlrev_b32 v6, 3, v7
s_lshl_b32 s45, s41, 6
v_add_u32 v6, s45, v6
v_bfe_u32 v7, v4, 3, 1
v_lshlrev_b32 v7, 6, v7
v_xor_b32 v6, v6, v7
v_bfe_u32 v23, v4, 4, 1
v_lshlrev_b32 v7, 5, v23
v_xor_b32 v6, v6, v7
v_add_u32 v3, v3, v6
v_add_u32 v{vBb}, 0x4000, v3
v_xor_b32 v{vBb+1}, 32, v{vBb}
v_mov_b32 v{vB}, v{vBb}
v_mov_b32 v{vB+1}, v{vBb+1}
v_mov_b32 v{vA}, v{vAb}
v_mov_b32 v{vA+1}, v{vAb+1}
s_lshl_b32 s39, s40, 5
v_lshlrev_b32 v{vL128}, 7, v4
v_mov_b32 v{vY}, {SYNC}
v_mov_b32 v{vOne}, 1
v_mov_b32 v{vZero}, 0
v_lshlrev_b32 v6, 2, v4
v_add_u32 v6, {SYNC}, v6
ds_write_b32 v6, v{vZero}
s_lshl_b32 s45, s3, 2
v_add_u32 v{vPW}, s45, v{vY}
s_mov_b32 s53, 0
s_mov_b32 s56, 0xffff0000
s_waitcnt lgkmcnt(0)
{WSOFF}
s_mov_b64 s[60:61], s[{sK}:{sK+1}]
s_mov_b64 s[64:65], s[{sV}:{sV+1}]
s_mov_b64 s[68:69], s[{sSH}:{sSH+1}]
""")
    a.sst(3); a("s_barrier"); a.sst(4)
    so = ["0", "s57", "s58", "s59"]
    for r in range(3): a(f"buffer_load_dwordx2 {vr(KR+2*r,2)}, v{vP1}, s[60:63], {so[r//2]} offen offset:{2048*(r%2)} {FL_KV}")
    for r in range(8): a(f"buffer_load_dwordx2 {vr(KR+6+2*r,2)}, v{vP0}, s[60:63], {so[r//2]} offen offset:{2048*(r%2)} {FL_KV}")
    for i in range(2): a(f"buffer_load_dwordx4 {vr(WR+4*i,4)}, v{vP2}, s[68:71], 0 offen offset:{16*i}")
    for r in range(8): a(f"buffer_load_dwordx2 {vr(VR[r],2)}, v{vP0}, s[64:67], {so[r//2]} offen offset:{2048*(r%2)} {FL_KV}")
    a(f"v_xor_b32 v17, s39, v{vB}\nv_xor_b32 v18, s39, v{vB+1}")
    a.sst(5)
    a("s_barrier")
    a.stamp(1)
    A0, A1, BB = 24, 200, 56
    NORD = [2, 3, 4, 5, 0, 1]
    def rdA(A): return [f"ds_read_b128 {vr(A+8*mt+4*k2,4)}, v{vA+k2} offset:{2048*mt}" for mt in range(4) for k2 in range(2)]
    vV, BQ2 = 17, 236
    def rdB(g, dst=None):
        n = NORD[g]; dst = BB + 8 * g if dst is None else dst
        return [f"ds_read_b64_tr_b16 {vr(dst+4*k2+2*i2,2)}, v{(vV if n >= 4 else vB)+(n&1)} offset:{(n//2)*8192+k2*4096+i2*512}" for k2 in range(2) for i2 in range(2)]
    def grp(A, g, zero=False, B=None):
        r = []; B = BB + 8 * g if B is None else B
        for mt in range(4):
            for k2 in range(2):
                c = "0" if zero and k2 == 0 else None
                x, y = A + 8 * mt + 4 * k2, B + 4 * k2
                if g < 2: r.append(mfma16(KK(mt, g), x, y, c))
                elif g < 4: r.append(mfma16(VV(mt, g - 2), x, y, c))
                else: r.append(mfma16(QT(g - 4, mt), y, x, c))
        return r
    advs = [f"s_add_u32 s52, s52, {STG}", f"s_cmp_eq_u32 s52, {3*STG}", "s_cselect_b32 s52, 0, s52"]
    advv = [f"v_add_u32 v{vA}, s52, v{vAb}", f"v_add_u32 v{vA+1}, s52, v{vAb+1}", f"v_add_u32 v{vB}, s52, v{vBb}", f"v_add_u32 v{vB+1}, s52, v{vBb+1}",
            f"v_xor_b32 v{vV}, s39, v{vB}", f"v_xor_b32 v{vV+1}, s39, v{vB+1}"]
    for r in rdA(A0)[:2] + rdB(0) + rdA(A0)[2:] + rdB(1): a(r)
    a("s_mov_b32 s52, 0")
    w = L(); srd(w, 60, sWS, 32 * MB); srd(w, 68, sOUT, 8 * MB)
    vTR, vUS, TD = [1, 2, 3, 6], 16, 236
    UF = int(opt("uf", "2"))
    w(f"""
v_lshlrev_b32 v3, 12, v2
v_lshl_add_u32 v{vUS}, v1, 4, v3
s_lshl_b32 s45, s{sdb}, 18
s_lshl_b32 s46, s3, 16
s_add_u32 s45, s45, s46
s_lshl_b32 s46, s{ssb}, 8
s_sub_u32 s45, s45, s46
s_add_u32 s45, s45, {WS_UT + 3840}
v_add_u32 v{vUS}, s45, v{vUS}
s_lshl_b32 s45, s3, 12
s_add_u32 s45, s45, {HB}
v_add_u32 v1, s45, v5
s_lshl_b32 s45, s40, 6
v_xor_b32 v1, s45, v1
v_xor_b32 v2, 16, v1
v_xor_b32 v3, 32, v1
v_xor_b32 v6, 48, v1
s_movk_i32 s57, 0x4000
s_mov_b32 s58, 0x8000
s_mov_b32 s59, 0xc000
s_lshl_b32 s43, s{sdb}, 2
s_add_u32 s43, s43, s3
s_lshl_b32 s43, s43, 4
s_add_u32 s43, s43, s{ssb}
s_lshl_b32 s43, s43, 2
{FA(43, FL_U)}
s_movk_i32 s42, {1 + (1 << UF)}
""")
    a("s_waitcnt lgkmcnt(10)")
    m = grp(A0, 0, True)
    a(m[0]); a(m[1])
    for x in rdB(2): a(x)
    a("s_waitcnt lgkmcnt(8)")
    interleave(a, m[2:], rdB(3) + rdB(4)[:2])
    a("s_waitcnt lgkmcnt(10)")
    interleave(a, grp(A0, 1, True), rdB(4)[2:] + rdB(5))
    a("s_waitcnt lgkmcnt(0)")
    interleave(a, grp(A0, 2, True) + grp(A0, 3, True) + grp(A0, 4, True) + grp(A0, 5, True), advs + advv + w.l, 2)
    a("s_waitcnt vmcnt(10)")
    a.sst(6)
    unpack(a, KR, KF, 22, 56)
    a("s_waitcnt vmcnt(8)")
    for p in range(4):
        a(f"v_lshlrev_b32 v{WF+p}, 16, v{WR+2*p}\nv_and_b32 v{WF+4+p}, s56, v{WR+2*p}")
        a(f"v_lshlrev_b32 v{WF+8+p}, 16, v{WR+2*p+1}\nv_and_b32 v{WF+12+p}, s56, v{WR+2*p+1}")
    for i0 in range(0, 8, 2):
        ch = [(i, h) for i in (i0, i0 + 1) for h in range(2)]
        for c, (i, h) in enumerate(ch): a(f"v_pk_mul_f32 {vr(TM+2*c,2)}, {vr(KF+4*(i+3)+2*h,2)}, {vr(WF+2*h,2)}")
        for t in (2, 1):
            for c, (i, h) in enumerate(ch): a(f"v_pk_fma_f32 {vr(TM+2*c,2)}, {vr(KF+4*(i+t)+2*h,2)}, {vr(WF+4*(3-t)+2*h,2)}, {vr(TM+2*c,2)}")
        for c, (i, h) in enumerate(ch): a(f"v_pk_fma_f32 {vr(KF+4*i+2*h,2)}, {vr(KF+4*i+2*h,2)}, {vr(WF+12+2*h,2)}, {vr(TM+2*c,2)}")
    a("s_waitcnt vmcnt(0)")
    for r in range(8): unpack(a, VR[r], VF + 4 * r, 2, 56)
    for h in range(2):
        for i in range(8): a(f"v_pk_mul_f32 {vr(KF+4*i+2*h,2)}, {vr(KF+4*i+2*h,2)}, {vr(VF+4*i+2*h,2)}")
        for e in (2 * h, 2 * h + 1):
            for d in range(4): a(f"v_cvt_pk_bf16_f32 v{UT+4*e+d}, v{KF+4*(7-2*d)+e}, v{KF+4*(6-2*d)+e}")
            a(f"ds_write_b128 v{vTW}, {vr(UT+4*e,4)} offset:{256*e}")
    a("s_waitcnt lgkmcnt(0)\ns_barrier")
    for r in rdA(A0)[:2] + rdB(0) + rdA(A0)[2:]: a(r)
    a("s_waitcnt lgkmcnt(6)")
    for r in rdB(1) + rdB(2): a(r)
    a("s_waitcnt lgkmcnt(8)")
    for r in rdB(3) + rdB(4): a(r)
    a("s_waitcnt lgkmcnt(8)")
    for e in range(4): a(f"ds_read_b128 {vr(TD+4*e,4)}, v{vTR[e]} offset:{1024*e}")
    a("s_branch L_loop1\nL_side:\ns_cmp_eq_u32 s53, 0\ns_cbranch_scc0 L_side2")
    for e in range(4): a(f"buffer_store_dwordx4 {vr(TD+4*e,4)}, v{vUS}, s[60:63], {['0','s57','s58','s59'][e]} offen sc1")
    a(f"""
s_branch L_back
L_side2:
v_readfirstlane_b32 s{sEP}, v{vEp}
s_mov_b32 s45, 0
s_waitcnt vmcnt(0)
s_cmp_lg_u32 s{sEP}, 0
s_cbranch_scc1 L_cepok
L_cep:
ds_read_b32 v{vEp}, v{vY} offset:{Y_EP}
s_add_u32 s45, s45, 1
s_waitcnt lgkmcnt(0)
v_readfirstlane_b32 s{sEP}, v{vEp}
s_cmp_gt_u32 s45, 0x40000
s_cbranch_scc1 L_cepok
s_cmp_eq_u32 s{sEP}, 0
s_cbranch_scc1 L_cep
L_cepok:
s_mov_b32 s{sEP+1}, s{sEP}
""")
    flag_store(a, 60, 43, vEp, vL128)
    a(f"""
s_branch L_back
{opt("lal", "")}
L_loop1:
""")
    def stage(A, An, first, plain=False):
        interleave(a, grp(A, 0), rdB(5) + ["\n".join(advs)] + ["\n".join(advv[:2]), "\n".join(advv[2:4]), "\n".join(advv[4:])])
        m = grp(A, 1)
        a("s_waitcnt lgkmcnt(0)"); a(m[0]); a("s_barrier")
        interleave(a, m[1:], rdB(0) + rdA(An)[:3])
        interleave(a, grp(A, 2), rdB(1) + rdA(An)[3:7])
        interleave(a, grp(A, 3), rdB(2) + rdA(An)[7:] + (["s_bitcmp1_b32 s42, s53", "s_cbranch_scc1 L_side\nL_back:"] if first and not plain else []))
        interleave(a, grp(A, 4), rdB(3) + ([f"ds_read_b32 v{vEp}, v{vY} offset:{Y_EP}"] if first and not plain else []))
        interleave(a, grp(A, 5), ["s_waitcnt lgkmcnt(4)\n" + rdB(4)[0]] + rdB(4)[1:] + ([] if first else ["s_add_u32 s53, s53, 1", "s_cmp_lt_u32 s53, 6"]))
    stage(A0, A1, True); stage(A1, A0, False)
    a("s_cbranch_scc1 L_loop1")
    stage(A0, A1, True, True)
    PK, PV, ONES, T, KV, Z, R, PQ = ACC + 32, ACC + 64, ACC + 56, 56, 72, 64, ACC + 80, ACC
    pre = [f"s_mov_b32 s54, {LOG2E:#x}", f"s_mov_b32 s55, {LOG2E:#x}", f"s_mov_b32 s56, {EPS:#x}",
           f"s_lshl_b32 s57, s{shk}, 2", "s_add_u32 s57, s57, s3", "s_lshl_b32 s57, s57, 4", f"s_add_u32 s57, s57, s{srb}",
           "s_lshl_b32 s58, s57, 10", f"s_add_u32 s58, s58, {WS_KVP:#x}", "s_lshr_b32 s59, s57, 4", "s_lshl_b32 s59, s59, 11",
           f"s_lshl_b32 s45, s{srb}, 4", "s_add_u32 s59, s59, s45", f"s_add_u32 s59, s59, {WS_ZP:#x}", "s_lshr_b32 s57, s57, 4", "s_lshl_b32 s57, s57, 11", f"s_add_u32 s57, s57, {FL_P:#x}"]
    PROT = opt("prot", "1") == "1"
    pre += ["v_and_b32 v19, 7, v4", f"v_lshlrev_b32 v19, {1 if PROT else 4}, v19", f"v_sub_u32 v19, s{srb}, v19", "v_and_b32 v19, 15, v19", f"v_lshl_add_u32 v19, v19, 2, v{vL128}"]
    pre += ["s_lshl_b32 s45, s3, 11", f"s_add_u32 s45, s45, {XCH}", "v_add_u32 v6, s45, v5", "v_xor_b32 v7, 2048, v6", "s_lshl_b32 s45, s3, 7", f"s_add_u32 s45, s45, {ZX}",
            "v_and_b32 v3, 0x30, v4", "v_add_u32 v16, s45, v3", "v_xor_b32 v253, 128, v16", f"v_xor_b32 v255, 4, v{vPW}"]
    interleave(a, grp(A1, 0), rdB(5) + ["\n".join(advs)] + ["\n".join(advv[:2]), "\n".join(advv[2:4]), "\n".join(advv[4:])])
    m = grp(A1, 1)
    a("s_waitcnt lgkmcnt(0)"); a(m[0]); a("s_barrier")
    interleave(a, m[1:], rdB(0) + rdA(A0)[:3])
    inter3(a, grp(A1, 2) + grp(A1, 3), pre, 3, rdB(1) + rdA(A0)[3:8] + rdB(2), 1)
    a("s_waitcnt lgkmcnt(4)")
    interleave(a, grp(A0, 0) + grp(A0, 1)[:2], rdB(3) + rdB(4, BQ2) + rdB(5, BQ2 + 8), 2)
    a(f"s_waitcnt lgkmcnt(0)\nds_write_b32 v{vPW}, v{vOne} offset:{Y_FR}")
    w = L(); phi_pack_np(w, PK, PK, 16, T, 54, 56)
    P1 = opt("p1", "0") == "1"
    if P1: phi_pack_np(w, PK + 16, PK + 16, 16, T, 54, 56)
    inter2(a, grp(A0, 1)[2:] + grp(A0, 2) + grp(A0, 3), w.l, int(opt("kfi", "3")))
    a.stamp(2)
    a(f"s_setprio {opt('cprio', '2')}")
    pk1 = phi_pack if GATE != "none" else phi_pack_np
    pack(a, PV, PV, 32)
    ON0 = ACC + 40
    for i in range(4): a(f"v_mov_b32 v{ON0+i}, 0x3f803f80")
    for dt in range(2):
        if dt == 1:
            w = L(); pk1(w, PK + 16, PK + 16, 16, T, 54, 56)
            k = len(w.l) // 2
            for x in w.l[:k]: a(x)
            a(f"ds_write_b128 v6, {vr(KV+8,4)}\nds_write_b128 v16, {vr(Z,4)}")
            for x in w.l[k:]: a(x)
        a("s_nop 1")
        for p in range(2):
            c = "0" if p == 0 else None
            a(mfma16(KV + 4 * (2 + dt), PK + 16 * dt + 4 * p, PV + 8 + 4 * p, c))
            a(mfma16(Z + 4 * dt, PK + 16 * dt + 4 * p, ON0, c))
            a(mfma16(KV + 4 * dt, PK + 16 * dt + 4 * p, PV + 4 * p, c))
    KST = opt("kst", "0") == "1"
    if KST: a.stamp(7)
    for i in range(4): a(f"v_mov_b32 v{ONES+i}, 0x3f803f80")
    a(f"s_nop 1\nds_write_b128 v6, {vr(KV+12,4)} offset:1024\nds_write_b128 v16, {vr(Z+4,4)} offset:64")
    a(f"""
ds_write_b32 v{vPW}, v{vOne} offset:{Y_XC}
s_mov_b32 s45, 0
L_xspin:
ds_read_b32 v{vT}, v255 offset:{Y_XC}
ds_read_b128 {vr(R,4)}, v7
ds_read_b128 {vr(R+4,4)}, v7 offset:1024
ds_read_b128 {vr(R+8,4)}, v253
ds_read_b128 {vr(R+12,4)}, v253 offset:64
s_add_u32 s45, s45, 1
s_waitcnt lgkmcnt(4)
v_readfirstlane_b32 s46, v{vT}
s_cmp_gt_u32 s45, 0x40000
s_cbranch_scc1 L_xdone
s_cmp_eq_u32 s46, 0
s_cbranch_scc1 L_xspin
L_xdone:
s_waitcnt lgkmcnt(2)
""")
    if KST: a.stamp(8)
    def add8(d, r):
        if GATE != "none":
            for i in range(4): a(f"v_pk_add_f32 {vr(d+2*i,2)}, {vr(d+2*i,2)}, {vr(r+2*i,2)}")
        else:
            for i in range(8): a(f"v_add_f32 v{d+i}, v{d+i}, v{r+i}")
    add8(KV, R)
    pack(a, KV, KV + 8, 8)
    a(f"buffer_store_dwordx4 {vr(KV+8,4)}, v5, s[60:63], s58 offen sc1")
    a("s_waitcnt lgkmcnt(0)")
    add8(Z, R + 8)
    pack(a, Z, KV + 12, 8)
    a("s_mov_b32 exec_lo, 0x10001\ns_mov_b32 exec_hi, 0x10001")
    a(f"buffer_store_dwordx4 {vr(KV+12,4)}, v5, s[60:63], s59 offen sc1")
    a("s_mov_b64 exec, -1")
    if GATE == "kv": a(f"ds_write_b32 v{vPW}, v{vOne} offset:{Y_KD}")
    a.stamp(3)
    PP, AC, ZZ, SEL, D1, B2, DN, EQ, KO, KP = 24, 88, 96, 8, 184, 136, 212, 168, 172, 176
    T = 204
    PS = opt("ps", "0") == "1"
    if PS: PQ = 180
    su = L()
    su(f"""
s_lshl_b32 s47, s{shq}, 1
s_add_u32 s47, s47, s41
s_lshl_b32 s44, s{shq}, 2
s_add_u32 s44, s44, s3
s_lshl_b32 s58, s44, 14
s_add_u32 s58, s58, {WS_KVP:#x}
s_lshl_b32 s59, s44, 11
s_add_u32 s59, s59, {WS_ZP:#x}
s_lshl_b32 s44, s44, 6
{FC(44, FL_P, srb)}
s_lshl_b32 s45, s41, 2
v_add_u32 v14, s45, v{vY}
v_mov_b32 v6, 0x3f80
v_and_b32 v7, 1, v4
v_lshlrev_b32 v7, 4, v7
v_lshlrev_b32 v6, v7, v6
v_lshrrev_b32 v2, 4, v4
v_cmp_eq_u32 vcc, v2, v22
v_bfe_u32 v7, v4, 1, 1
v_mov_b32 v{SEL}, 0
v_cndmask_b32 v6, 0, v6, vcc
v_cmp_eq_u32 vcc, 0, v7
v_mov_b32 v{SEL+1}, 0
v_mov_b32 v{SEL+4}, 0
v_cndmask_b32 v{SEL+2}, 0, v6, vcc
v_cndmask_b32 v{SEL+3}, v6, v{vZero}, vcc
v_mov_b32 v{SEL+5}, 0
s_lshl_b32 s45, s3, 10
s_add_u32 s45, s45, {KVL}
v_add_u32 v6, s45, v5
s_xor_b32 s45, s3, 1
s_lshl_b32 s45, s45, 10
s_add_u32 s45, s45, {KVL}
v_add_u32 v7, s45, v5
s_lshl_b32 s48, s{srb}, 3
s_lshl_b32 s45, s40, 2
s_add_u32 s48, s48, s45
s_lshl_b32 s48, s48, 15
s_lshl_b32 s45, s47, 10
s_add_u32 s48, s48, s45
s_add_u32 s48, s48, {WS_O:#x}
s_lshl_b32 s49, s{srb}, 1
s_add_u32 s49, s49, s40
s_lshl_b32 s49, s49, 7
s_lshl_b32 s45, s47, 2
s_add_u32 s49, s49, s45
{FA(49, FL_O)}
s_mov_b32 s50, 0
s_mov_b32 s51, 0
s_mov_b32 s53, 0
s_mov_b32 s46, 0
s_and_b32 s43, s{srb}, {7 if PROT else 0}
""")
    gq = [grp(A1, 4), grp(A0, 4, B=BQ2), grp(A1, 5), grp(A0, 5, B=BQ2 + 8)]
    qm = [x for mt in range(4) for g in gq for x in g[2 * mt:2 * mt + 2]]
    inter2(a, qm, su.l, 2)
    phiq = phi_keep if PS else phi_pack if GATE == "pq" else phi_pack_np
    NQ1 = int(opt("nq1", "0"))
    if NQ1: phiq(a, ACC, PQ, 8 * NQ1, T, 54, 56)
    a("s_waitcnt vmcnt(0)")
    flag_store(a, 60, 57, vEp, 19)
    a(f"s_load_dwordx16 s[4:19], s[{sWS}:{sWS+1}], s44 glc")
    a.stamp(4)
    for mt in range(NQ1, 4): phiq(a, ACC + 8 * mt, PQ + 4 * mt, 8, T, 54, 56)
    if GATE == "pq": a(f"ds_write_b32 v{vPW}, v{vOne} offset:{Y_KD}")
    for i in range(4): a(f"v_mov_b64 {vr(AC+2*i,2)}, 0\nv_mov_b64 {vr(B2+4*i+2,2)}, 0\nv_mov_b32 v{EQ+i}, s56")
    a("s_setprio 3")
    def accm(j):
        for i in range(2):
            a(mfma16(AC, SEL + 2, PP + 8 * j + 4 * i)); a(mfma16(AC + 4, SEL, PP + 8 * j + 4 * i))
    for k in range(8):
        a(f"s_cmp_eq_u32 s46, 0\ns_cbranch_scc1 L_poll{k}\nL_go{k}:\ns_ff1_i32_b32 s45, s46\ns_bitset0_b32 s46, s45\ns_add_u32 s45, s45, s43\ns_and_b32 s45, s45, 7\ns_lshl_b32 s45, s45, 11\ns_add_u32 s45, s45, s58")
        for i in range(2): a(f"buffer_load_dwordx4 {vr(PP+8*k+4*i,4)}, v5, s[60:63], s45 offen offset:{1024*i} sc1")
        a(f"s_bitset1_b32 s51, {k}")
    a("s_branch L_fin")
    for k in range(8):
        a(f"L_poll{k}:\ns_waitcnt lgkmcnt(0)")
        for i in range(7, -1, -1): a(f"s_cmp_eq_u64 s[{4+2*i}:{5+2*i}], s[{sEP}:{sEP+1}]\ns_addc_u32 s46, s46, s46")
        a(f"""
s_add_u32 s53, s53, 1
s_cmp_gt_u32 s53, 0x8000
s_cselect_b32 s46, 0xff, s46
s_andn2_b32 s46, s46, s50
s_or_b32 s50, s50, s46
s_cmp_eq_u32 s50, 0xff
s_cbranch_scc0 L_pm{k}
buffer_load_dwordx4 {vr(ZZ,4)}, v5, s[60:63], s59 offen sc1
s_mov_b32 s47, s51
s_mov_b32 s52, {k}
""")
        if STAMP: a.stamp(5)
        a(f"""
s_branch L_go{k}
L_pm{k}:
s_load_dwordx16 s[4:19], s[{sWS}:{sWS+1}], s44 glc
s_cmp_lg_u32 s46, 0
s_cbranch_scc1 L_go{k}
""")
        if k == 0: a("s_branch L_poll0")
        else: a(f"s_cmp_eq_u32 s51, 0\ns_cbranch_scc1 L_poll{k}\ns_mov_b32 s52, {k}\ns_branch L_acc")
    a("L_acc:\ns_waitcnt vmcnt(0)")
    for j in range(7):
        a(f"s_bitcmp1_b32 s51, {j}\ns_cbranch_scc0 L_ac{j}"); accm(j); a(f"L_ac{j}:")
    a("s_mov_b32 s51, 0")
    for k in range(1, 7): a(f"s_cmp_eq_u32 s52, {k}\ns_cbranch_scc1 L_poll{k}")
    a("s_branch L_poll7\nL_fin:")
    a("s_cmp_eq_u32 s47, 0\ns_cbranch_scc1 L_pz")
    for k in range(1, 7): a(f"s_cmp_eq_u32 s52, {k}\ns_cbranch_scc1 L_pv{k}")
    a("s_waitcnt vmcnt(3)\ns_branch L_pvd")
    for k in range(1, 7): a(f"L_pv{k}:\ns_waitcnt vmcnt({2*(8-k)+1})" + ("\ns_branch L_pvd" if k < 6 else ""))
    a("L_pvd:")
    for j in range(7):
        a(f"s_bitcmp1_b32 s47, {j}\ns_cbranch_scc0 L_ao{j}"); accm(j); a(f"L_ao{j}:")
    a("L_pz:")
    OST = opt("ost", "0") == "1"
    NOG = OST or KST
    for k in range(7): a(f"s_cmp_eq_u32 s52, {k}\ns_cbranch_scc1 L_pw{k}")
    a("s_waitcnt vmcnt(2)\ns_branch L_pwd")
    for k in range(7): a(f"L_pw{k}:\ns_waitcnt vmcnt({2*(8-k)})" + ("\ns_branch L_pwd" if k < 6 else ""))
    a("L_pwd:")
    if OST: a.stamp(7)
    for i in range(4): a(mfma16(D1 + 4 * i, ZZ, PQ + 4 * i, "0"))
    a("s_nop 4")
    for i in range(4): a(f"v_cvt_pk_bf16_f32 v{B2+4*i}, v{D1+4*i}, v{D1+4*i+1}\nv_cvt_pk_bf16_f32 v{B2+4*i+1}, v{D1+4*i+2}, v{D1+4*i+3}")
    a("s_nop 0")
    for i in range(4): a(mfma16(DN + 4 * i, ONES, B2 + 4 * i, vr(EQ, 4)))
    if PS:
        a("s_nop 4")
        for i in range(4): a(f"v_rcp_f32 v{DN+4*i}, v{DN+4*i}")
        for i in range(4):
            for p in range(8): a(f"v_mul_f32 v{ACC+8*i+p}, v{ACC+8*i+p}, v{DN+4*i}")
            pack(a, ACC + 8 * i, PQ + 4 * i, 8)
    for k in range(7, 0, -1): a(f"s_cmp_eq_u32 s52, {k}\ns_cbranch_scc1 L_an{k}")
    for j in range(8):
        a(f"L_an{j}:\ns_waitcnt vmcnt({2*(7-j)})"); accm(j)
    if OST: a.stamp(8)
    if PS: a("s_nop 7")
    else:
        a("s_nop 3")
        for i in range(4): a(f"v_rcp_f32 v{DN+4*i}, v{DN+4*i}")
    pack(a, AC, KO, 8)
    NO, NP, OP = 24, 40, 56
    a(f"ds_write_b128 v6, {vr(KO,4)}\nds_write_b32 v{vPW}, v{vOne} offset:{Y_K2}\nds_read_b32 v{vT}, v255 offset:{Y_K2}\nds_read_b128 {vr(KP,4)}, v7")
    for i in range(4): a(mfma16(NO + 4 * i, KO, PQ + 4 * i, "0"))
    a("s_mov_b32 s45, 0\ns_nop 3\ns_cmp_eq_u32 s40, 0")
    OPK = opt("opk", "0") == "1"
    def mul4(r, d):
        if PS: return
        if OPK:
            for p in range(2): a(f"v_pk_mul_f32 {vr(r+2*p,2)}, {vr(r+2*p,2)}, {vr(d,2)} op_sel_hi:[1,0]")
        else:
            for p in range(4): a(f"v_mul_f32 v{r+p}, v{r+p}, v{d}")
    for i in range(4): mul4(NO + 4 * i, DN + 4 * i)
    a("s_cbranch_scc0 L_o1")
    for wr in range(2):
        if wr: a("L_o1:")
        for i in range(4): pack(a, NO + 4 * i, OP + 4 * i + 2 * wr, 4)
        a(f"""
s_branch L_ks{wr}g
L_ks{wr}:
ds_read_b32 v{vT}, v255 offset:{Y_K2}
ds_read_b128 {vr(KP,4)}, v7
L_ks{wr}g:
s_add_u32 s45, s45, 1
s_waitcnt lgkmcnt(0)
v_readfirstlane_b32 s46, v{vT}
s_cmp_gt_u32 s45, 0x40000
s_cbranch_scc1 L_kd{wr}
s_cmp_eq_u32 s46, 0
s_cbranch_scc1 L_ks{wr}
L_kd{wr}:
""")
        for i in range(4): a(mfma16(NP + 4 * i, KP, PQ + 4 * i, "0"))
        a("s_nop 4")
        for i in range(4):
            if PS and i: a("s_nop 0")
            mul4(NP + 4 * i, DN + 4 * i)
            pack(a, NP + 4 * i, OP + 4 * i + 2 * (1 - wr), 4)
            a(f"buffer_store_dwordx4 {vr(OP+4*i,4)}, v5, s[60:63], s48 offen sc1")
            if i < 3: a("s_add_u32 s48, s48, 0x8000")
        if wr == 0: a("s_branch L_o2")
    a("L_o2:")
    if GATE == "o": a(f"ds_write_b32 v{vPW}, v{vOne} offset:{Y_KD}")
    a.stamp(9)
    OF, WX, WY, C, PO = 24, 88, 104, 120, 172
    vWb, vWA, vWB = 236, 8, 244
    a(f"""
s_lshl_b32 s59, s{sg_rb}, 3
s_lshl_b32 s45, s3, 1
s_add_u32 s59, s59, s45
s_lshl_b32 s45, s59, 15
s_add_u32 s45, s45, {WS_O:#x}
v_add_u32 v242, 0x8000, v5
s_mov_b32 s51, 0x55555555
""")
    srd_off(a, 64, sWS, "s45", 65536)
    a(f"""
s_lshl_b32 s52, s{sg_rb}, 8
s_lshl_b32 s46, s3, 6
s_add_u32 s52, s52, s46
{FC(52, FL_O, sg_cb)}
v_lshrrev_b32 v6, 2, v4
v_lshlrev_b32 v6, 7, v6
v_and_b32 v7, 3, v4
v_lshl_add_u32 v6, v7, 3, v6
v_bfe_u32 v7, v4, 3, 1
v_lshl_add_u32 v6, v7, 6, v6
v_lshl_add_u32 v{vWb}, v23, 5, v6
v_xor_b32 v{vWb+1}, 32, v{vWb}
v_xor_b32 v{vWb+2}, 64, v{vWb}
v_xor_b32 v{vWb+3}, 0x60, v{vWb}
s_lshl_b32 s57, s3, 11
s_add_u32 s57, s57, {XCH}
v_lshrrev_b32 v7, 5, v4
v_lshl_add_u32 v6, v23, 1, v7
v_and_b32 v7, 7, v4
v_xor_b32 v6, v6, v7
v_lshlrev_b32 v6, 4, v6
v_and_b32 v3, 15, v4
v_lshl_add_u32 v6, v3, 7, v6
v_add_u32 v15, s57, v6
v_xor_b32 v18, 64, v15
v_lshrrev_b32 v6, 3, v4
v_lshlrev_b32 v3, 4, v7
v_lshl_add_u32 v17, v6, 12, v3
v_xor_b32 v7, v7, v6
v_lshlrev_b32 v7, 4, v7
v_lshl_add_u32 v6, v6, 7, v7
v_add_u32 v16, s57, v6
s_mov_b32 s50, 0
s_mov_b32 s53, 0
s_mov_b32 s54, 0
s_lshl_b32 s55, s40, 4
s_and_b32 s42, s{sg_rb}, {3 if opt("wrot", "1") == "1" else 0}
s_lshl_b32 s42, s42, 3
""")
    for i in range(10): a(f"v_mov_b64 {vr(C+2*i,2)}, 0")
    a(f"s_load_dwordx16 s[4:19], s[{sWS}:{sWS+1}], s52 glc")
    for i in range(10, 16): a(f"v_mov_b64 {vr(C+2*i,2)}, 0")
    a("s_waitcnt vmcnt(0)")
    flag_store(a, 60, 49, vEp, vL128)
    a.stamp(6)
    a("s_waitcnt lgkmcnt(0)")
    maskbuild(a, 54, 46)
    a(f"s_lshl_b32 s46, s54, s55\ns_mov_b32 s47, s46\ns_lshr_b64 s[46:47], s[46:47], s42\nv_mov_b32 v{vT}, s46\ns_mov_b64 exec, 1\nds_or_b32 v14, v{vT} offset:{Y_CO}\ns_mov_b64 exec, -1")
    a(f"s_setprio {opt('gprio', '2')}")
    if opt("og", "0") == "1":
        a(f"""
ds_write_b32 v{vPW}, v{vOne} offset:160
s_mov_b32 s45, 0
L_og:
ds_read_b128 v[152:155], v{vY} offset:160
s_add_u32 s45, s45, 1
s_waitcnt lgkmcnt(0)
v_and_b32 v152, v152, v153
v_and_b32 v154, v154, v155
v_and_b32 v152, v152, v154
s_cmp_gt_u32 s45, 0x40000
s_cbranch_scc1 L_ogd
v_readfirstlane_b32 s46, v152
s_nop 3
s_cmp_eq_u32 s46, 0
s_cbranch_scc1 L_og
L_ogd:
""")
    selno = [0]
    def select(slot):
        n = selno[0]; selno[0] += 1
        a(f"""
s_cmp_lg_u32 s50, 0
s_cbranch_scc1 L_sel{n}_ok
s_mov_b32 s45, 0
s_cmp_lg_u32 s51, 0
s_cbranch_scc1 L_sel{n}
s_mov_b32 s66, 0
s_mov_b32 s50, 0x55555555
s_branch L_sel{n}_ok
L_sel{n}:
ds_read_b32 v{vT}, v14 offset:{Y_CO}
ds_read_b32 v13, v{vY} offset:{Y_WM}
s_add_u32 s45, s45, 1
s_waitcnt lgkmcnt(0)
v_and_b32 v13, v13, v{vT}
s_cmp_gt_u32 s45, 0x40000
s_cselect_b32 s46, -1, 0
v_readfirstlane_b32 s50, v13
s_nop 3
s_or_b32 s50, s50, s46
s_and_b32 s50, s50, s51
s_cbranch_scc1 L_sel{n}_ok
s_cmp_lg_u32 s54, 0x5555
s_cbranch_scc1 L_sel{n}_p
s_sleep 1
s_branch L_sel{n}
L_sel{n}_p:
s_load_dwordx16 s[4:19], s[{sWS}:{sWS+1}], s52 glc
s_add_u32 s45, s45, 8
s_waitcnt lgkmcnt(0)
""")
        maskbuild(a, 54, 46)
        a(f"s_lshl_b32 s46, s54, s55\ns_mov_b32 s47, s46\ns_lshr_b64 s[46:47], s[46:47], s42\nv_mov_b32 v{vT}, s46\ns_mov_b64 exec, 1\nds_or_b32 v14, v{vT} offset:{Y_CO}\ns_mov_b64 exec, -1")
        a(f"s_branch L_sel{n}\nL_sel{n}_ok:")
        return [f"s_ff1_i32_b32 s46, s50", "s_bitset0_b32 s50, s46\ns_add_u32 s48, s46, s42", "s_and_b32 s48, s48, 31\ns_lshl_b32 s48, s48, 10", "s_bitset0_b32 s51, s46", f"s_lshl_b32 s{28+slot}, s46, 12"]
    def oload(slot):
        return [f"buffer_load_dwordx4 {vr(OF+16*slot+8*hh+4*rt,4)}, v{[5,242][rt]}, s[64:67], s48 offen offset:{1024*hh} {OSC}" for hh in range(2) for rt in range(2)]
    def wreads(S, hh, vw):
        return [f"ds_read_b64_tr_b16 {vr(S+4*ct+2*i2,2)}, v{vw+ct} offset:{hh*4096+i2*2048}" for ct in range(4) for i2 in range(2)]
    def wset(slot, vw): return [f"v_add_u32 v{vw+i}, s{28+slot}, v{vWb+i}" for i in range(4)]
    for sl in range(3):
        for x in select(sl): a(x)
        if sl == 0 and not NOG: a.stamp(7)
        if sl == 0 and opt("lat", "0") == "1": a("s_waitcnt lgkmcnt(0)\ns_mov_b32 s94, s50\ns_bitset1_b32 s94, s46")
        for x in oload(sl): a(x)
    for x in wset(0, vWA): a(x)
    for r in wreads(WX, 0, vWA): a(r)
    a("L_gloop:")
    for u in range(4):
        cur, nxt = (vWA, vWB) if u % 2 == 0 else (vWB, vWA)
        sel = select((u + 3) % 4)
        ol = oload((u + 3) % 4)
        a("s_waitcnt vmcnt(10) lgkmcnt(0)")
        if TRACE: a("s_memrealtime s[100:101]")
        m = [mfma16(C + 4 * (rt * 4 + ct), WX + 4 * ct, OF + 16 * u + 4 * rt) for rt in range(2) for ct in range(4)]
        interleave(a, m, wreads(WY, 1, cur) + wset((u + 1) % 4, nxt) + sel[:4], 2)
        a("s_waitcnt vmcnt(8) lgkmcnt(0)")
        if TRACE: a(f"s_lshl_b32 m0, s53, 2\ns_add_u32 m0, m0, {u}\ns_nop 0\nv_writelane_b32 v252, s100, m0")
        m = [mfma16(C + 4 * (rt * 4 + ct), WY + 4 * ct, OF + 16 * u + 8 + 4 * rt) for rt in range(2) for ct in range(4)]
        if u == 3: oth = wreads(WX, 0, nxt) + [ol[0], ol[1], sel[4], ol[2], "s_add_u32 s53, s53, 1", ol[3], "s_cmp_lt_u32 s53, 4"]
        else: oth = wreads(WX, 0, nxt) + [ol[0], sel[4], ol[1]] + [None, ol[2], None, ol[3]]
        o2 = list(oth)
        for mm in m:
            a(mm)
            for _ in range(2):
                if o2:
                    x = o2.pop(0)
                    if x: a(x)
        for x in o2:
            if x: a(x)
    a("s_cbranch_scc1 L_gloop")
    if not NOG: a.stamp(8)
    a(f"""
s_lshl_b32 s48, s59, 16
s_lshl_b32 s49, s{sg_cb}, 7
s_add_u32 s48, s48, s49
s_add_u32 s49, s48, 0x8000
s_add_u32 s50, s48, 0x10000
s_add_u32 s51, s48, 0x18000
s_waitcnt lgkmcnt(0)
""")
    pack(a, C, PO, 32)
    a("s_nop 1")
    for q in range(4):
        a(f"v_permlane16_swap_b32 v{PO+4*q}, v{PO+4*q+2}\nv_permlane16_swap_b32 v{PO+4*q+1}, v{PO+4*q+3}")
    for rt in range(2):
        for qq in range(2): a(f"ds_write_b128 v{[15,18][qq]}, {vr(PO+8*rt+4*qq,4)}")
        for i in range(2): a(f"ds_read_b128 {vr(WX+8*rt+4*i,4)}, v16 offset:{1024*i}")
    for q in range(4):
        a(f"s_waitcnt lgkmcnt({[5,4,1,0][q]})")
        a(f"buffer_store_dwordx4 {vr(WX+4*q,4)}, v17, s[68:71], s{48+q} offen {FL_OUT}")
    if TRACE:
        a(f"v_writelane_b32 v252, s90, 16\ns_lshl_b32 s100, s2, 10\ns_add_u32 s100, s100, {WS_ST + 0x200000:#x}\nv_lshlrev_b32 v253, 2, v0\nbuffer_store_dword v252, v253, s[60:63], s100 offen")
    a.end()

def aux(a):
    vOA, vOB = 8, 12
    vZero, vEp, vOne, vY, vT = 6, 7, 14, 15, 3
    a(f"""
s_sub_u32 s3, s3, 4
v_lshrrev_b32 v1, 3, v4
v_and_b32 v2, 7, v4
v_lshrrev_b32 v3, 4, v4
v_xor_b32 v6, v2, v3
v_lshlrev_b32 v6, 4, v6
v_lshl_add_u32 v6, v1, 11, v6
s_lshl_b32 s60, s{srb}, 7
s_lshl_b32 s61, s3, 5
s_add_u32 s60, s60, s61
s_lshl_b32 s60, s60, 11
v_add_u32 v{vOA}, s60, v6
v_xor_b32 v6, 64, v{vOA}
v_add_u32 v{vOA+1}, {16384-1024}, v6
v_add_u32 v{vOA+2}, {2*(16384-1024)}, v{vOA}
v_add_u32 v{vOA+3}, {3*(16384-1024)}, v6
v_and_b32 v3, 1, v3
v_lshlrev_b32 v3, 2, v3
v_xor_b32 v7, v2, v3
v_lshlrev_b32 v7, 4, v7
v_xor_b32 v6, 32, v7
s_movk_i32 s61, 6144
v_mad_u32_u24 v7, v1, s61, v7
v_mad_u32_u24 v6, v1, s61, v6
s_mul_i32 s60, s3, {16*6144}
v_add_u32 v{vOB}, s60, v7
s_add_u32 s60, s60, {8*6144-1024}
v_add_u32 v{vOB+1}, s60, v6
s_lshl_b32 s65, s3, 12
s_lshl_b32 s66, s3, 11
s_add_u32 s66, s66, 0x4000
s_mov_b32 s64, 0
s_mov_b32 s67, s{sk0}
s_lshl_b32 s74, s{shq}, 7
s_lshl_b32 s75, s{shk}, 7
s_add_u32 s75, s75, 2048
s_mov_b32 s42, {4*MB:#x}
s_mov_b32 s43, 0x20000
s_mov_b32 s46, {6*MB:#x}
s_mov_b32 s47, 0x20000
s_waitcnt lgkmcnt(0)
s_mov_b64 s[40:41], s[{sX}:{sX+1}]
s_mov_b64 s[44:45], s[{sW}:{sW+1}]
""")
    vm = VM(a)
    def issue(tag):
        a(f"s_add_u32 m0, s64, s65\ns_lshl_b32 s60, s67, 7\ns_mul_i32 s63, s67, {64*6144}")
        for i in range(4): a(f"buffer_load_dwordx4 v{vOA+i}, s[40:43], s60 offen offset:{1024*i} {FL_XW} lds")
        a(f"s_add_u32 m0, s64, s66\ns_add_u32 s61, s63, s74\ns_add_u32 s62, s63, s75")
        for i in range(2): a(f"buffer_load_dwordx4 v{vOB+i}, s[44:47], s61 offen offset:{1024*i} {FL_XW} lds")
        a(f"s_add_u32 m0, m0, 8192\ns_add_u32 s63, s62, 2048")
        for i in range(2): a(f"buffer_load_dwordx4 v{vOB+i}, s[44:47], s62 offen offset:{1024*i} {FL_XW} lds")
        a(f"s_add_u32 m0, m0, 8192\ns_add_u32 s67, s67, 1")
        for i in range(2): a(f"buffer_load_dwordx4 v{vOB+i}, s[44:47], s63 offen offset:{1024*i} {FL_XW} lds")
        a(f"s_and_b32 s67, s67, 15\ns_add_u32 s64, s64, {STG}\ns_cmp_eq_u32 s64, {3*STG}\ns_cselect_b32 s64, 0, s64")
        vm.issue(tag, 10)
    def B(i): vm.wait(i); a.bar()
    a.sst(2)
    issue(0)
    a.sst(3)
    a("s_barrier")
    a.sst(4)
    ids2(a)
    a(f"v_mov_b32 v{vZero}, 0\nv_mov_b32 v{vOne}, 1\nv_mov_b32 v{vY}, {SYNC}\nv_lshlrev_b32 v255, 7, v4\n{WSOFF}")
    srd(a, 48, sWS, 32 * MB)
    srd(a, 52, sDBG, 256)
    a(f"""
s_or_b32 s60, s2, s3
s_cmp_eq_u32 s60, 0
s_cbranch_scc0 L_noep
s_memrealtime s[60:61]
s_waitcnt lgkmcnt(0)
s_or_b32 s60, s60, 1
v_mov_b32 v{vEp}, s60
s_mov_b64 exec, 1
buffer_store_dword v{vEp}, v{vZero}, s[52:55], 0 offen sc1
s_mov_b64 exec, -1
L_noep:
""")
    P, Qs, CACC, W2, QQ = 32, 96, 160, 192, 224
    VU = [240, 241, 242, 243]; vH, vE, vS, vTR, vHP = 244, 245, 246, 247, 251
    vUS, vHL, vO = 25, 26, 20
    a(f"""
s_mul_i32 s68, s3, {HCH}
s_add_u32 s68, s68, {HB}
s_lshl_b32 s69, s{ssb}, 7
s_lshl_b32 s70, s3, 5
s_add_u32 s69, s69, s70
v_lshrrev_b32 v28, 4, v4
v_bfe_u32 v29, v4, 2, 2
v_and_b32 v30, 3, v4
v_and_b32 v31, 15, v4
s_lshl_b32 s60, s3, 12
s_add_u32 s60, s60, {HB}
v_add_u32 v{vTR}, s60, v5
s_and_b32 s60, s3, 1
s_lshl_b32 s60, s60, 6
v_xor_b32 v{vTR}, s60, v{vTR}
v_xor_b32 v{vTR+1}, 16, v{vTR}
v_xor_b32 v{vTR+2}, 32, v{vTR}
v_xor_b32 v{vTR+3}, 48, v{vTR}
v_lshlrev_b32 v3, 12, v28
v_lshl_add_u32 v{vUS}, v31, 4, v3
s_lshl_b32 s60, s{sdb}, 18
s_lshl_b32 s61, s3, 16
s_add_u32 s60, s60, s61
s_lshl_b32 s61, s{ssb}, 8
s_sub_u32 s60, s60, s61
s_add_u32 s60, s60, {WS_UT + 3840}
v_add_u32 v{vUS}, s60, v{vUS}
v_lshlrev_b32 v{vHL}, 5, v4
v_and_b32 v3, 1, v28
v_lshlrev_b32 v3, 2, v3
v_xor_b32 v3, v2, v3
v_lshrrev_b32 v27, 5, v4
v_lshlrev_b32 v27, 1, v27
v_xor_b32 v3, v27, v3
v_lshlrev_b32 v3, 4, v3
v_lshl_add_u32 v3, v1, 11, v3
s_lshl_b32 s60, s{sg_cb}, 7
v_add_u32 v{vO}, s60, v3
v_add_u32 v{vO+1}, {16384-1024}, v{vO}
v_add_u32 v{vO+2}, {2*(16384-1024)}, v{vO}
v_add_u32 v{vO+3}, {3*(16384-1024)}, v{vO}
s_mov_b32 s70, 0xffff0000
v_and_b32 v3, 1, v28
s_movk_i32 s60, {HP}
v_mul_u32_u24 v3, s60, v3
v_lshl_add_u32 v3, v31, 4, v3
v_add_u32 v{vHP}, s68, v3
s_mul_i32 s71, s3, {UCH}
s_add_u32 s71, s71, {U0}
v_add_u32 v19, s71, v5
s_movk_i32 s61, {CPY}
v_and_b32 v24, 1, v29
v_mul_u32_u24 v24, s61, v24
v_lshl_add_u32 v24, v30, 4, v24
v_add_u32 v24, s71, v24
v_add_u32 v3, 1, v31
v_and_b32 v16, 1, v3
v_add_u32 v17, v16, v31
v_mul_u32_u24 v3, s61, v16
v_lshl_add_u32 v3, v28, 5, v3
v_lshlrev_b32 v17, 1, v17
v_sub_u32 v3, v3, v17
s_add_u32 s60, s71, {4014 - 512 - 16}
v_add_u32 v{VU[0]}, s60, v3
v_subrev_u32 v{VU[1]}, 1024, v{VU[0]}
v_subrev_u32 v{VU[2]}, 2048, v{VU[0]}
v_subrev_u32 v{VU[3]}, 3072, v{VU[0]}
v_add_u32 v3, v31, v28
s_add_u32 s60, s68, 208
v_lshlrev_b32 v3, 4, v3
v_add_u32 v{vH}, s60, v3
v_lshlrev_b32 v3, 5, v31
v_lshl_add_u32 v16, v28, 3, v3
s_add_u32 s60, s71, {4088 - 3584}
v_sub_u32 v{vE}, s60, v16
v_and_b32 v16, 1, v28
v_lshl_add_u32 v3, v16, 9, v3
v_lshrrev_b32 v16, 5, v4
v_lshl_add_u32 v{vS}, v16, 4, v3
v_lshlrev_b32 v27, 4, v2
v_lshl_add_u32 v16, v1, 11, v27
v_lshl_add_u32 v17, v1, 12, v27
s_add_u32 s39, s{sch}, s3
s_and_b32 s60, s39, 0xfffffffe
s_lshl_b32 s60, s60, 1
s_load_dword s71, s[{sD}:{sD+1}], s60
s_lshl_b32 s61, s39, 12
""")
    for i in range(16): a(f"v_mov_b64 {vr(CACC+2*i,2)}, 0")
    srd_off(a, 52, sH, "s61", 4096); srd(a, 56, sWO, 2 * MB)
    a(f"s_waitcnt lgkmcnt(0)\ns_mov_b32 s20, s{sQ}\ns_mov_b32 s21, s{sQ+1}")
    def hload():
        a(f"s_add_u32 m0, s68, 256\ns_movk_i32 s60, 1024\ns_movk_i32 s61, 1040")
        a(f"buffer_load_dwordx4 v{vHL}, s[52:55], 0 offen {FL_KV} lds\nbuffer_load_dwordx4 v{vHL}, s[52:55], s60 offen offset:1024 {FL_KV} lds")
        a(f"s_add_u32 m0, s68, {HP+256}\ns_nop 0")
        a(f"buffer_load_dwordx4 v{vHL}, s[52:55], 16 offen {FL_KV} lds\nbuffer_load_dwordx4 v{vHL}, s[52:55], s61 offen offset:1024 {FL_KV} lds")
        vm.issue("h", 4)
    def epoch():
        a(f"""
s_waitcnt lgkmcnt(0)
s_mov_b32 s60, 0
L_eploop:
s_cmp_lg_u32 s{sEP}, 0
s_cbranch_scc1 L_epok
s_sleep 8
s_load_dword s{sEP}, s[{sDBG}:{sDBG+1}], 0 glc
s_add_u32 s60, s60, 1
s_cmp_gt_u32 s60, 0x4000
s_waitcnt lgkmcnt(0)
s_cbranch_scc0 L_eploop
L_epok:
s_mov_b32 s{sEP+1}, s{sEP}
v_mov_b32 v{vEp}, s{sEP}
ds_write_b32 v{vY}, v{vEp} offset:{Y_EP}
""")
    a.sst(5); vm.wait(0); a.sst(6)
    B(0); issue(1); issue(2)
    B(1); issue(3)
    a.stamp(9)
    B(2); issue(4)
    a(f"s_load_dword s{sEP}, s[{sDBG}:{sDBG+1}], 0")
    D, E, O = 32, 48, 52
    H0 = int(opt("h0", "14")); D0 = int(opt("d0", "14")); HN = int(opt("hn", "1")); DN_ = int(opt("dn", "1"))
    hl = [(f"s_add_u32 m0, s68, 256", f"buffer_load_dwordx4 v{vHL}, s[52:55], 0 offen {FL_KV} lds"),
          (f"s_add_u32 m0, s68, 256\ns_movk_i32 s60, 1024", f"buffer_load_dwordx4 v{vHL}, s[52:55], s60 offen offset:1024 {FL_KV} lds"),
          (f"s_add_u32 m0, s68, {HP+256}", f"buffer_load_dwordx4 v{vHL}, s[52:55], 16 offen {FL_KV} lds"),
          (f"s_add_u32 m0, s68, {HP+256}\ns_movk_i32 s60, 1040", f"buffer_load_dwordx4 v{vHL}, s[52:55], s60 offen offset:1024 {FL_KV} lds")]
    dl = [f"buffer_load_dwordx4 {vr(D+4*j,4)}, v5, s[48:51], s39 offen offset:{1024*j} sc1" for j in range(4)]
    a(f"s_lshl_b32 s33, s39, 7\ns_add_u32 s33, s33, {FL_U:#x}\ns_lshl_b32 s39, s39, 12")
    def uchk():
        a("s_waitcnt lgkmcnt(0)")
        for i in range(8): a(f"s_cmp_eq_u64 s[{4+2*i}:{5+2*i}], s[{sEP}:{sEP+1}]\ns_cbranch_scc0 L_us")
        a("s_branch L_upoll_done\nL_us:")
        spoll(a, "L_upoll", 33, 60)
    SP = opt("sp", "H"); SN = int(opt("sn", "4")); S0 = int(opt("s0", "5")); SH = int(opt("sh", "2"))
    pf = []
    if SP:
        a(f"""
s_lshl_b32 s60, s69, 11
s_lshl_b32 s61, s{sdb}, 7
s_add_u32 s60, s60, s61
s_add_u32 s0, s20, s60
s_addc_u32 s1, s21, 0
s_lshl2_add_u32 s60, s{sj}, s3
s_lshl_b32 s60, s60, 14
s_and_b32 s61, s{sx}, 4
s_lshl_b32 s61, s61, 8
s_add_u32 s60, s60, s61
s_add_u32 s6, s56, s60
s_addc_u32 s7, s57, 0
s_lshl2_add_u32 s60, s2, s3
s_lshl_b32 s60, s60, 11
s_add_u32 s8, s56, s60
s_addc_u32 s9, s57, 0
""")
        hs = [0] if SH == 1 else [0, 64]
        for c in SP:
            if c == "h": pf += [f"s_load_dword s5, s[52:53], {i*128+o:#x}" for i in range(32) for o in hs]
            if c == "q": pf += [f"s_load_dword s5, s[0:1], {i*2048+o:#x}" for i in range(32) for o in hs]
            if c == "W": pf += [f"s_load_dword s5, s[8:9], {i*64:#x}" for i in range(32)]
            if c == "H": pf += [f"s_load_dword s5, s[52:53], {i*128:#x}" for i in range(32)]
            if c == "w": pf += [f"s_load_dword s5, s[6:7], {r*2048+c2*128+o:#x}" for r in range(8) for c2 in range(8) for o in hs]
    for b in range(3, 14):
        B(b)
        if b == 3:
            epoch(); a(f"ds_write_b128 v{vHP}, {vr(CACC,4)}")
        issue(b + 2)
        PT = opt("pt", "0")
        if b == 3 and PT != "0":
            fl = "glc" if PT == "glc" else ""
            a(f"""
s_load_dword s5, s[{sWS}:{sWS+1}], s33 {fl}
s_lshl2_add_u32 s60, s{shq}, s3
s_lshl_b32 s61, s60, 11
s_lshl_b32 s62, s{srb}, 6
s_add_u32 s61, s61, s62
s_add_u32 s61, s61, {WS_ZP:#x}
s_load_dword s5, s[{sWS}:{sWS+1}], s61 {fl}
s_lshl_b32 s60, s60, 6
{FC(60, FL_P, srb)}
s_load_dword s5, s[{sWS}:{sWS+1}], s60 {fl}
s_lshl_b32 s60, s{sg_rb}, 8
s_lshl_b32 s61, s3, 6
s_add_u32 s60, s60, s61
{FC(60, FL_O, sg_cb)}
s_load_dword s5, s[{sWS}:{sWS+1}], s60 {fl}
s_lshl_b32 s60, s{sdb}, 6
s_lshl2_add_u32 s61, s{ssb}, s3
{FC(60, FL_Y, 61, 8192)}
s_load_dword s5, s[{sWS}:{sWS+1}], s60 {fl}
""")
        if S0 <= b <= 12:
            for _ in range(SN):
                if pf: a(pf.pop(0))
        if b == 13: a("s_waitcnt lgkmcnt(0)")
        if b == min(D0, 14) - 1: a(f"s_load_dwordx16 s[4:19], s[{sWS}:{sWS+1}], s33 glc")
        if b == D0: uchk()
        if b >= H0:
            for _ in range(HN):
                if hl:
                    x = hl.pop(0); a(x[0]); a("s_nop 0"); a(x[1]); vm.issue("h")
        if b >= D0:
            for _ in range(DN_):
                if dl: a(dl.pop(0)); vm.issue("d")
    srd(a, 40, 20, 4 * MB); srd(a, 44, sOUT, 8 * MB)
    sPo = {0: 3, 1: 75, 2: 65, 3: 31}
    a(f"s_and_b32 s28, s{sg_rb}, {3 if opt('wrot', '1') == '1' else 0}\ns_lshl_b32 s74, s28, 2\ns_lshl_b32 s28, s28, 3")
    a("s_add_u32 s65, s3, 5\ns_add_u32 s75, s3, 9\ns_cmp_eq_u32 s3, 3\ns_cselect_b32 s75, 4, s75\ns_add_u32 s31, s3, 12")
    def usrc(g): return [f"s_add_u32 s60, s{sPo[g]}, s74", "s_and_b32 s60, s60, 15", "s_lshl_b32 s60, s60, 17", "s_add_u32 s61, s60, 0x10000"]
    def w2(g):
        r = usrc(g)
        for hh in range(2):
            for i in range(4): r.append(f"buffer_load_dwordx4 {vr(W2+16*hh+4*i,4)}, v{vO+i}, s[56:59], s{60+hh} offen offset:{1024*i} {FL_WO}")
        vm.issue(f"w{g}", 8)
        return r
    def wb(g):
        a(f"s_lshl_b32 m0, s{sPo[g]}, 13")
        for x in usrc(g): a(x)
        for hh in range(2):
            for i in range(4): a(f"buffer_load_dwordx4 v{vO+i}, s[56:59], s{60+hh} offen offset:{1024*i} {FL_WO} lds")
            if hh == 0: a("s_add_u32 m0, m0, 4096\ns_nop 0")
        vm.issue(f"w{g}", 8)
    def wm_lines(bits):
        r = ["s_mov_b32 s61, 0"]
        for g in bits: r += [f"s_lshl_b32 s60, s{sPo[g]}, 1", "s_bitset1_b32 s61, s60"]
        return r + [f"v_mov_b32 v{vT}, s61", f"s_mov_b64 exec, 1\nds_or_b32 v{vY}, v{vT} offset:{Y_WM}\ns_mov_b64 exec, -1"]
    B(14)
    if D0 >= 14: uchk()
    for x in dl: a(x); vm.issue("d")
    for x in hl: a(x[0]); a("s_nop 0"); a(x[1]); vm.issue("h")
    W14 = len(dl) + len(hl) <= 4
    if W14: wb(2)
    B(15)
    a.stamp(1)
    a(f"ds_write_b128 v24, {vr(CACC,4)} offset:4096")
    def wait4(lab, off, slp=1, T=68):
        a(f"""
s_mov_b32 s60, 0
{lab}:
ds_read_b128 v[{T}:{T+3}], v{vY} offset:{off}
s_add_u32 s60, s60, 1
s_waitcnt lgkmcnt(0)
v_and_b32 v{T}, v{T}, v{T+1}
v_and_b32 v{T+2}, v{T+2}, v{T+3}
v_and_b32 v{T}, v{T}, v{T+2}
s_cmp_gt_u32 s60, 0x40000
s_cbranch_scc1 {lab}_d
v_readfirstlane_b32 s61, v{T}
s_nop 3
s_cmp_eq_u32 s61, 1
s_cbranch_scc1 {lab}_d
s_sleep {slp}
s_branch {lab}
{lab}_d:
""")
    if not W14: wb(2)
    UO = opt("uo", "0")
    if UO == "1":
        wait4("L_fr", Y_FR); wb(1); wb(0)
    if UO == "2":
        wait4("L_fr", Y_FR); wb(1)
    vm.wait("d")
    for j in range(3): a(f"v_mov_b32_dpp v{E+j}, v{D+4*j+4} wave_rol:1 row_mask:0xf bank_mask:0xf")
    a(f"v_mov_b32 v{E+3}, 0\ns_nop 0")
    for j in range(4): a(f"v_mov_b32_dpp v{E+j}, v{D+4*j} wave_shl:1 row_mask:0xf bank_mask:0xf")
    for j in range(4):
        d = [D + 4 * j + i for i in range(4)] + [E + j]
        o = O + 4 * j
        a(f"ds_write_b128 v19, {vr(D+4*j,4)} offset:{1024*j}")
        for i in range(4): a(f"v_alignbit_b32 v{o+i}, v{d[i+1]}, v{d[i]}, 16")
        a(f"ds_write_b128 v19, {vr(o,4)} offset:{CPY+1024*j}")
    if UO == "0": wait4("L_fr", Y_FR)
    a.stamp(2)
    if UO == "0": wb(1)
    if UO == "2" and opt("gate", "kv") != "none": wait4("L_kdz", Y_KD, T=Qs)
    if UO != "1": wb(0)
    a(f"""
s_lshl_b32 s30, s69, 11
s_lshl_b32 s61, s{sdb}, 7
s_add_u32 s30, s30, s61
s_lshl_b32 s63, s69, 12
s_add_u32 s63, s63, s61
s_add_u32 s63, s63, 2048
s_lshl_b32 s66, s{sg_rb}, 8
s_lshl_b32 s61, s3, 6
s_add_u32 s66, s66, s61
{FC(66, FL_O, sg_cb)}
s_bitcmp1_b32 s3, 0
s_cselect_b32 s60, 0, 16
s_cselect_b32 s33, 16, 0
s_lshl_b32 s71, s71, s60
s_and_b32 s71, s71, 0xffff0000
s_lshr_b32 s60, s3, 1
v_lshl_add_u32 v19, s60, 2, v{vY}
s_mov_b32 s32, s{sch}
{FA(32, FL_Y, 8192)}
s_lshl_b32 s67, s{sdb}, 6
s_lshl_b32 s60, s{ssb}, 2
s_add_u32 s60, s60, s3
{FC(67, FL_Y, 60, 8192)}
s_mov_b32 s64, 0
""")
    def creads(S, rho):
        r = []
        for i in range(8):
            o0 = 128 * (1 - i % 2) + 4 * (1 - rho)
            r.append(f"ds_read2_b32 {vr(S+4*i,2)}, v{VU[i//2]} offset0:{o0} offset1:{o0+1}")
            r.append(f"ds_read2_b32 {vr(S+4*i+2,2)}, v{VU[i//2]} offset0:{o0+2} offset1:{o0+3}")
            r.append(f"ds_read_b128 {vr(S+32+4*i,4)}, v{vH} offset:{256*i+(HP if rho == 0 else 0)}")
        return r
    def cmf(S):
        if opt("cch", "1") == "1": return [mfma16(CACC + 4 * t, S + 4 * x, S + 32 + 4 * (t - x)) for t in range(7, -1, -1) for x in range(t + 1)]
        return [mfma16(CACC + 4 * (x + y), S + 4 * x, S + 32 + 4 * y) for x in range(8) for y in range(8 - x)]
    vm.wait("h")
    for r in creads(P, 0): a(r)
    if opt("gate", "kv") != "none": wait4("L_kd", Y_KD, T=Qs)
    a.stamp(3)
    a(f"s_setprio {opt('vprio', '0')}")
    adv = [f"v_subrev_u32 v{x}, 128, v{x}" for x in VU] + [f"v_subrev_u32 v{vH}, 64, v{vH}"]
    pn = [0]
    def Pissue(): return f"s_load_dwordx16 s[4:19], s[{sWS}:{sWS+1}], s66 glc"
    def Pcheck(w):
        n = pn[0]; pn[0] += 1
        maskbuild(w, 62, 60)
        w(f"s_mov_b32 s64, s62\ns_lshl_b32 s60, s62, s33\ns_mov_b32 s61, s60\ns_lshr_b64 s[60:61], s[60:61], s28\nv_mov_b32 v{vT}, s60")
        g = f"s_mov_b64 exec, 1\nds_or_b32 v19, v{vT} offset:{Y_CO}\ns_mov_b64 exec, -1"
        if isinstance(w, L): w.l.append(g)
        else: w(g)
    W3H = int(opt("w3h", "1")); QH = int(opt("qh", "1"))
    ql = [x for i in range(4) for x in ([f"buffer_load_dwordx4 {vr(QQ+4*i,4)}, v16, s[40:43], s30 offen {FL_KV}"] + (["s_add_u32 s30, s30, 0x4000"] if i < 3 else []))]
    for h in range(8):
        S, N = (P, Qs) if h % 2 == 0 else (Qs, P)
        a("s_waitcnt lgkmcnt(0)")
        ex = []
        if h == 1:
            vm.wait("w0"); ex = wm_lines((0, 1, 2))
        if h == W3H: ex = ex + w2(3)
        if h == QH:
            ex = ex + ql; vm.issue("q", 4)
        inter3(a, cmf(S), ex, 1, (creads(N, 1 - h % 2) if h < 7 else []) + (adv if h % 2 == 0 else []), 1)
    a.stamp(4)
    UU, T = Qs + 40, Qs + 56
    for t in range(8): a(f"ds_read_b64 {vr(UU+2*t,2)}, v{vE} offset:{512*(7-t)}")
    ladd(a, vY, Y_CD, vOne)
    a(f"s_setprio {opt('yprio', '3')}\ns_waitcnt lgkmcnt(0)")
    YP = opt("yp", "0")
    if YP != "0": a(Pissue())
    for t in range(8):
        a(f"v_and_b32 v{T}, s70, v{UU+2*t+1}\nv_lshlrev_b32 v{T+1}, 16, v{UU+2*t+1}")
        a(f"v_and_b32 v{T+2}, s70, v{UU+2*t}\nv_lshlrev_b32 v{T+3}, 16, v{UU+2*t}")
        for i in range(4): a(f"v_fmac_f32 v{CACC+4*t+i}, s71, v{T+i}")
        a(f"v_cvt_pk_bf16_f32 v{UU+2*t}, v{CACC+4*t}, v{CACC+4*t+1}")
        a(f"v_cvt_pk_bf16_f32 v{UU+2*t+1}, v{CACC+4*t+2}, v{CACC+4*t+3}")
    a("s_nop 1")
    for t in range(0, 8, 2):
        a(f"v_permlane16_swap_b32 v{UU+2*t}, v{UU+2*t+2}\nv_permlane16_swap_b32 v{UU+2*t+1}, v{UU+2*t+3}")
    vm.wait("w3")
    for t in range(0, 8, 2): a(f"buffer_store_dwordx4 {vr(UU+2*t,4)}, v{vS}, s[48:51], s39 offen offset:{512*t} sc1")
    if YP != "0":
        a("s_waitcnt lgkmcnt(0)"); Pcheck(a)
    if YP == "2": a(Pissue())
    if W3H == 8:
        for x in w2(3): a(x)
    lspin(a, "L_cdspin", vY, Y_CD, "4", vT, 60, 61, slp=0)
    if YP == "2": Pcheck(a)
    def w2write():
        a(f"s_lshl_b32 s60, s3, 13\ns_add_u32 s60, s60, {U0}\nv_add_u32 v21, s60, v5")
        for i in range(8): a(f"ds_write_b128 v21, {vr(W2+4*i,4)} offset:{1024*i}")
        for x in wm_lines((3,)): a(x)
    if W3H != 8: w2write()
    if QH > 7:
        for x in ql: a(x)
    a.stamp(5)
    a(f"""
s_lshl_b32 s65, s{sdb}, 18
s_lshl_b32 s60, s69, 1
s_add_u32 s65, s65, s60
s_add_u32 s65, s65, {WS_YT:#x}
v_lshrrev_b32 v18, 2, v4
v_lshlrev_b32 v18, 12, v18
v_lshl_add_u32 v18, v30, 4, v18
v_lshl_add_u32 v20, v28, 3, v29
v_lshlrev_b32 v20, 6, v20
v_lshl_add_u32 v20, v30, 3, v20
v_add_u32 v20, s68, v20
s_movk_i32 s60, 144
v_mul_u32_u24 v24, s60, v31
v_lshl_add_u32 v24, v28, 4, v24
v_add_u32 v24, s68, v24
v_mul_u32_u24 v25, s60, v1
v_add3_u32 v25, v25, v27, s68
s_mov_b32 m0, s68
s_waitcnt vmcnt({(4 if QH > 7 else 0) + (8 if W3H == 8 else 0)})
s_mov_b64 exec, 1
ds_add_rtn_u32 v{vT}, v{vY}, v{vOne} offset:{Y_CY}
s_mov_b64 exec, -1
s_waitcnt lgkmcnt(0)
v_readfirstlane_b32 s60, v{vT}
s_nop 3
s_cmp_eq_u32 s60, 3
s_cbranch_scc0 L_yfl
""")
    flag_store(a, 48, 32, vEp, 255, "-1")
    a("L_yfl:")
    if W3H == 8:
        a(f"s_waitcnt vmcnt({4 if QH > 7 else 0})"); w2write()
    a.stamp(6)
    a("s_setprio 0\ns_waitcnt vmcnt(0)")
    unpack(a, QQ, 96, 16, 70)
    a("s_mov_b32 s29, 0\nL_yloop:\ns_cmp_eq_u32 s64, 0x5555\ns_cbranch_scc1 L_ynop")
    a(Pissue() + "\ns_waitcnt lgkmcnt(0)"); Pcheck(a)
    a(f"L_ynop:\ns_load_dwordx16 s[4:19], s[{sWS}:{sWS+1}], s67 glc\ns_add_u32 s29, s29, 1\ns_cmp_gt_u32 s29, 0x8000\ns_cbranch_scc1 L_ydone\ns_waitcnt lgkmcnt(0)")
    for i in range(8): a(f"s_cmp_eq_u64 s[{4+2*i}:{5+2*i}], s[{sEP}:{sEP+1}]\ns_cbranch_scc0 L_yloop")
    a("L_ydone:\ns_waitcnt lgkmcnt(0)")
    a.stamp(7)
    for i in range(4):
        a(f"buffer_load_dwordx4 v18, s[48:51], s65 offen offset:{1024*i} sc1 lds")
        if i < 3: a(f"s_add_u32 s65, s65, {0x10000-1024}")
    YY, T = 48, 64
    a("s_waitcnt vmcnt(0)")
    a.stamp(8)
    for sh in range(2):
        for oh in range(2):
            for i2 in range(2):
                a(f"ds_read_b64_tr_b16 {vr(YY+8*sh+4*oh+2*i2,2)}, v20 offset:{32*sh+2048*oh+256*i2}")
    a("s_waitcnt lgkmcnt(0)")
    for sh in range(2):
        for oh in range(2): a(f"ds_write_b128 v24, {vr(YY+8*sh+4*oh,4)} offset:{16*144*sh+64*oh}")
    for j in range(4): a(f"ds_read_b128 {vr(YY+32+4*j,4)}, v25 offset:{8*144*j}")
    for j in range(4):
        a(f"s_waitcnt lgkmcnt({3-j})")
        unpack(a, YY + 32 + 4 * j, T, 4, 70)
        for e in range(8): a(f"v_mul_f32 v{T+e}, v{T+e}, v{96+8*j+e}")
        pack(a, T, QQ + 4 * j, 8)
        a(f"buffer_store_dwordx4 {vr(QQ+4*j,4)}, v17, s[44:47], s63 offen {FL_OUT}")
        if j < 3: a("s_add_u32 s63, s63, 0x8000")
    a.trace_out()
    a.end()

def desc(name, vgpr, sgpr=102):
    return f""".amdhsa_kernel {name}
  .amdhsa_next_free_vgpr {vgpr}
  .amdhsa_next_free_sgpr {sgpr}
  .amdhsa_accum_offset {(vgpr + 3) // 4 * 4}
  .amdhsa_group_segment_fixed_size 0
  .amdhsa_kernarg_size 96
  .amdhsa_user_sgpr_count 2
  .amdhsa_user_sgpr_kernarg_segment_ptr 1
  .amdhsa_system_sgpr_workgroup_id_x 1
.end_amdhsa_kernel
"""
def main():
    out = open("cdna_kernels/" + NAME + ".s.ref").read().split("; Override launch")[0]
    KS = [KN]
    if AMP:
        out += f"; @launch kernel={KN} grid=(256,1,1) block=(512,1,1) lds={LDS}\n"
        out += "; @launch kernel=kd_kernel grid=(1,1,1) block=(64,1,1) lds=0\n"; KS.append("kd_kernel")
    else:
        out += f"; @launch grid=(256,1,1) block=(512,1,1) lds={LDS}\n"
    out += '.amdgcn_target "amdgcn-amd-amdhsa--gfx950"\n.text\n'
    for k in KS: out += f".globl {k}\n.type {k},@function\n"
    if opt("pal", ""): out += f".p2align {opt('pal', '')}\n"
    out += ".p2align 8\n"
    a = A()
    kernel(a)
    if AMP: kd.kernel_d(a, AMP, WS_ST + _o)
    out += a.text()
    out += '.section .rodata,"a"\n'
    for k in KS: out += ".p2align 6\n" + desc(k, 256)
    path = sys.argv[1] if len(sys.argv) > 1 and not sys.argv[1].startswith("--") else "cdna_kernels/" + NAME + ".s"
    open(path, "w").write(out)
main()
```

```python
import sys, os
sys.path.insert(0, os.path.dirname(os.path.abspath(__file__)))
import kd
NAME = "concat_heads__linear_attn_block__ssm_conv_h3__prompt"
KN = NAME + "_kernel"
MB = 1 << 20
WS_UT, WS_KVP, WS_ZP, WS_FL, WS_O, WS_YT, WS_ST = 0, 8 * MB, 9 * MB, 9 * MB + 0x40000, 4 * MB, 0, 24 * MB
LOG2E, EPS = 0x3FB8AA3B, 0x358637BD
STAMP = "--stamp" in sys.argv
TRACE = "--trace" in sys.argv
def opt(name, default):
    for x in sys.argv:
        if x.startswith("--" + name + "="): return x.split("=", 1)[1]
    return default
FL_U, FL_P, FL_O, FL_Y = [WS_FL + k * 131072 for k in range(4)]
def FA(r, base, grp=2048):
    return f"s_lshr_b32 vcc_lo, s{r}, 6\ns_mul_i32 vcc_lo, vcc_lo, {grp-64}\ns_add_u32 s{r}, s{r}, vcc_lo\ns_add_u32 s{r}, s{r}, {base:#x}"
def FC(r, base, own, grp=2048):
    return FA(r, base, grp) + f"\ns_lshl_b32 vcc_lo, s{own}, 7\ns_add_u32 s{r}, s{r}, vcc_lo"
if opt("ysep", "0") == "1": WS_YT = 10 * MB
FL_KV = opt("kv", "")
FL_H = opt("hf", FL_KV)
FL_Q = opt("qf", FL_KV)
FL_WO = opt("wo", "")
FL_XW = opt("xw", "")
FL_OUT = opt("outst", "sc1")
AMP = opt("amp", "")
KROT = opt("krot", "q8c")
ROT2 = opt("rot2", "0") == "1"
ROTW = opt("rotw", "1") == "1"
G2 = opt("g2", "")
OSC = "" if "nosc1" in G2 else "sc1"
DEPTH = int(opt("depth", "6"))
PSLEEP = opt("psleep", "0")

SST = opt("sst", "0") == "1"
class A:
    def __init__(self): self.l = []
    def __call__(self, s):
        for x in s.strip("\n").split("\n"):
            x = x.strip()
            self.l.append(x if x.endswith(":") else "    " + x)
    jn = 0
    def stamp(self, i):
        J = opt("jitter", "")
        if J and i > 0 and getattr(self, "jon", False):
            n = self.jn; self.jn += 1
            self(f"""
s_cselect_b32 s101, 1, 0
s_memrealtime s[98:99]
s_waitcnt lgkmcnt(0)
s_lshr_b32 s100, s98, 2
s_xor_b32 s100, s100, s2
s_mul_i32 s100, s100, {2654435761 + 2*n + int(J)}
s_add_u32 s100, s100, s3
s_mul_i32 s100, s100, 40503
s_lshr_b32 s100, s100, 29
s_cmp_lt_u32 s100, 6
s_cbranch_scc1 L_j{n}
s_sleep 60
s_cmp_lt_u32 s100, 7
s_cbranch_scc1 L_j{n}
s_sleep 127
L_j{n}:
s_cmp_lg_u32 s101, 0
""")
        if STAMP and not (SST and getattr(self, "jon", False) and 2 <= i <= 6): self(f"s_memrealtime s[{76+2*i}:{77+2*i}]")
    def sst(self, i):
        if STAMP and SST: self(f"s_memrealtime s[{76+2*i}:{77+2*i}]")
    def end(self):
        if STAMP:
            self(f"""
s_memrealtime s[96:97]
s_mov_b64 exec, 1
v_lshrrev_b32 v1, 6, v0
s_waitcnt vmcnt(0) lgkmcnt(0)
s_memrealtime s[98:99]
s_mov_b32 s40, s26
s_mov_b32 s41, s27
s_mov_b32 s42, 0x2000000
s_mov_b32 s43, 0x20000
s_lshl_b32 s100, s2, 3
v_add_u32 v1, s100, v1
v_lshlrev_b32 v1, 5, v1
v_add_u32 v1, {WS_ST}, v1
v_add_u32 v2, 65536, v1
s_waitcnt lgkmcnt(0)
""")
            for i in range(12): self(f"v_mov_b32 v{4+i}, s{76+2*i}")
            self("""
buffer_store_dwordx4 v[4:7], v1, s[40:43], 0 offen
buffer_store_dwordx4 v[8:11], v1, s[40:43], 0 offen offset:16
buffer_store_dwordx4 v[12:15], v2, s[40:43], 0 offen
buffer_store_dwordx4 v[12:15], v2, s[40:43], 0 offen offset:16
""")
        self("s_endpgm")
    tn = 0
    def trace(self):
        if TRACE:
            self(f"s_memrealtime s[96:97]\ns_waitcnt lgkmcnt(0)\nv_writelane_b32 v252, s96, {self.tn}"); self.tn += 1
    def bar(self):
        self.trace(); self("s_barrier"); self.trace()
    def trace_out(self):
        if TRACE: self(f"""
s_lshl_b32 s96, s2, 10
s_add_u32 s96, s96, {WS_ST + 0x100000:#x}
v_lshlrev_b32 v253, 2, v0
v_subrev_u32 v253, 1024, v253
buffer_store_dword v252, v253, s[48:51], s96 offen
""")
    def text(self): return "\n".join(self.l) + "\n"

class VM:
    def __init__(self, a): self.a = a; self.q = []
    def issue(self, tag, n=1): self.q += [tag] * n; assert len(self.q) <= 63, len(self.q)
    def wait(self, tag):
        if tag not in self.q: return
        idx = max(i for i, t in enumerate(self.q) if t == tag)
        n = len(self.q) - 1 - idx
        self.q = self.q[idx + 1:]
        self.a(f"s_waitcnt vmcnt({n})")
    def drained(self): self.q = []

def vr(b, n=1): return f"v{b}" if n == 1 else f"v[{b}:{b+n-1}]"
def sr(b, n=1): return f"s{b}" if n == 1 else f"s[{b}:{b+n-1}]"
def srd(a, d, lo, nbytes):
    a(f"s_mov_b32 s{d}, s{lo}\ns_mov_b32 s{d+1}, s{lo+1}\ns_mov_b32 s{d+2}, {nbytes:#x}\ns_mov_b32 s{d+3}, 0x20000")
def srd_off(a, d, lo, off, nbytes):
    a(f"s_add_u32 s{d}, s{lo}, {off}\ns_addc_u32 s{d+1}, s{lo+1}, 0\ns_mov_b32 s{d+2}, {nbytes:#x}\ns_mov_b32 s{d+3}, 0x20000")
def mfma16(d, x, y, c=None):
    c = vr(d, 4) if c is None else c
    return f"v_mfma_f32_16x16x32_bf16 {vr(d,4)}, {vr(x,4)}, {vr(y,4)}, {c}"
def interleave(a, mf, others, per_gap=1):
    o = list(others)
    for m in mf:
        a(m)
        for _ in range(per_gap):
            if o: a(o.pop(0))
    for x in o: a(x)
def phi_pack(a, src, dst, n, t, sL, sE):
    for i in range(0, n, 8):
        for p in range(4): a(f"v_pk_mul_f32 {vr(t+2*p,2)}, {vr(src+i+2*p,2)}, {sr(sL,2)}")
        for p in range(8): a(f"v_exp_f32_e64 v{t+p}, v{t+p} clamp")
        for p in range(8): a(f"v_max_f32 v{src+i+p}, s{sE}, v{src+i+p}")
        for p in range(4): a(f"v_pk_add_f32 {vr(t+2*p,2)}, {vr(t+2*p,2)}, {vr(src+i+2*p,2)}")
        for p in range(4): a(f"v_cvt_pk_bf16_f32 v{dst+i//2+p}, v{t+2*p}, v{t+2*p+1}")
def phi_pack_np(a, src, dst, n, t, sL, sE):
    for i in range(0, n, 8):
        for p in range(8): a(f"v_mul_f32 v{t+p}, s{sL}, v{src+i+p}")
        for p in range(8): a(f"v_exp_f32_e64 v{t+p}, v{t+p} clamp")
        for p in range(8): a(f"v_max_f32 v{src+i+p}, s{sE}, v{src+i+p}")
        for p in range(8): a(f"v_add_f32 v{t+p}, v{t+p}, v{src+i+p}")
        for p in range(4): a(f"v_cvt_pk_bf16_f32 v{dst+i//2+p}, v{t+2*p}, v{t+2*p+1}")
def phi_keep(a, src, dst, n, t, sL, sE):
    for i in range(0, n, 8):
        for p in range(8): a(f"v_mul_f32 v{t+p}, s{sL}, v{src+i+p}")
        for p in range(8): a(f"v_exp_f32_e64 v{t+p}, v{t+p} clamp")
        for p in range(8): a(f"v_max_f32 v{src+i+p}, s{sE}, v{src+i+p}")
        for p in range(8): a(f"v_add_f32 v{src+i+p}, v{t+p}, v{src+i+p}")
        for p in range(4): a(f"v_cvt_pk_bf16_f32 v{dst+i//2+p}, v{src+i+2*p}, v{src+i+2*p+1}")
def pack(a, src, dst, n):
    for i in range(n // 2): a(f"v_cvt_pk_bf16_f32 v{dst+i}, v{src+2*i}, v{src+2*i+1}")
def unpack(a, src, dst, ndw, smask):
    for i in range(ndw):
        a(f"v_lshlrev_b32 v{dst+2*i}, 16, v{src+i}\nv_and_b32 v{dst+2*i+1}, s{smask}, v{src+i}")

sX, sW, sWO, sQ, sK, sV, sSH, sH, sD, sOUT, sDBG, sWS = 4, 6, 8, 10, 12, 14, 16, 18, 20, 22, 24, 26
sx, sj, srb, shk, shq, sk0, sg_rb, sg_cb, sdb, ssb, sch, sEP = 28, 29, 30, 31, 32, 33, 34, 35, 36, 37, 38, 72
TOUCH = ""
_o = int(opt("wsoff", "0")) * MB
WSOFF = f"s_add_u32 s26, s26, {_o:#x}\ns_addc_u32 s27, s27, 0" if _o else "s_nop 0"
if opt("touch", "0") == "1":
    t = ["s_mov_b32 s52, 0x200000", "s_mov_b32 s53, 0x400000", "s_mov_b32 s54, 0x600000", "s_mov_b32 s55, 0x800000"]
    for base, n in ((sWS, 5), (sOUT, 4), (sQ, 2), (sH, 2), (sWO, 1)):
        for i in range(n): t.append(f"s_load_dword s46, s[{base}:{base+1}], {['0','s52','s53','s54','s55'][i]}")
    TOUCH = "\n".join(t)
STG = 40960
CPY = 4160
UCH = 2 * CPY
U0 = 98304
XCH = U0 + 4 * UCH
HB = XCH + 8192
HP = 2304
HCH = 2 * HP
KVL = HB + 4 * HCH
ZX = KVL + 4096
SYNC = ZX + 512
Y_XC, Y_CW, Y_C2, Y_CU, Y_CY, Y_CD, Y_PQ, Y_EP, Y_W1, Y_CO, Y_UOK, Y_YOK, Y_UB = 0, 96, 20, 28, 32, 36, 40, 56, 60, 64, 72, 76, 80
Y_WM = Y_W1
Y_FR, Y_KD, Y_K2 = 112, 128, 40
LDS = 163840


def spoll(a, lab, soff, sc):
    if opt("poll", "s") == "v":
        a(f"v_and_b32 v254, 15, v4\nv_lshlrev_b32 v254, 2, v254")
        vpoll(a, lab, 254, soff, 255, sc); return
    a(f"""
s_mov_b32 s{sc}, 0
s_branch {lab}_go
{lab}:
s_sleep {PSLEEP}
{lab}_go:
s_load_dwordx16 s[4:19], s[{sWS}:{sWS+1}], s{soff} glc
s_add_u32 s{sc}, s{sc}, 1
s_cmp_gt_u32 s{sc}, 0x8000
s_cbranch_scc1 {lab}_done
s_waitcnt lgkmcnt(0)
""")
    for i in range(8): a(f"s_cmp_eq_u64 s[{4+2*i}:{5+2*i}], s[{sEP}:{sEP+1}]\ns_cbranch_scc0 {lab}")
    a(f"{lab}_done:\ns_waitcnt lgkmcnt(0)")
def vpoll(a, lab, v16x4, soff, vt, sc):
    a(f"""
s_mov_b32 s{sc}, 0
{lab}:
buffer_load_dword v{vt}, v{v16x4}, s[48:51], s{soff} offen sc1
s_waitcnt vmcnt(0)
v_cmp_eq_u32 vcc, s{sEP}, v{vt}
s_add_u32 s{sc}, s{sc}, 1
s_nop 2
s_cmp_eq_u64 vcc, -1
s_cbranch_scc1 {lab}_done
s_sleep {PSLEEP}
s_cmp_lt_u32 s{sc}, 0x4000
s_cbranch_scc1 {lab}
{lab}_done:
""")
def lead_poll(a, lab, soff, sc, st, vY, off, vOne, vT):
    a(f"s_mov_b32 s{sc}, 0\ns_cmp_eq_u32 s3, 0\ns_cbranch_scc0 {lab}_f")
    spoll(a, lab, soff, sc)
    a(f"ds_write_b32 v{vY}, v{vOne} offset:{off}\ns_branch {lab}_f_done")
    a(f"{lab}_f:"); a.l.pop()
    lspin(a, lab + "_f", vY, off, "1", vT, sc, st, init=False, slp=3)
def lspin(a, lab, vaddr, off, target, vt, sc, st, init=True, slp=1):
    if init: a(f"s_mov_b32 s{sc}, 0")
    a(f"""
{lab}:
ds_read_b32 v{vt}, v{vaddr} offset:{off}
s_add_u32 s{sc}, s{sc}, 1
s_waitcnt lgkmcnt(0)
v_readfirstlane_b32 s{st}, v{vt}
s_cmp_gt_u32 s{sc}, 0x40000
s_cbranch_scc1 {lab}_done
s_cmp_ge_u32 s{st}, {target}
s_cbranch_scc1 {lab}_done
s_sleep {slp}
s_branch {lab}
{lab}_done:
""")
def ladd(a, vaddr, off, vone):
    a(f"s_mov_b64 exec, 1\nds_add_u32 v{vaddr}, v{vone} offset:{off}\ns_mov_b64 exec, -1")
def flag_store(a, srdn, soff, vep, vl128, mask="0xffff"):
    a(f"s_mov_b64 exec, {mask}\nbuffer_store_dword v{vep}, v{vl128}, s[{srdn}:{srdn+3}], s{soff} offen sc1\ns_mov_b64 exec, -1")
def wg_flag(a, lab, vaddr, off, vone, vt, st, srdn, soff, vep, vzero):
    a(f"""
s_mov_b64 exec, 1
ds_add_rtn_u32 v{vt}, v{vaddr}, v{vone} offset:{off}
s_waitcnt lgkmcnt(0)
v_readfirstlane_b32 s{st}, v{vt}
s_nop 3
s_cmp_eq_u32 s{st}, 3
s_cbranch_scc0 {lab}
buffer_store_dword v{vep}, v{vzero}, s[{srdn}:{srdn+3}], s{soff} offen sc1
{lab}:
s_mov_b64 exec, -1
""")

def ids2(a):
    if opt("rm", "3") in "12":
        CBMAP = f"s_lshr_b32 vcc_lo, s{sj}, 2\ns_add_u32 vcc_lo, vcc_lo, 3\ns_and_b32 vcc_lo, vcc_lo, 3\ns_and_b32 s{sg_cb}, s{sx}, 4\ns_add_u32 s{sg_cb}, s{sg_cb}, vcc_lo\ns_lshr_b32 vcc_lo, s{sj}, 4\ns_lshl3_add_u32 s{sg_cb}, vcc_lo, s{sg_cb}"
    else: CBMAP = f"s_lshr_b32 s{sg_cb}, s{sx}, 2\ns_lshl_b32 s{sg_cb}, s{sg_cb}, 3\ns_lshr_b32 vcc_lo, s{sj}, 2\ns_add_u32 s{sg_cb}, s{sg_cb}, vcc_lo"
    if opt("rm", "3") == "4": CBMAP += f"\ns_lshr_b32 vcc_lo, 0x820, s{sg_cb}\ns_bitcmp1_b32 vcc_lo, 0\ns_cselect_b32 vcc_lo, 14, 0\ns_xor_b32 s{sg_cb}, s{sg_cb}, vcc_lo"
    RBMAP = f"s_and_b32 s{sg_rb}, s{sx}, 3\ns_lshl_b32 s{sg_rb}, s{sg_rb}, 2\ns_and_b32 vcc_lo, s{sj}, 3\ns_add_u32 s{sg_rb}, s{sg_rb}, vcc_lo"
    if opt("gm", "0") == "1":
        RBMAP = f"s_mov_b32 s{sg_rb}, s{srb}"
        CBMAP = f"s_add_u32 s{sg_cb}, s{shq}, 2\ns_and_b32 s{sg_cb}, s{sg_cb}, 3\ns_and_b32 vcc_lo, s{shq}, 12\ns_add_u32 s{sg_cb}, s{sg_cb}, vcc_lo"
    if opt("gm", "0") == "2":
        RBMAP = f"s_and_b32 vcc_lo, s{sj}, 1\ns_lshl1_add_u32 s{sg_rb}, s{sx}, vcc_lo"
        CBMAP = f"s_lshr_b32 s{sg_cb}, s{sj}, 1"
    a(f"""
{RBMAP}
{CBMAP}
s_and_b32 s{sdb}, s{sj}, 15
s_lshr_b32 s{ssb}, s{sj}, 4
s_lshl_b32 vcc_lo, s{sx}, 1
s_add_u32 s{ssb}, s{ssb}, vcc_lo
s_lshl_b32 s{sch}, s{sx}, 5
s_add_u32 s{sch}, s{sch}, s{sj}
s_lshl_b32 s{sch}, s{sch}, 2
""")

def kernel(a):
    a(f"""
{KN}:
s_cmp_ge_u32 s2, 256
s_cbranch_scc1 L_exit
s_load_dwordx16 s[4:19], s[0:1], 0
s_load_dwordx8 s[20:27], s[0:1], 64
s_getpc_b64 s[48:49]
L_pc:
s_and_b32 s45, s2, 24
s_lshl_b32 s45, s45, 4
v_lshl_add_u32 v2, v0, 9, s45
v_cmp_gt_u32 vcc, L_code_end-L_pc-4, v2
s_and_saveexec_b64 s[50:51], vcc
s_cbranch_execz L_pf
global_load_dword v252, v2, s[48:49]
L_pf:
s_mov_b64 exec, s[50:51]
""")
    for i in range(10): a.stamp(i)
    a(f"""
v_lshrrev_b32 v1, 6, v0
v_and_b32 v4, 63, v0
v_readfirstlane_b32 s3, v1
v_lshlrev_b32 v5, 4, v4
s_and_b32 s{sx}, s2, 7
s_lshr_b32 s{sj}, s2, 3
s_and_b32 s{srb}, s{sx}, 1
s_lshl_b32 s{srb}, s{srb}, 3
s_and_b32 s40, s{sj}, 7
s_add_u32 s{srb}, s{srb}, s40
s_lshr_b32 s40, s{sx}, 1
""")
    if opt("rm", "3") in "134":
        a(f"""
s_and_b32 s41, s{sx}, 4
s_and_b32 s42, s{sx}, 2
s_lshl2_add_u32 s41, s42, s41
s_lshr_b32 s42, s{sj}, 3
s_add_u32 s{shq}, s41, s42
s_add_u32 s42, s42, 3
s_and_b32 s42, s42, 3
s_add_u32 s{shk}, s41, s42
""")
    else: a(f"""
s_lshl_b32 s41, s40, 2
s_lshr_b32 s42, s{sj}, 3
s_add_u32 s{shk}, s41, s42
s_add_u32 s42, s42, 1
s_and_b32 s42, s42, 3
s_add_u32 s{shq}, s41, s42
""")
    if KROT.startswith("f"):
        a_, b_, c_, d_ = [int(t) for t in KROT[1:].split("_")]
        a(f"s_mul_i32 s{sk0}, s{srb}, {a_}\ns_mul_i32 s41, s{shk}, {b_}\ns_add_u32 s{sk0}, s{sk0}, s41\ns_and_b32 s41, s{sx}, 1\ns_mul_i32 s41, s41, {c_}\ns_add_u32 s{sk0}, s{sk0}, s41\ns_mul_i32 s41, s40, {d_}\ns_add_u32 s{sk0}, s{sk0}, s41\ns_and_b32 s{sk0}, s{sk0}, 15")
    elif KROT == "q8":
        a(f"""
s_lshl_b32 s{sk0}, s40, 1
s_and_b32 s41, s{shk}, 1
s_add_u32 s{sk0}, s{sk0}, s41
s_lshl_b32 s41, s{sx}, 2
s_add_u32 s{sk0}, s{sk0}, s41
s_and_b32 s41, s{srb}, 3
s_add_u32 s{sk0}, s{sk0}, s41
s_and_b32 s{sk0}, s{sk0}, 7
s_lshl_b32 s{sk0}, s{sk0}, 1
""")
    elif KROT.startswith("g"):
        a_, b_, c_, d_, e_ = [int(t) for t in KROT[1:].split("_")]
        a(f"s_and_b32 s41, s{srb}, 1\ns_mul_i32 s{sk0}, s41, {a_}\ns_bfe_u32 s41, s{srb}, 0x10001\ns_mul_i32 s41, s41, {b_}\ns_add_u32 s{sk0}, s{sk0}, s41\ns_and_b32 s41, s{shk}, 1\ns_mul_i32 s41, s41, {c_}\ns_add_u32 s{sk0}, s{sk0}, s41")
        a(f"s_and_b32 s41, s{sx}, 1\ns_mul_i32 s41, s41, {d_}\ns_add_u32 s{sk0}, s{sk0}, s41\ns_mul_i32 s41, s40, {e_}\ns_add_u32 s{sk0}, s{sk0}, s41\ns_and_b32 s{sk0}, s{sk0}, 15")
    elif KROT in ("q8h", "q8i"):
        a(f"s_and_b32 s41, s{shk}, 1\ns_lshl_b32 s41, s41, 1\ns_sub_u32 s42, 14, s41\ns_bitcmp{1 if KROT == 'q8h' else 0}_b32 s{srb}, 0\ns_cselect_b32 s{sk0}, s42, s41")
        a(f"s_and_b32 s41, s{srb}, 2\ns_lshl2_add_u32 s{sk0}, s41, s{sk0}\ns_and_b32 s41, s{sx}, 1\ns_add_u32 s41, s41, s40\ns_lshl2_add_u32 s{sk0}, s41, s{sk0}\ns_and_b32 s{sk0}, s{sk0}, 15")
    elif KROT in ("q8e", "q8f", "q8g"):
        a(f"s_and_b32 s41, s{srb}, 1\ns_lshl_b32 s{sk0}, s41, 1\ns_and_b32 s41, s{srb}, 2\ns_lshl_b32 s41, s41, 2\ns_add_u32 s{sk0}, s{sk0}, s41\ns_and_b32 s41, s{sx}, 1\ns_lshl_b32 s41, s41, 2\ns_add_u32 s{sk0}, s{sk0}, s41")
        if KROT == "q8e": a(f"s_and_b32 s41, s{shk}, 1\ns_lshl_b32 s41, s41, 1\ns_sub_u32 s{sk0}, s{sk0}, s41")
        elif KROT == "q8f": a(f"s_and_b32 s41, s{shk}, 2\ns_sub_u32 s{sk0}, s{sk0}, s41")
        else: a(f"s_add_u32 s41, s{shk}, 1\ns_and_b32 s41, s41, 3\ns_add_u32 s{sk0}, s{sk0}, s41")
        a(f"s_lshl_b32 s41, s40, 2\ns_add_u32 s{sk0}, s{sk0}, s41\ns_and_b32 s{sk0}, s{sk0}, 15")
    elif KROT in ("q8b", "q8c", "q8d"):
        if KROT == "q8c": a(f"s_and_b32 s41, s{srb}, 1\ns_lshl_b32 s{sk0}, s41, 1\ns_and_b32 s41, s{srb}, 2\ns_lshl_b32 s41, s41, 2\ns_add_u32 s{sk0}, s{sk0}, s41\ns_and_b32 s41, s{sx}, 1\ns_lshl_b32 s41, s41, 2\ns_add_u32 s{sk0}, s{sk0}, s41")
        else: a(f"s_and_b32 s41, s{srb}, 3\ns_lshl_b32 s{sk0}, s41, 2\ns_and_b32 s41, s{sx}, 1\ns_lshl_b32 s41, s41, 1\ns_add_u32 s{sk0}, s{sk0}, s41")
        if KROT == "q8b": a(f"s_and_b32 s41, s{shk}, 1\ns_lshl_b32 s41, s41, 3\ns_add_u32 s{sk0}, s{sk0}, s41\ns_lshl_b32 s41, s40, 1\ns_add_u32 s{sk0}, s{sk0}, s41")
        else: a(f"s_and_b32 s41, s{shk}, 1\ns_lshl_b32 s41, s41, 1\ns_add_u32 s{sk0}, s{sk0}, s41\ns_lshl_b32 s41, s40, 2\ns_add_u32 s{sk0}, s{sk0}, s41")
        a(f"s_and_b32 s{sk0}, s{sk0}, 15")
    elif KROT == "q4c":
        a(f"""
s_and_b32 s41, s{sx}, 1
s_add_u32 s{sk0}, s40, s41
s_lshl_b32 s41, s{srb}, 1
s_add_u32 s{sk0}, s{sk0}, s41
s_and_b32 s{sk0}, s{sk0}, 3
s_lshl_b32 s{sk0}, s{sk0}, 2
""")
        SL = opt("sl", "0")
        if SL != "0":
            a(f"s_and_b32 s41, s{shk}, {7 if SL == '1' else 6}\ns_cmp_eq_u32 s41, {3 if SL == '1' else 2}\ns_cselect_b32 s41, 6, 0\ns_and_b32 s41, s41, s{srb}\ns_sub_u32 s{sk0}, s{sk0}, s41\ns_and_b32 s{sk0}, s{sk0}, 15")
    elif KROT == "q4":
        a(f"""
s_lshl_b32 s41, s{sx}, 1
s_add_u32 s{sk0}, s40, s41
s_and_b32 s41, s{srb}, 1
s_add_u32 s{sk0}, s{sk0}, s41
s_and_b32 s{sk0}, s{sk0}, 3
s_lshl_b32 s{sk0}, s{sk0}, 2
""")
    elif KROT == "q2":
        a(f"s_xor_b32 s41, s{sx}, s40\ns_and_b32 s41, s41, 1\ns_lshl_b32 s{sk0}, s41, 3")
    elif KROT == "q3":
        a(f"""
s_and_b32 s41, s{sx}, 1
s_lshl_b32 s41, s41, 1
s_add_u32 s{sk0}, s40, s41
s_and_b32 s41, s{srb}, 1
s_add_u32 s{sk0}, s{sk0}, s41
s_mul_i32 s41, s{sk0}, 11
s_lshr_b32 s41, s41, 5
s_mul_i32 s41, s41, 3
s_sub_u32 s{sk0}, s{sk0}, s41
s_mul_i32 s{sk0}, s{sk0}, 11
s_lshr_b32 s{sk0}, s{sk0}, 1
""")
    else: a(f"s_mov_b32 s{sk0}, 0")
    a.jon = True
    a("s_cmp_lt_u32 s3, 4\ns_cbranch_scc1 L_comp")
    aux(a)
    compute(a)
    a("L_exit:\ns_endpgm\nL_code_end:")

def inter2(a, mf, others, per=2):
    o = list(others)
    for m in mf:
        a(m)
        for _ in range(per):
            if o: a(o.pop(0))
    for x in o: a(x)
def inter3(a, mf, l1, n1, l2, n2):
    l1 = list(l1); l2 = list(l2)
    for m in mf:
        a(m)
        for _ in range(n2):
            if l2: a(l2.pop(0))
        for _ in range(n1):
            if l1: a(l1.pop(0))
    assert not l1 and not l2
class L:
    def __init__(s): s.l = []
    def __call__(s, t): s.l += [x.strip() for x in t.strip("\n").split("\n")]
def maskbuild(a, sm, st, lo=4, step=2):
    a(f"s_mov_b32 s{sm}, 0")
    for i in range(8): a(f"s_cmp_eq_u64 s[{lo+2*i}:{lo+1+2*i}], s[{sEP}:{sEP+1}]\ns_cselect_b32 s{st}, {1 << (step*i):#x}, 0\ns_or_b32 s{sm}, s{sm}, s{st}")

def compute(a):
    vAb, vA, vBb, vB = 8, 10, 12, 14
    vY, vPW = 20, 21
    X, Y, ACC = 24, 64, 104
    vOne, vZero, vEp, vT, vL128 = 232, 233, 234, 235, 254
    QT = lambda dt, mt: ACC + 4 * (mt * 2 + dt)
    KK = lambda mt, nt: ACC + 32 + 4 * ((nt * 2 + (mt >> 1)) * 2 + (mt & 1))
    VV = lambda mt, nt: ACC + 64 + 4 * ((nt * 2 + (mt >> 1)) * 2 + (mt & 1))
    GATE = opt("gate", "kv")
    a("L_comp:")
    a.sst(2)
    KR, WR, KF, WF, TM, VF, UT = 200, 242, 24, 68, 84, 56, 200
    VR = [222, 224, 226, 228, 230, 236, 238, 240]
    vP0, vP1, vP2, vTW = 16, 17, 18, 19
    ids2(a)
    a(f"""
s_lshl_b32 s45, s{ssb}, 18
s_lshl_b32 s46, s3, 16
s_add_u32 s45, s45, s46
s_lshl_b32 s46, s{sdb}, 7
s_add_u32 s45, s45, s46
v_lshrrev_b32 v2, 4, v4
v_and_b32 v1, 15, v4
v_lshlrev_b32 v3, 3, v1
v_lshl_add_u32 v{vP0}, v2, 14, v3
v_add_u32 v{vP0}, s45, v{vP0}
v_subrev_u32 v{vP1}, 6144, v{vP0}
s_movk_i32 s57, 4096
s_movk_i32 s58, 8192
s_movk_i32 s59, 12288
s_mov_b32 s62, {4*MB:#x}
s_mov_b32 s63, 0x20000
s_mov_b32 s66, {4*MB:#x}
s_mov_b32 s67, 0x20000
s_mov_b32 s70, 8192
s_mov_b32 s71, 0x20000
v_lshlrev_b32 v{vP2}, 5, v1
s_lshl_b32 s46, s{sdb}, 9
v_add_u32 v{vP2}, s46, v{vP2}
v_sub_u32 v3, 3, v2
s_lshl_b32 s45, s3, 2
s_sub_u32 s45, 12, s45
v_add_u32 v3, s45, v3
v_and_b32 v6, 7, v4
v_xor_b32 v3, v3, v6
v_lshlrev_b32 v3, 4, v3
v_lshl_add_u32 v3, v1, 10, v3
v_add_u32 v{vTW}, {HB}, v3
s_and_b32 s40, s3, 1
s_lshr_b32 s41, s3, 1
v_bfe_u32 v3, v4, 1, 3
v_xor_b32 v3, v2, v3
v_lshlrev_b32 v3, 4, v3
v_lshl_add_u32 v3, v1, 7, v3
s_lshl_b32 s45, s40, 13
v_add_u32 v{vAb}, s45, v3
v_xor_b32 v{vAb+1}, 64, v{vAb}
v_bfe_u32 v22, v4, 2, 2
v_lshl_add_u32 v3, v2, 3, v22
v_lshlrev_b32 v3, 7, v3
v_and_b32 v7, 3, v4
v_lshlrev_b32 v6, 3, v7
s_lshl_b32 s45, s41, 6
v_add_u32 v6, s45, v6
v_bfe_u32 v7, v4, 3, 1
v_lshlrev_b32 v7, 6, v7
v_xor_b32 v6, v6, v7
v_bfe_u32 v23, v4, 4, 1
v_lshlrev_b32 v7, 5, v23
v_xor_b32 v6, v6, v7
v_add_u32 v3, v3, v6
v_add_u32 v{vBb}, 0x4000, v3
v_xor_b32 v{vBb+1}, 32, v{vBb}
v_mov_b32 v{vB}, v{vBb}
v_mov_b32 v{vB+1}, v{vBb+1}
v_mov_b32 v{vA}, v{vAb}
v_mov_b32 v{vA+1}, v{vAb+1}
s_lshl_b32 s39, s40, 5
v_lshlrev_b32 v{vL128}, 7, v4
v_mov_b32 v{vY}, {SYNC}
v_mov_b32 v{vOne}, 1
v_mov_b32 v{vZero}, 0
v_lshlrev_b32 v6, 2, v4
v_add_u32 v6, {SYNC}, v6
ds_write_b32 v6, v{vZero}
s_lshl_b32 s45, s3, 2
v_add_u32 v{vPW}, s45, v{vY}
s_mov_b32 s53, 0
s_mov_b32 s56, 0xffff0000
s_waitcnt lgkmcnt(0)
{WSOFF}
s_mov_b64 s[60:61], s[{sK}:{sK+1}]
s_mov_b64 s[64:65], s[{sV}:{sV+1}]
s_mov_b64 s[68:69], s[{sSH}:{sSH+1}]
""")
    a.sst(3); a("s_barrier"); a.sst(4)
    so = ["0", "s57", "s58", "s59"]
    for r in range(3): a(f"buffer_load_dwordx2 {vr(KR+2*r,2)}, v{vP1}, s[60:63], {so[r//2]} offen offset:{2048*(r%2)} {FL_KV}")
    for r in range(8): a(f"buffer_load_dwordx2 {vr(KR+6+2*r,2)}, v{vP0}, s[60:63], {so[r//2]} offen offset:{2048*(r%2)} {FL_KV}")
    for i in range(2): a(f"buffer_load_dwordx4 {vr(WR+4*i,4)}, v{vP2}, s[68:71], 0 offen offset:{16*i}")
    for r in range(8): a(f"buffer_load_dwordx2 {vr(VR[r],2)}, v{vP0}, s[64:67], {so[r//2]} offen offset:{2048*(r%2)} {FL_KV}")
    a(f"v_xor_b32 v17, s39, v{vB}\nv_xor_b32 v18, s39, v{vB+1}")
    a.sst(5)
    a("s_barrier")
    a.stamp(1)
    A0, A1, BB = 24, 200, 56
    NORD = [2, 3, 4, 5, 0, 1]
    def rdA(A): return [f"ds_read_b128 {vr(A+8*mt+4*k2,4)}, v{vA+k2} offset:{2048*mt}" for mt in range(4) for k2 in range(2)]
    vV, BQ2 = 17, 236
    def rdB(g, dst=None):
        n = NORD[g]; dst = BB + 8 * g if dst is None else dst
        return [f"ds_read_b64_tr_b16 {vr(dst+4*k2+2*i2,2)}, v{(vV if n >= 4 else vB)+(n&1)} offset:{(n//2)*8192+k2*4096+i2*512}" for k2 in range(2) for i2 in range(2)]
    def grp(A, g, zero=False, B=None):
        r = []; B = BB + 8 * g if B is None else B
        for mt in range(4):
            for k2 in range(2):
                c = "0" if zero and k2 == 0 else None
                x, y = A + 8 * mt + 4 * k2, B + 4 * k2
                if g < 2: r.append(mfma16(KK(mt, g), x, y, c))
                elif g < 4: r.append(mfma16(VV(mt, g - 2), x, y, c))
                else: r.append(mfma16(QT(g - 4, mt), y, x, c))
        return r
    advs = [f"s_add_u32 s52, s52, {STG}", f"s_cmp_eq_u32 s52, {3*STG}", "s_cselect_b32 s52, 0, s52"]
    advv = [f"v_add_u32 v{vA}, s52, v{vAb}", f"v_add_u32 v{vA+1}, s52, v{vAb+1}", f"v_add_u32 v{vB}, s52, v{vBb}", f"v_add_u32 v{vB+1}, s52, v{vBb+1}",
            f"v_xor_b32 v{vV}, s39, v{vB}", f"v_xor_b32 v{vV+1}, s39, v{vB+1}"]
    for r in rdA(A0)[:2] + rdB(0) + rdA(A0)[2:] + rdB(1): a(r)
    a("s_mov_b32 s52, 0")
    w = L(); srd(w, 60, sWS, 32 * MB); srd(w, 68, sOUT, 8 * MB)
    vTR, vUS, TD = [1, 2, 3, 6], 16, 236
    UF = int(opt("uf", "2"))
    w(f"""
v_lshlrev_b32 v3, 12, v2
v_lshl_add_u32 v{vUS}, v1, 4, v3
s_lshl_b32 s45, s{sdb}, 18
s_lshl_b32 s46, s3, 16
s_add_u32 s45, s45, s46
s_lshl_b32 s46, s{ssb}, 8
s_sub_u32 s45, s45, s46
s_add_u32 s45, s45, {WS_UT + 3840}
v_add_u32 v{vUS}, s45, v{vUS}
s_lshl_b32 s45, s3, 12
s_add_u32 s45, s45, {HB}
v_add_u32 v1, s45, v5
s_lshl_b32 s45, s40, 6
v_xor_b32 v1, s45, v1
v_xor_b32 v2, 16, v1
v_xor_b32 v3, 32, v1
v_xor_b32 v6, 48, v1
s_movk_i32 s57, 0x4000
s_mov_b32 s58, 0x8000
s_mov_b32 s59, 0xc000
s_lshl_b32 s43, s{sdb}, 2
s_add_u32 s43, s43, s3
s_lshl_b32 s43, s43, 4
s_add_u32 s43, s43, s{ssb}
s_lshl_b32 s43, s43, 2
{FA(43, FL_U)}
s_movk_i32 s42, {1 + (1 << UF)}
""")
    a("s_waitcnt lgkmcnt(10)")
    m = grp(A0, 0, True)
    a(m[0]); a(m[1])
    for x in rdB(2): a(x)
    a("s_waitcnt lgkmcnt(8)")
    interleave(a, m[2:], rdB(3) + rdB(4)[:2])
    a("s_waitcnt lgkmcnt(10)")
    interleave(a, grp(A0, 1, True), rdB(4)[2:] + rdB(5))
    a("s_waitcnt lgkmcnt(0)")
    interleave(a, grp(A0, 2, True) + grp(A0, 3, True) + grp(A0, 4, True) + grp(A0, 5, True), advs + advv + w.l, 2)
    a("s_waitcnt vmcnt(10)")
    a.sst(6)
    unpack(a, KR, KF, 22, 56)
    a("s_waitcnt vmcnt(8)")
    for p in range(4):
        a(f"v_lshlrev_b32 v{WF+p}, 16, v{WR+2*p}\nv_and_b32 v{WF+4+p}, s56, v{WR+2*p}")
        a(f"v_lshlrev_b32 v{WF+8+p}, 16, v{WR+2*p+1}\nv_and_b32 v{WF+12+p}, s56, v{WR+2*p+1}")
    for i0 in range(0, 8, 2):
        ch = [(i, h) for i in (i0, i0 + 1) for h in range(2)]
        for c, (i, h) in enumerate(ch): a(f"v_pk_mul_f32 {vr(TM+2*c,2)}, {vr(KF+4*(i+3)+2*h,2)}, {vr(WF+2*h,2)}")
        for t in (2, 1):
            for c, (i, h) in enumerate(ch): a(f"v_pk_fma_f32 {vr(TM+2*c,2)}, {vr(KF+4*(i+t)+2*h,2)}, {vr(WF+4*(3-t)+2*h,2)}, {vr(TM+2*c,2)}")
        for c, (i, h) in enumerate(ch): a(f"v_pk_fma_f32 {vr(KF+4*i+2*h,2)}, {vr(KF+4*i+2*h,2)}, {vr(WF+12+2*h,2)}, {vr(TM+2*c,2)}")
    a("s_waitcnt vmcnt(0)")
    for r in range(8): unpack(a, VR[r], VF + 4 * r, 2, 56)
    for h in range(2):
        for i in range(8): a(f"v_pk_mul_f32 {vr(KF+4*i+2*h,2)}, {vr(KF+4*i+2*h,2)}, {vr(VF+4*i+2*h,2)}")
        for e in (2 * h, 2 * h + 1):
            for d in range(4): a(f"v_cvt_pk_bf16_f32 v{UT+4*e+d}, v{KF+4*(7-2*d)+e}, v{KF+4*(6-2*d)+e}")
            a(f"ds_write_b128 v{vTW}, {vr(UT+4*e,4)} offset:{256*e}")
    a("s_waitcnt lgkmcnt(0)\ns_barrier")
    for r in rdA(A0)[:2] + rdB(0) + rdA(A0)[2:]: a(r)
    a("s_waitcnt lgkmcnt(6)")
    for r in rdB(1) + rdB(2): a(r)
    a("s_waitcnt lgkmcnt(8)")
    for r in rdB(3) + rdB(4): a(r)
    a("s_waitcnt lgkmcnt(8)")
    for e in range(4): a(f"ds_read_b128 {vr(TD+4*e,4)}, v{vTR[e]} offset:{1024*e}")
    a("s_branch L_loop1\nL_side:\ns_cmp_eq_u32 s53, 0\ns_cbranch_scc0 L_side2")
    for e in range(4): a(f"buffer_store_dwordx4 {vr(TD+4*e,4)}, v{vUS}, s[60:63], {['0','s57','s58','s59'][e]} offen sc1")
    a(f"""
s_branch L_back
L_side2:
v_readfirstlane_b32 s{sEP}, v{vEp}
s_mov_b32 s45, 0
s_waitcnt vmcnt(0)
s_cmp_lg_u32 s{sEP}, 0
s_cbranch_scc1 L_cepok
L_cep:
ds_read_b32 v{vEp}, v{vY} offset:{Y_EP}
s_add_u32 s45, s45, 1
s_waitcnt lgkmcnt(0)
v_readfirstlane_b32 s{sEP}, v{vEp}
s_cmp_gt_u32 s45, 0x40000
s_cbranch_scc1 L_cepok
s_cmp_eq_u32 s{sEP}, 0
s_cbranch_scc1 L_cep
L_cepok:
s_mov_b32 s{sEP+1}, s{sEP}
""")
    flag_store(a, 60, 43, vEp, vL128)
    a(f"""
s_branch L_back
{opt("lal", "")}
L_loop1:
""")
    def stage(A, An, first, plain=False):
        interleave(a, grp(A, 0), rdB(5) + ["\n".join(advs)] + ["\n".join(advv[:2]), "\n".join(advv[2:4]), "\n".join(advv[4:])])
        m = grp(A, 1)
        a("s_waitcnt lgkmcnt(0)"); a(m[0]); a("s_barrier")
        interleave(a, m[1:], rdB(0) + rdA(An)[:3])
        interleave(a, grp(A, 2), rdB(1) + rdA(An)[3:7])
        interleave(a, grp(A, 3), rdB(2) + rdA(An)[7:] + (["s_bitcmp1_b32 s42, s53", "s_cbranch_scc1 L_side\nL_back:"] if first and not plain else []))
        interleave(a, grp(A, 4), rdB(3) + ([f"ds_read_b32 v{vEp}, v{vY} offset:{Y_EP}"] if first and not plain else []))
        interleave(a, grp(A, 5), ["s_waitcnt lgkmcnt(4)\n" + rdB(4)[0]] + rdB(4)[1:] + ([] if first else ["s_add_u32 s53, s53, 1", "s_cmp_lt_u32 s53, 6"]))
    stage(A0, A1, True); stage(A1, A0, False)
    a("s_cbranch_scc1 L_loop1")
    stage(A0, A1, True, True)
    PK, PV, ONES, T, KV, Z, R, PQ = ACC + 32, ACC + 64, ACC + 56, 56, 72, 64, ACC + 80, ACC
    pre = [f"s_mov_b32 s54, {LOG2E:#x}", f"s_mov_b32 s55, {LOG2E:#x}", f"s_mov_b32 s56, {EPS:#x}",
           f"s_lshl_b32 s57, s{shk}, 2", "s_add_u32 s57, s57, s3", "s_lshl_b32 s57, s57, 4", f"s_add_u32 s57, s57, s{srb}",
           "s_lshl_b32 s58, s57, 10", f"s_add_u32 s58, s58, {WS_KVP:#x}", "s_lshr_b32 s59, s57, 4", "s_lshl_b32 s59, s59, 11",
           f"s_lshl_b32 s45, s{srb}, 4", "s_add_u32 s59, s59, s45", f"s_add_u32 s59, s59, {WS_ZP:#x}", "s_lshr_b32 s57, s57, 4", "s_lshl_b32 s57, s57, 11", f"s_add_u32 s57, s57, {FL_P:#x}"]
    PROT = opt("prot", "1") == "1"
    pre += ["v_and_b32 v19, 7, v4", f"v_lshlrev_b32 v19, {1 if PROT else 4}, v19", f"v_sub_u32 v19, s{srb}, v19", "v_and_b32 v19, 15, v19", f"v_lshl_add_u32 v19, v19, 2, v{vL128}"]
    pre += ["s_lshl_b32 s45, s3, 11", f"s_add_u32 s45, s45, {XCH}", "v_add_u32 v6, s45, v5", "v_xor_b32 v7, 2048, v6", "s_lshl_b32 s45, s3, 7", f"s_add_u32 s45, s45, {ZX}",
            "v_and_b32 v3, 0x30, v4", "v_add_u32 v16, s45, v3", "v_xor_b32 v253, 128, v16", f"v_xor_b32 v255, 4, v{vPW}"]
    interleave(a, grp(A1, 0), rdB(5) + ["\n".join(advs)] + ["\n".join(advv[:2]), "\n".join(advv[2:4]), "\n".join(advv[4:])])
    m = grp(A1, 1)
    a("s_waitcnt lgkmcnt(0)"); a(m[0]); a("s_barrier")
    interleave(a, m[1:], rdB(0) + rdA(A0)[:3])
    inter3(a, grp(A1, 2) + grp(A1, 3), pre, 3, rdB(1) + rdA(A0)[3:8] + rdB(2), 1)
    a("s_waitcnt lgkmcnt(4)")
    interleave(a, grp(A0, 0) + grp(A0, 1)[:2], rdB(3) + rdB(4, BQ2) + rdB(5, BQ2 + 8), 2)
    a(f"s_waitcnt lgkmcnt(0)\nds_write_b32 v{vPW}, v{vOne} offset:{Y_FR}")
    w = L(); phi_pack_np(w, PK, PK, 16, T, 54, 56)
    P1 = opt("p1", "0") == "1"
    if P1: phi_pack_np(w, PK + 16, PK + 16, 16, T, 54, 56)
    inter2(a, grp(A0, 1)[2:] + grp(A0, 2) + grp(A0, 3), w.l, int(opt("kfi", "3")))
    a.stamp(2)
    a(f"s_setprio {opt('cprio', '2')}")
    pk1 = phi_pack if GATE != "none" else phi_pack_np
    pack(a, PV, PV, 32)
    ON0 = ACC + 40
    for i in range(4): a(f"v_mov_b32 v{ON0+i}, 0x3f803f80")
    for dt in range(2):
        if dt == 1:
            w = L(); pk1(w, PK + 16, PK + 16, 16, T, 54, 56)
            k = len(w.l) // 2
            for x in w.l[:k]: a(x)
            a(f"ds_write_b128 v6, {vr(KV+8,4)}\nds_write_b128 v16, {vr(Z,4)}")
            for x in w.l[k:]: a(x)
        a("s_nop 1")
        for p in range(2):
            c = "0" if p == 0 else None
            a(mfma16(KV + 4 * (2 + dt), PK + 16 * dt + 4 * p, PV + 8 + 4 * p, c))
            a(mfma16(Z + 4 * dt, PK + 16 * dt + 4 * p, ON0, c))
            a(mfma16(KV + 4 * dt, PK + 16 * dt + 4 * p, PV + 4 * p, c))
    KST = opt("kst", "0") == "1"
    if KST: a.stamp(7)
    for i in range(4): a(f"v_mov_b32 v{ONES+i}, 0x3f803f80")
    a(f"s_nop 1\nds_write_b128 v6, {vr(KV+12,4)} offset:1024\nds_write_b128 v16, {vr(Z+4,4)} offset:64")
    a(f"""
ds_write_b32 v{vPW}, v{vOne} offset:{Y_XC}
s_mov_b32 s45, 0
L_xspin:
ds_read_b32 v{vT}, v255 offset:{Y_XC}
ds_read_b128 {vr(R,4)}, v7
ds_read_b128 {vr(R+4,4)}, v7 offset:1024
ds_read_b128 {vr(R+8,4)}, v253
ds_read_b128 {vr(R+12,4)}, v253 offset:64
s_add_u32 s45, s45, 1
s_waitcnt lgkmcnt(4)
v_readfirstlane_b32 s46, v{vT}
s_cmp_gt_u32 s45, 0x40000
s_cbranch_scc1 L_xdone
s_cmp_eq_u32 s46, 0
s_cbranch_scc1 L_xspin
L_xdone:
s_waitcnt lgkmcnt(2)
""")
    if KST: a.stamp(8)
    def add8(d, r):
        if GATE != "none":
            for i in range(4): a(f"v_pk_add_f32 {vr(d+2*i,2)}, {vr(d+2*i,2)}, {vr(r+2*i,2)}")
        else:
            for i in range(8): a(f"v_add_f32 v{d+i}, v{d+i}, v{r+i}")
    add8(KV, R)
    pack(a, KV, KV + 8, 8)
    a(f"buffer_store_dwordx4 {vr(KV+8,4)}, v5, s[60:63], s58 offen sc1")
    a("s_waitcnt lgkmcnt(0)")
    add8(Z, R + 8)
    pack(a, Z, KV + 12, 8)
    a("s_mov_b32 exec_lo, 0x10001\ns_mov_b32 exec_hi, 0x10001")
    a(f"buffer_store_dwordx4 {vr(KV+12,4)}, v5, s[60:63], s59 offen sc1")
    a("s_mov_b64 exec, -1")
    if GATE == "kv": a(f"ds_write_b32 v{vPW}, v{vOne} offset:{Y_KD}")
    a.stamp(3)
    PP, AC, ZZ, SEL, D1, B2, DN, EQ, KO, KP = 24, 88, 96, 8, 184, 136, 212, 168, 172, 176
    T = 204
    PS = opt("ps", "0") == "1"
    if PS: PQ = 180
    su = L()
    su(f"""
s_lshl_b32 s47, s{shq}, 1
s_add_u32 s47, s47, s41
s_lshl_b32 s44, s{shq}, 2
s_add_u32 s44, s44, s3
s_lshl_b32 s58, s44, 14
s_add_u32 s58, s58, {WS_KVP:#x}
s_lshl_b32 s59, s44, 11
s_add_u32 s59, s59, {WS_ZP:#x}
s_lshl_b32 s44, s44, 6
{FC(44, FL_P, srb)}
s_lshl_b32 s45, s41, 2
v_add_u32 v14, s45, v{vY}
v_mov_b32 v6, 0x3f80
v_and_b32 v7, 1, v4
v_lshlrev_b32 v7, 4, v7
v_lshlrev_b32 v6, v7, v6
v_lshrrev_b32 v2, 4, v4
v_cmp_eq_u32 vcc, v2, v22
v_bfe_u32 v7, v4, 1, 1
v_mov_b32 v{SEL}, 0
v_cndmask_b32 v6, 0, v6, vcc
v_cmp_eq_u32 vcc, 0, v7
v_mov_b32 v{SEL+1}, 0
v_mov_b32 v{SEL+4}, 0
v_cndmask_b32 v{SEL+2}, 0, v6, vcc
v_cndmask_b32 v{SEL+3}, v6, v{vZero}, vcc
v_mov_b32 v{SEL+5}, 0
s_lshl_b32 s45, s3, 10
s_add_u32 s45, s45, {KVL}
v_add_u32 v6, s45, v5
s_xor_b32 s45, s3, 1
s_lshl_b32 s45, s45, 10
s_add_u32 s45, s45, {KVL}
v_add_u32 v7, s45, v5
s_lshl_b32 s48, s{srb}, 3
s_lshl_b32 s45, s40, 2
s_add_u32 s48, s48, s45
s_lshl_b32 s48, s48, 15
s_lshl_b32 s45, s47, 10
s_add_u32 s48, s48, s45
s_add_u32 s48, s48, {WS_O:#x}
s_lshl_b32 s49, s{srb}, 1
s_add_u32 s49, s49, s40
s_lshl_b32 s49, s49, 7
s_lshl_b32 s45, s47, 2
s_add_u32 s49, s49, s45
{FA(49, FL_O)}
s_mov_b32 s50, 0
s_mov_b32 s51, 0
s_mov_b32 s53, 0
s_mov_b32 s46, 0
s_and_b32 s43, s{srb}, {7 if PROT else 0}
""")
    gq = [grp(A1, 4), grp(A0, 4, B=BQ2), grp(A1, 5), grp(A0, 5, B=BQ2 + 8)]
    qm = [x for mt in range(4) for g in gq for x in g[2 * mt:2 * mt + 2]]
    inter2(a, qm, su.l, 2)
    phiq = phi_keep if PS else phi_pack if GATE == "pq" else phi_pack_np
    NQ1 = int(opt("nq1", "0"))
    if NQ1: phiq(a, ACC, PQ, 8 * NQ1, T, 54, 56)
    a("s_waitcnt vmcnt(0)")
    flag_store(a, 60, 57, vEp, 19)
    a(f"s_load_dwordx16 s[4:19], s[{sWS}:{sWS+1}], s44 glc")
    a.stamp(4)
    for mt in range(NQ1, 4): phiq(a, ACC + 8 * mt, PQ + 4 * mt, 8, T, 54, 56)
    if GATE == "pq": a(f"ds_write_b32 v{vPW}, v{vOne} offset:{Y_KD}")
    for i in range(4): a(f"v_mov_b64 {vr(AC+2*i,2)}, 0\nv_mov_b64 {vr(B2+4*i+2,2)}, 0\nv_mov_b32 v{EQ+i}, s56")
    a("s_setprio 3")
    def accm(j):
        for i in range(2):
            a(mfma16(AC, SEL + 2, PP + 8 * j + 4 * i)); a(mfma16(AC + 4, SEL, PP + 8 * j + 4 * i))
    for k in range(8):
        a(f"s_cmp_eq_u32 s46, 0\ns_cbranch_scc1 L_poll{k}\nL_go{k}:\ns_ff1_i32_b32 s45, s46\ns_bitset0_b32 s46, s45\ns_add_u32 s45, s45, s43\ns_and_b32 s45, s45, 7\ns_lshl_b32 s45, s45, 11\ns_add_u32 s45, s45, s58")
        for i in range(2): a(f"buffer_load_dwordx4 {vr(PP+8*k+4*i,4)}, v5, s[60:63], s45 offen offset:{1024*i} sc1")
        a(f"s_bitset1_b32 s51, {k}")
    a("s_branch L_fin")
    for k in range(8):
        a(f"L_poll{k}:\ns_waitcnt lgkmcnt(0)")
        for i in range(7, -1, -1): a(f"s_cmp_eq_u64 s[{4+2*i}:{5+2*i}], s[{sEP}:{sEP+1}]\ns_addc_u32 s46, s46, s46")
        a(f"""
s_add_u32 s53, s53, 1
s_cmp_gt_u32 s53, 0x8000
s_cselect_b32 s46, 0xff, s46
s_andn2_b32 s46, s46, s50
s_or_b32 s50, s50, s46
s_cmp_eq_u32 s50, 0xff
s_cbranch_scc0 L_pm{k}
buffer_load_dwordx4 {vr(ZZ,4)}, v5, s[60:63], s59 offen sc1
s_mov_b32 s47, s51
s_mov_b32 s52, {k}
""")
        if STAMP: a.stamp(5)
        a(f"""
s_branch L_go{k}
L_pm{k}:
s_load_dwordx16 s[4:19], s[{sWS}:{sWS+1}], s44 glc
s_cmp_lg_u32 s46, 0
s_cbranch_scc1 L_go{k}
""")
        if k == 0: a("s_branch L_poll0")
        else: a(f"s_cmp_eq_u32 s51, 0\ns_cbranch_scc1 L_poll{k}\ns_mov_b32 s52, {k}\ns_branch L_acc")
    a("L_acc:\ns_waitcnt vmcnt(0)")
    for j in range(7):
        a(f"s_bitcmp1_b32 s51, {j}\ns_cbranch_scc0 L_ac{j}"); accm(j); a(f"L_ac{j}:")
    a("s_mov_b32 s51, 0")
    for k in range(1, 7): a(f"s_cmp_eq_u32 s52, {k}\ns_cbranch_scc1 L_poll{k}")
    a("s_branch L_poll7\nL_fin:")
    a("s_cmp_eq_u32 s47, 0\ns_cbranch_scc1 L_pz")
    for k in range(1, 7): a(f"s_cmp_eq_u32 s52, {k}\ns_cbranch_scc1 L_pv{k}")
    a("s_waitcnt vmcnt(3)\ns_branch L_pvd")
    for k in range(1, 7): a(f"L_pv{k}:\ns_waitcnt vmcnt({2*(8-k)+1})" + ("\ns_branch L_pvd" if k < 6 else ""))
    a("L_pvd:")
    for j in range(7):
        a(f"s_bitcmp1_b32 s47, {j}\ns_cbranch_scc0 L_ao{j}"); accm(j); a(f"L_ao{j}:")
    a("L_pz:")
    OST = opt("ost", "0") == "1"
    NOG = OST or KST
    for k in range(7): a(f"s_cmp_eq_u32 s52, {k}\ns_cbranch_scc1 L_pw{k}")
    a("s_waitcnt vmcnt(2)\ns_branch L_pwd")
    for k in range(7): a(f"L_pw{k}:\ns_waitcnt vmcnt({2*(8-k)})" + ("\ns_branch L_pwd" if k < 6 else ""))
    a("L_pwd:")
    if OST: a.stamp(7)
    for i in range(4): a(mfma16(D1 + 4 * i, ZZ, PQ + 4 * i, "0"))
    a("s_nop 4")
    for i in range(4): a(f"v_cvt_pk_bf16_f32 v{B2+4*i}, v{D1+4*i}, v{D1+4*i+1}\nv_cvt_pk_bf16_f32 v{B2+4*i+1}, v{D1+4*i+2}, v{D1+4*i+3}")
    a("s_nop 0")
    for i in range(4): a(mfma16(DN + 4 * i, ONES, B2 + 4 * i, vr(EQ, 4)))
    if PS:
        a("s_nop 4")
        for i in range(4): a(f"v_rcp_f32 v{DN+4*i}, v{DN+4*i}")
        for i in range(4):
            for p in range(8): a(f"v_mul_f32 v{ACC+8*i+p}, v{ACC+8*i+p}, v{DN+4*i}")
            pack(a, ACC + 8 * i, PQ + 4 * i, 8)
    for k in range(7, 0, -1): a(f"s_cmp_eq_u32 s52, {k}\ns_cbranch_scc1 L_an{k}")
    for j in range(8):
        a(f"L_an{j}:\ns_waitcnt vmcnt({2*(7-j)})"); accm(j)
    if OST: a.stamp(8)
    if PS: a("s_nop 7")
    else:
        a("s_nop 3")
        for i in range(4): a(f"v_rcp_f32 v{DN+4*i}, v{DN+4*i}")
    pack(a, AC, KO, 8)
    NO, NP, OP = 24, 40, 56
    a(f"ds_write_b128 v6, {vr(KO,4)}\nds_write_b32 v{vPW}, v{vOne} offset:{Y_K2}\nds_read_b32 v{vT}, v255 offset:{Y_K2}\nds_read_b128 {vr(KP,4)}, v7")
    for i in range(4): a(mfma16(NO + 4 * i, KO, PQ + 4 * i, "0"))
    a("s_mov_b32 s45, 0\ns_nop 3\ns_cmp_eq_u32 s40, 0")
    OPK = opt("opk", "0") == "1"
    def mul4(r, d):
        if PS: return
        if OPK:
            for p in range(2): a(f"v_pk_mul_f32 {vr(r+2*p,2)}, {vr(r+2*p,2)}, {vr(d,2)} op_sel_hi:[1,0]")
        else:
            for p in range(4): a(f"v_mul_f32 v{r+p}, v{r+p}, v{d}")
    for i in range(4): mul4(NO + 4 * i, DN + 4 * i)
    a("s_cbranch_scc0 L_o1")
    for wr in range(2):
        if wr: a("L_o1:")
        for i in range(4): pack(a, NO + 4 * i, OP + 4 * i + 2 * wr, 4)
        a(f"""
s_branch L_ks{wr}g
L_ks{wr}:
ds_read_b32 v{vT}, v255 offset:{Y_K2}
ds_read_b128 {vr(KP,4)}, v7
L_ks{wr}g:
s_add_u32 s45, s45, 1
s_waitcnt lgkmcnt(0)
v_readfirstlane_b32 s46, v{vT}
s_cmp_gt_u32 s45, 0x40000
s_cbranch_scc1 L_kd{wr}
s_cmp_eq_u32 s46, 0
s_cbranch_scc1 L_ks{wr}
L_kd{wr}:
""")
        for i in range(4): a(mfma16(NP + 4 * i, KP, PQ + 4 * i, "0"))
        a("s_nop 4")
        for i in range(4):
            if PS and i: a("s_nop 0")
            mul4(NP + 4 * i, DN + 4 * i)
            pack(a, NP + 4 * i, OP + 4 * i + 2 * (1 - wr), 4)
            a(f"buffer_store_dwordx4 {vr(OP+4*i,4)}, v5, s[60:63], s48 offen sc1")
            if i < 3: a("s_add_u32 s48, s48, 0x8000")
        if wr == 0: a("s_branch L_o2")
    a("L_o2:")
    if GATE == "o": a(f"ds_write_b32 v{vPW}, v{vOne} offset:{Y_KD}")
    a.stamp(9)
    OF, WX, WY, C, PO = 24, 88, 104, 120, 172
    vWb, vWA, vWB = 236, 8, 244
    a(f"""
s_lshl_b32 s59, s{sg_rb}, 3
s_lshl_b32 s45, s3, 1
s_add_u32 s59, s59, s45
s_lshl_b32 s45, s59, 15
s_add_u32 s45, s45, {WS_O:#x}
v_add_u32 v242, 0x8000, v5
s_mov_b32 s51, 0x55555555
""")
    srd_off(a, 64, sWS, "s45", 65536)
    a(f"""
s_lshl_b32 s52, s{sg_rb}, 8
s_lshl_b32 s46, s3, 6
s_add_u32 s52, s52, s46
{FC(52, FL_O, sg_cb)}
v_lshrrev_b32 v6, 2, v4
v_lshlrev_b32 v6, 7, v6
v_and_b32 v7, 3, v4
v_lshl_add_u32 v6, v7, 3, v6
v_bfe_u32 v7, v4, 3, 1
v_lshl_add_u32 v6, v7, 6, v6
v_lshl_add_u32 v{vWb}, v23, 5, v6
v_xor_b32 v{vWb+1}, 32, v{vWb}
v_xor_b32 v{vWb+2}, 64, v{vWb}
v_xor_b32 v{vWb+3}, 0x60, v{vWb}
s_lshl_b32 s57, s3, 11
s_add_u32 s57, s57, {XCH}
v_lshrrev_b32 v7, 5, v4
v_lshl_add_u32 v6, v23, 1, v7
v_and_b32 v7, 7, v4
v_xor_b32 v6, v6, v7
v_lshlrev_b32 v6, 4, v6
v_and_b32 v3, 15, v4
v_lshl_add_u32 v6, v3, 7, v6
v_add_u32 v15, s57, v6
v_xor_b32 v18, 64, v15
v_lshrrev_b32 v6, 3, v4
v_lshlrev_b32 v3, 4, v7
v_lshl_add_u32 v17, v6, 12, v3
v_xor_b32 v7, v7, v6
v_lshlrev_b32 v7, 4, v7
v_lshl_add_u32 v6, v6, 7, v7
v_add_u32 v16, s57, v6
s_mov_b32 s50, 0
s_mov_b32 s53, 0
s_mov_b32 s54, 0
s_lshl_b32 s55, s40, 4
s_and_b32 s42, s{sg_rb}, {3 if opt("wrot", "1") == "1" else 0}
s_lshl_b32 s42, s42, 3
""")
    for i in range(10): a(f"v_mov_b64 {vr(C+2*i,2)}, 0")
    a(f"s_load_dwordx16 s[4:19], s[{sWS}:{sWS+1}], s52 glc")
    for i in range(10, 16): a(f"v_mov_b64 {vr(C+2*i,2)}, 0")
    a("s_waitcnt vmcnt(0)")
    flag_store(a, 60, 49, vEp, vL128)
    a.stamp(6)
    a("s_waitcnt lgkmcnt(0)")
    maskbuild(a, 54, 46)
    a(f"s_lshl_b32 s46, s54, s55\ns_mov_b32 s47, s46\ns_lshr_b64 s[46:47], s[46:47], s42\nv_mov_b32 v{vT}, s46\ns_mov_b64 exec, 1\nds_or_b32 v14, v{vT} offset:{Y_CO}\ns_mov_b64 exec, -1")
    a(f"s_setprio {opt('gprio', '2')}")
    if opt("og", "0") == "1":
        a(f"""
ds_write_b32 v{vPW}, v{vOne} offset:160
s_mov_b32 s45, 0
L_og:
ds_read_b128 v[152:155], v{vY} offset:160
s_add_u32 s45, s45, 1
s_waitcnt lgkmcnt(0)
v_and_b32 v152, v152, v153
v_and_b32 v154, v154, v155
v_and_b32 v152, v152, v154
s_cmp_gt_u32 s45, 0x40000
s_cbranch_scc1 L_ogd
v_readfirstlane_b32 s46, v152
s_nop 3
s_cmp_eq_u32 s46, 0
s_cbranch_scc1 L_og
L_ogd:
""")
    selno = [0]
    def select(slot):
        n = selno[0]; selno[0] += 1
        a(f"""
s_cmp_lg_u32 s50, 0
s_cbranch_scc1 L_sel{n}_ok
s_mov_b32 s45, 0
s_cmp_lg_u32 s51, 0
s_cbranch_scc1 L_sel{n}
s_mov_b32 s66, 0
s_mov_b32 s50, 0x55555555
s_branch L_sel{n}_ok
L_sel{n}:
ds_read_b32 v{vT}, v14 offset:{Y_CO}
ds_read_b32 v13, v{vY} offset:{Y_WM}
s_add_u32 s45, s45, 1
s_waitcnt lgkmcnt(0)
v_and_b32 v13, v13, v{vT}
s_cmp_gt_u32 s45, 0x40000
s_cselect_b32 s46, -1, 0
v_readfirstlane_b32 s50, v13
s_nop 3
s_or_b32 s50, s50, s46
s_and_b32 s50, s50, s51
s_cbranch_scc1 L_sel{n}_ok
s_cmp_lg_u32 s54, 0x5555
s_cbranch_scc1 L_sel{n}_p
s_sleep 1
s_branch L_sel{n}
L_sel{n}_p:
s_load_dwordx16 s[4:19], s[{sWS}:{sWS+1}], s52 glc
s_add_u32 s45, s45, 8
s_waitcnt lgkmcnt(0)
""")
        maskbuild(a, 54, 46)
        a(f"s_lshl_b32 s46, s54, s55\ns_mov_b32 s47, s46\ns_lshr_b64 s[46:47], s[46:47], s42\nv_mov_b32 v{vT}, s46\ns_mov_b64 exec, 1\nds_or_b32 v14, v{vT} offset:{Y_CO}\ns_mov_b64 exec, -1")
        a(f"s_branch L_sel{n}\nL_sel{n}_ok:")
        return [f"s_ff1_i32_b32 s46, s50", "s_bitset0_b32 s50, s46\ns_add_u32 s48, s46, s42", "s_and_b32 s48, s48, 31\ns_lshl_b32 s48, s48, 10", "s_bitset0_b32 s51, s46", f"s_lshl_b32 s{28+slot}, s46, 12"]
    def oload(slot):
        return [f"buffer_load_dwordx4 {vr(OF+16*slot+8*hh+4*rt,4)}, v{[5,242][rt]}, s[64:67], s48 offen offset:{1024*hh} {OSC}" for hh in range(2) for rt in range(2)]
    def wreads(S, hh, vw):
        return [f"ds_read_b64_tr_b16 {vr(S+4*ct+2*i2,2)}, v{vw+ct} offset:{hh*4096+i2*2048}" for ct in range(4) for i2 in range(2)]
    def wset(slot, vw): return [f"v_add_u32 v{vw+i}, s{28+slot}, v{vWb+i}" for i in range(4)]
    for sl in range(3):
        for x in select(sl): a(x)
        if sl == 0 and not NOG: a.stamp(7)
        if sl == 0 and opt("lat", "0") == "1": a("s_waitcnt lgkmcnt(0)\ns_mov_b32 s94, s50\ns_bitset1_b32 s94, s46")
        for x in oload(sl): a(x)
    for x in wset(0, vWA): a(x)
    for r in wreads(WX, 0, vWA): a(r)
    a("L_gloop:")
    for u in range(4):
        cur, nxt = (vWA, vWB) if u % 2 == 0 else (vWB, vWA)
        sel = select((u + 3) % 4)
        ol = oload((u + 3) % 4)
        a("s_waitcnt vmcnt(10) lgkmcnt(0)")
        if TRACE: a("s_memrealtime s[100:101]")
        m = [mfma16(C + 4 * (rt * 4 + ct), WX + 4 * ct, OF + 16 * u + 4 * rt) for rt in range(2) for ct in range(4)]
        interleave(a, m, wreads(WY, 1, cur) + wset((u + 1) % 4, nxt) + sel[:4], 2)
        a("s_waitcnt vmcnt(8) lgkmcnt(0)")
        if TRACE: a(f"s_lshl_b32 m0, s53, 2\ns_add_u32 m0, m0, {u}\ns_nop 0\nv_writelane_b32 v252, s100, m0")
        m = [mfma16(C + 4 * (rt * 4 + ct), WY + 4 * ct, OF + 16 * u + 8 + 4 * rt) for rt in range(2) for ct in range(4)]
        if u == 3: oth = wreads(WX, 0, nxt) + [ol[0], ol[1], sel[4], ol[2], "s_add_u32 s53, s53, 1", ol[3], "s_cmp_lt_u32 s53, 4"]
        else: oth = wreads(WX, 0, nxt) + [ol[0], sel[4], ol[1]] + [None, ol[2], None, ol[3]]
        o2 = list(oth)
        for mm in m:
            a(mm)
            for _ in range(2):
                if o2:
                    x = o2.pop(0)
                    if x: a(x)
        for x in o2:
            if x: a(x)
    a("s_cbranch_scc1 L_gloop")
    if not NOG: a.stamp(8)
    a(f"""
s_lshl_b32 s48, s59, 16
s_lshl_b32 s49, s{sg_cb}, 7
s_add_u32 s48, s48, s49
s_add_u32 s49, s48, 0x8000
s_add_u32 s50, s48, 0x10000
s_add_u32 s51, s48, 0x18000
s_waitcnt lgkmcnt(0)
""")
    pack(a, C, PO, 32)
    a("s_nop 1")
    for q in range(4):
        a(f"v_permlane16_swap_b32 v{PO+4*q}, v{PO+4*q+2}\nv_permlane16_swap_b32 v{PO+4*q+1}, v{PO+4*q+3}")
    for rt in range(2):
        for qq in range(2): a(f"ds_write_b128 v{[15,18][qq]}, {vr(PO+8*rt+4*qq,4)}")
        for i in range(2): a(f"ds_read_b128 {vr(WX+8*rt+4*i,4)}, v16 offset:{1024*i}")
    for q in range(4):
        a(f"s_waitcnt lgkmcnt({[5,4,1,0][q]})")
        a(f"buffer_store_dwordx4 {vr(WX+4*q,4)}, v17, s[68:71], s{48+q} offen {FL_OUT}")
    if TRACE:
        a(f"v_writelane_b32 v252, s90, 16\ns_lshl_b32 s100, s2, 10\ns_add_u32 s100, s100, {WS_ST + 0x200000:#x}\nv_lshlrev_b32 v253, 2, v0\nbuffer_store_dword v252, v253, s[60:63], s100 offen")
    a.end()

def aux(a):
    vOA, vOB = 8, 12
    vZero, vEp, vOne, vY, vT = 6, 7, 14, 15, 3
    a(f"""
s_sub_u32 s3, s3, 4
v_lshrrev_b32 v1, 3, v4
v_and_b32 v2, 7, v4
v_lshrrev_b32 v3, 4, v4
v_xor_b32 v6, v2, v3
v_lshlrev_b32 v6, 4, v6
v_lshl_add_u32 v6, v1, 11, v6
s_lshl_b32 s60, s{srb}, 7
s_lshl_b32 s61, s3, 5
s_add_u32 s60, s60, s61
s_lshl_b32 s60, s60, 11
v_add_u32 v{vOA}, s60, v6
v_xor_b32 v6, 64, v{vOA}
v_add_u32 v{vOA+1}, {16384-1024}, v6
v_add_u32 v{vOA+2}, {2*(16384-1024)}, v{vOA}
v_add_u32 v{vOA+3}, {3*(16384-1024)}, v6
v_and_b32 v3, 1, v3
v_lshlrev_b32 v3, 2, v3
v_xor_b32 v7, v2, v3
v_lshlrev_b32 v7, 4, v7
v_xor_b32 v6, 32, v7
s_movk_i32 s61, 6144
v_mad_u32_u24 v7, v1, s61, v7
v_mad_u32_u24 v6, v1, s61, v6
s_mul_i32 s60, s3, {16*6144}
v_add_u32 v{vOB}, s60, v7
s_add_u32 s60, s60, {8*6144-1024}
v_add_u32 v{vOB+1}, s60, v6
s_lshl_b32 s65, s3, 12
s_lshl_b32 s66, s3, 11
s_add_u32 s66, s66, 0x4000
s_mov_b32 s64, 0
s_mov_b32 s67, s{sk0}
s_lshl_b32 s74, s{shq}, 7
s_lshl_b32 s75, s{shk}, 7
s_add_u32 s75, s75, 2048
s_mov_b32 s42, {4*MB:#x}
s_mov_b32 s43, 0x20000
s_mov_b32 s46, {6*MB:#x}
s_mov_b32 s47, 0x20000
s_waitcnt lgkmcnt(0)
s_mov_b64 s[40:41], s[{sX}:{sX+1}]
s_mov_b64 s[44:45], s[{sW}:{sW+1}]
""")
    vm = VM(a)
    def issue(tag):
        a(f"s_add_u32 m0, s64, s65\ns_lshl_b32 s60, s67, 7\ns_mul_i32 s63, s67, {64*6144}")
        for i in range(4): a(f"buffer_load_dwordx4 v{vOA+i}, s[40:43], s60 offen offset:{1024*i} {FL_XW} lds")
        a(f"s_add_u32 m0, s64, s66\ns_add_u32 s61, s63, s74\ns_add_u32 s62, s63, s75")
        for i in range(2): a(f"buffer_load_dwordx4 v{vOB+i}, s[44:47], s61 offen offset:{1024*i} {FL_XW} lds")
        a(f"s_add_u32 m0, m0, 8192\ns_add_u32 s63, s62, 2048")
        for i in range(2): a(f"buffer_load_dwordx4 v{vOB+i}, s[44:47], s62 offen offset:{1024*i} {FL_XW} lds")
        a(f"s_add_u32 m0, m0, 8192\ns_add_u32 s67, s67, 1")
        for i in range(2): a(f"buffer_load_dwordx4 v{vOB+i}, s[44:47], s63 offen offset:{1024*i} {FL_XW} lds")
        a(f"s_and_b32 s67, s67, 15\ns_add_u32 s64, s64, {STG}\ns_cmp_eq_u32 s64, {3*STG}\ns_cselect_b32 s64, 0, s64")
        vm.issue(tag, 10)
    def B(i): vm.wait(i); a.bar()
    a.sst(2)
    issue(0)
    a.sst(3)
    a("s_barrier")
    a.sst(4)
    ids2(a)
    a(f"v_mov_b32 v{vZero}, 0\nv_mov_b32 v{vOne}, 1\nv_mov_b32 v{vY}, {SYNC}\nv_lshlrev_b32 v255, 7, v4\n{WSOFF}")
    srd(a, 48, sWS, 32 * MB)
    srd(a, 52, sDBG, 256)
    a(f"""
s_or_b32 s60, s2, s3
s_cmp_eq_u32 s60, 0
s_cbranch_scc0 L_noep
s_memrealtime s[60:61]
s_waitcnt lgkmcnt(0)
s_or_b32 s60, s60, 1
v_mov_b32 v{vEp}, s60
s_mov_b64 exec, 1
buffer_store_dword v{vEp}, v{vZero}, s[52:55], 0 offen sc1
s_mov_b64 exec, -1
L_noep:
""")
    P, Qs, CACC, W2, QQ = 32, 96, 160, 192, 224
    VU = [240, 241, 242, 243]; vH, vE, vS, vTR, vHP = 244, 245, 246, 247, 251
    vUS, vHL, vO = 25, 26, 20
    a(f"""
s_mul_i32 s68, s3, {HCH}
s_add_u32 s68, s68, {HB}
s_lshl_b32 s69, s{ssb}, 7
s_lshl_b32 s70, s3, 5
s_add_u32 s69, s69, s70
v_lshrrev_b32 v28, 4, v4
v_bfe_u32 v29, v4, 2, 2
v_and_b32 v30, 3, v4
v_and_b32 v31, 15, v4
s_lshl_b32 s60, s3, 12
s_add_u32 s60, s60, {HB}
v_add_u32 v{vTR}, s60, v5
s_and_b32 s60, s3, 1
s_lshl_b32 s60, s60, 6
v_xor_b32 v{vTR}, s60, v{vTR}
v_xor_b32 v{vTR+1}, 16, v{vTR}
v_xor_b32 v{vTR+2}, 32, v{vTR}
v_xor_b32 v{vTR+3}, 48, v{vTR}
v_lshlrev_b32 v3, 12, v28
v_lshl_add_u32 v{vUS}, v31, 4, v3
s_lshl_b32 s60, s{sdb}, 18
s_lshl_b32 s61, s3, 16
s_add_u32 s60, s60, s61
s_lshl_b32 s61, s{ssb}, 8
s_sub_u32 s60, s60, s61
s_add_u32 s60, s60, {WS_UT + 3840}
v_add_u32 v{vUS}, s60, v{vUS}
v_lshlrev_b32 v{vHL}, 5, v4
v_and_b32 v3, 1, v28
v_lshlrev_b32 v3, 2, v3
v_xor_b32 v3, v2, v3
v_lshrrev_b32 v27, 5, v4
v_lshlrev_b32 v27, 1, v27
v_xor_b32 v3, v27, v3
v_lshlrev_b32 v3, 4, v3
v_lshl_add_u32 v3, v1, 11, v3
s_lshl_b32 s60, s{sg_cb}, 7
v_add_u32 v{vO}, s60, v3
v_add_u32 v{vO+1}, {16384-1024}, v{vO}
v_add_u32 v{vO+2}, {2*(16384-1024)}, v{vO}
v_add_u32 v{vO+3}, {3*(16384-1024)}, v{vO}
s_mov_b32 s70, 0xffff0000
v_and_b32 v3, 1, v28
s_movk_i32 s60, {HP}
v_mul_u32_u24 v3, s60, v3
v_lshl_add_u32 v3, v31, 4, v3
v_add_u32 v{vHP}, s68, v3
s_mul_i32 s71, s3, {UCH}
s_add_u32 s71, s71, {U0}
v_add_u32 v19, s71, v5
s_movk_i32 s61, {CPY}
v_and_b32 v24, 1, v29
v_mul_u32_u24 v24, s61, v24
v_lshl_add_u32 v24, v30, 4, v24
v_add_u32 v24, s71, v24
v_add_u32 v3, 1, v31
v_and_b32 v16, 1, v3
v_add_u32 v17, v16, v31
v_mul_u32_u24 v3, s61, v16
v_lshl_add_u32 v3, v28, 5, v3
v_lshlrev_b32 v17, 1, v17
v_sub_u32 v3, v3, v17
s_add_u32 s60, s71, {4014 - 512 - 16}
v_add_u32 v{VU[0]}, s60, v3
v_subrev_u32 v{VU[1]}, 1024, v{VU[0]}
v_subrev_u32 v{VU[2]}, 2048, v{VU[0]}
v_subrev_u32 v{VU[3]}, 3072, v{VU[0]}
v_add_u32 v3, v31, v28
s_add_u32 s60, s68, 208
v_lshlrev_b32 v3, 4, v3
v_add_u32 v{vH}, s60, v3
v_lshlrev_b32 v3, 5, v31
v_lshl_add_u32 v16, v28, 3, v3
s_add_u32 s60, s71, {4088 - 3584}
v_sub_u32 v{vE}, s60, v16
v_and_b32 v16, 1, v28
v_lshl_add_u32 v3, v16, 9, v3
v_lshrrev_b32 v16, 5, v4
v_lshl_add_u32 v{vS}, v16, 4, v3
v_lshlrev_b32 v27, 4, v2
v_lshl_add_u32 v16, v1, 11, v27
v_lshl_add_u32 v17, v1, 12, v27
s_add_u32 s39, s{sch}, s3
s_and_b32 s60, s39, 0xfffffffe
s_lshl_b32 s60, s60, 1
s_load_dword s71, s[{sD}:{sD+1}], s60
s_lshl_b32 s61, s39, 12
""")
    for i in range(16): a(f"v_mov_b64 {vr(CACC+2*i,2)}, 0")
    srd_off(a, 52, sH, "s61", 4096); srd(a, 56, sWO, 2 * MB)
    a(f"s_waitcnt lgkmcnt(0)\ns_mov_b32 s20, s{sQ}\ns_mov_b32 s21, s{sQ+1}")
    def hload():
        a(f"s_add_u32 m0, s68, 256\ns_movk_i32 s60, 1024\ns_movk_i32 s61, 1040")
        a(f"buffer_load_dwordx4 v{vHL}, s[52:55], 0 offen {FL_H} lds\nbuffer_load_dwordx4 v{vHL}, s[52:55], s60 offen offset:1024 {FL_H} lds")
        a(f"s_add_u32 m0, s68, {HP+256}\ns_nop 0")
        a(f"buffer_load_dwordx4 v{vHL}, s[52:55], 16 offen {FL_H} lds\nbuffer_load_dwordx4 v{vHL}, s[52:55], s61 offen offset:1024 {FL_H} lds")
        vm.issue("h", 4)
    def epoch():
        a(f"""
s_waitcnt lgkmcnt(0)
s_mov_b32 s60, 0
L_eploop:
s_cmp_lg_u32 s{sEP}, 0
s_cbranch_scc1 L_epok
s_sleep 8
s_load_dword s{sEP}, s[{sDBG}:{sDBG+1}], 0 glc
s_add_u32 s60, s60, 1
s_cmp_gt_u32 s60, 0x4000
s_waitcnt lgkmcnt(0)
s_cbranch_scc0 L_eploop
L_epok:
s_mov_b32 s{sEP+1}, s{sEP}
v_mov_b32 v{vEp}, s{sEP}
ds_write_b32 v{vY}, v{vEp} offset:{Y_EP}
""")
    a.sst(5); vm.wait(0); a.sst(6)
    B(0); issue(1); issue(2)
    B(1); issue(3)
    a.stamp(9)
    B(2); issue(4)
    a(f"s_load_dword s{sEP}, s[{sDBG}:{sDBG+1}], 0")
    D, E, O = 32, 48, 52
    H0 = int(opt("h0", "14")); D0 = int(opt("d0", "14")); HN = int(opt("hn", "1")); DN_ = int(opt("dn", "1"))
    hl = [(f"s_add_u32 m0, s68, 256", f"buffer_load_dwordx4 v{vHL}, s[52:55], 0 offen {FL_H} lds"),
          (f"s_add_u32 m0, s68, 256\ns_movk_i32 s60, 1024", f"buffer_load_dwordx4 v{vHL}, s[52:55], s60 offen offset:1024 {FL_H} lds"),
          (f"s_add_u32 m0, s68, {HP+256}", f"buffer_load_dwordx4 v{vHL}, s[52:55], 16 offen {FL_H} lds"),
          (f"s_add_u32 m0, s68, {HP+256}\ns_movk_i32 s60, 1040", f"buffer_load_dwordx4 v{vHL}, s[52:55], s60 offen offset:1024 {FL_H} lds")]
    dl = [f"buffer_load_dwordx4 {vr(D+4*j,4)}, v5, s[48:51], s39 offen offset:{1024*j} sc1" for j in range(4)]
    a(f"s_lshl_b32 s33, s39, 7\ns_add_u32 s33, s33, {FL_U:#x}\ns_lshl_b32 s39, s39, 12")
    def uchk():
        a("s_waitcnt lgkmcnt(0)")
        for i in range(8): a(f"s_cmp_eq_u64 s[{4+2*i}:{5+2*i}], s[{sEP}:{sEP+1}]\ns_cbranch_scc0 L_us")
        a("s_branch L_upoll_done\nL_us:")
        spoll(a, "L_upoll", 33, 60)
    SP = opt("sp", "H"); SN = int(opt("sn", "4")); S0 = int(opt("s0", "5")); SH = int(opt("sh", "2"))
    pf = []
    if SP:
        a(f"""
s_lshl_b32 s60, s69, 11
s_lshl_b32 s61, s{sdb}, 7
s_add_u32 s60, s60, s61
s_add_u32 s0, s20, s60
s_addc_u32 s1, s21, 0
s_lshl2_add_u32 s60, s{sj}, s3
s_lshl_b32 s60, s60, 14
s_and_b32 s61, s{sx}, 4
s_lshl_b32 s61, s61, 8
s_add_u32 s60, s60, s61
s_add_u32 s6, s56, s60
s_addc_u32 s7, s57, 0
s_lshl2_add_u32 s60, s2, s3
s_lshl_b32 s60, s60, 11
s_add_u32 s8, s56, s60
s_addc_u32 s9, s57, 0
""")
        hs = [0] if SH == 1 else [0, 64]
        for c in SP:
            if c == "h": pf += [f"s_load_dword s5, s[52:53], {i*128+o:#x}" for i in range(32) for o in hs]
            if c == "q": pf += [f"s_load_dword s5, s[0:1], {i*2048+o:#x}" for i in range(32) for o in hs]
            if c == "W": pf += [f"s_load_dword s5, s[8:9], {i*64:#x}" for i in range(32)]
            if c == "H": pf += [f"s_load_dword s5, s[52:53], {i*128:#x}" for i in range(32)]
            if c == "w": pf += [f"s_load_dword s5, s[6:7], {r*2048+c2*128+o:#x}" for r in range(8) for c2 in range(8) for o in hs]
    for b in range(3, 14):
        B(b)
        if b == 3:
            epoch(); a(f"ds_write_b128 v{vHP}, {vr(CACC,4)}")
        issue(b + 2)
        PT = opt("pt", "0")
        if b == 3 and PT != "0":
            fl = "glc" if PT == "glc" else ""
            a(f"""
s_load_dword s5, s[{sWS}:{sWS+1}], s33 {fl}
s_lshl2_add_u32 s60, s{shq}, s3
s_lshl_b32 s61, s60, 11
s_lshl_b32 s62, s{srb}, 6
s_add_u32 s61, s61, s62
s_add_u32 s61, s61, {WS_ZP:#x}
s_load_dword s5, s[{sWS}:{sWS+1}], s61 {fl}
s_lshl_b32 s60, s60, 6
{FC(60, FL_P, srb)}
s_load_dword s5, s[{sWS}:{sWS+1}], s60 {fl}
s_lshl_b32 s60, s{sg_rb}, 8
s_lshl_b32 s61, s3, 6
s_add_u32 s60, s60, s61
{FC(60, FL_O, sg_cb)}
s_load_dword s5, s[{sWS}:{sWS+1}], s60 {fl}
s_lshl_b32 s60, s{sdb}, 6
s_lshl2_add_u32 s61, s{ssb}, s3
{FC(60, FL_Y, 61, 8192)}
s_load_dword s5, s[{sWS}:{sWS+1}], s60 {fl}
""")
        if S0 <= b <= 12:
            for _ in range(SN):
                if pf: a(pf.pop(0))
        if b == 13: a("s_waitcnt lgkmcnt(0)")
        if b == min(D0, 14) - 1: a(f"s_load_dwordx16 s[4:19], s[{sWS}:{sWS+1}], s33 glc")
        if b == D0: uchk()
        if b >= H0:
            for _ in range(HN):
                if hl:
                    x = hl.pop(0); a(x[0]); a("s_nop 0"); a(x[1]); vm.issue("h")
        if b >= D0:
            for _ in range(DN_):
                if dl: a(dl.pop(0)); vm.issue("d")
    srd(a, 40, 20, 4 * MB); srd(a, 44, sOUT, 8 * MB)
    sPo = {0: 3, 1: 75, 2: 65, 3: 31}
    a(f"s_and_b32 s28, s{sg_rb}, {3 if opt('wrot', '1') == '1' else 0}\ns_lshl_b32 s74, s28, 2\ns_lshl_b32 s28, s28, 3")
    a("s_add_u32 s65, s3, 5\ns_add_u32 s75, s3, 9\ns_cmp_eq_u32 s3, 3\ns_cselect_b32 s75, 4, s75\ns_add_u32 s31, s3, 12")
    def usrc(g): return [f"s_add_u32 s60, s{sPo[g]}, s74", "s_and_b32 s60, s60, 15", "s_lshl_b32 s60, s60, 17", "s_add_u32 s61, s60, 0x10000"]
    def w2(g):
        r = usrc(g)
        for hh in range(2):
            for i in range(4): r.append(f"buffer_load_dwordx4 {vr(W2+16*hh+4*i,4)}, v{vO+i}, s[56:59], s{60+hh} offen offset:{1024*i} {FL_WO}")
        vm.issue(f"w{g}", 8)
        return r
    def wb(g):
        a(f"s_lshl_b32 m0, s{sPo[g]}, 13")
        for x in usrc(g): a(x)
        for hh in range(2):
            for i in range(4): a(f"buffer_load_dwordx4 v{vO+i}, s[56:59], s{60+hh} offen offset:{1024*i} {FL_WO} lds")
            if hh == 0: a("s_add_u32 m0, m0, 4096\ns_nop 0")
        vm.issue(f"w{g}", 8)
    def wm_lines(bits):
        r = ["s_mov_b32 s61, 0"]
        for g in bits: r += [f"s_lshl_b32 s60, s{sPo[g]}, 1", "s_bitset1_b32 s61, s60"]
        return r + [f"v_mov_b32 v{vT}, s61", f"s_mov_b64 exec, 1\nds_or_b32 v{vY}, v{vT} offset:{Y_WM}\ns_mov_b64 exec, -1"]
    B(14)
    if D0 >= 14: uchk()
    for x in dl: a(x); vm.issue("d")
    for x in hl: a(x[0]); a("s_nop 0"); a(x[1]); vm.issue("h")
    W14 = len(dl) + len(hl) <= 4
    if W14: wb(2)
    B(15)
    a.stamp(1)
    a(f"ds_write_b128 v24, {vr(CACC,4)} offset:4096")
    def wait4(lab, off, slp=1, T=68):
        a(f"""
s_mov_b32 s60, 0
{lab}:
ds_read_b128 v[{T}:{T+3}], v{vY} offset:{off}
s_add_u32 s60, s60, 1
s_waitcnt lgkmcnt(0)
v_and_b32 v{T}, v{T}, v{T+1}
v_and_b32 v{T+2}, v{T+2}, v{T+3}
v_and_b32 v{T}, v{T}, v{T+2}
s_cmp_gt_u32 s60, 0x40000
s_cbranch_scc1 {lab}_d
v_readfirstlane_b32 s61, v{T}
s_nop 3
s_cmp_eq_u32 s61, 1
s_cbranch_scc1 {lab}_d
s_sleep {slp}
s_branch {lab}
{lab}_d:
""")
    if not W14: wb(2)
    UO = opt("uo", "0")
    if UO == "1":
        wait4("L_fr", Y_FR); wb(1); wb(0)
    if UO == "2":
        wait4("L_fr", Y_FR); wb(1)
    vm.wait("d")
    for j in range(3): a(f"v_mov_b32_dpp v{E+j}, v{D+4*j+4} wave_rol:1 row_mask:0xf bank_mask:0xf")
    a(f"v_mov_b32 v{E+3}, 0\ns_nop 0")
    for j in range(4): a(f"v_mov_b32_dpp v{E+j}, v{D+4*j} wave_shl:1 row_mask:0xf bank_mask:0xf")
    for j in range(4):
        d = [D + 4 * j + i for i in range(4)] + [E + j]
        o = O + 4 * j
        a(f"ds_write_b128 v19, {vr(D+4*j,4)} offset:{1024*j}")
        for i in range(4): a(f"v_alignbit_b32 v{o+i}, v{d[i+1]}, v{d[i]}, 16")
        a(f"ds_write_b128 v19, {vr(o,4)} offset:{CPY+1024*j}")
    if UO == "0": wait4("L_fr", Y_FR)
    a.stamp(2)
    if UO == "0": wb(1)
    if UO == "2" and opt("gate", "kv") != "none": wait4("L_kdz", Y_KD, T=Qs)
    if UO != "1": wb(0)
    a(f"""
s_lshl_b32 s30, s69, 11
s_lshl_b32 s61, s{sdb}, 7
s_add_u32 s30, s30, s61
s_lshl_b32 s63, s69, 12
s_add_u32 s63, s63, s61
s_add_u32 s63, s63, 2048
s_lshl_b32 s66, s{sg_rb}, 8
s_lshl_b32 s61, s3, 6
s_add_u32 s66, s66, s61
{FC(66, FL_O, sg_cb)}
s_bitcmp1_b32 s3, 0
s_cselect_b32 s60, 0, 16
s_cselect_b32 s33, 16, 0
s_lshl_b32 s71, s71, s60
s_and_b32 s71, s71, 0xffff0000
s_lshr_b32 s60, s3, 1
v_lshl_add_u32 v19, s60, 2, v{vY}
s_mov_b32 s32, s{sch}
{FA(32, FL_Y, 8192)}
s_lshl_b32 s67, s{sdb}, 6
s_lshl_b32 s60, s{ssb}, 2
s_add_u32 s60, s60, s3
{FC(67, FL_Y, 60, 8192)}
s_mov_b32 s64, 0
""")
    def creads(S, rho):
        r = []
        for i in range(8):
            o0 = 128 * (1 - i % 2) + 4 * (1 - rho)
            r.append(f"ds_read2_b32 {vr(S+4*i,2)}, v{VU[i//2]} offset0:{o0} offset1:{o0+1}")
            r.append(f"ds_read2_b32 {vr(S+4*i+2,2)}, v{VU[i//2]} offset0:{o0+2} offset1:{o0+3}")
            r.append(f"ds_read_b128 {vr(S+32+4*i,4)}, v{vH} offset:{256*i+(HP if rho == 0 else 0)}")
        return r
    def cmf(S):
        if opt("cch", "1") == "1": return [mfma16(CACC + 4 * t, S + 4 * x, S + 32 + 4 * (t - x)) for t in range(7, -1, -1) for x in range(t + 1)]
        return [mfma16(CACC + 4 * (x + y), S + 4 * x, S + 32 + 4 * y) for x in range(8) for y in range(8 - x)]
    vm.wait("h")
    for r in creads(P, 0): a(r)
    if opt("gate", "kv") != "none": wait4("L_kd", Y_KD, T=Qs)
    a.stamp(3)
    a(f"s_setprio {opt('vprio', '0')}")
    adv = [f"v_subrev_u32 v{x}, 128, v{x}" for x in VU] + [f"v_subrev_u32 v{vH}, 64, v{vH}"]
    pn = [0]
    def Pissue(): return f"s_load_dwordx16 s[4:19], s[{sWS}:{sWS+1}], s66 glc"
    def Pcheck(w):
        n = pn[0]; pn[0] += 1
        maskbuild(w, 62, 60)
        w(f"s_mov_b32 s64, s62\ns_lshl_b32 s60, s62, s33\ns_mov_b32 s61, s60\ns_lshr_b64 s[60:61], s[60:61], s28\nv_mov_b32 v{vT}, s60")
        g = f"s_mov_b64 exec, 1\nds_or_b32 v19, v{vT} offset:{Y_CO}\ns_mov_b64 exec, -1"
        if isinstance(w, L): w.l.append(g)
        else: w(g)
    W3H = int(opt("w3h", "1")); QH = int(opt("qh", "1"))
    ql = [x for i in range(4) for x in ([f"buffer_load_dwordx4 {vr(QQ+4*i,4)}, v16, s[40:43], s30 offen {FL_Q}"] + (["s_add_u32 s30, s30, 0x4000"] if i < 3 else []))]
    for h in range(8):
        S, N = (P, Qs) if h % 2 == 0 else (Qs, P)
        a("s_waitcnt lgkmcnt(0)")
        ex = []
        if h == 1:
            vm.wait("w0"); ex = wm_lines((0, 1, 2))
        if h == W3H: ex = ex + w2(3)
        if h == QH:
            ex = ex + ql; vm.issue("q", 4)
        inter3(a, cmf(S), ex, 1, (creads(N, 1 - h % 2) if h < 7 else []) + (adv if h % 2 == 0 else []), 1)
    a.stamp(4)
    UU, T = Qs + 40, Qs + 56
    for t in range(8): a(f"ds_read_b64 {vr(UU+2*t,2)}, v{vE} offset:{512*(7-t)}")
    ladd(a, vY, Y_CD, vOne)
    a(f"s_setprio {opt('yprio', '3')}\ns_waitcnt lgkmcnt(0)")
    YP = opt("yp", "0")
    if YP != "0": a(Pissue())
    for t in range(8):
        a(f"v_and_b32 v{T}, s70, v{UU+2*t+1}\nv_lshlrev_b32 v{T+1}, 16, v{UU+2*t+1}")
        a(f"v_and_b32 v{T+2}, s70, v{UU+2*t}\nv_lshlrev_b32 v{T+3}, 16, v{UU+2*t}")
        for i in range(4): a(f"v_fmac_f32 v{CACC+4*t+i}, s71, v{T+i}")
        a(f"v_cvt_pk_bf16_f32 v{UU+2*t}, v{CACC+4*t}, v{CACC+4*t+1}")
        a(f"v_cvt_pk_bf16_f32 v{UU+2*t+1}, v{CACC+4*t+2}, v{CACC+4*t+3}")
    a("s_nop 1")
    for t in range(0, 8, 2):
        a(f"v_permlane16_swap_b32 v{UU+2*t}, v{UU+2*t+2}\nv_permlane16_swap_b32 v{UU+2*t+1}, v{UU+2*t+3}")
    vm.wait("w3")
    for t in range(0, 8, 2): a(f"buffer_store_dwordx4 {vr(UU+2*t,4)}, v{vS}, s[48:51], s39 offen offset:{512*t} sc1")
    if YP != "0":
        a("s_waitcnt lgkmcnt(0)"); Pcheck(a)
    if YP == "2": a(Pissue())
    if W3H == 8:
        for x in w2(3): a(x)
    lspin(a, "L_cdspin", vY, Y_CD, "4", vT, 60, 61, slp=0)
    if YP == "2": Pcheck(a)
    def w2write():
        a(f"s_lshl_b32 s60, s3, 13\ns_add_u32 s60, s60, {U0}\nv_add_u32 v21, s60, v5")
        for i in range(8): a(f"ds_write_b128 v21, {vr(W2+4*i,4)} offset:{1024*i}")
        for x in wm_lines((3,)): a(x)
    if W3H != 8: w2write()
    if QH > 7:
        for x in ql: a(x)
    a.stamp(5)
    a(f"""
s_lshl_b32 s65, s{sdb}, 18
s_lshl_b32 s60, s69, 1
s_add_u32 s65, s65, s60
s_add_u32 s65, s65, {WS_YT:#x}
v_lshrrev_b32 v18, 2, v4
v_lshlrev_b32 v18, 12, v18
v_lshl_add_u32 v18, v30, 4, v18
v_lshl_add_u32 v20, v28, 3, v29
v_lshlrev_b32 v20, 6, v20
v_lshl_add_u32 v20, v30, 3, v20
v_add_u32 v20, s68, v20
s_movk_i32 s60, 144
v_mul_u32_u24 v24, s60, v31
v_lshl_add_u32 v24, v28, 4, v24
v_add_u32 v24, s68, v24
v_mul_u32_u24 v25, s60, v1
v_add3_u32 v25, v25, v27, s68
s_mov_b32 m0, s68
s_waitcnt vmcnt({(4 if QH > 7 else 0) + (8 if W3H == 8 else 0)})
s_mov_b64 exec, 1
ds_add_rtn_u32 v{vT}, v{vY}, v{vOne} offset:{Y_CY}
s_mov_b64 exec, -1
s_waitcnt lgkmcnt(0)
v_readfirstlane_b32 s60, v{vT}
s_nop 3
s_cmp_eq_u32 s60, 3
s_cbranch_scc0 L_yfl
""")
    flag_store(a, 48, 32, vEp, 255, "-1")
    a("L_yfl:")
    if W3H == 8:
        a(f"s_waitcnt vmcnt({4 if QH > 7 else 0})"); w2write()
    a.stamp(6)
    a("s_setprio 0\ns_waitcnt vmcnt(0)")
    unpack(a, QQ, 96, 16, 70)
    a("s_mov_b32 s29, 0\nL_yloop:\ns_cmp_eq_u32 s64, 0x5555\ns_cbranch_scc1 L_ynop")
    a(Pissue() + "\ns_waitcnt lgkmcnt(0)"); Pcheck(a)
    a(f"L_ynop:\ns_load_dwordx16 s[4:19], s[{sWS}:{sWS+1}], s67 glc\ns_add_u32 s29, s29, 1\ns_cmp_gt_u32 s29, 0x8000\ns_cbranch_scc1 L_ydone\ns_waitcnt lgkmcnt(0)")
    for i in range(8): a(f"s_cmp_eq_u64 s[{4+2*i}:{5+2*i}], s[{sEP}:{sEP+1}]\ns_cbranch_scc0 L_yloop")
    a("L_ydone:\ns_waitcnt lgkmcnt(0)")
    a.stamp(7)
    for i in range(4):
        a(f"buffer_load_dwordx4 v18, s[48:51], s65 offen offset:{1024*i} sc1 lds")
        if i < 3: a(f"s_add_u32 s65, s65, {0x10000-1024}")
    YY, T = 48, 64
    a("s_waitcnt vmcnt(0)")
    a.stamp(8)
    for sh in range(2):
        for oh in range(2):
            for i2 in range(2):
                a(f"ds_read_b64_tr_b16 {vr(YY+8*sh+4*oh+2*i2,2)}, v20 offset:{32*sh+2048*oh+256*i2}")
    a("s_waitcnt lgkmcnt(0)")
    for sh in range(2):
        for oh in range(2): a(f"ds_write_b128 v24, {vr(YY+8*sh+4*oh,4)} offset:{16*144*sh+64*oh}")
    for j in range(4): a(f"ds_read_b128 {vr(YY+32+4*j,4)}, v25 offset:{8*144*j}")
    for j in range(4):
        a(f"s_waitcnt lgkmcnt({3-j})")
        unpack(a, YY + 32 + 4 * j, T, 4, 70)
        for e in range(8): a(f"v_mul_f32 v{T+e}, v{T+e}, v{96+8*j+e}")
        pack(a, T, QQ + 4 * j, 8)
        a(f"buffer_store_dwordx4 {vr(QQ+4*j,4)}, v17, s[44:47], s63 offen {FL_OUT}")
        if j < 3: a("s_add_u32 s63, s63, 0x8000")
    a.trace_out()
    a.end()

def desc(name, vgpr, sgpr=102):
    return f""".amdhsa_kernel {name}
  .amdhsa_next_free_vgpr {vgpr}
  .amdhsa_next_free_sgpr {sgpr}
  .amdhsa_accum_offset {(vgpr + 3) // 4 * 4}
  .amdhsa_group_segment_fixed_size 0
  .amdhsa_kernarg_size 96
  .amdhsa_user_sgpr_count 2
  .amdhsa_user_sgpr_kernarg_segment_ptr 1
  .amdhsa_system_sgpr_workgroup_id_x 1
.end_amdhsa_kernel
"""
def main():
    out = open("cdna_kernels/" + NAME + ".s.ref").read().split("; Override launch")[0]
    KS = [KN]
    if AMP:
        out += f"; @launch kernel={KN} grid=(256,1,1) block=(512,1,1) lds={LDS}\n"
        out += "; @launch kernel=kd_kernel grid=(1,1,1) block=(64,1,1) lds=0\n"; KS.append("kd_kernel")
    else:
        out += f"; @launch grid=(256,1,1) block=(512,1,1) lds={LDS}\n"
    out += '.amdgcn_target "amdgcn-amd-amdhsa--gfx950"\n.text\n'
    for k in KS: out += f".globl {k}\n.type {k},@function\n"
    if opt("pal", ""): out += f".p2align {opt('pal', '')}\n"
    out += ".p2align 8\n"
    a = A()
    kernel(a)
    if AMP: kd.kernel_d(a, AMP, WS_ST + _o)
    out += a.text()
    out += '.section .rodata,"a"\n'
    for k in KS: out += ".p2align 6\n" + desc(k, 256)
    path = sys.argv[1] if len(sys.argv) > 1 and not sys.argv[1].startswith("--") else "cdna_kernels/" + NAME + ".s"
    open(path, "w").write(out)
main()
```

```python
import sys, os
sys.path.insert(0, os.path.dirname(os.path.abspath(__file__)))
import kd
NAME = "concat_heads__linear_attn_block__ssm_conv_h3__prompt"
KN = NAME + "_kernel"
MB = 1 << 20
WS_UT, WS_KVP, WS_ZP, WS_FL, WS_O, WS_YT, WS_ST = 0, 8 * MB, 9 * MB, 9 * MB + 0x40000, 4 * MB, 0, 24 * MB
LOG2E, EPS = 0x3FB8AA3B, 0x358637BD
STAMP = "--stamp" in sys.argv
TRACE = "--trace" in sys.argv
def opt(name, default):
    for x in sys.argv:
        if x.startswith("--" + name + "="): return x.split("=", 1)[1]
    return default
FL_U, FL_P, FL_O, FL_Y = [WS_FL + k * 131072 for k in range(4)]
def FA(r, base, grp=2048):
    return f"s_lshr_b32 vcc_lo, s{r}, 6\ns_mul_i32 vcc_lo, vcc_lo, {grp-64}\ns_add_u32 s{r}, s{r}, vcc_lo\ns_add_u32 s{r}, s{r}, {base:#x}"
def FC(r, base, own, grp=2048):
    return FA(r, base, grp) + f"\ns_lshl_b32 vcc_lo, s{own}, 7\ns_add_u32 s{r}, s{r}, vcc_lo"
if opt("ysep", "0") == "1": WS_YT = 10 * MB
FL_KV = opt("kv", "")
FL_H = opt("hf", FL_KV)
FL_Q = opt("qf", FL_KV)
FL_WO = opt("wo", "")
FL_XW = opt("xw", "")
FL_OUT = opt("outst", "sc1")
AMP = opt("amp", "")
KROT = opt("krot", "q8c")
ROT2 = opt("rot2", "0") == "1"
ROTW = opt("rotw", "1") == "1"
G2 = opt("g2", "")
OSC = "" if "nosc1" in G2 else "sc1"
DEPTH = int(opt("depth", "6"))
PSLEEP = opt("psleep", "0")

SST = opt("sst", "0") == "1"
class A:
    def __init__(self): self.l = []
    def __call__(self, s):
        for x in s.strip("\n").split("\n"):
            x = x.strip()
            self.l.append(x if x.endswith(":") else "    " + x)
    jn = 0
    def stamp(self, i):
        J = opt("jitter", "")
        if J and i > 0 and getattr(self, "jon", False):
            n = self.jn; self.jn += 1
            self(f"""
s_cselect_b32 s101, 1, 0
s_memrealtime s[98:99]
s_waitcnt lgkmcnt(0)
s_lshr_b32 s100, s98, 2
s_xor_b32 s100, s100, s2
s_mul_i32 s100, s100, {2654435761 + 2*n + int(J)}
s_add_u32 s100, s100, s3
s_mul_i32 s100, s100, 40503
s_lshr_b32 s100, s100, 29
s_cmp_lt_u32 s100, 6
s_cbranch_scc1 L_j{n}
s_sleep 60
s_cmp_lt_u32 s100, 7
s_cbranch_scc1 L_j{n}
s_sleep 127
L_j{n}:
s_cmp_lg_u32 s101, 0
""")
        if STAMP and not (SST and getattr(self, "jon", False) and 2 <= i <= 6): self(f"s_memrealtime s[{76+2*i}:{77+2*i}]")
    def sst(self, i):
        if STAMP and SST: self(f"s_memrealtime s[{76+2*i}:{77+2*i}]")
    def end(self):
        if STAMP:
            self(f"""
s_memrealtime s[96:97]
s_mov_b64 exec, 1
v_lshrrev_b32 v1, 6, v0
s_waitcnt vmcnt(0) lgkmcnt(0)
s_memrealtime s[98:99]
s_mov_b32 s40, s26
s_mov_b32 s41, s27
s_mov_b32 s42, 0x2000000
s_mov_b32 s43, 0x20000
s_lshl_b32 s100, s2, 3
v_add_u32 v1, s100, v1
v_lshlrev_b32 v1, 5, v1
v_add_u32 v1, {WS_ST}, v1
v_add_u32 v2, 65536, v1
s_waitcnt lgkmcnt(0)
""")
            for i in range(12): self(f"v_mov_b32 v{4+i}, s{76+2*i}")
            self("""
buffer_store_dwordx4 v[4:7], v1, s[40:43], 0 offen
buffer_store_dwordx4 v[8:11], v1, s[40:43], 0 offen offset:16
buffer_store_dwordx4 v[12:15], v2, s[40:43], 0 offen
buffer_store_dwordx4 v[12:15], v2, s[40:43], 0 offen offset:16
""")
        self("s_endpgm")
    tn = 0
    def trace(self):
        if TRACE:
            self(f"s_memrealtime s[96:97]\ns_waitcnt lgkmcnt(0)\nv_writelane_b32 v252, s96, {self.tn}"); self.tn += 1
    def bar(self):
        self.trace(); self("s_barrier"); self.trace()
    def trace_out(self):
        if TRACE: self(f"""
s_lshl_b32 s96, s2, 10
s_add_u32 s96, s96, {WS_ST + 0x100000:#x}
v_lshlrev_b32 v253, 2, v0
v_subrev_u32 v253, 1024, v253
buffer_store_dword v252, v253, s[48:51], s96 offen
""")
    def text(self): return "\n".join(self.l) + "\n"

class VM:
    def __init__(self, a): self.a = a; self.q = []
    def issue(self, tag, n=1): self.q += [tag] * n; assert len(self.q) <= 63, len(self.q)
    def wait(self, tag):
        if tag not in self.q: return
        idx = max(i for i, t in enumerate(self.q) if t == tag)
        n = len(self.q) - 1 - idx
        self.q = self.q[idx + 1:]
        self.a(f"s_waitcnt vmcnt({n})")
    def drained(self): self.q = []

def vr(b, n=1): return f"v{b}" if n == 1 else f"v[{b}:{b+n-1}]"
def sr(b, n=1): return f"s{b}" if n == 1 else f"s[{b}:{b+n-1}]"
def srd(a, d, lo, nbytes):
    a(f"s_mov_b32 s{d}, s{lo}\ns_mov_b32 s{d+1}, s{lo+1}\ns_mov_b32 s{d+2}, {nbytes:#x}\ns_mov_b32 s{d+3}, 0x20000")
def srd_off(a, d, lo, off, nbytes):
    a(f"s_add_u32 s{d}, s{lo}, {off}\ns_addc_u32 s{d+1}, s{lo+1}, 0\ns_mov_b32 s{d+2}, {nbytes:#x}\ns_mov_b32 s{d+3}, 0x20000")
def mfma16(d, x, y, c=None):
    c = vr(d, 4) if c is None else c
    return f"v_mfma_f32_16x16x32_bf16 {vr(d,4)}, {vr(x,4)}, {vr(y,4)}, {c}"
def interleave(a, mf, others, per_gap=1):
    o = list(others)
    for m in mf:
        a(m)
        for _ in range(per_gap):
            if o: a(o.pop(0))
    for x in o: a(x)
def phi_pack(a, src, dst, n, t, sL, sE):
    for i in range(0, n, 8):
        for p in range(4): a(f"v_pk_mul_f32 {vr(t+2*p,2)}, {vr(src+i+2*p,2)}, {sr(sL,2)}")
        for p in range(8): a(f"v_exp_f32_e64 v{t+p}, v{t+p} clamp")
        for p in range(8): a(f"v_max_f32 v{src+i+p}, s{sE}, v{src+i+p}")
        for p in range(4): a(f"v_pk_add_f32 {vr(t+2*p,2)}, {vr(t+2*p,2)}, {vr(src+i+2*p,2)}")
        for p in range(4): a(f"v_cvt_pk_bf16_f32 v{dst+i//2+p}, v{t+2*p}, v{t+2*p+1}")
def phi_pack_np(a, src, dst, n, t, sL, sE):
    for i in range(0, n, 8):
        for p in range(8): a(f"v_mul_f32 v{t+p}, s{sL}, v{src+i+p}")
        for p in range(8): a(f"v_exp_f32_e64 v{t+p}, v{t+p} clamp")
        for p in range(8): a(f"v_max_f32 v{src+i+p}, s{sE}, v{src+i+p}")
        for p in range(8): a(f"v_add_f32 v{t+p}, v{t+p}, v{src+i+p}")
        for p in range(4): a(f"v_cvt_pk_bf16_f32 v{dst+i//2+p}, v{t+2*p}, v{t+2*p+1}")
def phi_keep(a, src, dst, n, t, sL, sE):
    for i in range(0, n, 8):
        for p in range(8): a(f"v_mul_f32 v{t+p}, s{sL}, v{src+i+p}")
        for p in range(8): a(f"v_exp_f32_e64 v{t+p}, v{t+p} clamp")
        for p in range(8): a(f"v_max_f32 v{src+i+p}, s{sE}, v{src+i+p}")
        for p in range(8): a(f"v_add_f32 v{src+i+p}, v{t+p}, v{src+i+p}")
        for p in range(4): a(f"v_cvt_pk_bf16_f32 v{dst+i//2+p}, v{src+i+2*p}, v{src+i+2*p+1}")
def pack(a, src, dst, n):
    for i in range(n // 2): a(f"v_cvt_pk_bf16_f32 v{dst+i}, v{src+2*i}, v{src+2*i+1}")
def unpack(a, src, dst, ndw, smask):
    for i in range(ndw):
        a(f"v_lshlrev_b32 v{dst+2*i}, 16, v{src+i}\nv_and_b32 v{dst+2*i+1}, s{smask}, v{src+i}")

sX, sW, sWO, sQ, sK, sV, sSH, sH, sD, sOUT, sDBG, sWS = 4, 6, 8, 10, 12, 14, 16, 18, 20, 22, 24, 26
sx, sj, srb, shk, shq, sk0, sg_rb, sg_cb, sdb, ssb, sch, sEP = 28, 29, 30, 31, 32, 33, 34, 35, 36, 37, 38, 72
TOUCH = ""
_o = int(opt("wsoff", "0")) * MB
WSOFF = f"s_add_u32 s26, s26, {_o:#x}\ns_addc_u32 s27, s27, 0" if _o else "s_nop 0"
if opt("touch", "0") == "1":
    t = ["s_mov_b32 s52, 0x200000", "s_mov_b32 s53, 0x400000", "s_mov_b32 s54, 0x600000", "s_mov_b32 s55, 0x800000"]
    for base, n in ((sWS, 5), (sOUT, 4), (sQ, 2), (sH, 2), (sWO, 1)):
        for i in range(n): t.append(f"s_load_dword s46, s[{base}:{base+1}], {['0','s52','s53','s54','s55'][i]}")
    TOUCH = "\n".join(t)
STG = 40960
CPY = 4160
UCH = 2 * CPY
U0 = 98304
XCH = U0 + 4 * UCH
HB = XCH + 8192
HP = 2304
HCH = 2 * HP
KVL = HB + 4 * HCH
ZX = KVL + 4096
SYNC = ZX + 512
Y_XC, Y_CW, Y_C2, Y_CU, Y_CY, Y_CD, Y_PQ, Y_EP, Y_W1, Y_CO, Y_UOK, Y_YOK, Y_UB = 0, 96, 20, 28, 32, 36, 40, 56, 60, 64, 72, 76, 80
Y_WM = Y_W1
Y_FR, Y_KD, Y_K2 = 112, 128, 40
LDS = 163840


def spoll(a, lab, soff, sc):
    if opt("poll", "s") == "v":
        a(f"v_and_b32 v254, 15, v4\nv_lshlrev_b32 v254, 2, v254")
        vpoll(a, lab, 254, soff, 255, sc); return
    a(f"""
s_mov_b32 s{sc}, 0
s_branch {lab}_go
{lab}:
s_sleep {PSLEEP}
{lab}_go:
s_load_dwordx16 s[4:19], s[{sWS}:{sWS+1}], s{soff} glc
s_add_u32 s{sc}, s{sc}, 1
s_cmp_gt_u32 s{sc}, 0x8000
s_cbranch_scc1 {lab}_done
s_waitcnt lgkmcnt(0)
""")
    for i in range(8): a(f"s_cmp_eq_u64 s[{4+2*i}:{5+2*i}], s[{sEP}:{sEP+1}]\ns_cbranch_scc0 {lab}")
    a(f"{lab}_done:\ns_waitcnt lgkmcnt(0)")
def vpoll(a, lab, v16x4, soff, vt, sc):
    a(f"""
s_mov_b32 s{sc}, 0
{lab}:
buffer_load_dword v{vt}, v{v16x4}, s[48:51], s{soff} offen sc1
s_waitcnt vmcnt(0)
v_cmp_eq_u32 vcc, s{sEP}, v{vt}
s_add_u32 s{sc}, s{sc}, 1
s_nop 2
s_cmp_eq_u64 vcc, -1
s_cbranch_scc1 {lab}_done
s_sleep {PSLEEP}
s_cmp_lt_u32 s{sc}, 0x4000
s_cbranch_scc1 {lab}
{lab}_done:
""")
def lead_poll(a, lab, soff, sc, st, vY, off, vOne, vT):
    a(f"s_mov_b32 s{sc}, 0\ns_cmp_eq_u32 s3, 0\ns_cbranch_scc0 {lab}_f")
    spoll(a, lab, soff, sc)
    a(f"ds_write_b32 v{vY}, v{vOne} offset:{off}\ns_branch {lab}_f_done")
    a(f"{lab}_f:"); a.l.pop()
    lspin(a, lab + "_f", vY, off, "1", vT, sc, st, init=False, slp=3)
def lspin(a, lab, vaddr, off, target, vt, sc, st, init=True, slp=1):
    if init: a(f"s_mov_b32 s{sc}, 0")
    a(f"""
{lab}:
ds_read_b32 v{vt}, v{vaddr} offset:{off}
s_add_u32 s{sc}, s{sc}, 1
s_waitcnt lgkmcnt(0)
v_readfirstlane_b32 s{st}, v{vt}
s_cmp_gt_u32 s{sc}, 0x40000
s_cbranch_scc1 {lab}_done
s_cmp_ge_u32 s{st}, {target}
s_cbranch_scc1 {lab}_done
s_sleep {slp}
s_branch {lab}
{lab}_done:
""")
def ladd(a, vaddr, off, vone):
    a(f"s_mov_b64 exec, 1\nds_add_u32 v{vaddr}, v{vone} offset:{off}\ns_mov_b64 exec, -1")
def flag_store(a, srdn, soff, vep, vl128, mask="0xffff"):
    a(f"s_mov_b64 exec, {mask}\nbuffer_store_dword v{vep}, v{vl128}, s[{srdn}:{srdn+3}], s{soff} offen sc1\ns_mov_b64 exec, -1")
def wg_flag(a, lab, vaddr, off, vone, vt, st, srdn, soff, vep, vzero):
    a(f"""
s_mov_b64 exec, 1
ds_add_rtn_u32 v{vt}, v{vaddr}, v{vone} offset:{off}
s_waitcnt lgkmcnt(0)
v_readfirstlane_b32 s{st}, v{vt}
s_nop 3
s_cmp_eq_u32 s{st}, 3
s_cbranch_scc0 {lab}
buffer_store_dword v{vep}, v{vzero}, s[{srdn}:{srdn+3}], s{soff} offen sc1
{lab}:
s_mov_b64 exec, -1
""")

def ids2(a):
    if opt("rm", "3") in "12":
        CBMAP = f"s_lshr_b32 vcc_lo, s{sj}, 2\ns_add_u32 vcc_lo, vcc_lo, 3\ns_and_b32 vcc_lo, vcc_lo, 3\ns_and_b32 s{sg_cb}, s{sx}, 4\ns_add_u32 s{sg_cb}, s{sg_cb}, vcc_lo\ns_lshr_b32 vcc_lo, s{sj}, 4\ns_lshl3_add_u32 s{sg_cb}, vcc_lo, s{sg_cb}"
    else: CBMAP = f"s_lshr_b32 s{sg_cb}, s{sx}, 2\ns_lshl_b32 s{sg_cb}, s{sg_cb}, 3\ns_lshr_b32 vcc_lo, s{sj}, 2\ns_add_u32 s{sg_cb}, s{sg_cb}, vcc_lo"
    if opt("rm", "3") == "4": CBMAP += f"\ns_lshr_b32 vcc_lo, 0x820, s{sg_cb}\ns_bitcmp1_b32 vcc_lo, 0\ns_cselect_b32 vcc_lo, 14, 0\ns_xor_b32 s{sg_cb}, s{sg_cb}, vcc_lo"
    RBMAP = f"s_and_b32 s{sg_rb}, s{sx}, 3\ns_lshl_b32 s{sg_rb}, s{sg_rb}, 2\ns_and_b32 vcc_lo, s{sj}, 3\ns_add_u32 s{sg_rb}, s{sg_rb}, vcc_lo"
    if opt("gm", "0") == "1":
        RBMAP = f"s_mov_b32 s{sg_rb}, s{srb}"
        CBMAP = f"s_add_u32 s{sg_cb}, s{shq}, 2\ns_and_b32 s{sg_cb}, s{sg_cb}, 3\ns_and_b32 vcc_lo, s{shq}, 12\ns_add_u32 s{sg_cb}, s{sg_cb}, vcc_lo"
    if opt("gm", "0") == "2":
        RBMAP = f"s_and_b32 vcc_lo, s{sj}, 1\ns_lshl1_add_u32 s{sg_rb}, s{sx}, vcc_lo"
        CBMAP = f"s_lshr_b32 s{sg_cb}, s{sj}, 1"
    a(f"""
{RBMAP}
{CBMAP}
s_and_b32 s{sdb}, s{sj}, 15
s_lshr_b32 s{ssb}, s{sj}, 4
s_lshl_b32 vcc_lo, s{sx}, 1
s_add_u32 s{ssb}, s{ssb}, vcc_lo
s_lshl_b32 s{sch}, s{sx}, 5
s_add_u32 s{sch}, s{sch}, s{sj}
s_lshl_b32 s{sch}, s{sch}, 2
""")

def kernel(a):
    a(f"""
{KN}:
s_cmp_ge_u32 s2, 256
s_cbranch_scc1 L_exit
s_load_dwordx16 s[4:19], s[0:1], 0
s_load_dwordx8 s[20:27], s[0:1], 64
s_getpc_b64 s[48:49]
L_pc:
s_and_b32 s45, s2, 24
s_lshl_b32 s45, s45, 4
v_lshl_add_u32 v2, v0, 9, s45
v_cmp_gt_u32 vcc, L_code_end-L_pc-4, v2
s_and_saveexec_b64 s[50:51], vcc
s_cbranch_execz L_pf
global_load_dword v252, v2, s[48:49]
L_pf:
s_mov_b64 exec, s[50:51]
""")
    for i in range(10): a.stamp(i)
    a(f"""
v_lshrrev_b32 v1, 6, v0
v_and_b32 v4, 63, v0
v_readfirstlane_b32 s3, v1
v_lshlrev_b32 v5, 4, v4
s_and_b32 s{sx}, s2, 7
s_lshr_b32 s{sj}, s2, 3
s_and_b32 s{srb}, s{sx}, 1
s_lshl_b32 s{srb}, s{srb}, 3
s_and_b32 s40, s{sj}, 7
s_add_u32 s{srb}, s{srb}, s40
s_lshr_b32 s40, s{sx}, 1
""")
    if opt("rm", "3") in "134":
        a(f"""
s_and_b32 s41, s{sx}, 4
s_and_b32 s42, s{sx}, 2
s_lshl2_add_u32 s41, s42, s41
s_lshr_b32 s42, s{sj}, 3
s_add_u32 s{shq}, s41, s42
s_add_u32 s42, s42, 3
s_and_b32 s42, s42, 3
s_add_u32 s{shk}, s41, s42
""")
    else: a(f"""
s_lshl_b32 s41, s40, 2
s_lshr_b32 s42, s{sj}, 3
s_add_u32 s{shk}, s41, s42
s_add_u32 s42, s42, 1
s_and_b32 s42, s42, 3
s_add_u32 s{shq}, s41, s42
""")
    if KROT.startswith("f"):
        a_, b_, c_, d_ = [int(t) for t in KROT[1:].split("_")]
        a(f"s_mul_i32 s{sk0}, s{srb}, {a_}\ns_mul_i32 s41, s{shk}, {b_}\ns_add_u32 s{sk0}, s{sk0}, s41\ns_and_b32 s41, s{sx}, 1\ns_mul_i32 s41, s41, {c_}\ns_add_u32 s{sk0}, s{sk0}, s41\ns_mul_i32 s41, s40, {d_}\ns_add_u32 s{sk0}, s{sk0}, s41\ns_and_b32 s{sk0}, s{sk0}, 15")
    elif KROT == "q8":
        a(f"""
s_lshl_b32 s{sk0}, s40, 1
s_and_b32 s41, s{shk}, 1
s_add_u32 s{sk0}, s{sk0}, s41
s_lshl_b32 s41, s{sx}, 2
s_add_u32 s{sk0}, s{sk0}, s41
s_and_b32 s41, s{srb}, 3
s_add_u32 s{sk0}, s{sk0}, s41
s_and_b32 s{sk0}, s{sk0}, 7
s_lshl_b32 s{sk0}, s{sk0}, 1
""")
    elif KROT.startswith("g"):
        a_, b_, c_, d_, e_ = [int(t) for t in KROT[1:].split("_")]
        a(f"s_and_b32 s41, s{srb}, 1\ns_mul_i32 s{sk0}, s41, {a_}\ns_bfe_u32 s41, s{srb}, 0x10001\ns_mul_i32 s41, s41, {b_}\ns_add_u32 s{sk0}, s{sk0}, s41\ns_and_b32 s41, s{shk}, 1\ns_mul_i32 s41, s41, {c_}\ns_add_u32 s{sk0}, s{sk0}, s41")
        a(f"s_and_b32 s41, s{sx}, 1\ns_mul_i32 s41, s41, {d_}\ns_add_u32 s{sk0}, s{sk0}, s41\ns_mul_i32 s41, s40, {e_}\ns_add_u32 s{sk0}, s{sk0}, s41\ns_and_b32 s{sk0}, s{sk0}, 15")
    elif KROT in ("q8h", "q8i"):
        a(f"s_and_b32 s41, s{shk}, 1\ns_lshl_b32 s41, s41, 1\ns_sub_u32 s42, 14, s41\ns_bitcmp{1 if KROT == 'q8h' else 0}_b32 s{srb}, 0\ns_cselect_b32 s{sk0}, s42, s41")
        a(f"s_and_b32 s41, s{srb}, 2\ns_lshl2_add_u32 s{sk0}, s41, s{sk0}\ns_and_b32 s41, s{sx}, 1\ns_add_u32 s41, s41, s40\ns_lshl2_add_u32 s{sk0}, s41, s{sk0}\ns_and_b32 s{sk0}, s{sk0}, 15")
    elif KROT in ("q8e", "q8f", "q8g"):
        a(f"s_and_b32 s41, s{srb}, 1\ns_lshl_b32 s{sk0}, s41, 1\ns_and_b32 s41, s{srb}, 2\ns_lshl_b32 s41, s41, 2\ns_add_u32 s{sk0}, s{sk0}, s41\ns_and_b32 s41, s{sx}, 1\ns_lshl_b32 s41, s41, 2\ns_add_u32 s{sk0}, s{sk0}, s41")
        if KROT == "q8e": a(f"s_and_b32 s41, s{shk}, 1\ns_lshl_b32 s41, s41, 1\ns_sub_u32 s{sk0}, s{sk0}, s41")
        elif KROT == "q8f": a(f"s_and_b32 s41, s{shk}, 2\ns_sub_u32 s{sk0}, s{sk0}, s41")
        else: a(f"s_add_u32 s41, s{shk}, 1\ns_and_b32 s41, s41, 3\ns_add_u32 s{sk0}, s{sk0}, s41")
        a(f"s_lshl_b32 s41, s40, 2\ns_add_u32 s{sk0}, s{sk0}, s41\ns_and_b32 s{sk0}, s{sk0}, 15")
    elif KROT in ("q8b", "q8c", "q8d"):
        if KROT == "q8c": a(f"s_and_b32 s41, s{srb}, 1\ns_lshl_b32 s{sk0}, s41, 1\ns_and_b32 s41, s{srb}, 2\ns_lshl_b32 s41, s41, 2\ns_add_u32 s{sk0}, s{sk0}, s41\ns_and_b32 s41, s{sx}, 1\ns_lshl_b32 s41, s41, 2\ns_add_u32 s{sk0}, s{sk0}, s41")
        else: a(f"s_and_b32 s41, s{srb}, 3\ns_lshl_b32 s{sk0}, s41, 2\ns_and_b32 s41, s{sx}, 1\ns_lshl_b32 s41, s41, 1\ns_add_u32 s{sk0}, s{sk0}, s41")
        if KROT == "q8b": a(f"s_and_b32 s41, s{shk}, 1\ns_lshl_b32 s41, s41, 3\ns_add_u32 s{sk0}, s{sk0}, s41\ns_lshl_b32 s41, s40, 1\ns_add_u32 s{sk0}, s{sk0}, s41")
        else: a(f"s_and_b32 s41, s{shk}, 1\ns_lshl_b32 s41, s41, 1\ns_add_u32 s{sk0}, s{sk0}, s41\ns_lshl_b32 s41, s40, 2\ns_add_u32 s{sk0}, s{sk0}, s41")
        a(f"s_and_b32 s{sk0}, s{sk0}, 15")
    elif KROT == "q4c":
        a(f"""
s_and_b32 s41, s{sx}, 1
s_add_u32 s{sk0}, s40, s41
s_lshl_b32 s41, s{srb}, 1
s_add_u32 s{sk0}, s{sk0}, s41
s_and_b32 s{sk0}, s{sk0}, 3
s_lshl_b32 s{sk0}, s{sk0}, 2
""")
        SL = opt("sl", "0")
        if SL != "0":
            a(f"s_and_b32 s41, s{shk}, {7 if SL == '1' else 6}\ns_cmp_eq_u32 s41, {3 if SL == '1' else 2}\ns_cselect_b32 s41, 6, 0\ns_and_b32 s41, s41, s{srb}\ns_sub_u32 s{sk0}, s{sk0}, s41\ns_and_b32 s{sk0}, s{sk0}, 15")
    elif KROT == "q4":
        a(f"""
s_lshl_b32 s41, s{sx}, 1
s_add_u32 s{sk0}, s40, s41
s_and_b32 s41, s{srb}, 1
s_add_u32 s{sk0}, s{sk0}, s41
s_and_b32 s{sk0}, s{sk0}, 3
s_lshl_b32 s{sk0}, s{sk0}, 2
""")
    elif KROT == "q2":
        a(f"s_xor_b32 s41, s{sx}, s40\ns_and_b32 s41, s41, 1\ns_lshl_b32 s{sk0}, s41, 3")
    elif KROT == "q3":
        a(f"""
s_and_b32 s41, s{sx}, 1
s_lshl_b32 s41, s41, 1
s_add_u32 s{sk0}, s40, s41
s_and_b32 s41, s{srb}, 1
s_add_u32 s{sk0}, s{sk0}, s41
s_mul_i32 s41, s{sk0}, 11
s_lshr_b32 s41, s41, 5
s_mul_i32 s41, s41, 3
s_sub_u32 s{sk0}, s{sk0}, s41
s_mul_i32 s{sk0}, s{sk0}, 11
s_lshr_b32 s{sk0}, s{sk0}, 1
""")
    else: a(f"s_mov_b32 s{sk0}, 0")
    a.jon = True
    a("s_cmp_lt_u32 s3, 4\ns_cbranch_scc1 L_comp")
    aux(a)
    compute(a)
    a("L_exit:\ns_endpgm\nL_code_end:")

def inter2(a, mf, others, per=2):
    o = list(others)
    for m in mf:
        a(m)
        for _ in range(per):
            if o: a(o.pop(0))
    for x in o: a(x)
def inter3(a, mf, l1, n1, l2, n2):
    l1 = list(l1); l2 = list(l2)
    for m in mf:
        a(m)
        for _ in range(n2):
            if l2: a(l2.pop(0))
        for _ in range(n1):
            if l1: a(l1.pop(0))
    assert not l1 and not l2
class L:
    def __init__(s): s.l = []
    def __call__(s, t): s.l += [x.strip() for x in t.strip("\n").split("\n")]
def maskbuild(a, sm, st, lo=4, step=2):
    a(f"s_mov_b32 s{sm}, 0")
    for i in range(8): a(f"s_cmp_eq_u64 s[{lo+2*i}:{lo+1+2*i}], s[{sEP}:{sEP+1}]\ns_cselect_b32 s{st}, {1 << (step*i):#x}, 0\ns_or_b32 s{sm}, s{sm}, s{st}")

def compute(a):
    vAb, vA, vBb, vB = 8, 10, 12, 14
    vY, vPW = 20, 21
    X, Y, ACC = 24, 64, 104
    vOne, vZero, vEp, vT, vL128 = 232, 233, 234, 235, 254
    QT = lambda dt, mt: ACC + 4 * (mt * 2 + dt)
    KK = lambda mt, nt: ACC + 32 + 4 * ((nt * 2 + (mt >> 1)) * 2 + (mt & 1))
    VV = lambda mt, nt: ACC + 64 + 4 * ((nt * 2 + (mt >> 1)) * 2 + (mt & 1))
    GATE = opt("gate", "pq")
    a("L_comp:")
    a.sst(2)
    KR, WR, KF, WF, TM, VF, UT = 200, 242, 24, 68, 84, 56, 200
    VR = [222, 224, 226, 228, 230, 236, 238, 240]
    vP0, vP1, vP2, vTW = 16, 17, 18, 19
    ids2(a)
    a(f"""
s_lshl_b32 s45, s{ssb}, 18
s_lshl_b32 s46, s3, 16
s_add_u32 s45, s45, s46
s_lshl_b32 s46, s{sdb}, 7
s_add_u32 s45, s45, s46
v_lshrrev_b32 v2, 4, v4
v_and_b32 v1, 15, v4
v_lshlrev_b32 v3, 3, v1
v_lshl_add_u32 v{vP0}, v2, 14, v3
v_add_u32 v{vP0}, s45, v{vP0}
v_subrev_u32 v{vP1}, 6144, v{vP0}
s_movk_i32 s57, 4096
s_movk_i32 s58, 8192
s_movk_i32 s59, 12288
s_mov_b32 s62, {4*MB:#x}
s_mov_b32 s63, 0x20000
s_mov_b32 s66, {4*MB:#x}
s_mov_b32 s67, 0x20000
s_mov_b32 s70, 8192
s_mov_b32 s71, 0x20000
v_lshlrev_b32 v{vP2}, 5, v1
s_lshl_b32 s46, s{sdb}, 9
v_add_u32 v{vP2}, s46, v{vP2}
v_sub_u32 v3, 3, v2
s_lshl_b32 s45, s3, 2
s_sub_u32 s45, 12, s45
v_add_u32 v3, s45, v3
v_and_b32 v6, 7, v4
v_xor_b32 v3, v3, v6
v_lshlrev_b32 v3, 4, v3
v_lshl_add_u32 v3, v1, 10, v3
v_add_u32 v{vTW}, {HB}, v3
s_and_b32 s40, s3, 1
s_lshr_b32 s41, s3, 1
v_bfe_u32 v3, v4, 1, 3
v_xor_b32 v3, v2, v3
v_lshlrev_b32 v3, 4, v3
v_lshl_add_u32 v3, v1, 7, v3
s_lshl_b32 s45, s40, 13
v_add_u32 v{vAb}, s45, v3
v_xor_b32 v{vAb+1}, 64, v{vAb}
v_bfe_u32 v22, v4, 2, 2
v_lshl_add_u32 v3, v2, 3, v22
v_lshlrev_b32 v3, 7, v3
v_and_b32 v7, 3, v4
v_lshlrev_b32 v6, 3, v7
s_lshl_b32 s45, s41, 6
v_add_u32 v6, s45, v6
v_bfe_u32 v7, v4, 3, 1
v_lshlrev_b32 v7, 6, v7
v_xor_b32 v6, v6, v7
v_bfe_u32 v23, v4, 4, 1
v_lshlrev_b32 v7, 5, v23
v_xor_b32 v6, v6, v7
v_add_u32 v3, v3, v6
v_add_u32 v{vBb}, 0x4000, v3
v_xor_b32 v{vBb+1}, 32, v{vBb}
v_mov_b32 v{vB}, v{vBb}
v_mov_b32 v{vB+1}, v{vBb+1}
v_mov_b32 v{vA}, v{vAb}
v_mov_b32 v{vA+1}, v{vAb+1}
s_lshl_b32 s39, s40, 5
v_lshlrev_b32 v{vL128}, 7, v4
v_mov_b32 v{vY}, {SYNC}
v_mov_b32 v{vOne}, 1
v_mov_b32 v{vZero}, 0
v_lshlrev_b32 v6, 2, v4
v_add_u32 v6, {SYNC}, v6
ds_write_b32 v6, v{vZero}
s_lshl_b32 s45, s3, 2
v_add_u32 v{vPW}, s45, v{vY}
s_mov_b32 s53, 0
s_mov_b32 s56, 0xffff0000
s_waitcnt lgkmcnt(0)
{WSOFF}
s_mov_b64 s[60:61], s[{sK}:{sK+1}]
s_mov_b64 s[64:65], s[{sV}:{sV+1}]
s_mov_b64 s[68:69], s[{sSH}:{sSH+1}]
""")
    a.sst(3); a("s_barrier"); a.sst(4)
    so = ["0", "s57", "s58", "s59"]
    for r in range(3): a(f"buffer_load_dwordx2 {vr(KR+2*r,2)}, v{vP1}, s[60:63], {so[r//2]} offen offset:{2048*(r%2)} {FL_KV}")
    for r in range(8): a(f"buffer_load_dwordx2 {vr(KR+6+2*r,2)}, v{vP0}, s[60:63], {so[r//2]} offen offset:{2048*(r%2)} {FL_KV}")
    for i in range(2): a(f"buffer_load_dwordx4 {vr(WR+4*i,4)}, v{vP2}, s[68:71], 0 offen offset:{16*i}")
    for r in range(8): a(f"buffer_load_dwordx2 {vr(VR[r],2)}, v{vP0}, s[64:67], {so[r//2]} offen offset:{2048*(r%2)} {FL_KV}")
    a(f"v_xor_b32 v17, s39, v{vB}\nv_xor_b32 v18, s39, v{vB+1}")
    a.sst(5)
    a("s_barrier")
    a.stamp(1)
    A0, A1, BB = 24, 200, 56
    NORD = [2, 3, 4, 5, 0, 1]
    def rdA(A): return [f"ds_read_b128 {vr(A+8*mt+4*k2,4)}, v{vA+k2} offset:{2048*mt}" for mt in range(4) for k2 in range(2)]
    vV, BQ2 = 17, 236
    def rdB(g, dst=None):
        n = NORD[g]; dst = BB + 8 * g if dst is None else dst
        return [f"ds_read_b64_tr_b16 {vr(dst+4*k2+2*i2,2)}, v{(vV if n >= 4 else vB)+(n&1)} offset:{(n//2)*8192+k2*4096+i2*512}" for k2 in range(2) for i2 in range(2)]
    def grp(A, g, zero=False, B=None):
        r = []; B = BB + 8 * g if B is None else B
        for mt in range(4):
            for k2 in range(2):
                c = "0" if zero and k2 == 0 else None
                x, y = A + 8 * mt + 4 * k2, B + 4 * k2
                if g < 2: r.append(mfma16(KK(mt, g), x, y, c))
                elif g < 4: r.append(mfma16(VV(mt, g - 2), x, y, c))
                else: r.append(mfma16(QT(g - 4, mt), y, x, c))
        return r
    advs = [f"s_add_u32 s52, s52, {STG}", f"s_cmp_eq_u32 s52, {3*STG}", "s_cselect_b32 s52, 0, s52"]
    advv = [f"v_add_u32 v{vA}, s52, v{vAb}", f"v_add_u32 v{vA+1}, s52, v{vAb+1}", f"v_add_u32 v{vB}, s52, v{vBb}", f"v_add_u32 v{vB+1}, s52, v{vBb+1}",
            f"v_xor_b32 v{vV}, s39, v{vB}", f"v_xor_b32 v{vV+1}, s39, v{vB+1}"]
    for r in rdA(A0)[:2] + rdB(0) + rdA(A0)[2:] + rdB(1): a(r)
    a("s_mov_b32 s52, 0")
    w = L(); srd(w, 60, sWS, 32 * MB); srd(w, 68, sOUT, 8 * MB)
    vTR, vUS, TD = [1, 2, 3, 6], 16, 236
    UF = int(opt("uf", "2"))
    w(f"""
v_lshlrev_b32 v3, 12, v2
v_lshl_add_u32 v{vUS}, v1, 4, v3
s_lshl_b32 s45, s{sdb}, 18
s_lshl_b32 s46, s3, 16
s_add_u32 s45, s45, s46
s_lshl_b32 s46, s{ssb}, 8
s_sub_u32 s45, s45, s46
s_add_u32 s45, s45, {WS_UT + 3840}
v_add_u32 v{vUS}, s45, v{vUS}
s_lshl_b32 s45, s3, 12
s_add_u32 s45, s45, {HB}
v_add_u32 v1, s45, v5
s_lshl_b32 s45, s40, 6
v_xor_b32 v1, s45, v1
v_xor_b32 v2, 16, v1
v_xor_b32 v3, 32, v1
v_xor_b32 v6, 48, v1
s_movk_i32 s57, 0x4000
s_mov_b32 s58, 0x8000
s_mov_b32 s59, 0xc000
s_lshl_b32 s43, s{sdb}, 2
s_add_u32 s43, s43, s3
s_lshl_b32 s43, s43, 4
s_add_u32 s43, s43, s{ssb}
s_lshl_b32 s43, s43, 2
{FA(43, FL_U)}
s_movk_i32 s42, {1 + (1 << UF)}
""")
    a("s_waitcnt lgkmcnt(10)")
    m = grp(A0, 0, True)
    a(m[0]); a(m[1])
    for x in rdB(2): a(x)
    a("s_waitcnt lgkmcnt(8)")
    interleave(a, m[2:], rdB(3) + rdB(4)[:2])
    a("s_waitcnt lgkmcnt(10)")
    interleave(a, grp(A0, 1, True), rdB(4)[2:] + rdB(5))
    a("s_waitcnt lgkmcnt(0)")
    interleave(a, grp(A0, 2, True) + grp(A0, 3, True) + grp(A0, 4, True) + grp(A0, 5, True), advs + advv + w.l, 2)
    a("s_waitcnt vmcnt(10)")
    a.sst(6)
    unpack(a, KR, KF, 22, 56)
    a("s_waitcnt vmcnt(8)")
    for p in range(4):
        a(f"v_lshlrev_b32 v{WF+p}, 16, v{WR+2*p}\nv_and_b32 v{WF+4+p}, s56, v{WR+2*p}")
        a(f"v_lshlrev_b32 v{WF+8+p}, 16, v{WR+2*p+1}\nv_and_b32 v{WF+12+p}, s56, v{WR+2*p+1}")
    for i0 in range(0, 8, 2):
        ch = [(i, h) for i in (i0, i0 + 1) for h in range(2)]
        for c, (i, h) in enumerate(ch): a(f"v_pk_mul_f32 {vr(TM+2*c,2)}, {vr(KF+4*(i+3)+2*h,2)}, {vr(WF+2*h,2)}")
        for t in (2, 1):
            for c, (i, h) in enumerate(ch): a(f"v_pk_fma_f32 {vr(TM+2*c,2)}, {vr(KF+4*(i+t)+2*h,2)}, {vr(WF+4*(3-t)+2*h,2)}, {vr(TM+2*c,2)}")
        for c, (i, h) in enumerate(ch): a(f"v_pk_fma_f32 {vr(KF+4*i+2*h,2)}, {vr(KF+4*i+2*h,2)}, {vr(WF+12+2*h,2)}, {vr(TM+2*c,2)}")
    a("s_waitcnt vmcnt(0)")
    for r in range(8): unpack(a, VR[r], VF + 4 * r, 2, 56)
    for h in range(2):
        for i in range(8): a(f"v_pk_mul_f32 {vr(KF+4*i+2*h,2)}, {vr(KF+4*i+2*h,2)}, {vr(VF+4*i+2*h,2)}")
        for e in (2 * h, 2 * h + 1):
            for d in range(4): a(f"v_cvt_pk_bf16_f32 v{UT+4*e+d}, v{KF+4*(7-2*d)+e}, v{KF+4*(6-2*d)+e}")
            a(f"ds_write_b128 v{vTW}, {vr(UT+4*e,4)} offset:{256*e}")
    a("s_waitcnt lgkmcnt(0)\ns_barrier")
    for r in rdA(A0)[:2] + rdB(0) + rdA(A0)[2:]: a(r)
    a("s_waitcnt lgkmcnt(6)")
    for r in rdB(1) + rdB(2): a(r)
    a("s_waitcnt lgkmcnt(8)")
    for r in rdB(3) + rdB(4): a(r)
    a("s_waitcnt lgkmcnt(8)")
    for e in range(4): a(f"ds_read_b128 {vr(TD+4*e,4)}, v{vTR[e]} offset:{1024*e}")
    a("s_branch L_loop1\nL_side:\ns_cmp_eq_u32 s53, 0\ns_cbranch_scc0 L_side2")
    for e in range(4): a(f"buffer_store_dwordx4 {vr(TD+4*e,4)}, v{vUS}, s[60:63], {['0','s57','s58','s59'][e]} offen sc1")
    a(f"""
s_branch L_back
L_side2:
v_readfirstlane_b32 s{sEP}, v{vEp}
s_mov_b32 s45, 0
s_waitcnt vmcnt(0)
s_cmp_lg_u32 s{sEP}, 0
s_cbranch_scc1 L_cepok
L_cep:
ds_read_b32 v{vEp}, v{vY} offset:{Y_EP}
s_add_u32 s45, s45, 1
s_waitcnt lgkmcnt(0)
v_readfirstlane_b32 s{sEP}, v{vEp}
s_cmp_gt_u32 s45, 0x40000
s_cbranch_scc1 L_cepok
s_cmp_eq_u32 s{sEP}, 0
s_cbranch_scc1 L_cep
L_cepok:
s_mov_b32 s{sEP+1}, s{sEP}
""")
    flag_store(a, 60, 43, vEp, vL128)
    a(f"""
s_branch L_back
{opt("lal", "")}
L_loop1:
""")
    def stage(A, An, first, plain=False):
        interleave(a, grp(A, 0), rdB(5) + ["\n".join(advs)] + ["\n".join(advv[:2]), "\n".join(advv[2:4]), "\n".join(advv[4:])])
        m = grp(A, 1)
        a("s_waitcnt lgkmcnt(0)"); a(m[0]); a("s_barrier")
        interleave(a, m[1:], rdB(0) + rdA(An)[:3])
        interleave(a, grp(A, 2), rdB(1) + rdA(An)[3:7])
        interleave(a, grp(A, 3), rdB(2) + rdA(An)[7:] + (["s_bitcmp1_b32 s42, s53", "s_cbranch_scc1 L_side\nL_back:"] if first and not plain else []))
        interleave(a, grp(A, 4), rdB(3) + ([f"ds_read_b32 v{vEp}, v{vY} offset:{Y_EP}"] if first and not plain else []))
        interleave(a, grp(A, 5), ["s_waitcnt lgkmcnt(4)\n" + rdB(4)[0]] + rdB(4)[1:] + ([] if first else ["s_add_u32 s53, s53, 1", "s_cmp_lt_u32 s53, 6"]))
    stage(A0, A1, True); stage(A1, A0, False)
    a("s_cbranch_scc1 L_loop1")
    stage(A0, A1, True, True)
    PK, PV, ONES, T, KV, Z, R, PQ = ACC + 32, ACC + 64, ACC + 56, 56, 72, 64, ACC + 80, ACC
    pre = [f"s_mov_b32 s54, {LOG2E:#x}", f"s_mov_b32 s55, {LOG2E:#x}", f"s_mov_b32 s56, {EPS:#x}",
           f"s_lshl_b32 s57, s{shk}, 2", "s_add_u32 s57, s57, s3", "s_lshl_b32 s57, s57, 4", f"s_add_u32 s57, s57, s{srb}",
           "s_lshl_b32 s58, s57, 10", f"s_add_u32 s58, s58, {WS_KVP:#x}", "s_lshr_b32 s59, s57, 4", "s_lshl_b32 s59, s59, 11",
           f"s_lshl_b32 s45, s{srb}, 4", "s_add_u32 s59, s59, s45", f"s_add_u32 s59, s59, {WS_ZP:#x}", "s_lshr_b32 s57, s57, 4", "s_lshl_b32 s57, s57, 11", f"s_add_u32 s57, s57, {FL_P:#x}"]
    PROT = opt("prot", "1") == "1"
    pre += ["v_and_b32 v19, 7, v4", f"v_lshlrev_b32 v19, {1 if PROT else 4}, v19", f"v_sub_u32 v19, s{srb}, v19", "v_and_b32 v19, 15, v19", f"v_lshl_add_u32 v19, v19, 2, v{vL128}"]
    pre += ["s_lshl_b32 s45, s3, 11", f"s_add_u32 s45, s45, {XCH}", "v_add_u32 v6, s45, v5", "v_xor_b32 v7, 2048, v6", "s_lshl_b32 s45, s3, 7", f"s_add_u32 s45, s45, {ZX}",
            "v_and_b32 v3, 0x30, v4", "v_add_u32 v16, s45, v3", "v_xor_b32 v253, 128, v16", f"v_xor_b32 v255, 4, v{vPW}"]
    interleave(a, grp(A1, 0), rdB(5) + ["\n".join(advs)] + ["\n".join(advv[:2]), "\n".join(advv[2:4]), "\n".join(advv[4:])])
    m = grp(A1, 1)
    a("s_waitcnt lgkmcnt(0)"); a(m[0]); a("s_barrier")
    interleave(a, m[1:], rdB(0) + rdA(A0)[:3])
    inter3(a, grp(A1, 2) + grp(A1, 3), pre, 3, rdB(1) + rdA(A0)[3:8] + rdB(2), 1)
    a("s_waitcnt lgkmcnt(4)")
    interleave(a, grp(A0, 0) + grp(A0, 1)[:2], rdB(3) + rdB(4, BQ2) + rdB(5, BQ2 + 8), 2)
    a(f"s_waitcnt lgkmcnt(0)\nds_write_b32 v{vPW}, v{vOne} offset:{Y_FR}")
    w = L(); phi_pack_np(w, PK, PK, 16, T, 54, 56)
    P1 = opt("p1", "0") == "1"
    if P1: phi_pack_np(w, PK + 16, PK + 16, 16, T, 54, 56)
    inter2(a, grp(A0, 1)[2:] + grp(A0, 2) + grp(A0, 3), w.l, int(opt("kfi", "3")))
    a.stamp(2)
    a(f"s_setprio {opt('cprio', '2')}")
    pk1 = phi_pack if GATE != "none" else phi_pack_np
    pack(a, PV, PV, 32)
    ON0 = ACC + 40
    for i in range(4): a(f"v_mov_b32 v{ON0+i}, 0x3f803f80")
    for dt in range(2):
        if dt == 1:
            w = L(); pk1(w, PK + 16, PK + 16, 16, T, 54, 56)
            k = len(w.l) // 2
            for x in w.l[:k]: a(x)
            a(f"ds_write_b128 v6, {vr(KV+8,4)}\nds_write_b128 v16, {vr(Z,4)}")
            for x in w.l[k:]: a(x)
        a("s_nop 1")
        for p in range(2):
            c = "0" if p == 0 else None
            a(mfma16(KV + 4 * (2 + dt), PK + 16 * dt + 4 * p, PV + 8 + 4 * p, c))
            a(mfma16(Z + 4 * dt, PK + 16 * dt + 4 * p, ON0, c))
            a(mfma16(KV + 4 * dt, PK + 16 * dt + 4 * p, PV + 4 * p, c))
    KST = opt("kst", "0") == "1"
    if KST: a.stamp(7)
    for i in range(4): a(f"v_mov_b32 v{ONES+i}, 0x3f803f80")
    a(f"s_nop 1\nds_write_b128 v6, {vr(KV+12,4)} offset:1024\nds_write_b128 v16, {vr(Z+4,4)} offset:64")
    a(f"""
ds_write_b32 v{vPW}, v{vOne} offset:{Y_XC}
s_mov_b32 s45, 0
L_xspin:
ds_read_b32 v{vT}, v255 offset:{Y_XC}
ds_read_b128 {vr(R,4)}, v7
ds_read_b128 {vr(R+4,4)}, v7 offset:1024
ds_read_b128 {vr(R+8,4)}, v253
ds_read_b128 {vr(R+12,4)}, v253 offset:64
s_add_u32 s45, s45, 1
s_waitcnt lgkmcnt(4)
v_readfirstlane_b32 s46, v{vT}
s_cmp_gt_u32 s45, 0x40000
s_cbranch_scc1 L_xdone
s_cmp_eq_u32 s46, 0
s_cbranch_scc1 L_xspin
L_xdone:
s_waitcnt lgkmcnt(2)
""")
    if KST: a.stamp(8)
    def add8(d, r):
        if GATE != "none":
            for i in range(4): a(f"v_pk_add_f32 {vr(d+2*i,2)}, {vr(d+2*i,2)}, {vr(r+2*i,2)}")
        else:
            for i in range(8): a(f"v_add_f32 v{d+i}, v{d+i}, v{r+i}")
    add8(KV, R)
    pack(a, KV, KV + 8, 8)
    a(f"buffer_store_dwordx4 {vr(KV+8,4)}, v5, s[60:63], s58 offen sc1")
    a("s_waitcnt lgkmcnt(0)")
    add8(Z, R + 8)
    pack(a, Z, KV + 12, 8)
    a("s_mov_b32 exec_lo, 0x10001\ns_mov_b32 exec_hi, 0x10001")
    a(f"buffer_store_dwordx4 {vr(KV+12,4)}, v5, s[60:63], s59 offen sc1")
    a("s_mov_b64 exec, -1")
    if GATE == "kv": a(f"ds_write_b32 v{vPW}, v{vOne} offset:{Y_KD}")
    a.stamp(3)
    PP, AC, ZZ, SEL, D1, B2, DN, EQ, KO, KP = 24, 88, 96, 8, 184, 136, 212, 168, 172, 176
    T = 204
    PS = opt("ps", "0") == "1"
    if PS: PQ = 180
    su = L()
    su(f"""
s_lshl_b32 s47, s{shq}, 1
s_add_u32 s47, s47, s41
s_lshl_b32 s44, s{shq}, 2
s_add_u32 s44, s44, s3
s_lshl_b32 s58, s44, 14
s_add_u32 s58, s58, {WS_KVP:#x}
s_lshl_b32 s59, s44, 11
s_add_u32 s59, s59, {WS_ZP:#x}
s_lshl_b32 s44, s44, 6
{FC(44, FL_P, srb)}
s_lshl_b32 s45, s41, 2
v_add_u32 v14, s45, v{vY}
v_mov_b32 v6, 0x3f80
v_and_b32 v7, 1, v4
v_lshlrev_b32 v7, 4, v7
v_lshlrev_b32 v6, v7, v6
v_lshrrev_b32 v2, 4, v4
v_cmp_eq_u32 vcc, v2, v22
v_bfe_u32 v7, v4, 1, 1
v_mov_b32 v{SEL}, 0
v_cndmask_b32 v6, 0, v6, vcc
v_cmp_eq_u32 vcc, 0, v7
v_mov_b32 v{SEL+1}, 0
v_mov_b32 v{SEL+4}, 0
v_cndmask_b32 v{SEL+2}, 0, v6, vcc
v_cndmask_b32 v{SEL+3}, v6, v{vZero}, vcc
v_mov_b32 v{SEL+5}, 0
s_lshl_b32 s45, s3, 10
s_add_u32 s45, s45, {KVL}
v_add_u32 v6, s45, v5
s_xor_b32 s45, s3, 1
s_lshl_b32 s45, s45, 10
s_add_u32 s45, s45, {KVL}
v_add_u32 v7, s45, v5
s_lshl_b32 s48, s{srb}, 3
s_lshl_b32 s45, s40, 2
s_add_u32 s48, s48, s45
s_lshl_b32 s48, s48, 15
s_lshl_b32 s45, s47, 10
s_add_u32 s48, s48, s45
s_add_u32 s48, s48, {WS_O:#x}
s_lshl_b32 s49, s{srb}, 1
s_add_u32 s49, s49, s40
s_lshl_b32 s49, s49, 7
s_lshl_b32 s45, s47, 2
s_add_u32 s49, s49, s45
{FA(49, FL_O)}
s_mov_b32 s50, 0
s_mov_b32 s51, 0
s_mov_b32 s53, 0
s_mov_b32 s46, 0
s_and_b32 s43, s{srb}, {7 if PROT else 0}
""")
    gq = [grp(A1, 4), grp(A0, 4, B=BQ2), grp(A1, 5), grp(A0, 5, B=BQ2 + 8)]
    qm = [x for mt in range(4) for g in gq for x in g[2 * mt:2 * mt + 2]]
    inter2(a, qm, su.l, 2)
    phiq = phi_keep if PS else phi_pack if GATE == "pq" else phi_pack_np
    NQ1 = int(opt("nq1", "1"))
    if NQ1: phiq(a, ACC, PQ, 8 * NQ1, T, 54, 56)
    a("s_waitcnt vmcnt(0)")
    flag_store(a, 60, 57, vEp, 19)
    a(f"s_load_dwordx16 s[4:19], s[{sWS}:{sWS+1}], s44 glc")
    a.stamp(4)
    for mt in range(NQ1, 4): phiq(a, ACC + 8 * mt, PQ + 4 * mt, 8, T, 54, 56)
    if GATE == "pq": a(f"ds_write_b32 v{vPW}, v{vOne} offset:{Y_KD}")
    for i in range(4): a(f"v_mov_b64 {vr(AC+2*i,2)}, 0\nv_mov_b64 {vr(B2+4*i+2,2)}, 0\nv_mov_b32 v{EQ+i}, s56")
    a("s_setprio 3")
    def accm(j):
        for i in range(2):
            a(mfma16(AC, SEL + 2, PP + 8 * j + 4 * i)); a(mfma16(AC + 4, SEL, PP + 8 * j + 4 * i))
    for k in range(8):
        a(f"s_cmp_eq_u32 s46, 0\ns_cbranch_scc1 L_poll{k}\nL_go{k}:\ns_ff1_i32_b32 s45, s46\ns_bitset0_b32 s46, s45\ns_add_u32 s45, s45, s43\ns_and_b32 s45, s45, 7\ns_lshl_b32 s45, s45, 11\ns_add_u32 s45, s45, s58")
        for i in range(2): a(f"buffer_load_dwordx4 {vr(PP+8*k+4*i,4)}, v5, s[60:63], s45 offen offset:{1024*i} sc1")
        a(f"s_bitset1_b32 s51, {k}")
    a("s_branch L_fin")
    for k in range(8):
        a(f"L_poll{k}:\ns_waitcnt lgkmcnt(0)")
        for i in range(7, -1, -1): a(f"s_cmp_eq_u64 s[{4+2*i}:{5+2*i}], s[{sEP}:{sEP+1}]\ns_addc_u32 s46, s46, s46")
        a(f"""
s_add_u32 s53, s53, 1
s_cmp_gt_u32 s53, 0x8000
s_cselect_b32 s46, 0xff, s46
s_andn2_b32 s46, s46, s50
s_or_b32 s50, s50, s46
s_cmp_eq_u32 s50, 0xff
s_cbranch_scc0 L_pm{k}
buffer_load_dwordx4 {vr(ZZ,4)}, v5, s[60:63], s59 offen sc1
s_mov_b32 s47, s51
s_mov_b32 s52, {k}
""")
        if STAMP: a.stamp(5)
        a(f"""
s_branch L_go{k}
L_pm{k}:
s_load_dwordx16 s[4:19], s[{sWS}:{sWS+1}], s44 glc
s_cmp_lg_u32 s46, 0
s_cbranch_scc1 L_go{k}
""")
        if k == 0: a("s_branch L_poll0")
        else: a(f"s_cmp_eq_u32 s51, 0\ns_cbranch_scc1 L_poll{k}\ns_mov_b32 s52, {k}\ns_branch L_acc")
    a("L_acc:\ns_waitcnt vmcnt(0)")
    for j in range(7):
        a(f"s_bitcmp1_b32 s51, {j}\ns_cbranch_scc0 L_ac{j}"); accm(j); a(f"L_ac{j}:")
    a("s_mov_b32 s51, 0")
    for k in range(1, 7): a(f"s_cmp_eq_u32 s52, {k}\ns_cbranch_scc1 L_poll{k}")
    a("s_branch L_poll7\nL_fin:")
    a("s_cmp_eq_u32 s47, 0\ns_cbranch_scc1 L_pz")
    for k in range(1, 7): a(f"s_cmp_eq_u32 s52, {k}\ns_cbranch_scc1 L_pv{k}")
    a("s_waitcnt vmcnt(3)\ns_branch L_pvd")
    for k in range(1, 7): a(f"L_pv{k}:\ns_waitcnt vmcnt({2*(8-k)+1})" + ("\ns_branch L_pvd" if k < 6 else ""))
    a("L_pvd:")
    for j in range(7):
        a(f"s_bitcmp1_b32 s47, {j}\ns_cbranch_scc0 L_ao{j}"); accm(j); a(f"L_ao{j}:")
    a("L_pz:")
    OST = opt("ost", "0") == "1"
    NOG = OST or KST
    for k in range(7): a(f"s_cmp_eq_u32 s52, {k}\ns_cbranch_scc1 L_pw{k}")
    a("s_waitcnt vmcnt(2)\ns_branch L_pwd")
    for k in range(7): a(f"L_pw{k}:\ns_waitcnt vmcnt({2*(8-k)})" + ("\ns_branch L_pwd" if k < 6 else ""))
    a("L_pwd:")
    if OST: a.stamp(7)
    for i in range(4): a(mfma16(D1 + 4 * i, ZZ, PQ + 4 * i, "0"))
    a("s_nop 4")
    for i in range(4): a(f"v_cvt_pk_bf16_f32 v{B2+4*i}, v{D1+4*i}, v{D1+4*i+1}\nv_cvt_pk_bf16_f32 v{B2+4*i+1}, v{D1+4*i+2}, v{D1+4*i+3}")
    a("s_nop 0")
    for i in range(4): a(mfma16(DN + 4 * i, ONES, B2 + 4 * i, vr(EQ, 4)))
    if PS:
        a("s_nop 4")
        for i in range(4): a(f"v_rcp_f32 v{DN+4*i}, v{DN+4*i}")
        for i in range(4):
            for p in range(8): a(f"v_mul_f32 v{ACC+8*i+p}, v{ACC+8*i+p}, v{DN+4*i}")
            pack(a, ACC + 8 * i, PQ + 4 * i, 8)
    for k in range(7, 0, -1): a(f"s_cmp_eq_u32 s52, {k}\ns_cbranch_scc1 L_an{k}")
    for j in range(8):
        a(f"L_an{j}:\ns_waitcnt vmcnt({2*(7-j)})"); accm(j)
    if OST: a.stamp(8)
    if PS: a("s_nop 7")
    else:
        a("s_nop 3")
        for i in range(4): a(f"v_rcp_f32 v{DN+4*i}, v{DN+4*i}")
    pack(a, AC, KO, 8)
    NO, NP, OP = 24, 40, 56
    a(f"ds_write_b128 v6, {vr(KO,4)}\nds_write_b32 v{vPW}, v{vOne} offset:{Y_K2}\nds_read_b32 v{vT}, v255 offset:{Y_K2}\nds_read_b128 {vr(KP,4)}, v7")
    for i in range(4): a(mfma16(NO + 4 * i, KO, PQ + 4 * i, "0"))
    a("s_mov_b32 s45, 0\ns_nop 3\ns_cmp_eq_u32 s40, 0")
    OPK = opt("opk", "0") == "1"
    def mul4(r, d):
        if PS: return
        if OPK:
            for p in range(2): a(f"v_pk_mul_f32 {vr(r+2*p,2)}, {vr(r+2*p,2)}, {vr(d,2)} op_sel_hi:[1,0]")
        else:
            for p in range(4): a(f"v_mul_f32 v{r+p}, v{r+p}, v{d}")
    for i in range(4): mul4(NO + 4 * i, DN + 4 * i)
    a("s_cbranch_scc0 L_o1")
    for wr in range(2):
        if wr: a("L_o1:")
        for i in range(4): pack(a, NO + 4 * i, OP + 4 * i + 2 * wr, 4)
        a(f"""
s_branch L_ks{wr}g
L_ks{wr}:
ds_read_b32 v{vT}, v255 offset:{Y_K2}
ds_read_b128 {vr(KP,4)}, v7
L_ks{wr}g:
s_add_u32 s45, s45, 1
s_waitcnt lgkmcnt(0)
v_readfirstlane_b32 s46, v{vT}
s_cmp_gt_u32 s45, 0x40000
s_cbranch_scc1 L_kd{wr}
s_cmp_eq_u32 s46, 0
s_cbranch_scc1 L_ks{wr}
L_kd{wr}:
""")
        for i in range(4): a(mfma16(NP + 4 * i, KP, PQ + 4 * i, "0"))
        a("s_nop 4")
        for i in range(4):
            if PS and i: a("s_nop 0")
            mul4(NP + 4 * i, DN + 4 * i)
            pack(a, NP + 4 * i, OP + 4 * i + 2 * (1 - wr), 4)
            a(f"buffer_store_dwordx4 {vr(OP+4*i,4)}, v5, s[60:63], s48 offen sc1")
            if i < 3: a("s_add_u32 s48, s48, 0x8000")
        if wr == 0: a("s_branch L_o2")
    a("L_o2:")
    if GATE == "o": a(f"ds_write_b32 v{vPW}, v{vOne} offset:{Y_KD}")
    a.stamp(9)
    OF, WX, WY, C, PO = 24, 88, 104, 120, 172
    vWb, vWA, vWB = 236, 8, 244
    a(f"""
s_lshl_b32 s59, s{sg_rb}, 3
s_lshl_b32 s45, s3, 1
s_add_u32 s59, s59, s45
s_lshl_b32 s45, s59, 15
s_add_u32 s45, s45, {WS_O:#x}
v_add_u32 v242, 0x8000, v5
s_mov_b32 s51, 0x55555555
""")
    srd_off(a, 64, sWS, "s45", 65536)
    a(f"""
s_lshl_b32 s52, s{sg_rb}, 8
s_lshl_b32 s46, s3, 6
s_add_u32 s52, s52, s46
{FC(52, FL_O, sg_cb)}
v_lshrrev_b32 v6, 2, v4
v_lshlrev_b32 v6, 7, v6
v_and_b32 v7, 3, v4
v_lshl_add_u32 v6, v7, 3, v6
v_bfe_u32 v7, v4, 3, 1
v_lshl_add_u32 v6, v7, 6, v6
v_lshl_add_u32 v{vWb}, v23, 5, v6
v_xor_b32 v{vWb+1}, 32, v{vWb}
v_xor_b32 v{vWb+2}, 64, v{vWb}
v_xor_b32 v{vWb+3}, 0x60, v{vWb}
s_lshl_b32 s57, s3, 11
s_add_u32 s57, s57, {XCH}
v_lshrrev_b32 v7, 5, v4
v_lshl_add_u32 v6, v23, 1, v7
v_and_b32 v7, 7, v4
v_xor_b32 v6, v6, v7
v_lshlrev_b32 v6, 4, v6
v_and_b32 v3, 15, v4
v_lshl_add_u32 v6, v3, 7, v6
v_add_u32 v15, s57, v6
v_xor_b32 v18, 64, v15
v_lshrrev_b32 v6, 3, v4
v_lshlrev_b32 v3, 4, v7
v_lshl_add_u32 v17, v6, 12, v3
v_xor_b32 v7, v7, v6
v_lshlrev_b32 v7, 4, v7
v_lshl_add_u32 v6, v6, 7, v7
v_add_u32 v16, s57, v6
s_mov_b32 s50, 0
s_mov_b32 s53, 0
s_mov_b32 s54, 0
s_lshl_b32 s55, s40, 4
s_and_b32 s42, s{sg_rb}, {3 if opt("wrot", "1") == "1" else 0}
s_lshl_b32 s42, s42, 3
""")
    for i in range(10): a(f"v_mov_b64 {vr(C+2*i,2)}, 0")
    a(f"s_load_dwordx16 s[4:19], s[{sWS}:{sWS+1}], s52 glc")
    for i in range(10, 16): a(f"v_mov_b64 {vr(C+2*i,2)}, 0")
    a("s_waitcnt vmcnt(0)")
    flag_store(a, 60, 49, vEp, vL128)
    a.stamp(6)
    a("s_waitcnt lgkmcnt(0)")
    maskbuild(a, 54, 46)
    a(f"s_lshl_b32 s46, s54, s55\ns_mov_b32 s47, s46\ns_lshr_b64 s[46:47], s[46:47], s42\nv_mov_b32 v{vT}, s46\ns_mov_b64 exec, 1\nds_or_b32 v14, v{vT} offset:{Y_CO}\ns_mov_b64 exec, -1")
    a(f"s_setprio {opt('gprio', '2')}")
    if opt("og", "0") == "1":
        a(f"""
ds_write_b32 v{vPW}, v{vOne} offset:160
s_mov_b32 s45, 0
L_og:
ds_read_b128 v[152:155], v{vY} offset:160
s_add_u32 s45, s45, 1
s_waitcnt lgkmcnt(0)
v_and_b32 v152, v152, v153
v_and_b32 v154, v154, v155
v_and_b32 v152, v152, v154
s_cmp_gt_u32 s45, 0x40000
s_cbranch_scc1 L_ogd
v_readfirstlane_b32 s46, v152
s_nop 3
s_cmp_eq_u32 s46, 0
s_cbranch_scc1 L_og
L_ogd:
""")
    selno = [0]
    def select(slot):
        n = selno[0]; selno[0] += 1
        a(f"""
s_cmp_lg_u32 s50, 0
s_cbranch_scc1 L_sel{n}_ok
s_mov_b32 s45, 0
s_cmp_lg_u32 s51, 0
s_cbranch_scc1 L_sel{n}
s_mov_b32 s66, 0
s_mov_b32 s50, 0x55555555
s_branch L_sel{n}_ok
L_sel{n}:
ds_read_b32 v{vT}, v14 offset:{Y_CO}
ds_read_b32 v13, v{vY} offset:{Y_WM}
s_add_u32 s45, s45, 1
s_waitcnt lgkmcnt(0)
v_and_b32 v13, v13, v{vT}
s_cmp_gt_u32 s45, 0x40000
s_cselect_b32 s46, -1, 0
v_readfirstlane_b32 s50, v13
s_nop 3
s_or_b32 s50, s50, s46
s_and_b32 s50, s50, s51
s_cbranch_scc1 L_sel{n}_ok
s_cmp_lg_u32 s54, 0x5555
s_cbranch_scc1 L_sel{n}_p
s_sleep 1
s_branch L_sel{n}
L_sel{n}_p:
s_load_dwordx16 s[4:19], s[{sWS}:{sWS+1}], s52 glc
s_add_u32 s45, s45, 8
s_waitcnt lgkmcnt(0)
""")
        maskbuild(a, 54, 46)
        a(f"s_lshl_b32 s46, s54, s55\ns_mov_b32 s47, s46\ns_lshr_b64 s[46:47], s[46:47], s42\nv_mov_b32 v{vT}, s46\ns_mov_b64 exec, 1\nds_or_b32 v14, v{vT} offset:{Y_CO}\ns_mov_b64 exec, -1")
        a(f"s_branch L_sel{n}\nL_sel{n}_ok:")
        return [f"s_ff1_i32_b32 s46, s50", "s_bitset0_b32 s50, s46\ns_add_u32 s48, s46, s42", "s_and_b32 s48, s48, 31\ns_lshl_b32 s48, s48, 10", "s_bitset0_b32 s51, s46", f"s_lshl_b32 s{28+slot}, s46, 12"]
    def oload(slot):
        return [f"buffer_load_dwordx4 {vr(OF+16*slot+8*hh+4*rt,4)}, v{[5,242][rt]}, s[64:67], s48 offen offset:{1024*hh} {OSC}" for hh in range(2) for rt in range(2)]
    def wreads(S, hh, vw):
        return [f"ds_read_b64_tr_b16 {vr(S+4*ct+2*i2,2)}, v{vw+ct} offset:{hh*4096+i2*2048}" for ct in range(4) for i2 in range(2)]
    def wset(slot, vw): return [f"v_add_u32 v{vw+i}, s{28+slot}, v{vWb+i}" for i in range(4)]
    for sl in range(3):
        for x in select(sl): a(x)
        if sl == 0 and not NOG: a.stamp(7)
        if sl == 0 and opt("lat", "0") == "1": a("s_waitcnt lgkmcnt(0)\ns_mov_b32 s94, s50\ns_bitset1_b32 s94, s46")
        for x in oload(sl): a(x)
    for x in wset(0, vWA): a(x)
    for r in wreads(WX, 0, vWA): a(r)
    a("L_gloop:")
    for u in range(4):
        cur, nxt = (vWA, vWB) if u % 2 == 0 else (vWB, vWA)
        sel = select((u + 3) % 4)
        ol = oload((u + 3) % 4)
        a("s_waitcnt vmcnt(10) lgkmcnt(0)")
        if TRACE: a("s_memrealtime s[100:101]")
        m = [mfma16(C + 4 * (rt * 4 + ct), WX + 4 * ct, OF + 16 * u + 4 * rt) for rt in range(2) for ct in range(4)]
        interleave(a, m, wreads(WY, 1, cur) + wset((u + 1) % 4, nxt) + sel[:4], 2)
        a("s_waitcnt vmcnt(8) lgkmcnt(0)")
        if TRACE: a(f"s_lshl_b32 m0, s53, 2\ns_add_u32 m0, m0, {u}\ns_nop 0\nv_writelane_b32 v252, s100, m0")
        m = [mfma16(C + 4 * (rt * 4 + ct), WY + 4 * ct, OF + 16 * u + 8 + 4 * rt) for rt in range(2) for ct in range(4)]
        if u == 3: oth = wreads(WX, 0, nxt) + [ol[0], ol[1], sel[4], ol[2], "s_add_u32 s53, s53, 1", ol[3], "s_cmp_lt_u32 s53, 4"]
        else: oth = wreads(WX, 0, nxt) + [ol[0], sel[4], ol[1]] + [None, ol[2], None, ol[3]]
        o2 = list(oth)
        for mm in m:
            a(mm)
            for _ in range(2):
                if o2:
                    x = o2.pop(0)
                    if x: a(x)
        for x in o2:
            if x: a(x)
    a("s_cbranch_scc1 L_gloop")
    if not NOG: a.stamp(8)
    a(f"""
s_lshl_b32 s48, s59, 16
s_lshl_b32 s49, s{sg_cb}, 7
s_add_u32 s48, s48, s49
s_add_u32 s49, s48, 0x8000
s_add_u32 s50, s48, 0x10000
s_add_u32 s51, s48, 0x18000
s_waitcnt lgkmcnt(0)
""")
    pack(a, C, PO, 32)
    a("s_nop 1")
    for q in range(4):
        a(f"v_permlane16_swap_b32 v{PO+4*q}, v{PO+4*q+2}\nv_permlane16_swap_b32 v{PO+4*q+1}, v{PO+4*q+3}")
    for rt in range(2):
        for qq in range(2): a(f"ds_write_b128 v{[15,18][qq]}, {vr(PO+8*rt+4*qq,4)}")
        for i in range(2): a(f"ds_read_b128 {vr(WX+8*rt+4*i,4)}, v16 offset:{1024*i}")
    for q in range(4):
        a(f"s_waitcnt lgkmcnt({[5,4,1,0][q]})")
        a(f"buffer_store_dwordx4 {vr(WX+4*q,4)}, v17, s[68:71], s{48+q} offen {FL_OUT}")
    if TRACE:
        a(f"v_writelane_b32 v252, s90, 16\ns_lshl_b32 s100, s2, 10\ns_add_u32 s100, s100, {WS_ST + 0x200000:#x}\nv_lshlrev_b32 v253, 2, v0\nbuffer_store_dword v252, v253, s[60:63], s100 offen")
    a.end()

def aux(a):
    vOA, vOB = 8, 12
    vZero, vEp, vOne, vY, vT = 6, 7, 14, 15, 3
    a(f"""
s_sub_u32 s3, s3, 4
v_lshrrev_b32 v1, 3, v4
v_and_b32 v2, 7, v4
v_lshrrev_b32 v3, 4, v4
v_xor_b32 v6, v2, v3
v_lshlrev_b32 v6, 4, v6
v_lshl_add_u32 v6, v1, 11, v6
s_lshl_b32 s60, s{srb}, 7
s_lshl_b32 s61, s3, 5
s_add_u32 s60, s60, s61
s_lshl_b32 s60, s60, 11
v_add_u32 v{vOA}, s60, v6
v_xor_b32 v6, 64, v{vOA}
v_add_u32 v{vOA+1}, {16384-1024}, v6
v_add_u32 v{vOA+2}, {2*(16384-1024)}, v{vOA}
v_add_u32 v{vOA+3}, {3*(16384-1024)}, v6
v_and_b32 v3, 1, v3
v_lshlrev_b32 v3, 2, v3
v_xor_b32 v7, v2, v3
v_lshlrev_b32 v7, 4, v7
v_xor_b32 v6, 32, v7
s_movk_i32 s61, 6144
v_mad_u32_u24 v7, v1, s61, v7
v_mad_u32_u24 v6, v1, s61, v6
s_mul_i32 s60, s3, {16*6144}
v_add_u32 v{vOB}, s60, v7
s_add_u32 s60, s60, {8*6144-1024}
v_add_u32 v{vOB+1}, s60, v6
s_lshl_b32 s65, s3, 12
s_lshl_b32 s66, s3, 11
s_add_u32 s66, s66, 0x4000
s_mov_b32 s64, 0
s_mov_b32 s67, s{sk0}
s_lshl_b32 s74, s{shq}, 7
s_lshl_b32 s75, s{shk}, 7
s_add_u32 s75, s75, 2048
s_mov_b32 s42, {4*MB:#x}
s_mov_b32 s43, 0x20000
s_mov_b32 s46, {6*MB:#x}
s_mov_b32 s47, 0x20000
s_waitcnt lgkmcnt(0)
s_mov_b64 s[40:41], s[{sX}:{sX+1}]
s_mov_b64 s[44:45], s[{sW}:{sW+1}]
""")
    vm = VM(a)
    def issue(tag):
        a(f"s_add_u32 m0, s64, s65\ns_lshl_b32 s60, s67, 7\ns_mul_i32 s63, s67, {64*6144}")
        for i in range(4): a(f"buffer_load_dwordx4 v{vOA+i}, s[40:43], s60 offen offset:{1024*i} {FL_XW} lds")
        a(f"s_add_u32 m0, s64, s66\ns_add_u32 s61, s63, s74\ns_add_u32 s62, s63, s75")
        for i in range(2): a(f"buffer_load_dwordx4 v{vOB+i}, s[44:47], s61 offen offset:{1024*i} {FL_XW} lds")
        a(f"s_add_u32 m0, m0, 8192\ns_add_u32 s63, s62, 2048")
        for i in range(2): a(f"buffer_load_dwordx4 v{vOB+i}, s[44:47], s62 offen offset:{1024*i} {FL_XW} lds")
        a(f"s_add_u32 m0, m0, 8192\ns_add_u32 s67, s67, 1")
        for i in range(2): a(f"buffer_load_dwordx4 v{vOB+i}, s[44:47], s63 offen offset:{1024*i} {FL_XW} lds")
        a(f"s_and_b32 s67, s67, 15\ns_add_u32 s64, s64, {STG}\ns_cmp_eq_u32 s64, {3*STG}\ns_cselect_b32 s64, 0, s64")
        vm.issue(tag, 10)
    def B(i): vm.wait(i); a.bar()
    a.sst(2)
    issue(0)
    a.sst(3)
    a("s_barrier")
    a.sst(4)
    ids2(a)
    a(f"v_mov_b32 v{vZero}, 0\nv_mov_b32 v{vOne}, 1\nv_mov_b32 v{vY}, {SYNC}\nv_lshlrev_b32 v255, 7, v4\n{WSOFF}")
    srd(a, 48, sWS, 32 * MB)
    srd(a, 52, sDBG, 256)
    a(f"""
s_or_b32 s60, s2, s3
s_cmp_eq_u32 s60, 0
s_cbranch_scc0 L_noep
s_memrealtime s[60:61]
s_waitcnt lgkmcnt(0)
s_or_b32 s60, s60, 1
v_mov_b32 v{vEp}, s60
s_mov_b64 exec, 1
buffer_store_dword v{vEp}, v{vZero}, s[52:55], 0 offen sc1
s_mov_b64 exec, -1
L_noep:
""")
    P, Qs, CACC, W2, QQ = 32, 96, 160, 192, 224
    VU = [240, 241, 242, 243]; vH, vE, vS, vTR, vHP = 244, 245, 246, 247, 251
    vUS, vHL, vO = 25, 26, 20
    a(f"""
s_mul_i32 s68, s3, {HCH}
s_add_u32 s68, s68, {HB}
s_lshl_b32 s69, s{ssb}, 7
s_lshl_b32 s70, s3, 5
s_add_u32 s69, s69, s70
v_lshrrev_b32 v28, 4, v4
v_bfe_u32 v29, v4, 2, 2
v_and_b32 v30, 3, v4
v_and_b32 v31, 15, v4
s_lshl_b32 s60, s3, 12
s_add_u32 s60, s60, {HB}
v_add_u32 v{vTR}, s60, v5
s_and_b32 s60, s3, 1
s_lshl_b32 s60, s60, 6
v_xor_b32 v{vTR}, s60, v{vTR}
v_xor_b32 v{vTR+1}, 16, v{vTR}
v_xor_b32 v{vTR+2}, 32, v{vTR}
v_xor_b32 v{vTR+3}, 48, v{vTR}
v_lshlrev_b32 v3, 12, v28
v_lshl_add_u32 v{vUS}, v31, 4, v3
s_lshl_b32 s60, s{sdb}, 18
s_lshl_b32 s61, s3, 16
s_add_u32 s60, s60, s61
s_lshl_b32 s61, s{ssb}, 8
s_sub_u32 s60, s60, s61
s_add_u32 s60, s60, {WS_UT + 3840}
v_add_u32 v{vUS}, s60, v{vUS}
v_lshlrev_b32 v{vHL}, 5, v4
v_and_b32 v3, 1, v28
v_lshlrev_b32 v3, 2, v3
v_xor_b32 v3, v2, v3
v_lshrrev_b32 v27, 5, v4
v_lshlrev_b32 v27, 1, v27
v_xor_b32 v3, v27, v3
v_lshlrev_b32 v3, 4, v3
v_lshl_add_u32 v3, v1, 11, v3
s_lshl_b32 s60, s{sg_cb}, 7
v_add_u32 v{vO}, s60, v3
v_add_u32 v{vO+1}, {16384-1024}, v{vO}
v_add_u32 v{vO+2}, {2*(16384-1024)}, v{vO}
v_add_u32 v{vO+3}, {3*(16384-1024)}, v{vO}
s_mov_b32 s70, 0xffff0000
v_and_b32 v3, 1, v28
s_movk_i32 s60, {HP}
v_mul_u32_u24 v3, s60, v3
v_lshl_add_u32 v3, v31, 4, v3
v_add_u32 v{vHP}, s68, v3
s_mul_i32 s71, s3, {UCH}
s_add_u32 s71, s71, {U0}
v_add_u32 v19, s71, v5
s_movk_i32 s61, {CPY}
v_and_b32 v24, 1, v29
v_mul_u32_u24 v24, s61, v24
v_lshl_add_u32 v24, v30, 4, v24
v_add_u32 v24, s71, v24
v_add_u32 v3, 1, v31
v_and_b32 v16, 1, v3
v_add_u32 v17, v16, v31
v_mul_u32_u24 v3, s61, v16
v_lshl_add_u32 v3, v28, 5, v3
v_lshlrev_b32 v17, 1, v17
v_sub_u32 v3, v3, v17
s_add_u32 s60, s71, {4014 - 512 - 16}
v_add_u32 v{VU[0]}, s60, v3
v_subrev_u32 v{VU[1]}, 1024, v{VU[0]}
v_subrev_u32 v{VU[2]}, 2048, v{VU[0]}
v_subrev_u32 v{VU[3]}, 3072, v{VU[0]}
v_add_u32 v3, v31, v28
s_add_u32 s60, s68, 208
v_lshlrev_b32 v3, 4, v3
v_add_u32 v{vH}, s60, v3
v_lshlrev_b32 v3, 5, v31
v_lshl_add_u32 v16, v28, 3, v3
s_add_u32 s60, s71, {4088 - 3584}
v_sub_u32 v{vE}, s60, v16
v_and_b32 v16, 1, v28
v_lshl_add_u32 v3, v16, 9, v3
v_lshrrev_b32 v16, 5, v4
v_lshl_add_u32 v{vS}, v16, 4, v3
v_lshlrev_b32 v27, 4, v2
v_lshl_add_u32 v16, v1, 11, v27
v_lshl_add_u32 v17, v1, 12, v27
s_add_u32 s39, s{sch}, s3
s_and_b32 s60, s39, 0xfffffffe
s_lshl_b32 s60, s60, 1
s_load_dword s71, s[{sD}:{sD+1}], s60
s_lshl_b32 s61, s39, 12
""")
    for i in range(16): a(f"v_mov_b64 {vr(CACC+2*i,2)}, 0")
    srd_off(a, 52, sH, "s61", 4096); srd(a, 56, sWO, 2 * MB)
    a(f"s_waitcnt lgkmcnt(0)\ns_mov_b32 s20, s{sQ}\ns_mov_b32 s21, s{sQ+1}")
    def hload():
        a(f"s_add_u32 m0, s68, 256\ns_movk_i32 s60, 1024\ns_movk_i32 s61, 1040")
        a(f"buffer_load_dwordx4 v{vHL}, s[52:55], 0 offen {FL_H} lds\nbuffer_load_dwordx4 v{vHL}, s[52:55], s60 offen offset:1024 {FL_H} lds")
        a(f"s_add_u32 m0, s68, {HP+256}\ns_nop 0")
        a(f"buffer_load_dwordx4 v{vHL}, s[52:55], 16 offen {FL_H} lds\nbuffer_load_dwordx4 v{vHL}, s[52:55], s61 offen offset:1024 {FL_H} lds")
        vm.issue("h", 4)
    def epoch():
        a(f"""
s_waitcnt lgkmcnt(0)
s_mov_b32 s60, 0
L_eploop:
s_cmp_lg_u32 s{sEP}, 0
s_cbranch_scc1 L_epok
s_sleep 8
s_load_dword s{sEP}, s[{sDBG}:{sDBG+1}], 0 glc
s_add_u32 s60, s60, 1
s_cmp_gt_u32 s60, 0x4000
s_waitcnt lgkmcnt(0)
s_cbranch_scc0 L_eploop
L_epok:
s_mov_b32 s{sEP+1}, s{sEP}
v_mov_b32 v{vEp}, s{sEP}
ds_write_b32 v{vY}, v{vEp} offset:{Y_EP}
""")
    a.sst(5); vm.wait(0); a.sst(6)
    B(0); issue(1); issue(2)
    B(1); issue(3)
    a.stamp(9)
    B(2); issue(4)
    a(f"s_load_dword s{sEP}, s[{sDBG}:{sDBG+1}], 0")
    D, E, O = 32, 48, 52
    H0 = int(opt("h0", "14")); D0 = int(opt("d0", "14")); HN = int(opt("hn", "1")); DN_ = int(opt("dn", "1"))
    hl = [(f"s_add_u32 m0, s68, 256", f"buffer_load_dwordx4 v{vHL}, s[52:55], 0 offen {FL_H} lds"),
          (f"s_add_u32 m0, s68, 256\ns_movk_i32 s60, 1024", f"buffer_load_dwordx4 v{vHL}, s[52:55], s60 offen offset:1024 {FL_H} lds"),
          (f"s_add_u32 m0, s68, {HP+256}", f"buffer_load_dwordx4 v{vHL}, s[52:55], 16 offen {FL_H} lds"),
          (f"s_add_u32 m0, s68, {HP+256}\ns_movk_i32 s60, 1040", f"buffer_load_dwordx4 v{vHL}, s[52:55], s60 offen offset:1024 {FL_H} lds")]
    dl = [f"buffer_load_dwordx4 {vr(D+4*j,4)}, v5, s[48:51], s39 offen offset:{1024*j} sc1" for j in range(4)]
    a(f"s_lshl_b32 s33, s39, 7\ns_add_u32 s33, s33, {FL_U:#x}\ns_lshl_b32 s39, s39, 12")
    def uchk():
        a("s_waitcnt lgkmcnt(0)")
        for i in range(8): a(f"s_cmp_eq_u64 s[{4+2*i}:{5+2*i}], s[{sEP}:{sEP+1}]\ns_cbranch_scc0 L_us")
        a("s_branch L_upoll_done\nL_us:")
        spoll(a, "L_upoll", 33, 60)
    SP = opt("sp", "H"); SN = int(opt("sn", "4")); S0 = int(opt("s0", "5")); SH = int(opt("sh", "2"))
    pf = []
    if SP:
        a(f"""
s_lshl_b32 s60, s69, 11
s_lshl_b32 s61, s{sdb}, 7
s_add_u32 s60, s60, s61
s_add_u32 s0, s20, s60
s_addc_u32 s1, s21, 0
s_lshl2_add_u32 s60, s{sj}, s3
s_lshl_b32 s60, s60, 14
s_and_b32 s61, s{sx}, 4
s_lshl_b32 s61, s61, 8
s_add_u32 s60, s60, s61
s_add_u32 s6, s56, s60
s_addc_u32 s7, s57, 0
s_lshl2_add_u32 s60, s2, s3
s_lshl_b32 s60, s60, 11
s_add_u32 s8, s56, s60
s_addc_u32 s9, s57, 0
""")
        hs = [0] if SH == 1 else [0, 64]
        for c in SP:
            if c == "h": pf += [f"s_load_dword s5, s[52:53], {i*128+o:#x}" for i in range(32) for o in hs]
            if c == "q": pf += [f"s_load_dword s5, s[0:1], {i*2048+o:#x}" for i in range(32) for o in hs]
            if c == "W": pf += [f"s_load_dword s5, s[8:9], {i*64:#x}" for i in range(32)]
            if c == "H": pf += [f"s_load_dword s5, s[52:53], {i*128:#x}" for i in range(32)]
            if c == "w": pf += [f"s_load_dword s5, s[6:7], {r*2048+c2*128+o:#x}" for r in range(8) for c2 in range(8) for o in hs]
    for b in range(3, 14):
        B(b)
        if b == 3:
            epoch(); a(f"ds_write_b128 v{vHP}, {vr(CACC,4)}")
        issue(b + 2)
        PT = opt("pt", "0")
        if b == 3 and PT != "0":
            fl = "glc" if PT == "glc" else ""
            a(f"""
s_load_dword s5, s[{sWS}:{sWS+1}], s33 {fl}
s_lshl2_add_u32 s60, s{shq}, s3
s_lshl_b32 s61, s60, 11
s_lshl_b32 s62, s{srb}, 6
s_add_u32 s61, s61, s62
s_add_u32 s61, s61, {WS_ZP:#x}
s_load_dword s5, s[{sWS}:{sWS+1}], s61 {fl}
s_lshl_b32 s60, s60, 6
{FC(60, FL_P, srb)}
s_load_dword s5, s[{sWS}:{sWS+1}], s60 {fl}
s_lshl_b32 s60, s{sg_rb}, 8
s_lshl_b32 s61, s3, 6
s_add_u32 s60, s60, s61
{FC(60, FL_O, sg_cb)}
s_load_dword s5, s[{sWS}:{sWS+1}], s60 {fl}
s_lshl_b32 s60, s{sdb}, 6
s_lshl2_add_u32 s61, s{ssb}, s3
{FC(60, FL_Y, 61, 8192)}
s_load_dword s5, s[{sWS}:{sWS+1}], s60 {fl}
""")
        if S0 <= b <= 12:
            for _ in range(SN):
                if pf: a(pf.pop(0))
        if b == 13: a("s_waitcnt lgkmcnt(0)")
        if b == min(D0, 14) - 1: a(f"s_load_dwordx16 s[4:19], s[{sWS}:{sWS+1}], s33 glc")
        if b == D0: uchk()
        if b >= H0:
            for _ in range(HN):
                if hl:
                    x = hl.pop(0); a(x[0]); a("s_nop 0"); a(x[1]); vm.issue("h")
        if b >= D0:
            for _ in range(DN_):
                if dl: a(dl.pop(0)); vm.issue("d")
    srd(a, 40, 20, 4 * MB); srd(a, 44, sOUT, 8 * MB)
    sPo = {0: 3, 1: 75, 2: 65, 3: 31}
    a(f"s_and_b32 s28, s{sg_rb}, {3 if opt('wrot', '1') == '1' else 0}\ns_lshl_b32 s74, s28, 2\ns_lshl_b32 s28, s28, 3")
    a("s_add_u32 s65, s3, 5\ns_add_u32 s75, s3, 9\ns_cmp_eq_u32 s3, 3\ns_cselect_b32 s75, 4, s75\ns_add_u32 s31, s3, 12")
    def usrc(g): return [f"s_add_u32 s60, s{sPo[g]}, s74", "s_and_b32 s60, s60, 15", "s_lshl_b32 s60, s60, 17", "s_add_u32 s61, s60, 0x10000"]
    def w2(g):
        r = usrc(g)
        for hh in range(2):
            for i in range(4): r.append(f"buffer_load_dwordx4 {vr(W2+16*hh+4*i,4)}, v{vO+i}, s[56:59], s{60+hh} offen offset:{1024*i} {FL_WO}")
        vm.issue(f"w{g}", 8)
        return r
    def wb(g):
        a(f"s_lshl_b32 m0, s{sPo[g]}, 13")
        for x in usrc(g): a(x)
        for hh in range(2):
            for i in range(4): a(f"buffer_load_dwordx4 v{vO+i}, s[56:59], s{60+hh} offen offset:{1024*i} {FL_WO} lds")
            if hh == 0: a("s_add_u32 m0, m0, 4096\ns_nop 0")
        vm.issue(f"w{g}", 8)
    def wm_lines(bits):
        r = ["s_mov_b32 s61, 0"]
        for g in bits: r += [f"s_lshl_b32 s60, s{sPo[g]}, 1", "s_bitset1_b32 s61, s60"]
        return r + [f"v_mov_b32 v{vT}, s61", f"s_mov_b64 exec, 1\nds_or_b32 v{vY}, v{vT} offset:{Y_WM}\ns_mov_b64 exec, -1"]
    B(14)
    if D0 >= 14: uchk()
    for x in dl: a(x); vm.issue("d")
    for x in hl: a(x[0]); a("s_nop 0"); a(x[1]); vm.issue("h")
    W14 = len(dl) + len(hl) <= 4
    if W14: wb(2)
    B(15)
    a.stamp(1)
    a(f"ds_write_b128 v24, {vr(CACC,4)} offset:4096")
    def wait4(lab, off, slp=1, T=68):
        a(f"""
s_mov_b32 s60, 0
{lab}:
ds_read_b128 v[{T}:{T+3}], v{vY} offset:{off}
s_add_u32 s60, s60, 1
s_waitcnt lgkmcnt(0)
v_and_b32 v{T}, v{T}, v{T+1}
v_and_b32 v{T+2}, v{T+2}, v{T+3}
v_and_b32 v{T}, v{T}, v{T+2}
s_cmp_gt_u32 s60, 0x40000
s_cbranch_scc1 {lab}_d
v_readfirstlane_b32 s61, v{T}
s_nop 3
s_cmp_eq_u32 s61, 1
s_cbranch_scc1 {lab}_d
s_sleep {slp}
s_branch {lab}
{lab}_d:
""")
    if not W14: wb(2)
    UO = opt("uo", "0")
    if UO == "1":
        wait4("L_fr", Y_FR); wb(1); wb(0)
    if UO == "2":
        wait4("L_fr", Y_FR); wb(1)
    vm.wait("d")
    for j in range(3): a(f"v_mov_b32_dpp v{E+j}, v{D+4*j+4} wave_rol:1 row_mask:0xf bank_mask:0xf")
    a(f"v_mov_b32 v{E+3}, 0\ns_nop 0")
    for j in range(4): a(f"v_mov_b32_dpp v{E+j}, v{D+4*j} wave_shl:1 row_mask:0xf bank_mask:0xf")
    for j in range(4):
        d = [D + 4 * j + i for i in range(4)] + [E + j]
        o = O + 4 * j
        a(f"ds_write_b128 v19, {vr(D+4*j,4)} offset:{1024*j}")
        for i in range(4): a(f"v_alignbit_b32 v{o+i}, v{d[i+1]}, v{d[i]}, 16")
        a(f"ds_write_b128 v19, {vr(o,4)} offset:{CPY+1024*j}")
    if UO == "0": wait4("L_fr", Y_FR)
    a.stamp(2)
    if UO == "0": wb(1)
    if UO == "2" and opt("gate", "pq") != "none": wait4("L_kdz", Y_KD, T=Qs)
    if UO != "1": wb(0)
    a(f"""
s_lshl_b32 s30, s69, 11
s_lshl_b32 s61, s{sdb}, 7
s_add_u32 s30, s30, s61
s_lshl_b32 s63, s69, 12
s_add_u32 s63, s63, s61
s_add_u32 s63, s63, 2048
s_lshl_b32 s66, s{sg_rb}, 8
s_lshl_b32 s61, s3, 6
s_add_u32 s66, s66, s61
{FC(66, FL_O, sg_cb)}
s_bitcmp1_b32 s3, 0
s_cselect_b32 s60, 0, 16
s_cselect_b32 s33, 16, 0
s_lshl_b32 s71, s71, s60
s_and_b32 s71, s71, 0xffff0000
s_lshr_b32 s60, s3, 1
v_lshl_add_u32 v19, s60, 2, v{vY}
s_mov_b32 s32, s{sch}
{FA(32, FL_Y, 8192)}
s_lshl_b32 s67, s{sdb}, 6
s_lshl_b32 s60, s{ssb}, 2
s_add_u32 s60, s60, s3
{FC(67, FL_Y, 60, 8192)}
s_mov_b32 s64, 0
""")
    def creads(S, rho):
        r = []
        for i in range(8):
            o0 = 128 * (1 - i % 2) + 4 * (1 - rho)
            r.append(f"ds_read2_b32 {vr(S+4*i,2)}, v{VU[i//2]} offset0:{o0} offset1:{o0+1}")
            r.append(f"ds_read2_b32 {vr(S+4*i+2,2)}, v{VU[i//2]} offset0:{o0+2} offset1:{o0+3}")
            r.append(f"ds_read_b128 {vr(S+32+4*i,4)}, v{vH} offset:{256*i+(HP if rho == 0 else 0)}")
        return r
    def cmf(S):
        if opt("cch", "1") == "1": return [mfma16(CACC + 4 * t, S + 4 * x, S + 32 + 4 * (t - x)) for t in range(7, -1, -1) for x in range(t + 1)]
        return [mfma16(CACC + 4 * (x + y), S + 4 * x, S + 32 + 4 * y) for x in range(8) for y in range(8 - x)]
    vm.wait("h")
    for r in creads(P, 0): a(r)
    if opt("gate", "pq") != "none": wait4("L_kd", Y_KD, T=Qs)
    a.stamp(3)
    a(f"s_setprio {opt('vprio', '0')}")
    adv = [f"v_subrev_u32 v{x}, 128, v{x}" for x in VU] + [f"v_subrev_u32 v{vH}, 64, v{vH}"]
    pn = [0]
    def Pissue(): return f"s_load_dwordx16 s[4:19], s[{sWS}:{sWS+1}], s66 glc"
    def Pcheck(w):
        n = pn[0]; pn[0] += 1
        maskbuild(w, 62, 60)
        w(f"s_mov_b32 s64, s62\ns_lshl_b32 s60, s62, s33\ns_mov_b32 s61, s60\ns_lshr_b64 s[60:61], s[60:61], s28\nv_mov_b32 v{vT}, s60")
        g = f"s_mov_b64 exec, 1\nds_or_b32 v19, v{vT} offset:{Y_CO}\ns_mov_b64 exec, -1"
        if isinstance(w, L): w.l.append(g)
        else: w(g)
    W3H = int(opt("w3h", "1")); QH = int(opt("qh", "1"))
    ql = [x for i in range(4) for x in ([f"buffer_load_dwordx4 {vr(QQ+4*i,4)}, v16, s[40:43], s30 offen {FL_Q}"] + (["s_add_u32 s30, s30, 0x4000"] if i < 3 else []))]
    for h in range(8):
        S, N = (P, Qs) if h % 2 == 0 else (Qs, P)
        a("s_waitcnt lgkmcnt(0)")
        ex = []
        if h == 1:
            vm.wait("w0"); ex = wm_lines((0, 1, 2))
        if h == W3H: ex = ex + w2(3)
        if h == QH:
            ex = ex + ql; vm.issue("q", 4)
        inter3(a, cmf(S), ex, 1, (creads(N, 1 - h % 2) if h < 7 else []) + (adv if h % 2 == 0 else []), 1)
    a.stamp(4)
    UU, T = Qs + 40, Qs + 56
    for t in range(8): a(f"ds_read_b64 {vr(UU+2*t,2)}, v{vE} offset:{512*(7-t)}")
    ladd(a, vY, Y_CD, vOne)
    a(f"s_setprio {opt('yprio', '3')}\ns_waitcnt lgkmcnt(0)")
    YP = opt("yp", "0")
    if YP != "0": a(Pissue())
    for t in range(8):
        a(f"v_and_b32 v{T}, s70, v{UU+2*t+1}\nv_lshlrev_b32 v{T+1}, 16, v{UU+2*t+1}")
        a(f"v_and_b32 v{T+2}, s70, v{UU+2*t}\nv_lshlrev_b32 v{T+3}, 16, v{UU+2*t}")
        for i in range(4): a(f"v_fmac_f32 v{CACC+4*t+i}, s71, v{T+i}")
        a(f"v_cvt_pk_bf16_f32 v{UU+2*t}, v{CACC+4*t}, v{CACC+4*t+1}")
        a(f"v_cvt_pk_bf16_f32 v{UU+2*t+1}, v{CACC+4*t+2}, v{CACC+4*t+3}")
    a("s_nop 1")
    for t in range(0, 8, 2):
        a(f"v_permlane16_swap_b32 v{UU+2*t}, v{UU+2*t+2}\nv_permlane16_swap_b32 v{UU+2*t+1}, v{UU+2*t+3}")
    vm.wait("w3")
    for t in range(0, 8, 2): a(f"buffer_store_dwordx4 {vr(UU+2*t,4)}, v{vS}, s[48:51], s39 offen offset:{512*t} sc1")
    if YP != "0":
        a("s_waitcnt lgkmcnt(0)"); Pcheck(a)
    if YP == "2": a(Pissue())
    if W3H == 8:
        for x in w2(3): a(x)
    lspin(a, "L_cdspin", vY, Y_CD, "4", vT, 60, 61, slp=0)
    if YP == "2": Pcheck(a)
    def w2write():
        a(f"s_lshl_b32 s60, s3, 13\ns_add_u32 s60, s60, {U0}\nv_add_u32 v21, s60, v5")
        for i in range(8): a(f"ds_write_b128 v21, {vr(W2+4*i,4)} offset:{1024*i}")
        for x in wm_lines((3,)): a(x)
    if W3H != 8: w2write()
    if QH > 7:
        for x in ql: a(x)
    a.stamp(5)
    a(f"""
s_lshl_b32 s65, s{sdb}, 18
s_lshl_b32 s60, s69, 1
s_add_u32 s65, s65, s60
s_add_u32 s65, s65, {WS_YT:#x}
v_lshrrev_b32 v18, 2, v4
v_lshlrev_b32 v18, 12, v18
v_lshl_add_u32 v18, v30, 4, v18
v_lshl_add_u32 v20, v28, 3, v29
v_lshlrev_b32 v20, 6, v20
v_lshl_add_u32 v20, v30, 3, v20
v_add_u32 v20, s68, v20
s_movk_i32 s60, 144
v_mul_u32_u24 v24, s60, v31
v_lshl_add_u32 v24, v28, 4, v24
v_add_u32 v24, s68, v24
v_mul_u32_u24 v25, s60, v1
v_add3_u32 v25, v25, v27, s68
s_mov_b32 m0, s68
s_waitcnt vmcnt({(4 if QH > 7 else 0) + (8 if W3H == 8 else 0)})
s_mov_b64 exec, 1
ds_add_rtn_u32 v{vT}, v{vY}, v{vOne} offset:{Y_CY}
s_mov_b64 exec, -1
s_waitcnt lgkmcnt(0)
v_readfirstlane_b32 s60, v{vT}
s_nop 3
s_cmp_eq_u32 s60, 3
s_cbranch_scc0 L_yfl
""")
    flag_store(a, 48, 32, vEp, 255, "-1")
    a("L_yfl:")
    if W3H == 8:
        a(f"s_waitcnt vmcnt({4 if QH > 7 else 0})"); w2write()
    a.stamp(6)
    a("s_setprio 0\ns_waitcnt vmcnt(0)")
    unpack(a, QQ, 96, 16, 70)
    a("s_mov_b32 s29, 0\nL_yloop:\ns_cmp_eq_u32 s64, 0x5555\ns_cbranch_scc1 L_ynop")
    a(Pissue() + "\ns_waitcnt lgkmcnt(0)"); Pcheck(a)
    a(f"L_ynop:\ns_load_dwordx16 s[4:19], s[{sWS}:{sWS+1}], s67 glc\ns_add_u32 s29, s29, 1\ns_cmp_gt_u32 s29, 0x8000\ns_cbranch_scc1 L_ydone\ns_waitcnt lgkmcnt(0)")
    for i in range(8): a(f"s_cmp_eq_u64 s[{4+2*i}:{5+2*i}], s[{sEP}:{sEP+1}]\ns_cbranch_scc0 L_yloop")
    a("L_ydone:\ns_waitcnt lgkmcnt(0)")
    a.stamp(7)
    for i in range(4):
        a(f"buffer_load_dwordx4 v18, s[48:51], s65 offen offset:{1024*i} sc1 lds")
        if i < 3: a(f"s_add_u32 s65, s65, {0x10000-1024}")
    YY, T = 48, 64
    a("s_waitcnt vmcnt(0)")
    a.stamp(8)
    for sh in range(2):
        for oh in range(2):
            for i2 in range(2):
                a(f"ds_read_b64_tr_b16 {vr(YY+8*sh+4*oh+2*i2,2)}, v20 offset:{32*sh+2048*oh+256*i2}")
    a("s_waitcnt lgkmcnt(0)")
    for sh in range(2):
        for oh in range(2): a(f"ds_write_b128 v24, {vr(YY+8*sh+4*oh,4)} offset:{16*144*sh+64*oh}")
    for j in range(4): a(f"ds_read_b128 {vr(YY+32+4*j,4)}, v25 offset:{8*144*j}")
    for j in range(4):
        a(f"s_waitcnt lgkmcnt({3-j})")
        unpack(a, YY + 32 + 4 * j, T, 4, 70)
        for e in range(8): a(f"v_mul_f32 v{T+e}, v{T+e}, v{96+8*j+e}")
        pack(a, T, QQ + 4 * j, 8)
        a(f"buffer_store_dwordx4 {vr(QQ+4*j,4)}, v17, s[44:47], s63 offen {FL_OUT}")
        if j < 3: a("s_add_u32 s63, s63, 0x8000")
    a.trace_out()
    a.end()

def desc(name, vgpr, sgpr=102):
    return f""".amdhsa_kernel {name}
  .amdhsa_next_free_vgpr {vgpr}
  .amdhsa_next_free_sgpr {sgpr}
  .amdhsa_accum_offset {(vgpr + 3) // 4 * 4}
  .amdhsa_group_segment_fixed_size 0
  .amdhsa_kernarg_size 96
  .amdhsa_user_sgpr_count 2
  .amdhsa_user_sgpr_kernarg_segment_ptr 1
  .amdhsa_system_sgpr_workgroup_id_x 1
.end_amdhsa_kernel
"""
def main():
    out = open("cdna_kernels/" + NAME + ".s.ref").read().split("; Override launch")[0]
    KS = [KN]
    if AMP:
        out += f"; @launch kernel={KN} grid=(256,1,1) block=(512,1,1) lds={LDS}\n"
        out += "; @launch kernel=kd_kernel grid=(1,1,1) block=(64,1,1) lds=0\n"; KS.append("kd_kernel")
    else:
        out += f"; @launch grid=(256,1,1) block=(512,1,1) lds={LDS}\n"
    out += '.amdgcn_target "amdgcn-amd-amdhsa--gfx950"\n.text\n'
    for k in KS: out += f".globl {k}\n.type {k},@function\n"
    if opt("pal", ""): out += f".p2align {opt('pal', '')}\n"
    out += ".p2align 8\n"
    a = A()
    kernel(a)
    if AMP: kd.kernel_d(a, AMP, WS_ST + _o)
    out += a.text()
    out += '.section .rodata,"a"\n'
    for k in KS: out += ".p2align 6\n" + desc(k, 256)
    path = sys.argv[1] if len(sys.argv) > 1 and not sys.argv[1].startswith("--") else "cdna_kernels/" + NAME + ".s"
    open(path, "w").write(out)
main()
```
